```python
import torch

def _softmax(x, axis=-1):
    return torch.softmax(x, dim=axis)
def _gelu(x):
    return torch.nn.functional.gelu(x, approximate="tanh")
def _silu(x):
    return torch.nn.functional.silu(x)
def _sigmoid(x):
    return torch.sigmoid(x)
def _layernorm(x, axis=-1, eps=1e-5):
    m = x.mean(dim=axis, keepdim=True)
    v = x.var(dim=axis, keepdim=True, unbiased=False)
    return (x - m) / torch.sqrt(v + eps)
def _scatter_add(tgt, idx, src, axis=0):
    return tgt.clone().index_add_(axis, idx, src)
def _segment_sum(src, seg, n):
    out = torch.zeros((n,) + src.shape[1:], dtype=src.dtype)
    return out.index_add_(0, seg, src)
def _pad(x, pw):
    flat = tuple(v for pair in reversed(pw) for v in pair)
    return torch.nn.functional.pad(x, flat)

kernel_name = 'recurrent_scan__mha_block__geglu_ffn__prompt'

def setup_inputs():

    _w = (lambda a: (lambda t: t.to(torch.bfloat16) if t.is_floating_point() else t)(torch.as_tensor(a)))
    def _A_setup():
        B, S, D, H = 1, 2048, 448, 16
        return {
            "x": _w((lambda *s: torch.randn(*s, dtype=torch.bfloat16) * 0.05)(B, S, D)),
            "wqkv": _w((lambda *s: torch.randn(*s, dtype=torch.bfloat16) * 0.05)(D, 3 * D)),
            "wo": _w((lambda *s: torch.randn(*s, dtype=torch.bfloat16) * 0.05)(D, D)),
        }
    _A_in = _A_setup()

    def _B_setup():
        B, S, D, F = 1, 2048, 448, 1792
        return {
            "x": _w((lambda *s: torch.randn(*s, dtype=torch.bfloat16) * 0.05)(B, S, D)),
            "w_gate": _w((lambda *s: torch.randn(*s, dtype=torch.bfloat16) * 0.05)(D, F)),
            "w_up": _w((lambda *s: torch.randn(*s, dtype=torch.bfloat16) * 0.05)(D, F)),
            "w_down": _w((lambda *s: torch.randn(*s, dtype=torch.bfloat16) * 0.05)(F, D)),
        }
    _B_in = _B_setup()

    return {
        "A_x": _A_in["x"],
        "A_wqkv": _A_in["wqkv"],
        "A_wo": _A_in["wo"],
        "B_x": _B_in["x"],
        "B_w_gate": _B_in["w_gate"],
        "B_w_up": _B_in["w_up"],
        "B_w_down": _B_in["w_down"],
    }

def reference(A_x, A_wqkv, A_wo, B_x, B_w_gate, B_w_up, B_w_down):
    def _A_ref(x, wqkv, wo):
        B, S, D = x.shape
        H = 16
        Dh = D // H
        qkv = (lambda x, *d: x.permute(*d))((x @ wqkv).reshape(B, S, 3, H, Dh), 2, 0, 3, 1, 4)
        q, k, v = qkv[0], qkv[1], qkv[2]
        scores = torch.einsum("bhqd,bhkd->bhqk", q, k) * (Dh ** -0.5)
        p = _softmax(scores, axis=-1)
        o = torch.einsum("bhqk,bhkd->bhqd", p, v)
        return (lambda x, *d: x.permute(*d))(o, 0, 2, 1, 3).reshape(B, S, D) @ wo

    def _B_ref(x, w_gate, w_up, w_down):
        return (_gelu(x @ w_gate) * (x @ w_up)) @ w_down

    x = A_x
    xn = _layernorm(x, axis=-1)
    s = _A_ref(xn, A_wqkv, A_wo)
    g = _silu(_B_ref(xn, B_w_gate, B_w_up, B_w_down))
    return x + s * g
```

```python
import re

_REG = re.compile(r"\b([vas])(\d+)\b|\b([vas])\[(\d+):(\d+)\]|\b(vcc|exec|m0|scc)\b|\b(vcc_lo|vcc_hi|exec_lo|exec_hi)\b")

TRANS = ("v_exp_f32", "v_log_f32", "v_rcp_f32", "v_rsq_f32", "v_sqrt_f32", "v_sin_f32", "v_cos_f32", "v_rcp_iflag_f32")


def regs_of(op):
    out = []
    for m in _REG.finditer(op):
        if m.group(1):
            out.append(m.group(1) + m.group(2))
        elif m.group(3):
            out += [m.group(3) + str(i) for i in range(int(m.group(4)), int(m.group(5)) + 1)]
        elif m.group(6):
            n = m.group(6)
            out += [n + "_lo", n + "_hi"] if n in ("vcc", "exec") else [n]
        else:
            out.append(m.group(7))
    return out


def split_ops(s):
    ops, depth, cur = [], 0, ""
    for ch in s:
        if ch == "[" or ch == "(":
            depth += 1
        if ch == "]" or ch == ")":
            depth -= 1
        if ch == "," and depth == 0:
            ops.append(cur.strip())
            cur = ""
        else:
            cur += ch
    if cur.strip():
        ops.append(cur.strip())
    return ops


class Ins:
    def __init__(self, text):
        self.text = text
        t = text.split(";")[0].strip()
        parts = t.split(None, 1)
        self.mn = parts[0]
        mn = self.mn
        rest = parts[1] if len(parts) > 1 else ""
        ops = split_ops(rest)
        self.mods = ""
        if ops:
            lp = ops[-1].split(None, 1)
            if len(lp) > 1 and not mn.startswith("s_waitcnt"):
                ops[-1] = lp[0]
                self.mods = lp[1]
        self.ops = ops
        self.w, self.r = [], []
        self.kind = "other"
        self.nops = 0
        self.passes = 0
        self.A = self.B = self.C = []
        R = [regs_of(o) for o in ops]
        flat = lambda l: [x for y in l for x in y]
        if mn.startswith("v_mfma"):
            self.kind = "mfma"
            self.passes = 8 if "32x32x16" in mn else 4 if "16x16x32" in mn else 16
            self.w = R[0]
            self.A, self.B, self.C = R[1], R[2], R[3]
            self.r = R[1] + R[2] + R[3]
        elif mn.startswith("v_"):
            self.kind = "valu"
            if mn.startswith("v_cmp"):
                self.w, self.r = R[0], flat(R[1:])
                assert not mn.startswith("v_cmpx")
            elif mn.startswith("v_permlane") and "swap" in mn:
                self.w = R[0] + R[1]
                self.r = R[0] + R[1]
            elif mn.startswith(("v_add_co", "v_sub_co", "v_addc_co", "v_subb_co", "v_subrev_co")):
                self.w, self.r = R[0] + R[1], flat(R[2:])
            elif mn.startswith(("v_fmac", "v_dot2c", "v_pk_fmac")):
                self.w, self.r = R[0], flat(R)
            elif mn == "v_nop":
                pass
            else:
                self.w, self.r = R[0], flat(R[1:])
                if mn.startswith("v_cndmask") and len(ops) == 3:
                    self.r += ["vcc_lo", "vcc_hi"]
                if "sdwa" in mn and "PRESERVE" in self.mods:
                    self.r += R[0]
                if mn.startswith("v_writelane"):
                    self.r += R[0]
        elif mn.startswith("ds_"):
            self.kind = "ds"
            if mn.startswith(("ds_read", "ds_bpermute", "ds_permute", "ds_swizzle")) or "_rtn" in mn:
                self.w, self.r = R[0], flat(R[1:])
            else:
                self.r = flat(R)
        elif mn.startswith(("buffer_", "global_")):
            self.kind = "vmem"
            lds = " lds" in (" " + self.mods) or "_lds_" in mn
            self.lds = lds
            if mn.startswith(("buffer_inv", "buffer_wbl2")):
                pass
            elif "load" in mn and not lds:
                self.w, self.r = R[0], flat(R[1:])
            elif "load" in mn:
                self.r = flat(R) + ["m0"]
            elif "atomic" in mn:
                self.r = flat(R)
                if "sc0" in self.mods:
                    self.w = R[0]
            else:
                self.r = flat(R)
                di = 0 if mn.startswith("buffer_") else 1
                self.data = R[di]
        elif mn.startswith("s_"):
            self.kind = "salu"
            if mn.startswith(("s_cmp", "s_bitcmp")):
                self.r, self.w = flat(R), ["scc"]
            elif mn.startswith(("s_cbranch", "s_branch", "s_waitcnt", "s_barrier", "s_nop", "s_endpgm", "s_sleep", "s_setprio", "s_sendmsg")):
                pass
            elif mn.startswith(("s_load", "s_buffer_load", "s_memtime", "s_memrealtime")):
                self.kind = "smem"
                self.w, self.r = R[0], flat(R[1:])
            else:
                self.w, self.r = (R[0] if R else []), flat(R[1:])
                if "saveexec" in mn:
                    self.w = self.w + ["exec_lo", "exec_hi"]
        self.is_dpp = "_dpp" in mn or "row_" in self.mods or "quad_perm" in self.mods
        self.is_trans = any(mn.startswith(t) for t in TRANS)
        self.is_wide_store = self.kind == "vmem" and "store" in mn and ("x3" in mn or "x4" in mn)

    def states(self):
        if self.mn == "s_nop":
            return int(self.ops[0], 0) + 1
        return 1


CAP = 24


def need_nops(ins, st):
    need = 0

    def chk(key, req):
        nonlocal need
        if key in st:
            need = max(need, req - st[key])

    k = ins.kind
    isv = lambda r: r[0] in "va" and r[1:].isdigit()
    if k in ("valu", "mfma", "vmem", "ds"):
        if ins.mn.startswith("v_dot2c"):
            srcs = regs_of(ins.ops[1]) + regs_of(ins.ops[2])
            for r in srcs:
                chk(("dot_w", r), 3)
        else:
            for r in ins.r + ins.w:
                chk(("dot_w", r), 3)
    if k == "mfma":
        for r in ins.r:
            chk(("valu_w", r), 2)
        for r in ins.A + ins.B:
            chk(("mfma8_w", r), 12)
            chk(("mfma4_w", r), 8)
        for r in ins.C:
            tag = ("chain", ins.passes, tuple(ins.C))
            if tag not in st or True:
                for p, req in ((8, 10), (4, 6)):
                    key = (f"mfma{p}_w", r)
                    if key in st and st.get(("dreg", r)) != (p, tuple(ins.C)):
                        need = max(need, req - st[key])
                    elif key in st and p != ins.passes:
                        need = max(need, req - st[key])
        chk(("valu_w", "exec_lo"), 4)
    if k == "valu":
        for r in ins.r + ins.w:
            chk(("mfma8_w", r), 12)
            chk(("mfma4_w", r), 8)
        for r in ins.w:
            chk(("mfma8_c", r), 7)
            chk(("mfma4_c", r), 3)
            chk(("store_data", r), 2)
        if not ins.is_trans:
            for r in ins.r:
                chk(("trans_w", r), 1)
        for r in ins.r:
            chk(("sdwa_w", r), 1)
            if not isv(r):
                chk(("valu_w", r), 2)
        if ins.is_dpp or ins.mn.startswith("v_permlane"):
            for r in ins.r:
                chk(("valu_w", r), 2)
        if ins.mn.startswith(("v_readlane", "v_readfirstlane")):
            for r in ins.r:
                if isv(r):
                    chk(("valu_w", r), 1)
        if ins.mn.startswith(("v_readlane", "v_writelane")):
            for r in ins.r:
                if not isv(r):
                    chk(("valu_w", r), 4)
    if k in ("vmem", "ds"):
        for r in ins.r + ins.w:
            chk(("mfma8_w", r), 12)
            chk(("mfma4_w", r), 8)
        for r in ins.w:
            chk(("store_data", r), 1)
        if k == "vmem":
            for r in ins.r:
                if not isv(r):
                    chk(("valu_w", r), 5)
            if getattr(ins, "lds", False):
                chk(("salu_w", "m0"), 1)
    if k in ("salu", "smem"):
        for r in ins.r:
            chk(("valu_w", r), 1)
    return max(need, 0)


def advance(ins, st, extra):
    n = ins.states() + extra
    out = {}
    for key, v in st.items():
        if key[0] == "dreg":
            out[key] = v
        elif v + n < CAP:
            out[key] = v + n
    k = ins.kind
    for r in ins.w:
        for t in ("valu_w", "trans_w", "mfma8_w", "mfma4_w", "sdwa_w"):
            if not (k == "mfma" and t.startswith("mfma")):
                pass
        if k != "mfma":
            out.pop(("dreg", r), None)
    if k == "valu":
        for r in ins.w:
            out[("valu_w", r)] = 0
            if ins.is_trans:
                out[("trans_w", r)] = 0
            else:
                out.pop(("trans_w", r), None)
            if "sdwa" in ins.mn or "op_sel" in ins.mods:
                out[("sdwa_w", r)] = 0
            if ins.mn.startswith("v_dot"):
                out[("dot_w", r)] = 0
    elif k == "mfma":
        p = 8 if ins.passes == 8 else 4
        assert ins.passes in (4, 8)
        for r in ins.w:
            out[(f"mfma{p}_w", r)] = 0
            out[("dreg", r)] = (p, tuple(ins.w))
        for r in ins.C:
            out[(f"mfma{p}_c", r)] = 0
    elif k == "salu":
        for r in ins.w:
            if r == "m0":
                out[("salu_w", "m0")] = 0
            out.pop(("valu_w", r), None)
    elif k == "vmem" and ins.is_wide_store:
        for r in ins.data:
            out[("store_data", r)] = 0
    for key in [x for x in out if x[0] == "dreg"]:
        if ("mfma8_w", key[1]) not in out and ("mfma4_w", key[1]) not in out:
            del out[key]
    return out


def merge(a, b):
    if a is None:
        return dict(b), True
    ch = False
    for key, v in b.items():
        if key[0] == "dreg":
            if key in a and a[key] != v:
                if a[key] != "x":
                    a[key] = "x"
                    ch = True
            elif key not in a:
                a[key] = v
                ch = True
        elif key not in a or v < a[key]:
            a[key] = v
            ch = True
    return a, ch


class Prog:
    def __init__(self):
        self.items = []
        self.uid = 0

    def I(self, text):
        for line in text.strip().split("\n"):
            line = line.strip()
            if not line or line.startswith(";"):
                continue
            if line.endswith(":") or line.startswith("."):
                self.items.append(line)
            else:
                self.items.append(Ins(line))

    __call__ = I

    def label(self, name):
        self.items.append(name + ":")

    def newlabel(self, base):
        self.uid += 1
        return f"{base}_{self.uid}"

    def finalize(self):
        it = self.items
        lab = {x[:-1]: i for i, x in enumerate(it) if isinstance(x, str) and x.endswith(":")}
        n = len(it)
        entries = [i for i, x in enumerate(it) if isinstance(x, str) and x.endswith("_kernel:")]
        while True:
            st = [None] * (n + 1)
            work = []
            for e in entries:
                st[e] = {}
                work.append(e)
            while work:
                i = work.pop()
                if i >= n:
                    continue
                x = it[i]
                s = st[i]
                succ = []
                if isinstance(x, str):
                    o = s
                    succ = [i + 1]
                else:
                    o = advance(x, s, x.nops) if True else None
                    if x.mn == "s_endpgm":
                        succ = []
                    elif x.mn == "s_branch":
                        succ = [lab[x.ops[0]]]
                    elif x.mn.startswith("s_cbranch"):
                        succ = [i + 1, lab[x.ops[0]]]
                    else:
                        succ = [i + 1]
                for j in succ:
                    st[j], ch = merge(st[j], o)
                    if ch:
                        work.append(j)
            changed = False
            for i, x in enumerate(it):
                if isinstance(x, Ins) and st[i] is not None:
                    nd = need_nops(x, st[i])
                    if nd > x.nops:
                        x.nops = nd
                        changed = True
            if not changed:
                break
        out = []
        tot = 0
        for x in it:
            if isinstance(x, str):
                out.append(x if x.endswith(":") or x.startswith(".") else x)
            else:
                k = x.nops
                tot += k
                while k > 0:
                    c = min(k, 16)
                    out.append(f"  s_nop {c-1}")
                    k -= c
                out.append("  " + x.text)
        self.total_nops = tot
        return "\n".join(out)
```

```python
import math, struct, sys
from asmlib import Prog

NAME = "recurrent_scan__mha_block__geglu_ffn__prompt"
MB = 1 << 20
QF_OFF, KV_OFF, H_OFF, O_OFF, G_OFF = 0, 2 * MB, 6 * MB, 13 * MB, 15 * MB
WS_USED = 17 * MB
LOG2E = math.log2(math.e)
QSCALE = LOG2E / math.sqrt(28.0)


def f32(x):
    return "0x%08x" % struct.unpack("<I", struct.pack("<f", x))[0]


def vr(b, n=1):
    return f"v{b}" if n == 1 else f"v[{b}:{b+n-1}]"


def sr(b, n=1):
    return f"s{b}" if n == 1 else f"s[{b}:{b+n-1}]"


MFMA = "v_mfma_f32_32x32x16_bf16"
P_X, P_WQKV, P_WO, P_WG, P_WU, P_WD, P_OUT, P_DBG, P_WS = 16, 18, 20, 24, 26, 28, 30, 32, 34


def header(p, name, nwg):
    p(f".globl {name}\n.p2align 8\n.type {name},@function")
    p.label(name)
    p(f"""
    s_cmp_ge_u32 s2, {nwg}
    s_cbranch_scc1 {name}_exit
    s_load_dwordx16 s[16:31], s[0:1], 0
    s_load_dwordx4 s[32:35], s[0:1], 64
    """)


def srd(p, d, base, nrec, add=None):
    if add is None:
        p(f"s_mov_b32 s{d}, s{base}\ns_mov_b32 s{d+1}, s{base+1}")
    else:
        p(f"s_add_u32 s{d}, s{base}, {add}\ns_addc_u32 s{d+1}, s{base+1}, 0")
    p(f"s_mov_b32 s{d+2}, {nrec}\ns_mov_b32 s{d+3}, 0x20000")


def pack16(p, dst, src):
    for i in range(8):
        p(f"v_cvt_pk_bf16_f32 v{dst+i}, v{src+2*i}, v{src+2*i+1}")


ST = " sc1"


NSA, NSD = 5, 4
A_RING, D_RING = 0, NSA * 16384
K2_LDS = (NSA + NSD) * 16384


def gen_k2(p):
    name = "k2_kernel"
    header(p, name, 256)
    p("""
    v_lshrrev_b32 v2, 6, v0
    v_and_b32 v1, 63, v0
    v_readfirstlane_b32 s4, v2
    v_lshlrev_b32 v2, 4, v1             ; lane*16
    s_and_b32 s5, s2, 7                 ; xcd
    s_lshr_b32 s6, s2, 3                ; j
    s_cmp_ge_u32 s4, 8
    s_cbranch_scc1 k2_down
    """)
    Q, KF, VF, S0, S1, PP, O = 8, 16, 24, 32, 48, 64, 72
    VCUR, VNXT, VL = 3, 4, 5
    p(f"""
    s_lshr_b32 s7, s6, 4
    s_lshl_b32 s8, s5, 1
    s_add_u32 s7, s7, s8                ; head
    s_and_b32 s8, s6, 15                ; q block
    s_and_b32 s9, s4, 3                 ; qt
    s_lshr_b32 s10, s4, 2               ; kh
    s_lshl_b32 s11, s8, 2
    s_add_u32 s11, s11, s9              ; q tile (0..63)
    s_lshl_b32 s12, s7, 18              ; head*256K
    s_add_u32 s12, s12, {KV_OFF}
    s_lshl_b32 s13, s4, 11              ; w*2048
    v_add_u32 v6, s13, v2
    s_waitcnt lgkmcnt(0)
    """)
    srd(p, 36, P_WS, 262144, "s12")
    srd(p, 40, P_WS, WS_USED)
    p("s_mov_b32 s14, 0")
    p(f"s_add_u32 s15, s13, {A_RING}")

    def fill():
        p(f"""
        s_mov_b32 m0, s15
        s_add_u32 s15, s15, 16384
        buffer_load_dwordx4 v6, s[36:39], s14 offen lds
        buffer_load_dwordx4 v6, s[36:39], s14 offen offset:1024 lds
        s_add_u32 s14, s14, 16384
        s_cmp_ge_u32 s15, {A_RING + NSA*16384}
        s_cselect_b32 s44, {NSA*16384}, 0
        s_sub_u32 s15, s15, s44
        """)
    p(f"""
    s_lshl_b32 s45, s7, 17
    s_lshl_b32 s46, s11, 11
    s_add_u32 s45, s45, s46
    s_add_u32 s45, s45, {QF_OFF}
    buffer_load_dwordx4 {vr(Q,4)}, v2, s[40:43], s45 offen
    buffer_load_dwordx4 {vr(Q+4,4)}, v2, s[40:43], s45 offen offset:1024
    """)
    for i in range(NSA - 1):
        fill()
    p(f"""
    s_lshl_b32 s46, s10, 13             ; kh*8192
    v_add_u32 v{VL}, s46, v2
    v_add_u32 v{VCUR}, {A_RING}, v{VL}
    v_add_u32 v{VNXT}, {A_RING + 16384}, v{VL}
    s_mov_b32 s47, {A_RING + 2*16384}
    """)
    for r in list(range(PP, PP + 8)) + list(range(O, O + 16)) + list(range(VF, VF + 8)):
        p(f"v_mov_b32 v{r}, 0")
    p(f"s_waitcnt vmcnt({2*(NSA-3)})\ns_barrier")
    p(f"""
    ds_read_b128 {vr(KF,4)}, v{VCUR}
    ds_read_b128 {vr(KF+4,4)}, v{VCUR} offset:1024
    s_waitcnt lgkmcnt(0)
    {MFMA} {vr(S0,16)}, {vr(KF,4)}, {vr(Q,4)}, 0
    {MFMA} {vr(S0,16)}, {vr(KF+4,4)}, {vr(Q+4,4)}, {vr(S0,16)}
    ds_read_b128 {vr(KF,4)}, v{VCUR} offset:4096
    ds_read_b128 {vr(KF+4,4)}, v{VCUR} offset:5120
    ds_read_b128 {vr(VF+4,4)}, v{VCUR} offset:3072
    ds_read_b128 {vr(VF,4)}, v{VCUR} offset:2048
    s_mov_b32 s48, 16
    s_mov_b32 s49, 0
    """)
    p(".p2align 6")
    p.label("k2_aloop")
    fill()

    def phase(mf, rd, sb, e0, pc):
        p("s_waitcnt lgkmcnt(3)")
        p(mf)
        p(rd)
        for i in range(4):
            p(f"v_exp_f32 v{sb+e0+i}, v{sb+e0+i}")
        p(f"v_cvt_pk_bf16_f32 v{PP+pc}, v{sb+e0}, v{sb+e0+1}")
        p(f"v_cvt_pk_bf16_f32 v{PP+pc+1}, v{sb+e0+2}, v{sb+e0+3}")

    for u in range(2):
        sc, sn = (S0, S1) if u == 0 else (S1, S0)
        phase(f"{MFMA} {vr(sn,16)}, {vr(KF,4)}, {vr(Q,4)}, 0",
              f"ds_read_b128 {vr(KF,4)}, v{VNXT} offset:{u*4096}", sc, 0, 0)
        phase(f"{MFMA} {vr(sn,16)}, {vr(KF+4,4)}, {vr(Q+4,4)}, {vr(sn,16)}",
              f"ds_read_b128 {vr(KF+4,4)}, v{VNXT} offset:{u*4096+1024}", sc, 4, 2)
        phase(f"{MFMA} {vr(O,16)}, {vr(VF+4,4)}, {vr(PP+4,4)}, {vr(O,16)}",
              f"ds_read_b128 {vr(VF+4,4)}, v{VCUR} offset:{u*4096+3072}", sc, 8, 4)
        nv = f"v{VCUR} offset:{4096+2048}" if u == 0 else f"v{VNXT} offset:2048"
        phase(f"{MFMA} {vr(O,16)}, {vr(VF,4)}, {vr(PP,4)}, {vr(O,16)}",
              f"ds_read_b128 {vr(VF,4)}, {nv}", sc, 12, 6)
    p(f"""
    v_mov_b32 v{VCUR}, v{VNXT}
    v_add_u32 v{VNXT}, s47, v{VL}
    s_add_u32 s47, s47, 16384
    s_cmp_ge_u32 s47, {A_RING + NSA*16384}
    s_cselect_b32 s44, {NSA*16384}, 0
    s_sub_u32 s47, s47, s44
    s_sub_u32 s48, s48, 1
    s_cmp_lg_u32 s48, 0
    s_waitcnt vmcnt({2*(NSA-3)}) lgkmcnt(1)
    s_barrier
    s_cbranch_scc1 k2_aloop
    """)
    p(f"""
    s_waitcnt lgkmcnt(0)
    {MFMA} {vr(O,16)}, {vr(VF+4,4)}, {vr(PP+4,4)}, {vr(O,16)}
    s_waitcnt vmcnt(0)
    s_lshl_b32 s46, s9, 12              ; qt*4096
    v_add_u32 v7, s46, v2
    s_barrier
    s_cmp_eq_u32 s10, 0
    s_cbranch_scc1 k2_acomb
    """)
    for i in range(4):
        p(f"ds_write_b128 v7, {vr(O+4*i,4)} offset:{1024*i}")
    p("s_waitcnt lgkmcnt(0)\ns_barrier\ns_endpgm")
    p.label("k2_acomb")
    p("s_barrier")
    for i in range(4):
        p(f"ds_read_b128 {vr(S0+4*i,4)}, v7 offset:{1024*i}")
    p("s_waitcnt lgkmcnt(0)")
    for i in range(16):
        p(f"v_add_f32 v{O+i}, v{O+i}, v{S0+i}")
    p.label("k2_afin")
    T = S1
    p(f"""
    v_mov_b32 v{T}, v{O+12}
    v_mov_b32 v{T+1}, v{O+12}
    v_permlane32_swap_b32 v{T}, v{T+1}
    s_mov_b32 s50, {f32(2.0**-60)}
    s_mov_b32 s51, {f32(2.0**100)}
    v_cmp_ge_f32 s[52:53], v{T+1}, s50
    v_cmp_le_f32 s[54:55], v{T+1}, s51
    v_rcp_f32 v{T+2}, v{T+1}
    s_and_b64 s[52:53], s[52:53], s[54:55]
    s_mov_b32 exec_lo, 0
    v_mov_b32 v{O+12}, 0
    v_mov_b32 v{O+13}, 0
    v_mov_b32 v{O+14}, 0
    v_mov_b32 v{O+15}, 0
    s_mov_b64 exec, -1
    """)
    p(f"v_max3_f32 v{T+3}, abs(v{O}), abs(v{O+1}), abs(v{O+2})")
    for i in range(3, 15, 2):
        p(f"v_max3_f32 v{T+3}, abs(v{O+i}), abs(v{O+i+1}), v{T+3}")
    p(f"v_max_f32 v{T+3}, abs(v{O+15}), v{T+3}")
    p(f"v_add_f32 v{T+4}, v{O}, v{O+1}")
    for i in range(2, 16):
        p(f"v_add_f32 v{T+4}, v{T+4}, v{O+i}")
    p(f"""
    s_mov_b32 s50, {f32(2.0**120)}
    v_cmp_lt_f32 s[54:55], v{T+3}, s50
    v_cmp_o_f32 s[56:57], v{T+4}, v{T+4}
    s_and_b64 s[52:53], s[52:53], s[54:55]
    s_and_b64 s[52:53], s[52:53], s[56:57]
    s_cmp_eq_u64 s[52:53], -1
    s_cbranch_scc1 k2_aok
    s_cmp_eq_u32 s49, 0x5afe
    s_cbranch_scc0 k2_fallback
    """)
    p.label("k2_aok")
    for i in range(16):
        p(f"v_mul_f32 v{O+i}, v{O+i}, v{T+2}")
    pack16(p, PP, O)
    p(f"""
    s_lshl_b32 s45, s11, 15             ; rowtile*32K
    s_lshl_b32 s46, s7, 11              ; head*2K
    s_add_u32 s45, s45, s46
    s_add_u32 s45, s45, {O_OFF}
    buffer_store_dwordx4 {vr(PP,4)}, v2, s[40:43], s45 offen{ST}
    buffer_store_dwordx4 {vr(PP+4,4)}, v2, s[40:43], s45 offen offset:1024{ST}
    s_endpgm
    """)
    p.label("k2_fallback")
    M, MN, AL, TM, T2 = 88, 89, 90, 91, 92
    p("s_mov_b32 s49, 0x5afe")
    for i in range(16):
        p(f"v_mov_b32 v{O+i}, 0")
    p(f"v_mov_b32 v{M}, 0xff800000\ns_mov_b32 s14, 0")
    p.label("k2_fbloop")
    p(f"""
    buffer_load_dwordx4 {vr(KF,4)}, v2, s[36:39], s14 offen
    buffer_load_dwordx4 {vr(KF+4,4)}, v2, s[36:39], s14 offen offset:1024
    buffer_load_dwordx4 {vr(VF,4)}, v2, s[36:39], s14 offen offset:2048
    buffer_load_dwordx4 {vr(VF+4,4)}, v2, s[36:39], s14 offen offset:3072
    s_waitcnt vmcnt(2)
    {MFMA} {vr(S0,16)}, {vr(KF,4)}, {vr(Q,4)}, 0
    {MFMA} {vr(S0,16)}, {vr(KF+4,4)}, {vr(Q+4,4)}, {vr(S0,16)}
    v_max3_f32 v{TM}, v{S0}, v{S0+1}, v{S0+2}
    """)
    for i in range(3, 15, 2):
        p(f"v_max3_f32 v{TM}, v{S0+i}, v{S0+i+1}, v{TM}")
    p(f"""
    v_max_f32 v{TM}, v{S0+15}, v{TM}
    v_mov_b32 v{T2}, v{TM}
    v_permlane32_swap_b32 v{TM}, v{T2}
    v_max3_f32 v{MN}, v{TM}, v{T2}, v{M}
    v_sub_f32 v{AL}, v{M}, v{MN}
    v_exp_f32 v{AL}, v{AL}
    v_mov_b32 v{M}, v{MN}
    """)
    for i in range(16):
        p(f"v_sub_f32 v{S0+i}, v{S0+i}, v{MN}")
    for i in range(16):
        p(f"v_exp_f32 v{S0+i}, v{S0+i}")
    for i in range(16):
        p(f"v_mul_f32 v{O+i}, v{O+i}, v{AL}")
    pack16(p, PP, S0)
    p(f"""
    s_waitcnt vmcnt(0)
    {MFMA} {vr(O,16)}, {vr(VF,4)}, {vr(PP,4)}, {vr(O,16)}
    {MFMA} {vr(O,16)}, {vr(VF+4,4)}, {vr(PP+4,4)}, {vr(O,16)}
    s_add_u32 s14, s14, 4096
    s_cmp_lt_u32 s14, 262144
    s_cbranch_scc1 k2_fbloop
    s_branch k2_afin
    """)

    p.label("k2_down")
    ACC, WF, HB = 8, 24, 56
    VD, VT = 3, 4
    p(f"""
    s_cmp_ge_u32 s6, 28
    s_cbranch_scc1 k2_kernel_exit
    s_sub_u32 s4, s4, 8                 ; dw
    s_and_b32 s7, s4, 1                 ; rt
    s_lshr_b32 s8, s4, 1                ; ct
    s_and_b32 s9, s6, 3
    s_lshl_b32 s10, s5, 2
    s_add_u32 s9, s9, s10
    s_lshr_b32 s10, s6, 2
    s_lshl_b32 s11, s9, 1
    s_add_u32 s11, s11, s7
    s_mul_i32 s12, s11, 114688
    s_add_u32 s12, s12, {H_OFF}
    v_lshrrev_b32 v5, 2, v1
    v_and_b32 v5, 7, v5
    v_mul_u32_u24 v5, 896, v5
    v_lshrrev_b32 v6, 5, v1
    v_lshl_add_u32 v5, v6, 6, v5
    v_and_b32 v6, 3, v1
    v_lshl_add_u32 v5, v6, 4, v5
    s_lshl_b32 s13, s10, 7
    s_mul_i32 s14, s4, {32*896}
    s_add_u32 s13, s13, s14
    v_add_u32 v{VD}, s13, v5
    v_lshrrev_b32 v5, 5, v1             ; h
    v_lshlrev_b32 v5, 8, v5
    v_bfe_u32 v6, v1, 2, 2              ; r'
    v_lshl_add_u32 v5, v6, 6, v5
    v_bfe_u32 v6, v1, 4, 1
    v_lshl_add_u32 v5, v6, 5, v5
    v_and_b32 v6, 3, v1
    v_lshl_add_u32 v5, v6, 3, v5
    s_lshl_b32 s13, s8, 9
    v_add_u32 v7, s13, v5
    s_waitcnt lgkmcnt(0)
    """)
    srd(p, 36, P_WD, 1792 * 896)
    srd(p, 40, P_WS, 114688, "s12")
    srd(p, 44, P_WS, WS_USED)
    p(f"""
    s_mov_b32 s14, 0
    s_lshl_b32 s13, s4, 12              ; dw*4096
    s_add_u32 s15, s13, {D_RING}
    s_mov_b32 s49, 0                    ; H soffset
    s_mov_b32 s51, {D_RING}
    """)

    def dfill():
        for o in range(4):
            p(f"s_add_u32 m0, s15, {o*1024}")
            if o:
                p(f"s_add_u32 s48, s14, {o*7168}")
            p(f"buffer_load_dwordx4 v{VD}, s[36:39], {'s48' if o else 's14'} offen lds")
        p(f"""
        s_add_u32 s14, s14, {128*896}
        s_add_u32 s15, s15, 16384
        s_cmp_ge_u32 s15, {D_RING + NSD*16384}
        s_cselect_b32 s48, {NSD*16384}, 0
        s_sub_u32 s15, s15, s48
        """)

    def hload(b):
        for ks in range(8):
            p(f"buffer_load_dwordx4 {vr(HB+32*b+4*ks,4)}, v2, s[40:43], s49 offen offset:{(ks&3)*1024}")
            if ks == 3:
                p("s_add_u32 s49, s49, 4096")
        p("s_add_u32 s49, s49, 4096")
    for i in range(16):
        p(f"v_mov_b32 v{ACC+i}, 0")
    hload(0); dfill(); hload(1); dfill(); dfill()
    p("s_barrier\ns_barrier")
    for i in range(14):
        b = i % 3
        if i == 0:
            p("s_waitcnt vmcnt(16)")
        elif i == 1:
            p("s_waitcnt vmcnt(16)")
        else:
            p("s_waitcnt vmcnt(24)")
        p("s_barrier")
        p(f"v_add_u32 v{VT}, s51, v7")
        for ks in range(8):
            p(f"ds_read_b64_tr_b16 {vr(WF+4*ks,2)}, v{VT} offset:{ks*2048}")
            p(f"ds_read_b64_tr_b16 {vr(WF+4*ks+2,2)}, v{VT} offset:{ks*2048+1024}")
        hload((i + 2) % 3)
        dfill()
        p(f"""
        s_add_u32 s51, s51, 16384
        s_cmp_ge_u32 s51, {D_RING + NSD*16384}
        s_cselect_b32 s48, {NSD*16384}, 0
        s_sub_u32 s51, s51, s48
        """)
        if i >= 2:
            p("s_waitcnt vmcnt(28)")
        for ks in range(8):
            p(f"s_waitcnt lgkmcnt({14-2*ks})")
            p(f"{MFMA} {vr(ACC,16)}, {vr(WF+4*ks,4)}, {vr(HB+32*b+4*ks,4)}, {vr(ACC,16)}")
    p("s_barrier")
    T = WF
    p(f"s_mov_b32 s50, {f32(-LOG2E)}")
    for i in range(16):
        p(f"v_mul_f32 v{T+i}, s50, v{ACC+i}")
    for i in range(16):
        p(f"v_exp_f32 v{T+i}, v{T+i}")
    for i in range(16):
        p(f"v_add_f32 v{T+i}, 1.0, v{T+i}")
    for i in range(16):
        p(f"v_rcp_f32 v{T+i}, v{T+i}")
    for i in range(16):
        p(f"v_mul_f32 v{ACC+i}, v{ACC+i}, v{T+i}")
    pack16(p, T + 16, ACC)
    p(f"""
    s_mul_i32 s52, s11, {14*2048}
    s_lshl_b32 s53, s10, 1
    s_add_u32 s53, s53, s8
    s_lshl_b32 s53, s53, 11
    s_add_u32 s52, s52, s53
    s_add_u32 s48, s52, {G_OFF}
    buffer_store_dwordx4 {vr(T+16,4)}, v2, s[44:47], s48 offen{ST}
    buffer_store_dwordx4 {vr(T+20,4)}, v2, s[44:47], s48 offen offset:1024{ST}
    """)
    p.label(name + "_exit")
    p("s_endpgm")
    return (name, 256, 768, K2_LDS, 160)


K3_CT = 29 * 1024
K3_LDS = 2 * K3_CT


def gen_k3(p):
    name = "k3_kernel"
    header(p, name, 256)
    ACC, OF, WF, GF, XF = 8, 24, 152, 168, 176
    p(f"""
    v_lshrrev_b32 v2, 6, v0
    v_and_b32 v1, 63, v0
    v_readfirstlane_b32 s4, v2
    v_lshlrev_b32 v2, 4, v1             ; lane*16
    s_and_b32 s5, s2, 7                 ; xcd
    s_lshr_b32 s6, s2, 3                ; j
    s_cmp_ge_u32 s6, 28
    s_cbranch_scc1 {name}_exit
    s_and_b32 s7, s4, 1                 ; rt
    s_lshr_b32 s8, s4, 1                ; ct
    s_and_b32 s9, s6, 3
    s_lshl_b32 s10, s5, 2
    s_add_u32 s9, s9, s10
    s_lshr_b32 s10, s6, 2
    s_lshl_b32 s11, s9, 1
    s_add_u32 s11, s11, s7
    s_lshl_b32 s12, s10, 1
    s_add_u32 s12, s12, s8
    v_lshrrev_b32 v5, 2, v1
    v_mul_u32_u24 v5, 896, v5
    v_and_b32 v6, 3, v1
    v_lshl_add_u32 v5, v6, 4, v5
    s_lshl_b32 s13, s10, 7
    s_lshl_b32 s14, s7, 6
    s_add_u32 s13, s13, s14
    v_add_u32 v3, s13, v5
    v_lshrrev_b32 v5, 5, v1
    v_lshlrev_b32 v5, 8, v5
    v_bfe_u32 v6, v1, 2, 2
    v_lshl_add_u32 v5, v6, 6, v5
    v_bfe_u32 v6, v1, 4, 1
    v_lshl_add_u32 v5, v6, 5, v5
    v_and_b32 v6, 3, v1
    v_lshl_add_u32 v5, v6, 3, v5
    s_mul_i32 s13, s8, {K3_CT}
    v_add_u32 v4, s13, v5
    v_and_b32 v5, 31, v1
    s_lshl_b32 s13, s11, 5
    v_add_u32 v5, s13, v5
    v_mul_u32_u24 v5, 896, v5
    v_lshrrev_b32 v6, 5, v1
    v_lshl_add_u32 v5, v6, 3, v5
    s_lshl_b32 s13, s12, 6
    v_add_u32 v7, s13, v5
    s_waitcnt lgkmcnt(0)
    """)
    srd(p, 36, P_WO, 448 * 896)
    srd(p, 40, P_WS, WS_USED)
    srd(p, 44, P_X, 2048 * 896)
    srd(p, 48, P_OUT, 2048 * 896)
    p(f"""
    s_mul_i32 s15, s7, {K3_CT}
    s_lshl_b32 s13, s8, 10
    s_add_u32 s15, s15, s13
    s_mul_i32 s14, s8, {16*896}
    """)
    for i in range(15):
        if i == 14:
            p("s_cmp_eq_u32 s8, 1\ns_cbranch_scc1 k3_skip")
        p(f"s_add_u32 m0, s15, {i*2048}")
        p(f"s_add_u32 s13, s14, {i*32*896}")
        p("buffer_load_dwordx4 v3, s[36:39], s13 offen lds")
    p.label("k3_skip")
    p(f"""
    s_lshl_b32 s13, s11, 15
    s_add_u32 s13, s13, {O_OFF}
    """)
    for kk in range(32):
        p(f"buffer_load_dwordx4 {vr(OF+4*kk,4)}, v2, s[40:43], s13 offen offset:{(kk&3)*1024}")
        if kk & 3 == 3:
            p("s_add_u32 s13, s13, 4096")
    p(f"""
    s_mul_i32 s13, s11, {14*2048}
    s_lshl_b32 s14, s12, 11
    s_add_u32 s13, s13, s14
    s_add_u32 s13, s13, {G_OFF}
    buffer_load_dwordx4 {vr(GF,4)}, v2, s[40:43], s13 offen
    buffer_load_dwordx4 {vr(GF+4,4)}, v2, s[40:43], s13 offen offset:1024
    """)
    for g4 in range(4):
        p(f"buffer_load_dwordx2 {vr(XF+2*g4,2)}, v7, s[44:47], 0 offen offset:{16*g4}")
    p("s_waitcnt vmcnt(38)\ns_barrier")
    NB = 4

    def rd(kk):
        hd, s = kk >> 1, kk & 1
        base = (28 * hd + 16 * s) * 64
        b = WF + 4 * (kk % NB)
        p(f"ds_read_b64_tr_b16 {vr(b,2)}, v4 offset:{base}")
        p(f"ds_read_b64_tr_b16 {vr(b+2,2)}, v4 offset:{base+512}")
    for kk in range(NB):
        rd(kk)
    for kk in range(32):
        left = min(NB - 1, 31 - kk)
        p(f"s_waitcnt vmcnt({6+31-kk}) lgkmcnt({2*left})")
        p(f"{MFMA} {vr(ACC,16)}, {vr(WF+4*(kk%NB),4)}, {vr(OF+4*kk,4)}, {'0' if kk == 0 else vr(ACC,16)}")
        if kk + NB < 32:
            rd(kk + NB)
    p("s_waitcnt vmcnt(0)")
    T = OF
    for i in range(8):
        p(f"v_lshlrev_b32 v{T+2*i}, 16, v{GF+i}")
        p(f"v_and_b32 v{T+2*i+1}, 0xffff0000, v{GF+i}")
        p(f"v_lshlrev_b32 v{T+16+2*i}, 16, v{XF+i}")
        p(f"v_and_b32 v{T+16+2*i+1}, 0xffff0000, v{XF+i}")
    for i in range(16):
        p(f"v_fma_f32 v{ACC+i}, v{ACC+i}, v{T+i}, v{T+16+i}")
    pack16(p, GF, ACC)
    for g4 in range(4):
        p(f"buffer_store_dwordx2 {vr(GF+2*g4,2)}, v7, s[48:51], 0 offen offset:{16*g4}")
    p.label(name + "_exit")
    p("s_endpgm")
    return (name, 256, 256, K3_LDS, 184)


K1_LDS = 163840
SLOT = 16384


def gen_k1(p):
    name = "k1_kernel"
    header(p, name, 256)
    X, A0, A1, WF, T = 16, 128, 144, 160, 176
    VLANE16, VFILL, VFFN, VQKV, VTRL, VCUR, VNXT, VXA, VXB, VPAD = 2, 3, 4, 5, 6, 7, 8, 9, 10, 11
    S_W, S_RG, S_HF, S_RB, S_CG = 59, 60, 61, 62, 63
    p(f"""
    v_lshrrev_b32 v2, 6, v0
    v_and_b32 v1, 63, v0
    v_readfirstlane_b32 s{S_W}, v2
    v_lshlrev_b32 v{VLANE16}, 4, v1
    s_and_b32 s5, s2, 7                 ; xcd
    s_lshr_b32 s6, s2, 3                ; j
    s_and_b32 s{S_RG}, s{S_W}, 3
    s_lshr_b32 s{S_HF}, s{S_W}, 2
    s_and_b32 s7, s5, 1
    s_lshl_b32 s7, s7, 3
    s_and_b32 s8, s6, 7
    s_add_u32 s{S_RB}, s7, s8           ; rb = 8*(x&1) + (j&7)
    s_lshr_b32 s7, s5, 1                ; cg>>2
    s_lshr_b32 s8, s6, 3                ; cg&3
    v_lshrrev_b32 v12, 2, v1            ; r16
    v_lshrrev_b32 v13, 4, v1            ; r16>>2
    v_xor_b32 v13, v13, v1
    v_and_b32 v13, 3, v13
    v_mul_u32_u24 v12, 896, v12
    v_lshl_add_u32 v12, v13, 4, v12
    s_lshl_b32 s9, s{S_RB}, 7
    s_lshl_b32 s10, s{S_RG}, 5
    s_add_u32 s9, s9, s10
    s_mul_i32 s9, s9, 896
    s_mul_i32 s10, s{S_HF}, 448
    s_add_u32 s9, s9, s10
    v_add_u32 v12, s9, v12
    s_lshl_b32 s10, s{S_RG}, 1
    s_add_u32 s10, s10, s{S_HF}
    s_mul_i32 s10, s10, 14336           ; XB(rg,hf)
    s_waitcnt lgkmcnt(0)
    """)
    srd(p, 36, P_X, 2048 * 896)
    p(f"s_mov_b32 s11, {16*896}")
    for cb in range(7):
        for rh in range(2):
            p(f"s_add_u32 m0, s10, {(rh*7+cb)*1024 - 64*cb}")
            p(f"buffer_load_dwordx4 v12, s[36:39], {'s11' if rh else '0'} offen offset:{64*cb} lds")
    srd(p, 40, P_WS, WS_USED)
    p(f"""
    s_cmp_eq_u32 s8, 3
    s_cbranch_scc1 k1_rtype
    s_mul_i32 s12, s7, 3
    s_add_u32 s12, s12, s8              ; pi
    s_lshr_b32 s13, s12, 3
    s_lshl_b32 s13, s13, 8
    s_and_b32 s14, s12, 7
    s_or_b32 s64, s13, s14
    s_lshl_b32 s13, s12, 1
    s_or_b32 s65, s13, 0x300
    s_add_u32 s66, s65, 1
    s_mov_b32 s67, 0x400
    s_branch k1_desc_done
    """)
    p.label("k1_rtype")
    p("s_mul_i32 s12, s7, 3\ns_add_u32 s12, s12, 12")
    for u in range(3):
        p(f"""
        s_add_u32 s13, s12, {u}
        s_lshr_b32 s14, s13, 3
        s_lshl_b32 s14, s14, 8
        s_and_b32 s13, s13, 7
        s_or_b32 s{64+u}, s13, s14
        """)
    p("s_add_u32 s67, s7, 0x318")
    p.label("k1_desc_done")
    p(f"""
    s_mov_b32 s68, s64
    s_mov_b32 s69, s65
    s_mov_b32 s70, s66
    s_mov_b32 s71, s67
    s_mov_b32 s72, 0x400
    v_bfe_u32 v13, v1, 2, 3
    s_lshl_b32 s12, s{S_W}, 3
    v_add_u32 v13, s12, v13
    v_lshrrev_b32 v14, 5, v1            ; t
    v_and_b32 v15, 3, v1
    v_lshlrev_b32 v15, 4, v15
    v_mul_u32_u24 v{VFFN}, 3584, v13
    v_lshl_add_u32 v{VFFN}, v14, 6, v{VFFN}
    v_add_u32 v{VFFN}, v{VFFN}, v15
    v_mul_u32_u24 v{VQKV}, 2688, v13
    v_mul_u32_u24 v14, 48, v14
    v_add3_u32 v{VQKV}, v{VQKV}, v14, v15
    v_lshrrev_b32 v13, 5, v1
    v_lshlrev_b32 v13, 11, v13
    v_bfe_u32 v14, v1, 2, 2
    v_lshl_add_u32 v13, v14, 6, v13
    v_bfe_u32 v14, v1, 4, 1
    v_lshl_add_u32 v13, v14, 5, v13
    v_and_b32 v14, 3, v1
    v_lshl_add_u32 v13, v14, 3, v13
    s_lshl_b32 s12, s{S_HF}, 9
    v_add_u32 v{VTRL}, s12, v13
    v_bfe_u32 v13, v1, 4, 1
    v_mul_u32_u24 v13, 7168, v13
    v_and_b32 v14, 15, v1
    v_lshl_add_u32 v13, v14, 6, v13
    v_lshrrev_b32 v14, 5, v1            ; h
    v_bfe_u32 v15, v1, 2, 2             ; swz
    v_xor_b32 v14, v14, v15
    v_lshl_add_u32 v{VXA}, v14, 4, v13
    v_xor_b32 v14, 2, v14
    v_lshl_add_u32 v{VXB}, v14, 4, v13
    v_add_u32 v{VXA}, s10, v{VXA}
    v_add_u32 v{VXB}, s10, v{VXB}
    v_and_b32 v13, 31, v1
    v_cmp_eq_u32 vcc, 28, v13
    v_mov_b32 v14, 0x3f803f80
    v_cndmask_b32 v{VPAD}, 0, v14, vcc
    v_cmp_le_u32 s[74:75], 28, v13
    s_mov_b32 s55, 0                    ; fleft
    s_lshl_b32 s12, s{S_W}, 11
    s_add_u32 s56, s12, {7*SLOT}
    s_mov_b32 s44, s{P_WQKV}
    s_mov_b32 s45, s{P_WQKV+1}
    s_mov_b32 s46, 0
    s_mov_b32 s47, 0x20000
    s_mov_b32 s48, s{P_WQKV}
    s_mov_b32 s49, s{P_WQKV+1}
    s_mov_b32 s50, 0
    s_mov_b32 s51, 0x20000
    """)

    def fill():
        L = p.newlabel("k1f")
        p(f"""
        s_cmp_lg_u32 s55, 0
        s_cbranch_scc1 {L}_go
        s_lshr_b32 s3, s68, 8
        s_and_b32 s4, s68, 0xff
        s_mov_b32 s68, s69
        s_mov_b32 s69, s70
        s_mov_b32 s70, s71
        s_mov_b32 s71, s72
        s_cmp_eq_u32 s3, 3
        s_cbranch_scc1 {L}_ffn
        s_mov_b32 s44, s{P_WQKV}
        s_mov_b32 s45, s{P_WQKV+1}
        s_mov_b32 s48, s{P_WQKV}
        s_mov_b32 s49, s{P_WQKV+1}
        s_cmp_eq_u32 s3, 4
        s_cselect_b32 s46, 0, {448*2688}
        s_mov_b32 s50, s46
        s_mul_i32 s52, s3, 896
        s_mul_i32 s4, s4, 112
        s_add_u32 s52, s52, s4
        s_add_u32 s53, s52, {64*2688}
        s_mov_b32 s54, {128*2688}
        s_mov_b32 s55, 4
        v_mov_b32 v{VFILL}, v{VQKV}
        s_branch {L}_go
        {L}_ffn:
        s_mov_b32 s44, s{P_WG}
        s_mov_b32 s45, s{P_WG+1}
        s_mov_b32 s48, s{P_WU}
        s_mov_b32 s49, s{P_WU+1}
        s_mov_b32 s46, {448*3584}
        s_mov_b32 s50, {448*3584}
        s_lshl_b32 s52, s4, 7
        s_mov_b32 s53, s52
        s_mov_b32 s54, {64*3584}
        s_mov_b32 s55, 7
        v_mov_b32 v{VFILL}, v{VFFN}
        {L}_go:
        s_mov_b32 m0, s56
        s_sub_u32 s55, s55, 1
        buffer_load_dwordx4 v{VFILL}, s[44:47], s52 offen lds
        s_add_u32 m0, s56, 1024
        s_add_u32 s52, s52, s54
        buffer_load_dwordx4 v{VFILL}, s[48:51], s53 offen lds
        s_add_u32 s53, s53, s54
        s_add_u32 s56, s56, {SLOT}
        s_cmp_ge_u32 s56, {10*SLOT}
        s_cselect_b32 s3, {10*SLOT}, 0
        s_sub_u32 s56, s56, s3
        """)
    p("s_branch k1_after_sub")
    p.label("k1_fill_sub")
    fill()
    p("s_setpc_b64 s[76:77]")
    p.label("k1_after_sub")
    p("s_getpc_b64 s[78:79]")
    p.label("k1_pcref")
    p("s_sub_u32 s78, s78, k1_pcref-k1_fill_sub\ns_subb_u32 s79, s79, 0")

    def call_fill():
        p("s_swappc_b64 s[76:77], s[78:79]")
    call_fill(); call_fill()
    SUM, SQ, ONES = 12, 13, 14
    p(f"v_mov_b32 v{SUM}, 0\nv_mov_b32 v{SQ}, 0\nv_mov_b32 v{ONES}, 0x3f803f80")

    def stat(cb):
        for d in range(8):
            r = X + 8 * cb + d
            p(f"v_dot2c_f32_bf16 v{SUM}, v{r}, v{ONES}")
            p(f"v_dot2c_f32_bf16 v{SQ}, v{r}, v{r}")
    for cb in range(7):
        p(f"s_waitcnt vmcnt({4 + 12 - 2*cb})")
        p(f"ds_read_b128 {vr(X+8*cb,4)}, v{VXA} offset:{cb*1024}")
        p(f"ds_read_b128 {vr(X+8*cb+4,4)}, v{VXB} offset:{cb*1024}")
        if cb:
            p("s_waitcnt lgkmcnt(2)")
            stat(cb - 1)
    p("s_waitcnt lgkmcnt(0)")
    stat(6)
    STAT = 9 * SLOT
    p(f"""
    v_mov_b32 v{T}, v{SUM}
    v_mov_b32 v{T+1}, v{SQ}
    v_permlane32_swap_b32 v{SUM}, v{T}
    v_permlane32_swap_b32 v{SQ}, v{T+1}
    v_add_f32 v{SUM}, v{SUM}, v{T}
    v_add_f32 v{SQ}, v{SQ}, v{T+1}
    v_and_b32 v{T+2}, 31, v1
    v_lshlrev_b32 v{T+2}, 3, v{T+2}
    s_lshl_b32 s12, s{S_W}, 8
    s_add_u32 s12, s12, {STAT}
    v_add_u32 v{T+3}, s12, v{T+2}
    s_xor_b32 s12, s12, 1024
    v_add_u32 v{T+2}, s12, v{T+2}
    ds_write_b64 v{T+3}, {vr(SUM,2)}
    s_waitcnt lgkmcnt(0)
    s_barrier
    ds_read_b64 {vr(T,2)}, v{T+2}
    s_waitcnt lgkmcnt(0)
    v_add_f32 v{SUM}, v{SUM}, v{T}
    v_add_f32 v{SQ}, v{SQ}, v{T+1}
    v_mul_f32 v{SUM}, {f32(1.0/448)}, v{SUM}        ; mean
    v_mul_f32 v{SQ}, {f32(1.0/448)}, v{SQ}
    v_fma_f32 v{SQ}, -v{SUM}, v{SUM}, v{SQ}         ; var
    v_max_f32 v{SQ}, 0, v{SQ}
    v_add_f32 v{SQ}, {f32(1e-5)}, v{SQ}
    v_rsq_f32 v{SQ}, v{SQ}                          ; rstd
    v_mul_f32 v{SUM}, v{SUM}, v{SQ}
    v_sub_f32 v{SUM}, 0, v{SUM}                     ; -mean*rstd
    """)
    for sl in range(14):
        for d in range(4):
            r = X + 4 * sl + d
            t = T + 2 * d
            p(f"v_lshlrev_b32 v{t}, 16, v{r}")
            p(f"v_and_b32 v{t+1}, 0xffff0000, v{r}")
            p(f"v_fma_f32 v{t}, v{t}, v{SQ}, v{SUM}")
            p(f"v_fma_f32 v{t+1}, v{t+1}, v{SQ}, v{SUM}")
            p(f"v_cvt_pk_bf16_f32 v{r}, v{t}, v{t+1}")
        p(f"ds_write_b128 v{VXB if sl&1 else VXA}, {vr(X+4*sl,4)} offset:{(sl>>1)*1024}")
    p(f"""
    s_mul_i32 s12, s{S_HF}, 14336
    v_subrev_u32 v{VXA}, s12, v{VXA}
    v_subrev_u32 v{VXB}, s12, v{VXB}
    s_waitcnt lgkmcnt(0)
    s_barrier
    """)
    call_fill()
    for s in range(28):
        hf, sl = s // 14, s % 14
        p(f"ds_read_b128 {vr(X+4*s,4)}, v{VXB if sl&1 else VXA} offset:{hf*14336 + (sl>>1)*1024}")
    p(f"""
    s_mov_b32 s58, {8*SLOT}
    s_mov_b32 s57, {7*SLOT}
    s_lshl_b32 s12, s{S_RB}, 2
    s_add_u32 s73, s12, s{S_RG}
    s_waitcnt vmcnt(2) lgkmcnt(0)
    s_barrier
    """)
    for i in range(6):
        call_fill()
    p.label("k1_dispatch")
    p(f"""
    s_lshr_b32 s12, s64, 8
    s_and_b32 s13, s64, 0xff
    s_mov_b32 s64, s65
    s_mov_b32 s65, s66
    s_mov_b32 s66, s67
    s_mov_b32 s67, 0x400
    s_cmp_eq_u32 s12, 4
    s_cbranch_scc1 {name}_exit
    s_cmp_eq_u32 s12, 3
    s_cbranch_scc1 k1_ffn
    s_cmp_eq_u32 s12, 2
    s_cbranch_scc1 k1_v
    """)
    NB = 4

    def unit(frs, lane_extra, swap):
        nsl = frs[-1][0] + 1
        p(f"v_add_u32 v{VCUR}, s57, v{VTRL}\nv_add_u32 v{VNXT}, s58, v{VTRL}")
        if lane_extra:
            p(f"s_lshl_b32 s14, s{S_HF}, 3\nv_add_u32 v{VCUR}, s14, v{VCUR}\nv_add_u32 v{VNXT}, s14, v{VNXT}")
            p(f"v_add_u32 v{T+15}, s14, v{VTRL}")
        trl = T + 15 if lane_extra else VTRL
        call_fill()
        cur = 0

        def rd(j):
            sl, imm = frs[j][0], frs[j][1]
            a = VCUR if sl == cur else VNXT
            assert sl in (cur, cur + 1)
            b = WF + 4 * (j % NB)
            p(f"ds_read_b64_tr_b16 {vr(b,2)}, v{a} offset:{imm}")
            p(f"ds_read_b64_tr_b16 {vr(b+2,2)}, v{a} offset:{imm+256}")

        def slot_sync(last):
            p(f"""
            s_mov_b32 s57, s58
            s_add_u32 s58, s58, {SLOT}
            s_cmp_ge_u32 s58, {10*SLOT}
            s_cselect_b32 s3, {10*SLOT}, 0
            s_sub_u32 s58, s58, s3
            """)
            if not last:
                p(f"v_mov_b32 v{VCUR}, v{VNXT}\nv_add_u32 v{VNXT}, s58, v{trl}")
            p("s_waitcnt vmcnt(14)\ns_barrier")
            if not last:
                call_fill()
        n = len(frs)
        for j in range(NB):
            rd(j)
        for j in range(n):
            sl, imm, xs, acc, first = frs[j]
            if sl != cur:
                slot_sync(False)
                cur = sl
            left = min(NB - 1, n - 1 - j)
            p(f"s_waitcnt lgkmcnt({2*left})")
            w = vr(WF + 4 * (j % NB), 4)
            x = vr(X + 4 * xs, 4)
            a, b = (x, w) if swap else (w, x)
            p(f"{MFMA} {vr(acc,16)}, {a}, {b}, {'0' if first else vr(acc,16)}")
            if j + NB < n:
                rd(j + NB)
        slot_sync(True)

    qkv = [(ks // 8, (ks & 3) * 4096 + ((ks >> 2) & 1) * 1024, ks, A0, ks == 0) for ks in range(28)]
    ffn = [(ks // 4, (ks & 3) * 4096 + m * 1024, ks, (A0, A1)[m], ks == 0) for ks in range(28) for m in range(2)]
    unit(qkv, True, False)
    p(f"""
    s_lshl_b32 s14, s13, 1
    s_add_u32 s14, s14, s{S_HF}         ; head
    s_cmp_eq_u32 s12, 0
    s_cselect_b32 s15, {f32(QSCALE)}, 1.0
    s_cselect_b32 s3, 17, 18
    s_lshl_b32 s14, s14, s3
    s_sub_u32 s3, s3, 6
    s_lshl_b32 s4, s73, s3
    s_add_u32 s14, s14, s4
    s_cmp_eq_u32 s12, 0
    s_cselect_b32 s4, {QF_OFF}, {KV_OFF}
    s_add_u32 s14, s14, s4
    """)
    for i in range(16):
        p(f"v_mul_f32 v{A0+i}, s15, v{A0+i}")
    pack16(p, T, A0)
    p(f"""
    s_mov_b32 exec_lo, 0
    v_mov_b32 v{T+6}, 0
    v_mov_b32 v{T+7}, 0
    s_mov_b64 exec, -1
    buffer_store_dwordx4 {vr(T,4)}, v{VLANE16}, s[40:43], s14 offen{ST}
    buffer_store_dwordx4 {vr(T+4,4)}, v{VLANE16}, s[40:43], s14 offen offset:1024{ST}
    s_branch k1_dispatch
    """)
    p.label("k1_v")
    unit(qkv, True, True)
    p(f"""
    s_lshl_b32 s14, s13, 1
    s_add_u32 s14, s14, s{S_HF}
    s_lshl_b32 s14, s14, 18
    s_lshl_b32 s4, s73, 12
    s_add_u32 s14, s14, s4
    s_add_u32 s14, s14, {KV_OFF + 2048}
    """)
    pack16(p, T, A0)
    for i in range(8):
        p(f"v_cndmask_b32 v{T+i}, v{T+i}, v{VPAD}, s[74:75]")
    p(f"""
    buffer_store_dwordx4 {vr(T,4)}, v{VLANE16}, s[40:43], s14 offen{ST}
    buffer_store_dwordx4 {vr(T+4,4)}, v{VLANE16}, s[40:43], s14 offen offset:1024{ST}
    s_branch k1_dispatch
    """)
    p.label("k1_ffn")
    unit(ffn, False, False)
    c0 = -2.0 * math.sqrt(2.0 / math.pi) * LOG2E
    c1 = c0 * 0.044715
    p(f"""
    s_lshl_b32 s14, s13, 1
    s_add_u32 s14, s14, s{S_HF}         ; f tile
    s_lshl_b32 s14, s14, 11
    s_mul_i32 s4, s73, 114688
    s_add_u32 s14, s14, s4
    s_add_u32 s14, s14, {H_OFF}
    s_mov_b32 s15, {f32(c1)}
    v_mov_b32 v{T+31}, {f32(c0)}
    """)
    for i in range(16):
        p(f"v_mul_f32 v{T+i}, v{A0+i}, v{A0+i}")
    for i in range(16):
        p(f"v_fma_f32 v{T+i}, v{T+i}, s15, v{T+31}")
    for i in range(16):
        p(f"v_mul_f32 v{T+i}, v{T+i}, v{A0+i}")
    for i in range(16):
        p(f"v_exp_f32 v{T+i}, v{T+i}")
    for i in range(16):
        p(f"v_mul_f32 v{A0+i}, v{A0+i}, v{A1+i}")
    for i in range(16):
        p(f"v_add_f32 v{T+i}, 1.0, v{T+i}")
    for i in range(16):
        p(f"v_rcp_f32 v{T+i}, v{T+i}")
    for i in range(16):
        p(f"v_mul_f32 v{A0+i}, v{A0+i}, v{T+i}")
    pack16(p, T + 16, A0)
    p(f"""
    buffer_store_dwordx4 {vr(T+16,4)}, v{VLANE16}, s[40:43], s14 offen{ST}
    buffer_store_dwordx4 {vr(T+20,4)}, v{VLANE16}, s[40:43], s14 offen offset:1024{ST}
    s_branch k1_dispatch
    """)
    p.label(name + "_exit")
    p("s_endpgm")
    return (name, 256, 512, K1_LDS, 208)


def main():
    ref = open("cdna_kernels/" + NAME + ".s.ref").read().split("\n")
    head = [l for l in ref if l.startswith(";") and "@launch" not in l and "Override launch" not in l and "grid=ceil" not in l]
    p = Prog()
    ks = [gen_k1(p), gen_k2(p), gen_k3(p)]
    body = p.finalize()
    out = head[:]
    extra = int(sys.argv[2]) if len(sys.argv) > 2 else 0
    for (n, g, b, lds, vg) in ks:
        out.append(f"; @launch kernel={n} grid=({g},1,1) block=({b},1,1) lds={lds}")
    for i in range(extra):
        out.append("; @launch kernel=nop_kernel grid=(256,1,1) block=(64,1,1) lds=0")
    out.append('.amdgcn_target "amdgcn-amd-amdhsa--gfx950"\n.text')
    out.append(body)
    if extra:
        out.append(".globl nop_kernel\n.p2align 8\n.type nop_kernel,@function\nnop_kernel:\n  s_endpgm")
        ks.append(("nop_kernel", 0, 0, 0, 8))
    out.append('.section .rodata,"a"')
    for (n, g, b, lds, vg) in ks:
        ao = (vg + 3) // 4 * 4
        out.append(f""".p2align 6
.amdhsa_kernel {n}
  .amdhsa_next_free_vgpr {vg}
  .amdhsa_next_free_sgpr 96
  .amdhsa_accum_offset {ao}
  .amdhsa_group_segment_fixed_size 0
  .amdhsa_kernarg_size 80
  .amdhsa_user_sgpr_count 2
  .amdhsa_user_sgpr_kernarg_segment_ptr 1
  .amdhsa_system_sgpr_workgroup_id_x 1
.end_amdhsa_kernel""")
    path = sys.argv[1] if len(sys.argv) > 1 else "cdna_kernels/" + NAME + ".s"
    open(path, "w").write("\n".join(out) + "\n")
    print("wrote", path, "nops inserted:", p.total_nops)


main()
```

```python
import re

_REG = re.compile(r"\b([vas])(\d+)\b|\b([vas])\[(\d+):(\d+)\]|\b(vcc|exec|m0|scc)\b|\b(vcc_lo|vcc_hi|exec_lo|exec_hi)\b")

TRANS = ("v_exp_f32", "v_log_f32", "v_rcp_f32", "v_rsq_f32", "v_sqrt_f32", "v_sin_f32", "v_cos_f32", "v_rcp_iflag_f32")


def regs_of(op):
    out = []
    for m in _REG.finditer(op):
        if m.group(1):
            out.append(m.group(1) + m.group(2))
        elif m.group(3):
            out += [m.group(3) + str(i) for i in range(int(m.group(4)), int(m.group(5)) + 1)]
        elif m.group(6):
            n = m.group(6)
            out += [n + "_lo", n + "_hi"] if n in ("vcc", "exec") else [n]
        else:
            out.append(m.group(7))
    return out


def split_ops(s):
    ops, depth, cur = [], 0, ""
    for ch in s:
        if ch == "[" or ch == "(":
            depth += 1
        if ch == "]" or ch == ")":
            depth -= 1
        if ch == "," and depth == 0:
            ops.append(cur.strip())
            cur = ""
        else:
            cur += ch
    if cur.strip():
        ops.append(cur.strip())
    return ops


class Ins:
    def __init__(self, text):
        self.text = text
        t = text.split(";")[0].strip()
        parts = t.split(None, 1)
        self.mn = parts[0]
        mn = self.mn
        rest = parts[1] if len(parts) > 1 else ""
        ops = split_ops(rest)
        self.mods = ""
        if ops:
            lp = ops[-1].split(None, 1)
            if len(lp) > 1 and not mn.startswith("s_waitcnt"):
                ops[-1] = lp[0]
                self.mods = lp[1]
        self.ops = ops
        self.w, self.r = [], []
        self.kind = "other"
        self.nops = 0
        self.passes = 0
        self.A = self.B = self.C = []
        R = [regs_of(o) for o in ops]
        flat = lambda l: [x for y in l for x in y]
        if mn.startswith("v_mfma"):
            self.kind = "mfma"
            self.passes = 8 if "32x32x16" in mn else 4 if "16x16x32" in mn else 16
            self.w = R[0]
            self.A, self.B, self.C = R[1], R[2], R[3]
            self.r = R[1] + R[2] + R[3]
        elif mn.startswith("v_"):
            self.kind = "valu"
            if mn.startswith("v_cmp"):
                self.w, self.r = R[0], flat(R[1:])
                assert not mn.startswith("v_cmpx")
            elif mn.startswith("v_permlane") and "swap" in mn:
                self.w = R[0] + R[1]
                self.r = R[0] + R[1]
            elif mn.startswith(("v_add_co", "v_sub_co", "v_addc_co", "v_subb_co", "v_subrev_co")):
                self.w, self.r = R[0] + R[1], flat(R[2:])
            elif mn.startswith(("v_fmac", "v_dot2c", "v_pk_fmac")):
                self.w, self.r = R[0], flat(R)
            elif mn == "v_nop":
                pass
            else:
                self.w, self.r = R[0], flat(R[1:])
                if mn.startswith("v_cndmask") and len(ops) == 3:
                    self.r += ["vcc_lo", "vcc_hi"]
                if "sdwa" in mn and "PRESERVE" in self.mods:
                    self.r += R[0]
                if mn.startswith("v_writelane"):
                    self.r += R[0]
        elif mn.startswith("ds_"):
            self.kind = "ds"
            if mn.startswith(("ds_read", "ds_bpermute", "ds_permute", "ds_swizzle")) or "_rtn" in mn:
                self.w, self.r = R[0], flat(R[1:])
            else:
                self.r = flat(R)
        elif mn.startswith(("buffer_", "global_")):
            self.kind = "vmem"
            lds = " lds" in (" " + self.mods) or "_lds_" in mn
            self.lds = lds
            if mn.startswith(("buffer_inv", "buffer_wbl2")):
                pass
            elif "load" in mn and not lds:
                self.w, self.r = R[0], flat(R[1:])
            elif "load" in mn:
                self.r = flat(R) + ["m0"]
            elif "atomic" in mn:
                self.r = flat(R)
                if "sc0" in self.mods:
                    self.w = R[0]
            else:
                self.r = flat(R)
                di = 0 if mn.startswith("buffer_") else 1
                self.data = R[di]
        elif mn.startswith("s_"):
            self.kind = "salu"
            if mn.startswith(("s_cmp", "s_bitcmp")):
                self.r, self.w = flat(R), ["scc"]
            elif mn.startswith(("s_cbranch", "s_branch", "s_waitcnt", "s_barrier", "s_nop", "s_endpgm", "s_sleep", "s_setprio", "s_sendmsg")):
                pass
            elif mn.startswith(("s_load", "s_buffer_load", "s_memtime", "s_memrealtime")):
                self.kind = "smem"
                self.w, self.r = R[0], flat(R[1:])
            else:
                self.w, self.r = (R[0] if R else []), flat(R[1:])
                if "saveexec" in mn:
                    self.w = self.w + ["exec_lo", "exec_hi"]
        self.is_dpp = "_dpp" in mn or "row_" in self.mods or "quad_perm" in self.mods
        self.is_trans = any(mn.startswith(t) for t in TRANS)
        self.is_wide_store = self.kind == "vmem" and "store" in mn and ("x3" in mn or "x4" in mn)

    def states(self):
        if self.mn == "s_nop":
            return int(self.ops[0], 0) + 1
        return 1


CAP = 24


def need_nops(ins, st):
    need = 0

    def chk(key, req):
        nonlocal need
        if key in st:
            need = max(need, req - st[key])

    k = ins.kind
    isv = lambda r: r[0] in "va" and r[1:].isdigit()
    if k in ("valu", "mfma", "vmem", "ds"):
        if ins.mn.startswith("v_dot2c"):
            srcs = regs_of(ins.ops[1]) + regs_of(ins.ops[2])
            for r in srcs:
                chk(("dot_w", r), 3)
        else:
            for r in ins.r + ins.w:
                chk(("dot_w", r), 3)
    if k == "mfma":
        for r in ins.r:
            chk(("valu_w", r), 2)
        for r in ins.A + ins.B:
            chk(("mfma8_w", r), 12)
            chk(("mfma4_w", r), 8)
        for r in ins.C:
            tag = ("chain", ins.passes, tuple(ins.C))
            if tag not in st or True:
                for p, req in ((8, 10), (4, 6)):
                    key = (f"mfma{p}_w", r)
                    if key in st and st.get(("dreg", r)) != (p, tuple(ins.C)):
                        need = max(need, req - st[key])
                    elif key in st and p != ins.passes:
                        need = max(need, req - st[key])
        chk(("valu_w", "exec_lo"), 4)
    if k == "valu":
        for r in ins.r + ins.w:
            chk(("mfma8_w", r), 12)
            chk(("mfma4_w", r), 8)
        for r in ins.w:
            chk(("mfma8_c", r), 7)
            chk(("mfma4_c", r), 3)
            chk(("store_data", r), 2)
        if not ins.is_trans:
            for r in ins.r:
                chk(("trans_w", r), 1)
        for r in ins.r:
            chk(("sdwa_w", r), 1)
            if not isv(r):
                chk(("valu_w", r), 2)
        if ins.is_dpp or ins.mn.startswith("v_permlane"):
            for r in ins.r:
                chk(("valu_w", r), 2)
        if ins.mn.startswith(("v_readlane", "v_readfirstlane")):
            for r in ins.r:
                if isv(r):
                    chk(("valu_w", r), 1)
        if ins.mn.startswith(("v_readlane", "v_writelane")):
            for r in ins.r:
                if not isv(r):
                    chk(("valu_w", r), 4)
    if k in ("vmem", "ds"):
        for r in ins.r + ins.w:
            chk(("mfma8_w", r), 12)
            chk(("mfma4_w", r), 8)
        for r in ins.w:
            chk(("store_data", r), 1)
        if k == "vmem":
            for r in ins.r:
                if not isv(r):
                    chk(("valu_w", r), 5)
            if getattr(ins, "lds", False):
                chk(("salu_w", "m0"), 1)
    if k in ("salu", "smem"):
        for r in ins.r:
            chk(("valu_w", r), 1)
    return max(need, 0)


def advance(ins, st, extra):
    n = ins.states() + extra
    out = {}
    for key, v in st.items():
        if key[0] == "dreg":
            out[key] = v
        elif v + n < CAP:
            out[key] = v + n
    k = ins.kind
    for r in ins.w:
        for t in ("valu_w", "trans_w", "mfma8_w", "mfma4_w", "sdwa_w"):
            if not (k == "mfma" and t.startswith("mfma")):
                pass
        if k != "mfma":
            out.pop(("dreg", r), None)
    if k == "valu":
        for r in ins.w:
            out[("valu_w", r)] = 0
            if ins.is_trans:
                out[("trans_w", r)] = 0
            else:
                out.pop(("trans_w", r), None)
            if "sdwa" in ins.mn or "op_sel" in ins.mods:
                out[("sdwa_w", r)] = 0
            if ins.mn.startswith("v_dot"):
                out[("dot_w", r)] = 0
    elif k == "mfma":
        p = 8 if ins.passes == 8 else 4
        assert ins.passes in (4, 8)
        for r in ins.w:
            out[(f"mfma{p}_w", r)] = 0
            out[("dreg", r)] = (p, tuple(ins.w))
        for r in ins.C:
            out[(f"mfma{p}_c", r)] = 0
    elif k == "salu":
        for r in ins.w:
            if r == "m0":
                out[("salu_w", "m0")] = 0
            out.pop(("valu_w", r), None)
    elif k == "vmem" and ins.is_wide_store:
        for r in ins.data:
            out[("store_data", r)] = 0
    for key in [x for x in out if x[0] == "dreg"]:
        if ("mfma8_w", key[1]) not in out and ("mfma4_w", key[1]) not in out:
            del out[key]
    return out


def merge(a, b):
    if a is None:
        return dict(b), True
    ch = False
    for key, v in b.items():
        if key[0] == "dreg":
            if key in a and a[key] != v:
                if a[key] != "x":
                    a[key] = "x"
                    ch = True
            elif key not in a:
                a[key] = v
                ch = True
        elif key not in a or v < a[key]:
            a[key] = v
            ch = True
    return a, ch


class Prog:
    def __init__(self):
        self.items = []
        self.uid = 0

    def I(self, text):
        for line in text.strip().split("\n"):
            line = line.strip()
            if not line or line.startswith(";"):
                continue
            if line.endswith(":") or line.startswith("."):
                self.items.append(line)
            else:
                self.items.append(Ins(line))

    __call__ = I

    def label(self, name):
        self.items.append(name + ":")

    def newlabel(self, base):
        self.uid += 1
        return f"{base}_{self.uid}"

    def finalize(self):
        it = self.items
        lab = {x[:-1]: i for i, x in enumerate(it) if isinstance(x, str) and x.endswith(":")}
        n = len(it)
        entries = [i for i, x in enumerate(it) if isinstance(x, str) and x.endswith("_kernel:")]
        while True:
            st = [None] * (n + 1)
            work = []
            for e in entries:
                st[e] = {}
                work.append(e)
            while work:
                i = work.pop()
                if i >= n:
                    continue
                x = it[i]
                s = st[i]
                succ = []
                if isinstance(x, str):
                    o = s
                    succ = [i + 1]
                else:
                    o = advance(x, s, x.nops) if True else None
                    if x.mn == "s_endpgm":
                        succ = []
                    elif x.mn == "s_branch":
                        succ = [lab[x.ops[0]]]
                    elif x.mn.startswith("s_cbranch"):
                        succ = [i + 1, lab[x.ops[0]]]
                    else:
                        succ = [i + 1]
                for j in succ:
                    st[j], ch = merge(st[j], o)
                    if ch:
                        work.append(j)
            changed = False
            lastfix = -100
            for i, x in enumerate(it):
                if isinstance(x, Ins) and st[i] is not None:
                    nd = need_nops(x, st[i])
                    if nd > x.nops:
                        changed = True
                        if i - lastfix > 30:
                            x.nops = nd
                            lastfix = i
            if not changed:
                break
        out = []
        tot = 0
        for x in it:
            if isinstance(x, str):
                out.append(x if x.endswith(":") or x.startswith(".") else x)
            else:
                k = x.nops
                tot += k
                while k > 0:
                    c = min(k, 16)
                    out.append(f"  s_nop {c-1}")
                    k -= c
                out.append("  " + x.text)
        self.total_nops = tot
        return "\n".join(out)
```

```python
import math, struct, sys, os
from asmlib import Prog

NAME = "recurrent_scan__mha_block__geglu_ffn__prompt"
KN = NAME + "_kernel"
MB = 1 << 20
QF_OFF, KV_OFF, H_OFF, O_OFF, G_OFF = 0, 2 * MB, 6 * MB, 13 * MB, 15 * MB
FLAG_OFF = 17 * MB
QKVF, HFL, OFL = FLAG_OFF, FLAG_OFF + 65536, FLAG_OFF + 131072
WS_USED = 18 * MB
LOG2E = math.log2(math.e)
QSCALE = LOG2E / math.sqrt(28.0)
SPIN_MAX = 1 << 12
ENV = os.environ.get
STAMPS = bool(ENV("STAMPS"))
STAMP_OFF = 24 * MB
MFMA = "v_mfma_f32_32x32x16_bf16"
P_X, P_WQKV, P_WO, P_WG, P_WU, P_WD, P_OUT, P_DBG, P_WS = 16, 18, 20, 24, 26, 28, 30, 32, 34
SLOT = 16384
EXB = 8 * SLOT
TAGL = 4 * SLOT + 8192
QL = 8192
PRIV = 6 * SLOT
CNT = PRIV + 15360
CNT_COMB, CNT_S0 = CNT + 64, CNT + 100
KVS = 32768
CNT_TAG = CNT + 224


def f32(x):
    return "0x%08x" % struct.unpack("<I", struct.pack("<f", x))[0]


def vr(b, n=1):
    return f"v{b}" if n == 1 else f"v[{b}:{b+n-1}]"


def srd(p, d, base, nrec, add=None):
    if add is None:
        p(f"s_mov_b32 s{d}, s{base}\ns_mov_b32 s{d+1}, s{base+1}")
    else:
        p(f"s_add_u32 s{d}, s{base}, {add}\ns_addc_u32 s{d+1}, s{base+1}, 0")
    p(f"s_mov_b32 s{d+2}, {nrec}\ns_mov_b32 s{d+3}, 0x20000")


def pack16(p, dst, src):
    for i in range(8):
        p(f"v_cvt_pk_bf16_f32 v{dst+i}, v{src+2*i}, v{src+2*i+1}")


def stamp_txt(i):
    if STAMPS and not (ENV("CB") and i < 7):
        assert i < 8
        return [f"{ENV('STAMP_INS', 's_memrealtime')} s[{80+2*i}:{81+2*i}]"]
    return []


def stamp(p, i):
    for x in stamp_txt(i):
        p(x)


TL = bool(ENV("TL"))


def tl(p, idx):
    if TL:
        p(f"{ENV('STAMP_INS', 's_memrealtime')} s[94:95]\ns_waitcnt lgkmcnt(0)\nv_writelane_b32 v60, s94, {idx}")


def tl_dump(p):
    if TL:
        p(f"""
        s_lshl_b32 s94, s2, 4
        s_add_u32 s94, s94, s59
        s_lshl_b32 s94, s94, 8
        s_add_u32 s94, s94, {STAMP_OFF + MB}
        s_mov_b32 s96, s{P_WS}
        s_mov_b32 s97, s{P_WS+1}
        s_mov_b32 s98, {32*MB}
        s_mov_b32 s99, 0x20000
        v_lshlrev_b32 v61, 2, v0
        buffer_store_dword v60, v61, s[96:99], s94 offen
        """)


def endpgm(p):
    if STAMPS:
        stamp(p, 7)
        p("s_waitcnt vmcnt(0) lgkmcnt(0)\ns_mov_b64 exec, -1")
        for i in range(8):
            p(f"v_writelane_b32 v8, s{80+2*i}, {i}")
        p(f"""
        s_lshl_b32 s4, s2, 4
        s_add_u32 s4, s4, s59
        s_lshl_b32 s4, s4, 5
        s_add_u32 s4, s4, {STAMP_OFF}
        s_mov_b32 s96, s{P_WS}
        s_mov_b32 s97, s{P_WS+1}
        s_mov_b32 s98, {32*MB}
        s_mov_b32 s99, 0x20000
        v_mbcnt_lo_u32_b32 v9, -1, 0
        v_lshlrev_b32 v9, 2, v9
        s_mov_b64 exec, 0xff
        buffer_store_dword v8, v9, s[96:99], s4 offen
        """)
    p("s_endpgm")


class DS:
    def __init__(self, pending):
        self.n, self.done = pending, 0

    def op(self):
        self.n += 1
        return self.n - 1

    def need(self, i):
        if i < self.done:
            return []
        self.done = i + 1
        return [f"s_waitcnt lgkmcnt({min(15, self.n - 1 - i)})"]


class VM:
    def __init__(self, p):
        self.p, self.n, self.done = p, 0, 0

    def op(self, txt):
        self.p(txt)
        self.n += 1
        return self.n - 1

    def need(self, i):
        if i is None or i < self.done:
            return
        self.done = i + 1
        k = self.n - 1 - i
        assert k <= 63
        self.p(f"s_waitcnt vmcnt({k})")


def cost(ins):
    c = 0
    for l in ins.strip().split("\n"):
        m = l.strip().split()[0]
        c += 8 if m.startswith(("v_exp", "v_rcp", "v_rsq", "ds_")) else 16 if m.startswith("buffer_") else 4
    return c


def lds_spin(p, label, addr_v, tmp, want, sreg, wide=False):
    p(f"s_mov_b32 s{sreg}, {SPIN_MAX*8}")
    p.label(label)
    if wide:
        p(f"ds_read_b64 {vr(tmp,2)}, {addr_v}\ns_sub_u32 s{sreg}, s{sreg}, 1\ns_waitcnt lgkmcnt(0)\nv_cmp_ne_u64 vcc, {want}, {vr(tmp,2)}")
    else:
        p(f"ds_read_b32 v{tmp}, {addr_v}\ns_sub_u32 s{sreg}, s{sreg}, 1\ns_waitcnt lgkmcnt(0)\nv_cmp_ne_u32 vcc, {want}, v{tmp}")
    p(f"""
    s_cmp_eq_u32 s{sreg}, 0
    s_cbranch_scc1 {label}_x
    s_cmp_eq_u64 vcc, 0
    s_cbranch_scc1 {label}_x
    s_sleep 1
    s_branch {label}
    {label}_x:
    """)


def gen(p):
    p(f".globl {KN}\n.p2align 8\n.type {KN},@function")
    p.label(KN)
    S_W, S_RG, S_HF, S_RB, S_RT = 59, 60, 61, 62, 63
    p(f"""
    s_cmp_ge_u32 s2, 256
    s_cbranch_scc1 L_exit
    s_load_dwordx16 s[16:31], s[0:1], 0
    s_load_dwordx4 s[32:35], s[0:1], 64
    """)
    if STAMPS:
        for i in range(16):
            p(f"s_mov_b32 s{80+i}, 0")
        stamp(p, 0)
    p(f"""
    v_lshrrev_b32 v2, 6, v0
    v_and_b32 v0, 63, v0
    v_readfirstlane_b32 s{S_W}, v2
    s_and_b32 s5, s2, 7                 ; xcd
    s_lshr_b32 s6, s2, 3                ; j
    s_and_b32 s7, s5, 3
    s_lshl_b32 s7, s7, 2
    s_and_b32 s8, s6, 3
    s_add_u32 s{S_RB}, s7, s8           ; rb = 4*(x&3) + (j&3)
    s_lshr_b32 s7, s5, 2
    s_lshl_b32 s7, s7, 3
    s_lshr_b32 s8, s6, 2
    s_add_u32 s7, s7, s8                ; cg = 8*(x>>2) + (j>>2)
    s_and_b32 s8, s7, 1
    s_lshr_b32 s7, s7, 1
    s_cmp_ge_u32 s{S_W}, 8
    s_cbranch_scc1 L_service
    """)
    gen_c(p, S_W, S_RG, S_HF, S_RB, S_RT)
    p.label("L_service")
    gen_s(p, S_W)
    p.label("L_exit")
    p("s_endpgm")


def gen_c(p, S_W, S_RG, S_HF, S_RB, S_RT):
    VL16, VA, VB, VTRL, VEX, VEXP, VST = 1, 2, 3, 4, 5, 6, 7
    X, SA, SB, G, WF, T = 8, 64, 96, 128, 144, 160
    p(f"""
    s_and_b32 s{S_RG}, s{S_W}, 3
    s_lshr_b32 s{S_HF}, s{S_W}, 2
    s_xor_b32 s{S_HF}, s{S_HF}, s8
    v_lshrrev_b32 v12, 2, v0            ; r16
    v_lshrrev_b32 v13, 4, v0            ; r16>>2
    v_xor_b32 v13, v13, v0
    v_and_b32 v13, 3, v13
    v_mul_u32_u24 v12, 896, v12
    v_lshl_add_u32 v12, v13, 4, v12
    s_lshl_b32 s9, s{S_RB}, 2
    s_add_u32 s{S_RT}, s9, s{S_RG}
    s_mul_i32 s9, s{S_RT}, {32*896}
    s_mul_i32 s10, s{S_HF}, 448
    s_add_u32 s9, s9, s10
    v_add_u32 v12, s9, v12
    s_mul_i32 s10, s{S_W}, 14336
    s_mov_b32 s11, {16*896}
    s_waitcnt lgkmcnt(0)
    """)
    srd(p, 44, P_DBG, 256)
    p(f"""
    s_add_u32 s12, s2, s{S_W}
    s_cmp_lg_u32 s12, 0
    s_cbranch_scc1 L_notagw
    s_memrealtime s[12:13]
    s_waitcnt lgkmcnt(0)
    s_or_b32 s12, s12, 1
    v_mov_b32 v16, s12
    v_mov_b32 v17, s13
    s_mov_b64 exec, 1
    buffer_store_dwordx2 v[16:17], off, s[44:47], 0 sc1
    s_mov_b64 exec, -1
    L_notagw:
    """)
    srd(p, 36, P_X, 2048 * 896)
    for cb in range(7):
        for rh in range(2):
            p(f"s_add_u32 m0, s10, {(rh*7+cb)*1024 - 64*cb}")
            p(f"buffer_load_dwordx4 v12, s[36:39], {'s11' if rh else '0'} offen offset:{64*cb} lds")
    srd(p, 40, P_WS, WS_USED)
    VXA, VXB, SUM, SQ, ONES, RS, NM, TG = T, T + 1, T + 2, T + 3, T + 4, G, G + 1, G + 2
    U = SB
    STAT = 7 * SLOT
    c0 = -2.0 * math.sqrt(2.0 / math.pi) * LOG2E
    c1 = c0 * 0.044715
    al = -((-c1) ** (1.0 / 3.0))
    p(f"""
    v_lshlrev_b32 v{VL16}, 4, v0
    s_lshl_b32 s3, s{S_HF}, 4
    v_xor_b32 v15, s3, v0
    v_lshlrev_b32 v{VST}, 4, v15
    s_lshl_b32 s12, s{S_HF}, 10
    v_add_u32 v{VST}, s12, v{VST}
    v_lshrrev_b32 v13, 5, v0
    v_lshlrev_b32 v13, 11, v13
    v_bfe_u32 v14, v0, 2, 2
    v_lshl_add_u32 v13, v14, 6, v13
    v_bfe_u32 v14, v15, 4, 1
    v_lshl_add_u32 v13, v14, 5, v13
    v_and_b32 v14, 3, v0
    v_lshl_add_u32 v13, v14, 3, v13
    s_lshl_b32 s12, s{S_HF}, 10
    v_add_u32 v{VTRL}, s12, v13
    v_add_u32 v{VA}, {8*SLOT}, v{VTRL}
    v_add_u32 v{VB}, {9*SLOT}, v{VTRL}
    s_lshl_b32 s12, s{S_W}, 12
    s_add_u32 s12, s12, {EXB}
    v_add_u32 v{VEX}, s12, v{VL16}
    v_xor_b32 v{VEXP}, 0x4100, v{VEX}
    v_bfe_u32 v13, v15, 4, 1
    v_mul_u32_u24 v13, 7168, v13
    v_and_b32 v14, 15, v0
    v_lshl_add_u32 v13, v14, 6, v13
    v_lshrrev_b32 v14, 5, v0            ; h
    v_bfe_u32 v15, v0, 2, 2             ; swz
    v_xor_b32 v14, v14, v15
    v_lshl_add_u32 v{VXA}, v14, 4, v13
    v_xor_b32 v14, 2, v14
    v_lshl_add_u32 v{VXB}, v14, 4, v13
    v_add_u32 v{VXA}, s10, v{VXA}
    v_add_u32 v{VXB}, s10, v{VXB}
    v_mov_b32 v{SUM}, 0
    v_mov_b32 v{SQ}, 0
    v_mov_b32 v{ONES}, 0x3f803f80
    s_mov_b32 s66, 0xffff0000
    s_mov_b32 s64, {f32(al)}
    s_mov_b32 s65, {f32(c0 / c1 * al * al)}
    v_and_b32 v{U+2}, 31, v0
    v_lshlrev_b32 v{U+2}, 3, v{U+2}
    s_lshl_b32 s12, s{S_W}, 8
    s_add_u32 s12, s12, {STAT}
    v_add_u32 v{U+3}, s12, v{U+2}
    v_xor_b32 v{U+2}, {1024+128}, v{U+3}
    """)
    p(f"""
    s_cmp_eq_u32 s8, 1
    s_cselect_b32 s69, {f32(QSCALE)}, 1.0
    s_cselect_b32 s4, 18, 19
    s_cselect_b32 s15, {QF_OFF}, {KV_OFF}
    s_cselect_b32 s73, 2048, 0
    s_cselect_b32 s14, 0, 4
    s_lshl_b32 s67, s7, s4
    s_sub_u32 s4, s4, 1
    s_lshl_b32 s68, 1, s4
    s_sub_u32 s4, s4, 6
    s_lshl_b32 s4, s{S_RT}, s4
    s_add_u32 s67, s67, s4
    s_add_u32 s67, s67, s15
    s_add_u32 s68, s68, s67
    s_add_u32 s72, s67, 2048
    s_add_u32 s75, s68, 2048
    s_lshl_b32 s12, s7, 12
    s_lshl_b32 s13, s{S_RT}, 4
    s_add_u32 s12, s12, s13
    s_lshl_b32 s13, s{S_HF}, 3
    s_add_u32 s12, s12, s13
    s_add_u32 s12, s12, {QKVF}          ; flags: [pair][K,V,Q][rowtile][hf]
    s_add_u32 s73, s73, s12
    s_add_u32 s74, s12, 1024
    s_mul_i32 s12, s7, 6
    s_add_u32 s14, s14, s12             ; first f tile
    s_add_u32 s58, s7, 48
    s_sub_u32 s58, s58, s14
    s_sub_u32 s58, s58, 2               ; from the tile after the first quad to the single tile (type A)
    s_lshl_b32 s70, s14, 11
    s_mul_i32 s4, s{S_RT}, 114688
    s_add_u32 s70, s70, s4
    s_add_u32 s70, s70, {H_OFF}
    s_lshl_b32 s71, s14, 4
    s_lshl_b32 s4, s{S_RT}, 10
    s_add_u32 s71, s71, s4
    s_add_u32 s71, s71, s13
    s_add_u32 s71, s71, {HFL}           ; flags: [rowtile][ftile][hf]
    ; pad masks: even head pads n=28..31 (hf=1 waves), odd head pads n=0..3 (hf=0 waves)
    s_cmp_eq_u32 s{S_HF}, 1
    s_mov_b32 s52, 0
    s_cselect_b32 s53, -1, 0            ; q/k even head: packed regs 2,3
    s_cselect_b32 s54, 0, -1            ; q/k odd head: packed regs 0,1
    s_mov_b32 s55, 0
    s_cselect_b32 s56, 0xf000, 0xf0000000 {';'} v even head: zero lanes
    """.replace("s_cselect_b32 s56, 0xf000, 0xf0000000 ;", "s_mov_b32 s56, 0xf0000000\n    s_cselect_b32 s56, 0xf000, s56 ;") + f"""
    s_mov_b32 s57, s56
    s_cselect_b32 s48, 0xf0000, 15      ; v odd head: zero lanes
    s_mov_b32 s49, s48
    s_lshr_b32 s50, s56, 3
    s_and_b32 s50, s50, s56             ; lowest lane of each group: the ones column
    s_mov_b32 s51, s50
    s_lshr_b32 s46, s48, 3
    s_and_b32 s46, s46, s48
    s_mov_b32 s47, s46
    """.replace("s46", "s78").replace("s47", "s79"))
    stamp(p, 1)

    def stat(cb):
        for d in range(8):
            r = X + 8 * cb + d
            p(f"v_dot2c_f32_bf16 v{SUM}, v{r}, v{ONES}")
            p(f"v_dot2c_f32_bf16 v{SQ}, v{r}, v{r}")
    for cb in range(7):
        p(f"s_waitcnt vmcnt({12 - 2*cb})")
        p(f"ds_read_b128 {vr(X+8*cb,4)}, v{VXA} offset:{cb*1024}")
        p(f"ds_read_b128 {vr(X+8*cb+4,4)}, v{VXB} offset:{cb*1024}")
        if cb:
            p("s_waitcnt lgkmcnt(2)")
            stat(cb - 1)
    p("s_waitcnt lgkmcnt(0)")
    stat(6)
    p(f"""
    v_mov_b32 v{U}, v{SUM}
    v_mov_b32 v{U+1}, v{SQ}
    v_permlane32_swap_b32 v{SUM}, v{U}
    v_permlane32_swap_b32 v{SQ}, v{U+1}
    v_add_f32 v{SUM}, v{SUM}, v{U}
    v_add_f32 v{SQ}, v{SQ}, v{U+1}
    ds_write_b64 v{U+3}, {vr(SUM,2)}
    s_waitcnt lgkmcnt(0)
    s_barrier
    ds_read_b64 {vr(U,2)}, v{U+2}
    s_waitcnt lgkmcnt(0)
    s_barrier
    v_add_f32 v{SUM}, v{SUM}, v{U}
    v_add_f32 v{SQ}, v{SQ}, v{U+1}
    v_mul_f32 v{SUM}, {f32(1.0/448)}, v{SUM}        ; mean
    v_mul_f32 v{SQ}, {f32(1.0/448)}, v{SQ}
    v_fma_f32 v{SQ}, -v{SUM}, v{SUM}, v{SQ}         ; var
    v_max_f32 v{SQ}, 0, v{SQ}
    v_add_f32 v{SQ}, {f32(1e-5)}, v{SQ}
    v_rsq_f32 v{RS}, v{SQ}                          ; rstd
    v_mul_f32 v{SUM}, v{SUM}, v{RS}
    v_sub_f32 v{NM}, 0, v{SUM}                      ; -mean*rstd
    """)
    stamp(p, 2)

    def normalise(kl):
        e = []
        tb = U + 8 * (kl & 1)
        for d in range(4):
            e += [f"v_lshlrev_b32 v{tb+2*d}, 16, v{X+4*kl+d}", f"v_and_b32 v{tb+2*d+1}, s66, v{X+4*kl+d}"]
        e += [f"v_fma_f32 v{tb+i}, v{tb+i}, v{RS}, v{NM}" for i in range(8)]
        e += [f"v_cvt_pk_bf16_f32 v{X+4*kl+d}, v{tb+2*d}, v{tb+2*d+1}" for d in range(4)]
        return e
    NPRE = int(ENV("NPRE", 3))
    for kl in range(NPRE):
        for i in normalise(kl):
            p(i)
    if ENV("CPRIO") == "young":
        p(f"s_cmp_lt_u32 s{S_W}, 4\ns_cbranch_scc1 L_noprio\ns_setprio 1\nL_noprio:")
    p("s_barrier")
    NB = 4

    def phys(c):
        return 8 if c == 0 else 9 if c == 1 else (c + 5) % 8

    def st(r, sreg):
        return f"buffer_store_dwordx4 {vr(r,4)}, v{VST}, s[40:43], s{sreg} offen sc1"

    def st2(r, sreg):
        return f"buffer_store_dwordx4 {vr(r,4)}, v{VST}, s[40:43], s{sreg} offen offset:2048 sc1"

    def flag(sreg, two=False):
        if ENV("NOFLAG"):
            return ["s_nop 0"]
        return [f"s_waitcnt vmcnt(0)\ns_mov_b64 exec, 1\nbuffer_store_dwordx2 v[0:1], off, s[40:43], s{sreg} sc1\n"
                + (f"buffer_store_dwordx2 v[0:1], off, s[40:43], s{sreg} offset:16 sc1\n" if two else "") + "s_mov_b64 exec, -1"]

    def epi_qk(acc):
        e = []
        for t in range(2):
            a = acc + 16 * t
            e += [f"v_mul_f32 v{a+i}, s69, v{a+i}" for i in range(8)]
            e += [f"v_cvt_pk_bf16_f32 v{T+4*t+i}, v{a+2*i}, v{a+2*i+1}" for i in range(4)]
            z = T + 2 if t == 0 else T + 4
            e += [f"s_mov_b64 exec, s[{52+2*t}:{53+2*t}]\nv_mov_b32 v{z}, 0\nv_mov_b32 v{z+1}, 0\ns_mov_b64 exec, -1"]
            e.append(st(T + 4 * t, 67 + t))
        return e

    def epi_v(acc):
        e = []
        for t in range(2):
            a = acc + 16 * t
            zm, om = ((56, 50), (48, 78))[t]
            e += [f"v_cvt_pk_bf16_f32 v{T+4*t+i}, v{a+2*i}, v{a+2*i+1}" for i in range(4)]
            e += [f"s_mov_b64 exec, s[{zm}:{zm+1}]\n" + "".join(f"v_mov_b32 v{T+4*t+i}, 0\n" for i in range(4))
                  + f"s_mov_b64 exec, s[{om}:{om+1}]\n"
                  + "".join(f"v_mov_b32 v{T+4*t+i}, 0x3f803f80\n" for i in range(4)) + "s_mov_b64 exec, -1"]
            e.append(st(T + 4 * t, (72, 75)[t]))
        return e

    def gelu(g, qs):
        e = []
        for q in qs:
            r = g[4 * q:4 * q + 4]
            t = [T + i for i in range(4)]
            u = [T + 4 + i for i in range(4)]
            e += [f"v_mul_f32 v{t[i]}, s64, v{r[i]}" for i in range(4)]
            e += [f"v_fma_f32 v{u[i]}, v{t[i]}, v{t[i]}, s65" for i in range(4)]
            e += [f"v_mul_f32 v{t[i]}, v{t[i]}, v{u[i]}" for i in range(4)]
            e += [f"v_exp_f32 v{t[i]}, v{t[i]}" for i in range(4)]
            e += [f"v_add_f32 v{t[i]}, 1.0, v{t[i]}" for i in range(4)]
            e += [f"v_rcp_f32 v{t[i]}, v{t[i]}" for i in range(4)]
            e += [f"v_mul_f32 v{r[i]}, v{r[i]}, v{t[i]}" for i in range(4)]
        return e
    GG = [G + i for i in range(16)]

    def prod2(acc):
        e = []
        for t in range(2):
            a = acc + 16 * t
            e += [f"v_mul_f32 v{a+i}, v{a+i}, v{G+8*t+i}" for i in range(8)]
            e += [f"v_cvt_pk_bf16_f32 v{T+4*t+i}, v{a+2*i}, v{a+2*i+1}" for i in range(4)]
            e.append((st, st2)[t](T + 4 * t, 70))
        return e + ["s_add_u32 s70, s70, 4096"]

    def epi_s(acc):
        g = [acc + i for i in range(8)]
        e = gelu(g, [0, 1])
        e += [f"v_mul_f32 v{g[i]}, v{g[i]}, v{acc+16+i}" for i in range(8)]
        e += [f"v_cvt_pk_bf16_f32 v{T+i}, v{g[2*i]}, v{g[2*i+1]}" for i in range(4)]
        return e + [st(T, 70)]

    tag_ld = [f"s_cmp_lg_u32 s{S_W}, 7\ns_cbranch_scc1 L_tl_@\n"
              f"buffer_load_dwordx2 {vr(TG,2)}, off, s[44:47], 0 sc1\nL_tl_@:"]
    tag_pub = [f"s_cmp_lg_u32 s{S_W}, 7\ns_cbranch_scc1 L_tp_@\ns_mov_b32 s12, {SPIN_MAX}\nL_tq_@:\ns_waitcnt vmcnt(0)\n"
               f"v_cmp_ne_u32 vcc, 0, v{TG}\ns_sub_u32 s12, s12, 1\ns_cbranch_scc1 L_tr_@\ns_cmp_lg_u64 vcc, 0\ns_cbranch_scc1 L_tr_@\n"
               f"buffer_load_dwordx2 {vr(TG,2)}, off, s[44:47], 0 sc1\ns_branch L_tq_@\nL_tr_@:\n"
               f"v_mov_b32 v{TG+2}, {TAGL}\nds_write_b64 v{TG+2}, {vr(TG,2)}\n"
               "s_waitcnt lgkmcnt(0)\nL_tp_@:"]
    XE = ([2, 3, 4, 5], [7, 8, 9, 10])
    XL = eval(ENV('XWR', '[2, 3, 4, 5], [7, 8, 9, 10]'))
    xreg = lambda acc, i: acc + 16 * (i >> 1) + 8 + 4 * (i & 1)

    def stream(kind):
        N = 140
        types = "VKGUS" if kind == "A" else "QGUGU"
        acc = [SA, SB, SA, SB, SA]
        win = []

        def W(a, b, ins):
            win.append((a, b, ins))
        for kl in range(NPRE, 14):
            W(2 * (kl - NPRE), 2 * (kl - NPRE) + 2, normalise(kl))
        W(8, 9, [x.replace("@", kind) for x in tag_ld])
        W(34, 35, [x.replace("@", kind) for x in tag_pub])
        FD = int(ENV("FLAGD", 13))
        E0, E1 = XE[1][-1] + 4, XL[1][-1] + 4
        hf2 = flag(71, True) + ["s_add_u32 s71, s71, 32"]
        if ENV("NOEPI"):
            pass
        elif kind == "A":
            W(28 + E0, 28 + E0 + 6, epi_v(SA))
            W(56 + FD, 56 + FD + 1, flag(74))
            W(56 + E0, 56 + E0 + 6, epi_qk(SB))
            W(84 + FD - 6, 84 + FD - 5, flag(73))
            W(84 + E1, 112 + E1 - 2, gelu(GG, [0, 1, 2, 3]))
            W(112 + E1, 140, prod2(SB) + ["s_lshl_b32 s12, s58, 11\ns_add_u32 s70, s70, s12"])
        else:
            W(28 + E0, 28 + E0 + 6, epi_qk(SA))
            W(56 + FD - 6, 56 + FD - 5, flag(73))
            W(56 + E1, 84 + E1 - 2, gelu(GG, [0, 1, 2, 3]))
            W(84 + E1, 112, prod2(SA))
            W(112 + E0 - 1, 112 + E0, hf2)
            W(112 + E0, 140, gelu(GG, [0, 1]) + gelu(GG, [2])[:12])
        xform = [None] + [XL if (types[ps - 1] in "GU" and not (kind == "B" and ps == 4)) else XE for ps in range(1, 5)]
        per = [[] for _ in range(N)]
        for (a, b, ins) in win:
            tot = sum(cost(i) for i in ins)
            c = 0
            for i in ins:
                g = a + min(b - a - 1, int((c + cost(i) / 2) * (b - a) / tot))
                per[g].append(i)
                c += cost(i)
        ds = DS(0)
        frag = {}
        out = []

        def rd(n):
            c = n // 28 * 4 + (n % 28 >> 3)
            j = n % 28
            imm = ((j >> 1) & 3) * 4096 + (j & 1) * 512
            b = WF + 4 * (n % NB)
            a = VA if c % 2 == 0 else VB
            out.extend([f"ds_read_b64_tr_b16 {vr(b,2)}, v{a} offset:{imm}", f"ds_read_b64_tr_b16 {vr(b+2,2)}, v{a} offset:{imm+256}"])
            ds.op()
            frag[n] = ds.op()
            nn = n + 1
            cn = nn // 28 * 4 + (nn % 28 >> 3)
            if cn != c and c + 2 < 20:
                out.append(f"v_add_u32 v{a}, {phys(c+2)*SLOT}, v{VTRL}")
        for n in range(NB):
            rd(n)
        wr = tagr = None
        rdx = {}
        for g in range(N):
            ps, j = divmod(g, 28)
            if g % 2 == 0:
                out += ds.need(frag[g + 1])
            w = vr(WF + 4 * (g % NB), 4)
            x = vr(X + 4 * (j >> 1), 4)
            a, b = (x, w) if types[ps] == "V" else (w, x)
            ac = vr(acc[ps] + 16 * (j & 1), 16)
            out.append(f"{MFMA} {ac}, {a}, {b}, {'0' if j < 2 else ac}")
            prev = acc[ps - 1] if ps else None
            XW, XR = xform[ps] if ps else ([], [])
            XB = XR[0] if ps else None
            if j in (7, 15, 23, 27) and g != N - 1:
                if j == XB and ps:
                    out += ds.need(wr)
                out.append("s_barrier")
                if ENV("CB"):
                    bi = ps * 4 + (7, 15, 23, 27).index(j) + 1 - int(ENV("CB"))
                    if 0 <= bi < 7:
                        out.append(f"s_memtime s[{80+2*bi}:{81+2*bi}]")
                if g == 35:
                    out.append(f"v_mov_b32 v0, {TAGL}\nds_read_b64 v[0:1], v0")
                    tagr = ds.op()
            if g + NB < N:
                rd(g + NB)
            if ps and j in XW:
                i = XW.index(j)
                if len(XW) == 4:
                    out.append(f"ds_write_b128 v{VEX}, {vr(xreg(prev, i),4)} offset:{1024*i}")
                else:
                    out.append(f"ds_write_b64 v{VEX}, {vr(xreg(prev, i >> 1) + 2*(i & 1),2)} offset:{1024*(i >> 1) + 8*(i & 1)}")
                wr = ds.op()
            if ps and j in XR:
                i = XR.index(j)
                out.append(f"ds_read_b128 {vr(xreg(prev, i),4)}, v{VEXP} offset:{1024*i}")
                rdx[i] = ds.op()
            if ps and j - 3 in XR:
                i = XR.index(j - 3)
                out += ds.need(rdx[i])
                r = xreg(prev, i)
                d = G + 4 * i if types[ps - 1] == "G" else r - 8
                out += [f"v_add_f32 v{d+k}, v{r-8+k}, v{r+k}" for k in range(4)]
            out += per[g]
            if ENV("CPRIO") == "tog":
                out.insert(len(out) - len(per[g]) - (2 if g + NB < N else 0), "s_setprio 0")
                out.append("s_setprio 1")
            if g == 27:
                out += stamp_txt(3)
        if ENV("NOXCHG"):
            out = [i for i in out if not i.startswith(("ds_write_b128", "ds_read_b128", "v_add_f32"))]
        if ENV("NOTR"):
            out = [i for i in out if not i.startswith("ds_read_b64_tr")]
        for i in out:
            p(i)
    def tail(pre, mid, post):
        stamp(p, 4)
        for i in pre:
            p(i)
        for i in range(4):
            p(f"ds_write_b128 v{VEX}, {vr(xreg(SA, i),4)} offset:{1024*i}")
        for i in mid[:12]:
            p(i)
        p("s_waitcnt lgkmcnt(0)\ns_barrier")
        for i in range(4):
            p(f"ds_read_b128 {vr(xreg(SA, i),4)}, v{VEXP} offset:{1024*i}")
        for i in mid[12:]:
            p(i)
        p("s_waitcnt lgkmcnt(0)\ns_barrier")
        for i in range(4):
            r = xreg(SA, i)
            for k in range(4):
                p(f"v_add_f32 v{r-8+k}, v{r-8+k}, v{r+k}")
        for i in post:
            p(i)
    p("s_cmp_eq_u32 s8, 1\ns_cbranch_scc1 L_btype")
    stream("A")
    tail([], [], epi_s(SA) + [flag(71, True)[0].replace("vmcnt(0)", "vmcnt(1)"),
                              "s_lshl_b32 s58, s58, 4\ns_add_u32 s71, s58, s71\ns_add_u32 s71, s71, 32\ns_mov_b32 s58, s71"])
    p("s_branch L_bdone")
    p.label("L_btype")
    stream("B")
    tail(gelu(GG, [2])[12:], gelu(GG, [3]), prod2(SA) + ["s_add_u32 s58, s71, 16"])
    p.label("L_bdone")
    p(f"""
    v_and_b32 v{VEXP}, 1023, v{VEX}
    v_mov_b32 v{T}, v0
    v_mov_b32 v{T+1}, v1
    v_mov_b32 v{VL16}, v{VEXP}
    """)
    if ENV("STOPB"):
        stamp(p, 5)
        endpgm(p)
    Q, KF, VF, S0, S1, PP, O = 8, 16, 24, 32, 48, 64, 72
    VCUR, VNXT, VKV, VCN, VONE, CK, E3 = 2, 3, 5, 6, 88, 90, 94
    p(f"""
    s_lshr_b32 s7, s6, 4
    s_lshl_b32 s8, s5, 1
    s_add_u32 s7, s7, s8                ; head
    s_and_b32 s8, s6, 15                ; q block
    s_lshl_b32 s11, s8, 2
    s_add_u32 s11, s11, s{S_RG}         ; q tile (0..63)
    s_lshl_b32 s12, s7, 18
    s_add_u32 s12, s12, {KV_OFF}
    s_lshl_b32 s46, s{S_HF}, 14         ; kh*16384
    v_add_u32 v{VCUR}, s46, v{VL16}
    v_add_u32 v{VNXT}, {3*SLOT}, v{VCUR}
    v_add_u32 v{VCUR}, {1*SLOT}, v{VCUR}
    s_cmp_eq_u32 s{S_HF}, 0
    s_cselect_b32 s47, {5*SLOT}, 0
    s_cselect_b32 s3, s47, {QL}
    s_lshl_b32 s13, s{S_RG}, 12         ; rg*4096
    v_add_u32 v{VKV}, s13, v{VL16}
    s_add_u32 s14, s46, {2*KVS}
    s_lshl_b32 s4, s{S_HF}, 7
    s_add_u32 s4, s4, {CNT}
    v_mov_b32 v{VCN}, s4
    v_mov_b32 v{VONE}, 1
    v_mov_b32 v{VONE+1}, 0
    s_mov_b32 s48, 1                    ; iteration
    s_mov_b32 s49, 0
    s_mov_b32 s50, 4
    s_mov_b32 s51, 4
    s_lshl_b32 s4, s{S_RG}, 11
    s_add_u32 s3, s3, s4
    v_add_u32 v{CK+2}, s3, v{VL16}
    """)
    srd(p, 36, P_WS, 262144, "s12")
    for r in list(range(PP, PP + 8)) + list(range(O, O + 16)) + list(range(E3, E3 + 4)):
        p(f"v_mov_b32 v{r}, 0")
    lds_spin(p, "L_w0", f"v{VCN} offset:4", CK, "4", 52)
    stamp(p, 5)
    p(f"""
    ds_read_b128 {vr(Q,4)}, v{CK+2}
    ds_read_b128 {vr(Q+4,4)}, v{CK+2} offset:1024
    ds_read_b128 {vr(KF,4)}, v{VCUR}
    ds_read_b128 {vr(KF+4,4)}, v{VCUR} offset:1024
    s_waitcnt lgkmcnt(0)
    {MFMA} {vr(S0,16)}, {vr(KF,4)}, {vr(Q,4)}, 0
    {MFMA} {vr(S0,16)}, {vr(KF+4,4)}, {vr(Q+4,4)}, {vr(S0,16)}
    ds_read_b128 {vr(KF,4)}, v{VCUR} offset:4096
    ds_read_b128 {vr(KF+4,4)}, v{VCUR} offset:5120
    ds_read_b128 {vr(VF+4,4)}, v{VCUR} offset:3072
    ds_read_b128 {vr(VF,4)}, v{VCUR} offset:2048
    s_nop 5
    """)

    def phase(k, mf, rd, sc, sp, extra=""):
        if k % 2 == 0:
            p("s_waitcnt lgkmcnt(2)")
        p(mf)
        p(rd)
        src, pk = (E3, 3) if k == 0 else (sc + 4 * (k - 1), k - 1)
        dst = E3 if k == 3 else sc + 4 * k
        e = [f"v_exp_f32 v{dst+i}, v{sc+4*k+i}" for i in range(4)]
        c = [f"v_cvt_pk_bf16_f32 v{PP+2*pk+i}, v{src+2*i}, v{src+2*i+1}" for i in range(2)]
        for x in (e[0], c[0], e[1], c[1]):
            p(x)
        if extra:
            p(extra)
        p(e[2]); p(e[3])

    def ta(u, off):
        return f"v{VCUR} offset:{u*4096+off}" if u < 4 else f"v{VNXT} offset:{(u-4)*4096+off}"

    def body(first, tag):
        sig = f"""
        s_mov_b64 exec, 1
        {'' if first else 's_waitcnt vmcnt(0)'}
        ds_add_u64 v{VCN}, {vr(VONE,2)}
        s_mov_b64 exec, -1
        """
        for u in range(4):
            sc, sn = (S0, S1) if u % 2 == 0 else (S1, S0)
            if u == 2:
                p(f"""
                s_waitcnt lgkmcnt(1)
                v_cmp_ne_u64 vcc, s[50:51], {vr(CK,2)}
                s_add_u32 m0, s47, s13
                s_cmp_lg_u64 vcc, 0
                s_cbranch_scc1 L_a_spin{tag}
                L_a_go{tag}:
                """)
                if first:
                    p(f"""
                    s_mov_b64 exec, 1
                    s_waitcnt vmcnt(0)
                    buffer_store_dwordx2 {vr(T,2)}, off, s[40:43], s71 sc1
                    buffer_store_dwordx2 {vr(T,2)}, off, s[40:43], s58 sc1
                    s_mov_b64 exec, -1
                    v_mov_b32 v{VONE+1}, 1
                    """)
                else:
                    p(f"s_cmp_gt_u32 s48, 5\ns_cbranch_scc1 L_a_nofill")
                for q in range(4):
                    p(f"buffer_load_dwordx4 v{VKV}, s[36:39], s14 offen offset:{q*1024} sc1 lds")
                p(f"s_add_u32 s14, s14, {KVS}")
                if not first:
                    p.label("L_a_nofill")
            phase(0, f"{MFMA} {vr(sn,16)}, {vr(KF,4)}, {vr(Q,4)}, 0", f"ds_read_b128 {vr(KF,4)}, {ta(u+2, 0)}", sc, sn)
            phase(1, f"{MFMA} {vr(sn,16)}, {vr(KF+4,4)}, {vr(Q+4,4)}, {vr(sn,16)}",
                  f"ds_read_b128 {vr(KF+4,4)}, {ta(u+2, 1024)}", sc, sn)
            phase(2, f"{MFMA} {vr(O,16)}, {vr(VF+4,4)}, {vr(PP+4,4)}, {vr(O,16)}",
                  f"ds_read_b128 {vr(VF+4,4)}, {ta(u, 3072)}", sc, sn,
                  f"ds_read_b64 {vr(CK,2)}, v{VCN}" if u == 1 else "")
            ex = sig if u == 0 else ""
            if u == 3:
                ex = f"""
                v_mov_b32 v{VCUR}, v{VNXT}
                v_add_u32 v{VNXT}, s47, v{VL16}
                v_add_u32 v{VCN}, 8, v{VCN}
                s_add_u32 s47, s47, {2*SLOT}
                s_cmp_ge_u32 s47, {6*SLOT}
                s_cselect_b32 s3, {6*SLOT}, 0
                s_sub_u32 s47, s47, s3
                """
                if not first:
                    ex += "s_add_u32 s48, s48, 1\ns_cmp_lt_u32 s48, 8"
            phase(3, f"{MFMA} {vr(O,16)}, {vr(VF,4)}, {vr(PP,4)}, {vr(O,16)}",
                  f"ds_read_b128 {vr(VF,4)}, {ta(u+1, 2048)}", sc, sn, ex)
    body(True, "f")
    p(".p2align 6")
    p.label("L_aloop")
    body(False, "")
    p("s_cbranch_scc1 L_aloop\ns_branch L_a_done")
    for tag in ("f", ""):
        p.label("L_a_spin" + tag)
        lds_spin(p, "L_a_sp" + tag, f"v{VCN}", CK, "s[50:51]", 52, wide=True)
        p("s_branch L_a_go" + tag)
    p.label("L_a_done")
    stamp(p, 6)
    p(f"""
    v_cvt_pk_bf16_f32 v{PP+6}, v{E3}, v{E3+1}
    v_cvt_pk_bf16_f32 v{PP+7}, v{E3+2}, v{E3+3}
    s_waitcnt lgkmcnt(0)
    {MFMA} {vr(O,16)}, {vr(VF+4,4)}, {vr(PP+4,4)}, {vr(O,16)}
    s_lshl_b32 s46, s{S_RG}, 12
    s_lshl_b32 s3, s{S_HF}, 14
    s_add_u32 s46, s46, s3
    s_add_u32 s46, s46, {SLOT}
    v_add_u32 v3, s46, v{VL16}
    s_lshl_b32 s3, s{S_RG}, 3
    s_add_u32 s3, s3, {CNT_COMB}
    v_mov_b32 v{VCN}, s3
    s_mov_b64 exec, 1
    ds_add_rtn_u32 v{CK}, v{VCN}, v{VONE}
    s_mov_b64 exec, -1
    s_waitcnt lgkmcnt(0)
    v_readfirstlane_b32 s3, v{CK}
    s_cmp_lg_u32 s3, 0
    s_cbranch_scc1 L_acomb
    """)
    for i in range(4):
        p(f"ds_write_b128 v3, {vr(O+4*i,4)} offset:{1024*i}")
    p(f"""
    s_mov_b64 exec, 1
    s_waitcnt lgkmcnt(0)
    ds_add_u32 v{VCN}, v{VONE} offset:4
    s_waitcnt lgkmcnt(0)
    """)
    endpgm(p)
    p.label("L_acomb")
    p(f"v_xor_b32 v3, {3*SLOT}, v3")
    lds_spin(p, "L_cw", f"v{VCN} offset:4", CK, "1", 52)
    for i in range(4):
        p(f"ds_read_b128 {vr(S0+4*i,4)}, v3 offset:{1024*i}")
    for q in range(4):
        p(f"s_waitcnt lgkmcnt({3-q})")
        for i in range(4 * q, 4 * q + 4):
            p(f"v_add_f32 v{O+i}, v{O+i}, v{S0+i}")
    p.label("L_afin")
    T2 = S1
    p(f"""
    s_mov_b32 s50, {f32(2.0**-60)}
    s_mov_b32 s51, {f32(2.0**100)}
    s_bitcmp1_b32 s7, 0
    s_cbranch_scc1 L_f_odd
    v_mov_b32 v{T2}, v{O+12}
    v_mov_b32 v{T2+1}, v{O+12}
    v_permlane32_swap_b32 v{T2}, v{T2+1}
    s_mov_b32 exec_lo, 0
    v_mov_b32 v{O+12}, 0
    v_mov_b32 v{O+13}, 0
    v_mov_b32 v{O+14}, 0
    v_mov_b32 v{O+15}, 0
    s_branch L_f_join
    L_f_odd:
    v_mov_b32 v{T2}, v{O}
    v_mov_b32 v{T2+1}, v{O}
    v_permlane32_swap_b32 v{T2+1}, v{T2}
    s_mov_b32 exec_hi, 0
    v_mov_b32 v{O}, 0
    v_mov_b32 v{O+1}, 0
    v_mov_b32 v{O+2}, 0
    v_mov_b32 v{O+3}, 0
    L_f_join:
    s_mov_b64 exec, -1
    v_rcp_f32 v{T2+2}, v{T2+1}
    v_cmp_ge_f32 s[52:53], v{T2+1}, s50
    v_cmp_le_f32 s[54:55], v{T2+1}, s51
    """)
    for i in range(16):
        p(f"v_mul_f32 v{O+i}, v{O+i}, v{T2+2}")
    p(f"v_mul_f32 v{T2+3}, 0, v{O}")
    for i in range(1, 16):
        p(f"v_fmac_f32 v{T2+3}, 0, v{O+i}")
    pack16(p, PP, O)
    p(f"""
    v_cmp_eq_f32 s[56:57], 0, v{T2+3}
    s_and_b64 s[52:53], s[52:53], s[54:55]
    s_lshl_b32 s45, s11, 15             ; rowtile*32K
    s_lshl_b32 s46, s7, 11              ; head*2K
    s_add_u32 s45, s45, s46
    s_add_u32 s45, s45, {O_OFF}
    s_and_b64 s[52:53], s[52:53], s[56:57]
    s_cmp_eq_u64 s[52:53], -1
    s_cbranch_scc1 L_aok
    s_cmp_eq_u32 s49, 0x5afe
    s_cbranch_scc0 L_fallback
    """)
    p.label("L_aok")
    p(f"""
    buffer_store_dwordx4 {vr(PP,4)}, v{VL16}, s[40:43], s45 offen sc1
    buffer_store_dwordx4 {vr(PP+4,4)}, v{VL16}, s[40:43], s45 offen offset:1024 sc1
    s_lshl_b32 s45, s11, 7
    s_lshl_b32 s46, s7, 3
    s_add_u32 s45, s45, s46
    s_add_u32 s45, s45, {OFL}
    s_mov_b64 exec, 1
    s_waitcnt vmcnt(0)
    buffer_store_dwordx2 {vr(T,2)}, off, s[40:43], s45 sc1
    """)
    endpgm(p)
    p.label("L_fallback")
    M, MN, AL, TM, T3 = 100, 101, 102, 103, 104
    p("s_mov_b32 s49, 0x5afe")
    for i in range(16):
        p(f"v_mov_b32 v{O+i}, 0")
    p(f"v_mov_b32 v{M}, 0xff800000\ns_mov_b32 s14, 0")
    p.label("L_fbloop")
    p(f"""
    buffer_load_dwordx4 {vr(KF,4)}, v{VL16}, s[36:39], s14 offen sc1
    buffer_load_dwordx4 {vr(KF+4,4)}, v{VL16}, s[36:39], s14 offen offset:1024 sc1
    buffer_load_dwordx4 {vr(VF,4)}, v{VL16}, s[36:39], s14 offen offset:2048 sc1
    buffer_load_dwordx4 {vr(VF+4,4)}, v{VL16}, s[36:39], s14 offen offset:3072 sc1
    s_waitcnt vmcnt(2)
    {MFMA} {vr(S0,16)}, {vr(KF,4)}, {vr(Q,4)}, 0
    {MFMA} {vr(S0,16)}, {vr(KF+4,4)}, {vr(Q+4,4)}, {vr(S0,16)}
    v_max3_f32 v{TM}, v{S0}, v{S0+1}, v{S0+2}
    """)
    for i in range(3, 15, 2):
        p(f"v_max3_f32 v{TM}, v{S0+i}, v{S0+i+1}, v{TM}")
    p(f"""
    v_max_f32 v{TM}, v{S0+15}, v{TM}
    v_mov_b32 v{T3}, v{TM}
    v_permlane32_swap_b32 v{TM}, v{T3}
    v_max3_f32 v{MN}, v{TM}, v{T3}, v{M}
    v_sub_f32 v{AL}, v{M}, v{MN}
    v_exp_f32 v{AL}, v{AL}
    v_mov_b32 v{M}, v{MN}
    """)
    for i in range(16):
        p(f"v_sub_f32 v{S0+i}, v{S0+i}, v{MN}")
    for i in range(16):
        p(f"v_exp_f32 v{S0+i}, v{S0+i}")
    for i in range(16):
        p(f"v_mul_f32 v{O+i}, v{O+i}, v{AL}")
    pack16(p, PP, S0)
    p(f"""
    s_waitcnt vmcnt(0)
    {MFMA} {vr(O,16)}, {vr(VF,4)}, {vr(PP,4)}, {vr(O,16)}
    {MFMA} {vr(O,16)}, {vr(VF+4,4)}, {vr(PP+4,4)}, {vr(O,16)}
    s_add_u32 s14, s14, 4096
    s_cmp_lt_u32 s14, 262144
    s_cbranch_scc1 L_fbloop
    s_branch L_afin
    """)


def gen_s(p, S_W):
    VL16, VQ, VF_, VS_ = 1, 2, 3, 7
    p(f"""
    s_sub_u32 s4, s{S_W}, 8
    s_and_b32 s9, s4, 1
    s_lshr_b32 s10, s4, 1
    v_bfe_u32 v13, v0, 2, 3
    s_mul_i32 s12, s9, 224
    s_lshl_b32 s13, s10, 3
    s_add_u32 s12, s12, s13
    v_add_u32 v13, s12, v13
    v_lshrrev_b32 v14, 5, v0
    v_and_b32 v15, 3, v0
    v_lshlrev_b32 v15, 4, v15
    v_mul_u32_u24 v{VS_}, 3584, v13
    v_add_u32 v{VS_}, v{VS_}, v15
    v_lshl_add_u32 v{VF_}, v14, 6, v{VS_}
    v_mul_u32_u24 v{VQ}, 2688, v13
    v_mul_u32_u24 v14, 48, v14
    v_add3_u32 v{VQ}, v{VQ}, v14, v15
    v_lshlrev_b32 v{VL16}, 4, v0
    s_lshl_b32 s56, s10, 11
    s_lshl_b32 s12, s9, 10
    s_add_u32 s56, s56, s12
    s_mul_i32 s64, s7, 112
    s_add_u32 s65, s64, 896
    s_cmp_eq_u32 s8, 1
    s_cselect_b32 s12, 0, 1792
    s_cselect_b32 s13, 0, 256
    s_add_u32 s64, s64, s12
    s_mul_i32 s66, s7, 384
    s_add_u32 s66, s66, s13
    s_lshl_b32 s67, s7, 6
    s_add_u32 s67, s67, {48*64}
    """)
    p.label("L_ld_p")
    p("s_waitcnt lgkmcnt(0)")
    if ENV("TLB"):
        TA = 44
        p(f"""
        s_cmp_lg_u32 s4, {ENV("TLBW", 0)}
        s_cbranch_scc1 L_notlb
        v_min_u32 v{TA}, {WS_USED // (2*MB) - 1}, v0
        v_lshlrev_b32 v{TA}, 21, v{TA}
        v_mov_b32 v{TA+1}, s{P_WS+1}
        v_add_co_u32 v{TA}, vcc, s{P_WS}, v{TA}
        v_addc_co_u32 v{TA+1}, vcc, 0, v{TA+1}, vcc
        """)
        bufs = [(P_WG, 448 * 3584), (P_WU, 448 * 3584), (P_WQKV, 448 * 2688), (P_WD, 1792 * 896), (P_WO, 448 * 896),
                (P_OUT, 2048 * 896), (P_DBG, 256), (P_X, 2048 * 896)]
        for i, (b, n) in enumerate(bufs):
            p(f"""
            v_writelane_b32 v{TA}, s{b}, {16+2*i}
            v_writelane_b32 v{TA+1}, s{b+1}, {16+2*i}
            s_add_u32 s12, s{b}, {n-4}
            s_addc_u32 s13, s{b+1}, 0
            v_writelane_b32 v{TA}, s12, {17+2*i}
            v_writelane_b32 v{TA+1}, s13, {17+2*i}
            """)
        p(f"global_load_dword v{TA+2}, {vr(TA,2)}, off")
        p.label("L_notlb")
    srd(p, 36, P_WQKV, 448 * 2688)
    srd(p, 40, P_WG, 448 * 3584)
    srd(p, 72, P_WU, 448 * 3584)
    srd(p, 48, P_WD, 1792 * 896)
    srd(p, 52, P_WO, 448 * 896)

    def phys(c):
        return 8 if c == 0 else 9 if c == 1 else (c + 5) % 8
    PF = 24

    VFQ, TGV, FL = 6, 4, 8
    PB = int(ENV('PB', 17))

    def qkv_poll(emit):
        emit(f"buffer_load_dwordx4 {vr(FL,4)}, v{VL16}, s[44:47], s62 offen sc1")
        emit(f"buffer_load_dwordx4 {vr(FL+4,4)}, v{VL16}, s[44:47], s62 offen offset:1024 sc1")
        emit(f"buffer_load_dwordx4 {vr(FL+8,4)}, v{VFQ}, s[44:47], s63 offen sc1")
    srd(p, 44, P_WS, WS_USED)
    p(f"""
    s_lshl_b32 s62, s5, 12
    s_add_u32 s62, s62, {QKVF}
    s_and_b32 s63, s6, 15
    s_lshl_b32 s63, s63, 6
    s_add_u32 s63, s63, s62
    s_add_u32 s63, s63, 2048
    v_and_b32 v{VFQ}, 3, v0
    v_lshlrev_b32 v{VFQ}, 4, v{VFQ}
    """)

    def stream(kinds):
        spec = {"V": (36, VQ, 64, 0), "Q": (36, VQ, 64, 0), "K": (36, VQ, 65, 0), "G": (40, VF_, 66, 0), "U": (72, VF_, 66, 0),
                "g": (40, VF_, 66, 128), "u": (72, VF_, 66, 128), "S": (40, VS_, 67, 0)}
        stages = [(kinds[ps], sl) for ps in range(5) for sl in range(4)]
        vm = VM(p)
        last = {}
        issued = 0

        nq = 0

        def issue1():
            nonlocal issued, nq
            kind, sl = stages[issued]
            s_, v, col, add = spec[kind]
            stride = 2688 if s_ == 36 else 3584
            q = nq
            p(f"s_add_u32 m0, s56, {phys(issued)*SLOT + q*4096}")
            p(f"s_add_u32 s13, s{col}, {(64*sl + 16*q)*stride + add}")
            if ENV("NOFILL"):
                last[issued] = None
            elif kind == "S":
                p("s_mov_b32 exec_hi, 0")
                vm.op(f"buffer_load_dwordx4 v{v}, s[40:43], s13 offen lds")
                p("s_not_b64 exec, exec")
                last[issued] = vm.op(f"buffer_load_dwordx4 v{v}, s[72:75], s13 offen lds")
                p("s_mov_b64 exec, -1")
            else:
                last[issued] = vm.op(f"buffer_load_dwordx4 v{v}, s[{s_}:{s_+3}], s13 offen lds")
            nq += 1
            if nq == (2 if sl == 3 else 4):
                nq = 0
                issued += 1

        def issue():
            c = issued
            while issued == c:
                issue1()
        if TL:
            p("v_mov_b32 v60, 0")
        tl(p, 0)
        if ENV("WPF", "1") == "1":
            p(f"s_lshl_b32 s13, s2, 2\ns_add_u32 s13, s13, s4\ns_lshl_b32 s13, s13, 10\ns_add_u32 s14, s13, {1 << 20}")
            for r in (36, 40, 72):
                vm.op(f"buffer_load_dwordx4 {vr(PF,4)}, v{VL16}, s[{r}:{r+3}], s13 offen")
                vm.op(f"buffer_load_dwordx4 {vr(PF,4)}, v{VL16}, s[{r}:{r+3}], s14 offen")
        issue(); issue()
        tl(p, 1)
        dbg = ENV("SDBG")
        p(f"s_barrier\ns_barrier\ns_setprio {ENV('SPRIO', 0)}")
        if dbg: stamp(p, 1)
        tl(p, 2)
        issue(); issue()
        vm.need(last[1])
        tl(p, 3)
        p("s_barrier")
        tl(p, 4)
        if dbg: stamp(p, 2)
        issue(); issue()
        if dbg: stamp(p, 3)
        for i in range(1, PB + 2):
            vm.need(last[min(i + 1, 19)])
            if dbg and i == int(dbg): stamp(p, 5)
            tl(p, 3 + 2 * i)
            p("s_barrier")
            tl(p, 4 + 2 * i)
            if dbg and i == int(dbg) - 1: stamp(p, 4)
            if dbg and i == int(dbg): stamp(p, 6)
            budget = 8 if i < 3 else int(ENV("SHORTB", 0)) if i % 4 == 3 else int(ENV("LONGB", 6))
            if i >= 3:
                budget = eval(ENV("BUD", "[0, 6, 6, 2]"))[i % 4]
            elif i % 4 == 0 and kinds[i // 4 - 1] in "VKQ":
                budget = int(ENV("XB", 2))
            while budget > 0:
                if issued < min(20, max(10, i + 8)):
                    budget -= 2 if stages[issued][0] == "S" else 1
                    issue1()
                else:
                    break
            if i == PB:
                p(f"v_mov_b32 v{TGV}, {TAGL}\nds_read_b64 {vr(TGV,2)}, v{TGV}")
                qkv_poll(vm.op)
            if i == int(ENV('PFI', 15)):
                PFMODE = ENV("PFMODE", "chip")
                if PFMODE == "chip":
                    p(f"s_lshl_b32 s13, s2, 2\ns_add_u32 s13, s13, s4\ns_lshl_b32 s14, s13, 11\ns_lshl_b32 s13, s13, 9")
                    vm.op(f"buffer_load_dwordx4 {vr(PF,4)}, v{VL16}, s[48:51], s14 offen")
                    vm.op(f"buffer_load_dwordx4 {vr(PF+4,4)}, v{VL16}, s[48:51], s14 offen offset:1024")
                    vm.op(f"buffer_load_dwordx4 {vr(PF+8,4)}, v{VL16}, s[52:55], s13 offen")
            if ENV("PFMODE", "chip") == "xcd" and 5 <= i < 9:
                k = i - 5
                if k == 0:
                    p(f"s_lshl_b32 s13, s6, 2\ns_add_u32 s13, s13, s4\ns_mul_i32 s57, s13, {13*1024}\ns_lshl_b32 s58, s13, 12")
                    for q in range(4):
                        vm.op(f"buffer_load_dwordx4 {vr(PF+4*q,4)}, v{VL16}, s[52:55], s58 offen offset:{q*1024}")
                    vm.op(f"buffer_load_dwordx4 {vr(PF+16,4)}, v{VL16}, s[48:51], s57 offen")
                    p("s_add_u32 s57, s57, 1024")
                else:
                    for q in range(4):
                        vm.op(f"buffer_load_dwordx4 {vr(PF+4*q,4)}, v{VL16}, s[48:51], s57 offen offset:{q*1024}")
                    p("s_add_u32 s57, s57, 4096")
        assert issued == 20
    p("s_cmp_eq_u32 s8, 1\ns_cbranch_scc1 L_ld_b")
    stream("VKGUS")
    p("s_branch L_ld_done")
    p.label("L_ld_b")
    stream("QGUgu")
    p.label("L_ld_done")
    if not ENV("SDBG"):
        stamp(p, 1)
    tl_dump(p)
    if ENV("STOPB"):
        endpgm(p)
    p(f"""
    s_lshr_b32 s7, s6, 4
    s_lshl_b32 s8, s5, 1
    s_add_u32 s7, s7, s8                ; head
    s_and_b32 s8, s6, 15                ; q block
    """)
    VKV = 2
    p(f"""
    s_lshl_b32 s12, s7, 18
    s_add_u32 s12, s12, {KV_OFF}
    s_lshl_b32 s13, s4, 12              ; s*4096
    v_add_u32 v{VKV}, s13, v{VL16}
    s_lshl_b32 s66, s7, 17
    s_lshl_b32 s3, s8, 13
    s_add_u32 s66, s66, s3
    s_lshl_b32 s3, s4, 11
    s_add_u32 s66, s66, s3
    s_add_u32 s66, s66, {QF_OFF}
    s_add_u32 s67, s3, {QL}
    s_mov_b32 s68, 0                    ; ready
    s_mov_b32 s69, 0
    s_mov_b32 s70, {PB+2}
    s_mov_b32 s71, {SPIN_MAX}
    """)
    srd(p, 36, P_WS, 262144, "s12")
    srd(p, 40, P_WS, WS_USED)
    p.label("L_pl")
    p(f"""
    s_cmp_lg_u32 s68, 0
    s_cbranch_scc1 L_pl_ready
    s_cmp_eq_u32 s70, {PB+2}
    s_cbranch_scc1 L_pl_eval
    s_cmp_lt_u32 s70, 22
    s_cbranch_scc1 L_pl_bar
    L_pl_eval:
    s_waitcnt vmcnt(0) lgkmcnt(0)
    v_cmp_eq_u64 s[76:77], {vr(FL,2)}, {vr(TGV,2)}
    """)
    for k in range(1, 6):
        p(f"v_cmp_eq_u64 vcc, {vr(FL+2*k,2)}, {vr(TGV,2)}\ns_and_b64 s[76:77], s[76:77], vcc")
    p(f"""
    s_sub_u32 s71, s71, 1
    s_cselect_b32 s68, 1, 0
    s_cmp_eq_u64 s[76:77], -1
    s_cselect_b32 s68, 1, s68
    s_cmp_lg_u32 s68, 0
    s_cbranch_scc1 L_pl_q
    """)
    qkv_poll(lambda t: p(t))
    p(f"""
    s_branch L_pl_bar
    L_pl_q:
    s_mov_b32 m0, s67
    s_nop 0
    buffer_load_dwordx4 v{VL16}, s[40:43], s66 offen sc1 lds
    buffer_load_dwordx4 v{VL16}, s[40:43], s66 offen offset:1024 sc1 lds
    s_add_u32 m0, s67, {5*SLOT - QL}
    s_nop 0
    buffer_load_dwordx4 v{VL16}, s[40:43], s66 offen sc1 lds
    buffer_load_dwordx4 v{VL16}, s[40:43], s66 offen offset:1024 sc1 lds
    L_pl_ready:
    s_add_u32 s3, s69, 14
    s_cmp_gt_u32 s3, s70
    s_cbranch_scc1 L_pl_bar
    s_cmp_ge_u32 s69, 4
    s_cbranch_scc1 L_pl_bar
    s_lshl_b32 s14, s69, 14
    s_add_u32 s3, s14, s13
    s_add_u32 m0, s3, {SLOT}
    s_add_u32 s69, s69, 1
    buffer_load_dwordx4 v{VKV}, s[36:39], s14 offen sc1 lds
    buffer_load_dwordx4 v{VKV}, s[36:39], s14 offen offset:1024 sc1 lds
    buffer_load_dwordx4 v{VKV}, s[36:39], s14 offen offset:2048 sc1 lds
    buffer_load_dwordx4 v{VKV}, s[36:39], s14 offen offset:3072 sc1 lds
    s_branch L_pl_ready
    L_pl_bar:
    s_cmp_ge_u32 s70, 22
    s_cbranch_scc1 L_pl_nobar
    s_cmp_lg_u32 s70, 20
    s_cbranch_scc1 L_pl_noinit
    s_cmp_lg_u32 s4, 0
    s_cbranch_scc1 L_pl_noinit
    v_lshlrev_b32 v22, 2, v0
    v_add_u32 v22, {CNT}, v22
    v_mov_b32 v23, 0
    ds_write_b32 v22, v23
    s_waitcnt lgkmcnt(0)
    L_pl_noinit:
    s_barrier
    s_add_u32 s70, s70, 1
    s_branch L_pl
    L_pl_nobar:
    s_cmp_ge_u32 s69, 4
    s_cbranch_scc1 L_pl_done
    s_sleep 4
    s_branch L_pl
    L_pl_done:
    v_mov_b32 v{FL}, {CNT}
    v_mov_b32 v{FL+1}, 1
    s_mov_b64 exec, 1
    s_waitcnt vmcnt(0)
    ds_add_u32 v{FL}, v{FL+1} offset:4
    ds_add_u32 v{FL}, v{FL+1} offset:132
    s_mov_b64 exec, -1
    s_mul_i32 s14, s8, {12*1024}
    s_mul_i32 s3, s4, {3*1024}
    s_add_u32 s14, s14, s3
    s_add_u32 s14, s14, {2*KVS}
    buffer_load_dwordx4 {vr(FL+4,4)}, v{VL16}, s[36:39], s14 offen sc1
    buffer_load_dwordx4 {vr(FL+4,4)}, v{VL16}, s[36:39], s14 offen offset:1024 sc1
    buffer_load_dwordx4 {vr(FL+4,4)}, v{VL16}, s[36:39], s14 offen offset:2048 sc1
    s_cmp_ge_u32 s6, {0 if ENV("NODOWN") else 28}
    s_cbranch_scc1 L_s_end
    s_setprio {ENV("DPRIO", 0)}
    """)
    stamp(p, 2)
    ACC, WF, HB = 8, 72, 88
    VD, VT0, VT1, VX = 2, 3, 6, 7
    GR, XF = 144, 160
    NRING = 7
    p(f"""
    s_and_b32 s9, s6, 3
    s_lshl_b32 s10, s5, 2
    s_add_u32 s9, s9, s10
    s_lshr_b32 s10, s6, 2
    s_lshr_b32 s11, s4, 1
    s_lshl_b32 s57, s9, 1
    s_add_u32 s57, s57, s11
    s_xor_b32 s58, s57, 1
    s_mul_i32 s3, s4, {12*2048}
    s_add_u32 s3, s3, {H_OFF}
    s_mul_i32 s60, s57, 114688
    s_add_u32 s60, s60, s3
    s_mul_i32 s61, s58, 114688
    s_add_u32 s61, s61, s3
    v_bfe_u32 v{VX}, v0, 2, 3
    v_mul_u32_u24 v{VX}, 896, v{VX}
    v_lshrrev_b32 v{VT0}, 5, v0
    v_lshl_add_u32 v{VX}, v{VT0}, 6, v{VX}
    v_and_b32 v{VT0}, 3, v0
    v_lshl_add_u32 v{VX}, v{VT0}, 4, v{VX}
    s_lshl_b32 s14, s10, 7
    v_add_u32 v{VD}, s14, v{VX}
    v_lshrrev_b32 v{VX}, 5, v0
    v_lshlrev_b32 v{VX}, 8, v{VX}
    v_bfe_u32 v{VT0}, v0, 2, 2
    v_lshl_add_u32 v{VX}, v{VT0}, 6, v{VX}
    v_bfe_u32 v{VT0}, v0, 4, 1
    v_lshl_add_u32 v{VX}, v{VT0}, 5, v{VX}
    v_and_b32 v{VT0}, 3, v0
    v_lshl_add_u32 v{VX}, v{VT0}, 3, v{VX}
    s_lshl_b32 s15, s4, 14
    s_add_u32 s15, s15, {PRIV}
    s_and_b32 s3, s4, 1
    s_lshl_b32 s3, s3, 9
    s_add_u32 s3, s3, s15
    v_add_u32 v{VT0}, s3, v{VX}
    v_xor_b32 v{VT1}, 512, v{VT0}
    s_mul_i32 s62, s4, {12*32*896}
    s_mul_i32 s63, s4, -10
    s_add_u32 s63, s63, 48
    s_lshl_b32 s64, s63, 11
    s_add_u32 s65, s64, s61
    s_add_u32 s64, s64, s60
    s_mul_i32 s63, s63, {32*896}
    s_add_u32 s63, s63, s62
    """)
    vm = VM(p)

    order = [0, 1, 6, 7, 4, 5, 10, 11, 2, 3, 8, 9, 12, 13]
    seg_end = [8, 16, 28]
    seg_mask = [0x0000F00F, 0x00F00F00, 0x0F0F00F0]

    def wload(ks):
        sl = ks % NRING
        t = order[ks >> 1]
        base, t = ("s62", t) if t < 12 else ("s63", t - 12)
        for o in range(2):
            p(f"s_add_u32 m0, s15, {sl*2048 + o*1024}")
            p(f"s_add_u32 s14, {base}, {(32*t + 16*(ks&1) + 8*o)*896}")
            wid[ks] = vm.op(f"buffer_load_dwordx4 v{VD}, s[48:51], s14 offen lds")

    def hload(ks):
        sl = ks % NRING
        t = order[ks >> 1]
        (b0, b1), t = (("s60", "s61"), t) if t < 12 else (("s64", "s65"), t - 12)
        off = t * 2048 + (ks & 1) * 1024
        for r, b_ in enumerate((b0, b1)):
            if off >= 4096:
                p(f"s_add_u32 s14, {b_}, {off & ~4095}")
            hid[ks] = vm.op(f"buffer_load_dwordx4 {vr(HB+8*sl+4*r,4)}, v{VL16}, s[40:43], {'s14' if off >= 4096 else b_} offen offset:{off & 4095} sc1")
    wid, hid = {}, {}
    for ks in range(NRING):
        wload(ks)
    VFA, FT = GR, GR + 2
    p(f"""
    v_and_b32 v{VFA}, 31, v0
    v_min_u32 v{VFA}, 27, v{VFA}
    v_cmp_lt_u32 vcc, 23, v{VFA}
    v_lshlrev_b32 v{VFA}, 3, v{VFA}
    s_mul_i32 s3, s4, -160
    s_add_u32 s3, s3, {48*16 - 192}
    v_mov_b32 v{VFA+1}, s3
    v_cndmask_b32 v{VFA+1}, 0, v{VFA+1}, vcc
    v_add_u32 v{VFA}, v{VFA}, v{VFA+1}
    v_lshrrev_b32 v{VFA+1}, 5, v0
    v_lshl_add_u32 v{VFA}, v{VFA+1}, 10, v{VFA}
    s_lshl_b32 s66, s9, 11
    s_mul_i32 s3, s4, 192
    s_add_u32 s66, s66, s3
    s_add_u32 s66, s66, {HFL}
    s_mov_b32 s71, {SPIN_MAX}
    """)

    def hpoll(k):
        label = f"L_hp{k}"
        p(f"s_mov_b32 s68, {seg_mask[k]}\ns_mov_b32 s69, s68")
        p.label(label)
        p(f"""
        buffer_load_dwordx2 {vr(FT,2)}, v{VFA}, s[40:43], s66 offen sc1
        s_sub_u32 s71, s71, 1
        s_waitcnt vmcnt(0)
        v_cmp_eq_u64 vcc, {vr(FT,2)}, {vr(TGV,2)}
        s_cmp_eq_u32 s71, 0
        s_cbranch_scc1 {label}_x
        s_and_b64 vcc, vcc, s[68:69]
        s_cmp_eq_u64 vcc, s[68:69]
        s_cbranch_scc1 {label}_x
        s_sleep 8
        s_branch {label}
        {label}_x:
        """)
        vm.done = vm.n

    def trd(wb, base, a0=VT0, a1=VT1):
        for c, a in enumerate((a0, a1)):
            for b in range(2):
                p(f"ds_read_b64_tr_b16 {vr(wb+4*c+2*b,2)}, v{a} offset:{base + b*1024}")
    LOOK = int(ENV("LOOK", 3))
    seg, hn = 0, 0

    def hfill(done):
        nonlocal hn
        while hn < min(seg_end[seg], done + NRING):
            hload(hn)
            hn += 1
    hpoll(0)
    stamp(p, 3)
    hfill(0)
    trd(WF, 0)
    for ks in range(28):
        sl = ks % NRING
        wb = WF + 8 * (ks & 1)
        if ks + 1 < 28:
            vm.need(wid[ks + 1])
            trd(WF + 8 * ((ks + 1) & 1), ((ks + 1) % NRING) * 2048)
        vm.need(hid[ks])
        p(f"s_waitcnt lgkmcnt({4 if ks + 1 < 28 else 0})")
        for a in range(4):
            ac = vr(ACC + 16 * a, 16)
            p(f"{MFMA} {ac}, {vr(wb+4*(a&1),4)}, {vr(HB+8*sl+4*(a>>1),4)}, {'0' if ks == 0 else ac}")
        if seg < 2 and ks + 1 + LOOK == seg_end[seg]:
            seg += 1
            hpoll(seg)
        hfill(ks + 1)
        if ks + NRING < 28:
            wload(ks + NRING)
    stamp(p, 4)

    def send():
        p(f"v_add_u32 v{VX}, s15, v{VL16}")
        for a in range(1, 4):
            for r in range(4):
                p(f"ds_write_b128 v{VX}, {vr(ACC+16*a+4*r,4)} offset:{(a-1)*4096 + r*1024}")

    def ssync(k):
        p(f"v_mov_b32 v{WF+1}, {CNT_S0 + 4*k}\nv_mov_b32 v{WF+2}, 1")
        p(f"s_mov_b64 exec, 1\ns_waitcnt lgkmcnt(0)\nds_add_u32 v{WF+1}, v{WF+2}\ns_mov_b64 exec, -1")
        lds_spin(p, f"L_ss{k}", f"v{WF+1}", WF, "4", 71)

    def recv():
        for a in range(1, 4):
            p(f"s_xor_b32 s3, s4, {a}\ns_lshl_b32 s3, s3, 14\ns_add_u32 s3, s3, {PRIV + (a-1)*4096}\nv_add_u32 v{VX}, s3, v{VL16}")
            for r in range(4):
                p(f"ds_read_b128 {vr(ACC+16*a+4*r,4)}, v{VX} offset:{r*1024}")

    def addup():
        for a in range(1, 4):
            p(f"s_waitcnt lgkmcnt({4*(3-a)})")
            for r in range(16):
                p(f"v_add_f32 v{ACC+r}, v{ACC+r}, v{ACC+16*a+r}")
    send()
    ssync(0)
    recv()
    addup()
    ssync(1)
    p(f"s_mul_i32 s62, s4, {112*896}")
    for o in range(14):
        p(f"s_add_u32 m0, s15, {o*1024}")
        p(f"s_add_u32 s14, s62, {8*o*896}")
        p(f"buffer_load_dwordx4 v{VD}, s[52:55], s14 offen lds")
    srd(p, 44, P_X, 2048 * 896)
    p(f"""
    v_and_b32 v{VX}, 31, v0
    s_lshl_b32 s14, s57, 5
    v_add_u32 v{VX}, s14, v{VX}
    v_mul_u32_u24 v{VX}, 896, v{VX}
    v_lshrrev_b32 v{VD}, 5, v0
    v_lshl_add_u32 v{VX}, v{VD}, 3, v{VX}
    s_and_b32 s14, s4, 1
    s_lshl_b32 s14, s14, 6
    s_lshl_b32 s3, s10, 7
    s_add_u32 s14, s14, s3
    v_add_u32 v{VD}, s14, v{VX}
    """)
    for g4 in range(4):
        p(f"buffer_load_dwordx2 {vr(XF+2*g4,2)}, v{VD}, s[44:47], 0 offen offset:{16*g4}")
    T = ACC + 16
    p(f"s_mov_b32 s3, {f32(-LOG2E)}")
    for i in range(16):
        p(f"v_mul_f32 v{T+i}, s3, v{ACC+i}")
    for i in range(16):
        p(f"v_exp_f32 v{T+i}, v{T+i}")
    for i in range(16):
        p(f"v_add_f32 v{T+i}, 1.0, v{T+i}")
    for i in range(16):
        p(f"v_rcp_f32 v{T+i}, v{T+i}")
    GREG = [GR + i for i in range(16)]
    for i in range(16):
        p(f"v_mul_f32 v{GREG[i]}, v{ACC+i}, v{T+i}")
    if ENV("DUMP_G"):
        for i in range(8):
            p(f"v_cvt_pk_bf16_f32 v{T+i}, v{GREG[2*i]}, v{GREG[2*i+1]}")
        p(f"""
        s_mul_i32 s14, s57, {14*2048}
        s_lshl_b32 s3, s10, 1
        s_and_b32 s63, s4, 1
        s_add_u32 s3, s3, s63
        s_lshl_b32 s3, s3, 11
        s_add_u32 s14, s14, s3
        s_add_u32 s14, s14, {G_OFF}
        buffer_store_dwordx4 {vr(T,4)}, v{VL16}, s[40:43], s14 offen
        buffer_store_dwordx4 {vr(T+4,4)}, v{VL16}, s[40:43], s14 offen offset:1024
        """)
    p(f"""
    v_and_b32 v{VX}, 3, v0
    v_lshlrev_b32 v{VX}, 3, v{VX}
    v_bfe_u32 v{WF}, v0, 2, 1
    v_lshl_add_u32 v{VX}, v{WF}, 7, v{VX}
    s_lshl_b32 s14, s9, 8
    s_lshl_b32 s3, s4, 5
    s_add_u32 s14, s14, s3
    s_add_u32 s14, s14, {OFL}
    s_mov_b32 s71, {SPIN_MAX}
    s_lshl_b32 s3, s4, 13
    s_add_u32 s3, s3, {O_OFF}
    s_lshl_b32 s60, s57, 15
    s_add_u32 s60, s60, s3
    s_lshl_b32 s61, s58, 15
    s_add_u32 s61, s61, s3
    s_add_u32 s62, s60, 4096
    s_add_u32 s63, s61, 4096
    """)
    stamp(p, 5)
    p.label("L_op")
    p(f"""
    buffer_load_dwordx2 {vr(WF,2)}, v{VX}, s[40:43], s14 offen sc1
    s_sub_u32 s71, s71, 1
    s_waitcnt vmcnt(0)
    v_cmp_eq_u64 vcc, {vr(WF,2)}, {vr(TGV,2)}
    s_cmp_eq_u32 s71, 0
    s_cbranch_scc1 L_op_x
    s_cmp_eq_u64 vcc, -1
    s_cbranch_scc1 L_op_x
    s_sleep 1
    s_branch L_op
    L_op_x:
    """)
    stamp(p, 6)
    vm = VM(p)
    OB = HB
    oid = {}

    def oload(kk, r):
        sreg = (("s60", "s61"), ("s62", "s63"))[kk >> 2][r]
        slot = (2 * kk + r) % 14
        oid[(kk, r)] = vm.op(f"buffer_load_dwordx4 {vr(OB+4*slot,4)}, v{VL16}, s[40:43], {sreg} offen offset:{(kk&3)*1024} sc1")
    for kk in range(7):
        oload(kk, 0); oload(kk, 1)

    def wrd(kk):
        hh, s_ = kk >> 1, kk & 1
        row = 28 * hh - 4 * (hh & 1) + 16 * s_
        trd(WF + 8 * (kk & 1), (row >> 3) * 1024)
    wrd(0)
    for kk in range(8):
        if kk + 1 < 8:
            wrd(kk + 1)
        wb = WF + 8 * (kk & 1)
        p(f"s_waitcnt lgkmcnt({4 if kk + 1 < 8 else 0})")
        for a in range(4):
            vm.need(oid[(kk, a >> 1)])
            ac = vr(ACC + 16 * a, 16)
            p(f"{MFMA} {ac}, {vr(wb+4*(a&1),4)}, {vr(OB+4*((2*kk+(a>>1))%14),4)}, {'0' if kk == 0 else ac}")
        if kk == 0:
            oload(7, 0); oload(7, 1)
    send()
    srd(p, 44, P_OUT, 2048 * 896)
    XE = HB
    for i in range(8):
        p(f"v_lshlrev_b32 v{XE+2*i}, 16, v{XF+i}")
        p(f"v_and_b32 v{XE+2*i+1}, 0xffff0000, v{XF+i}")
    ssync(2)
    recv()
    addup()
    for i in range(16):
        p(f"v_fma_f32 v{ACC+i}, v{ACC+i}, v{GREG[i]}, v{XE+i}")
    pack16(p, WF, ACC)
    for g4 in range(4):
        p(f"buffer_store_dwordx2 {vr(WF+2*g4,2)}, v{VD}, s[44:47], 0 offen offset:{16*g4}")
    p.label("L_s_end")
    endpgm(p)


def main():
    ref = open("cdna_kernels/" + NAME + ".s.ref").read().split("\n")
    head = [l for l in ref if l.startswith(";") and "@launch" not in l and "Override launch" not in l and "grid=ceil" not in l]
    p = Prog()
    gen(p)
    body = p.finalize()
    out = head[:]
    out.append("; @launch grid=(256,1,1) block=(768,1,1) lds=163840")
    out.append('.amdgcn_target "amdgcn-amd-amdhsa--gfx950"\n.text')
    out.append(body)
    out.append(f""".section .rodata,"a"
.p2align 6
.amdhsa_kernel {KN}
  .amdhsa_next_free_vgpr 168
  .amdhsa_next_free_sgpr 100
  .amdhsa_accum_offset 168
  .amdhsa_group_segment_fixed_size 0
  .amdhsa_kernarg_size 80
  .amdhsa_user_sgpr_count 2
  .amdhsa_user_sgpr_kernarg_segment_ptr 1
  .amdhsa_system_sgpr_workgroup_id_x 1
.end_amdhsa_kernel""")
    if ENV("PLAINLD"):
        import re
        out = [re.sub(r"(buffer_load_dwordx4 .*) sc1( lds)?$", r"\1\2", l, flags=re.M) if "s[44:47], s6" not in l else l for l in "\n".join(out).split("\n")]
    path = sys.argv[1] if len(sys.argv) > 1 else "cdna_kernels/" + NAME + ".s"
    open(path, "w").write("\n".join(out) + "\n")
    print("wrote", path, "nops inserted:", p.total_nops)


main()
```

```python
import math, struct, sys, os
from asmlib import Prog

NAME = "recurrent_scan__mha_block__geglu_ffn__prompt"
KN = NAME + "_kernel"
MB = 1 << 20
QF_OFF, KV_OFF, H_OFF, O_OFF, G_OFF = 0, 2 * MB, 6 * MB, 13 * MB, 15 * MB
FLAG_OFF = 17 * MB
QKVF, HFL, OFL = FLAG_OFF, FLAG_OFF + 65536, FLAG_OFF + 131072
WS_USED = 18 * MB
LOG2E = math.log2(math.e)
QSCALE = LOG2E / math.sqrt(28.0)
SPIN_MAX = 1 << 12
ENV = os.environ.get
STAMPS = bool(ENV("STAMPS"))
STAMP_OFF = 24 * MB
MFMA = "v_mfma_f32_32x32x16_bf16"
P_X, P_WQKV, P_WO, P_WG, P_WU, P_WD, P_OUT, P_DBG, P_WS = 16, 18, 20, 24, 26, 28, 30, 32, 34
SLOT = 16384
EXB = 8 * SLOT
TAGL = 4 * SLOT + 8192
QL = 8192
PRIV = 6 * SLOT
CNT = PRIV + 15360
CNT_COMB, CNT_S0 = CNT + 64, CNT + 100
KVS = 32768
CNT_TAG = CNT + 224


def f32(x):
    return "0x%08x" % struct.unpack("<I", struct.pack("<f", x))[0]


def vr(b, n=1):
    return f"v{b}" if n == 1 else f"v[{b}:{b+n-1}]"


def srd(p, d, base, nrec, add=None):
    if add is None:
        p(f"s_mov_b32 s{d}, s{base}\ns_mov_b32 s{d+1}, s{base+1}")
    else:
        p(f"s_add_u32 s{d}, s{base}, {add}\ns_addc_u32 s{d+1}, s{base+1}, 0")
    p(f"s_mov_b32 s{d+2}, {nrec}\ns_mov_b32 s{d+3}, 0x20000")


def pack16(p, dst, src):
    for i in range(8):
        p(f"v_cvt_pk_bf16_f32 v{dst+i}, v{src+2*i}, v{src+2*i+1}")


def stamp_txt(i):
    if STAMPS and not (ENV("CB") and i < 7):
        assert i < 8
        return [f"{ENV('STAMP_INS', 's_memrealtime')} s[{80+2*i}:{81+2*i}]"]
    return []


def stamp(p, i):
    for x in stamp_txt(i):
        p(x)


TL = bool(ENV("TL"))


def tl(p, idx):
    if TL:
        p(f"{ENV('STAMP_INS', 's_memrealtime')} s[94:95]\ns_waitcnt lgkmcnt(0)\nv_writelane_b32 v60, s94, {idx}")


def tl_dump(p):
    if TL:
        p(f"""
        s_lshl_b32 s94, s2, 4
        s_add_u32 s94, s94, s59
        s_lshl_b32 s94, s94, 8
        s_add_u32 s94, s94, {STAMP_OFF + MB}
        s_mov_b32 s96, s{P_WS}
        s_mov_b32 s97, s{P_WS+1}
        s_mov_b32 s98, {32*MB}
        s_mov_b32 s99, 0x20000
        v_lshlrev_b32 v61, 2, v0
        buffer_store_dword v60, v61, s[96:99], s94 offen
        """)


def endpgm(p):
    if STAMPS and ENV("DBGMAX"):
        stamp(p, 7)
        p(f"""
        s_mov_b64 exec, -1
        s_mov_b32 s96, s{P_DBG}
        s_mov_b32 s97, s{P_DBG+1}
        s_mov_b32 s98, 256
        s_mov_b32 s99, 0x20000
        buffer_load_dword v10, off, s[96:99], 0 sc1
        s_waitcnt vmcnt(0) lgkmcnt(0)
        """)
        for i in range(8):
            p(f"v_writelane_b32 v8, s{80+2*((i+1) % 8)}, {i}")
        p(f"""
        v_cmp_ne_u32 vcc, 0, v8
        v_sub_u32 v8, v8, v10
        v_add_u32 v8, 1000, v8
        v_cndmask_b32 v8, 0, v8, vcc
        s_cmp_ge_u32 s59, 8
        s_cselect_b32 s4, 36, 8
        v_mbcnt_lo_u32_b32 v9, -1, 0
        v_lshlrev_b32 v9, 2, v9
        s_mov_b64 exec, 0x7f
        buffer_atomic_umax v8, v9, s[96:99], s4 offen
        s_waitcnt vmcnt(0)
        """)
    elif STAMPS:
        stamp(p, 7)
        p("s_waitcnt vmcnt(0) lgkmcnt(0)\ns_mov_b64 exec, -1")
        for i in range(8):
            p(f"v_writelane_b32 v8, s{80+2*i}, {i}")
        p(f"""
        s_lshl_b32 s4, s2, 4
        s_add_u32 s4, s4, s59
        s_lshl_b32 s4, s4, 5
        s_add_u32 s4, s4, {STAMP_OFF}
        s_mov_b32 s96, s{P_WS}
        s_mov_b32 s97, s{P_WS+1}
        s_mov_b32 s98, {32*MB}
        s_mov_b32 s99, 0x20000
        v_mbcnt_lo_u32_b32 v9, -1, 0
        v_lshlrev_b32 v9, 2, v9
        s_mov_b64 exec, 0xff
        buffer_store_dword v8, v9, s[96:99], s4 offen
        """)
    p("s_endpgm")


class DS:
    def __init__(self, pending):
        self.n, self.done = pending, 0

    def op(self):
        self.n += 1
        return self.n - 1

    def need(self, i):
        if i < self.done:
            return []
        self.done = i + 1
        return [f"s_waitcnt lgkmcnt({min(15, self.n - 1 - i)})"]


class VM:
    def __init__(self, p):
        self.p, self.n, self.done = p, 0, 0

    def op(self, txt):
        self.p(txt)
        self.n += 1
        return self.n - 1

    def need(self, i):
        if i is None or i < self.done:
            return
        self.done = i + 1
        k = self.n - 1 - i
        assert k <= 63
        self.p(f"s_waitcnt vmcnt({k})")


def cost(ins):
    c = 0
    for l in ins.strip().split("\n"):
        m = l.strip().split()[0]
        c += 8 if m.startswith(("v_exp", "v_rcp", "v_rsq", "ds_")) else 16 if m.startswith("buffer_") else 4
    return c


def lds_spin(p, label, addr_v, tmp, want, sreg, wide=False):
    p(f"s_mov_b32 s{sreg}, {SPIN_MAX*8}")
    p.label(label)
    if wide:
        p(f"ds_read_b64 {vr(tmp,2)}, {addr_v}\ns_sub_u32 s{sreg}, s{sreg}, 1\ns_waitcnt lgkmcnt(0)\nv_cmp_ne_u64 vcc, {want}, {vr(tmp,2)}")
    else:
        p(f"ds_read_b32 v{tmp}, {addr_v}\ns_sub_u32 s{sreg}, s{sreg}, 1\ns_waitcnt lgkmcnt(0)\nv_cmp_ne_u32 vcc, {want}, v{tmp}")
    p(f"""
    s_cmp_eq_u32 s{sreg}, 0
    s_cbranch_scc1 {label}_x
    s_cmp_eq_u64 vcc, 0
    s_cbranch_scc1 {label}_x
    s_sleep 1
    s_branch {label}
    {label}_x:
    """)


def gen(p):
    p(f".globl {KN}\n.p2align 8\n.type {KN},@function")
    p.label(KN)
    S_W, S_RG, S_HF, S_RB, S_RT = 59, 60, 61, 62, 63
    p(f"""
    s_cmp_ge_u32 s2, 256
    s_cbranch_scc1 L_exit
    s_load_dwordx16 s[16:31], s[0:1], 0
    s_load_dwordx4 s[32:35], s[0:1], 64
    """)
    if STAMPS:
        for i in range(16):
            p(f"s_mov_b32 s{80+i}, 0")
        stamp(p, 0)
    p(f"""
    v_lshrrev_b32 v2, 6, v0
    v_and_b32 v0, 63, v0
    v_readfirstlane_b32 s{S_W}, v2
    s_and_b32 s5, s2, 7                 ; xcd
    s_lshr_b32 s6, s2, 3                ; j
    s_and_b32 s7, s5, 3
    s_lshl_b32 s7, s7, 2
    s_and_b32 s8, s6, 3
    s_add_u32 s{S_RB}, s7, s8           ; rb = 4*(x&3) + (j&3)
    s_lshr_b32 s7, s5, 2
    s_lshl_b32 s7, s7, 3
    s_lshr_b32 s8, s6, 2
    s_add_u32 s7, s7, s8                ; cg = 8*(x>>2) + (j>>2)
    s_and_b32 s8, s7, 1
    s_lshr_b32 s7, s7, 1
    s_cmp_ge_u32 s{S_W}, 8
    s_cbranch_scc1 L_service
    """)
    gen_c(p, S_W, S_RG, S_HF, S_RB, S_RT)
    p.label("L_service")
    gen_s(p, S_W)
    p.label("L_exit")
    p("s_endpgm")


def gen_c(p, S_W, S_RG, S_HF, S_RB, S_RT):
    VL16, VA, VB, VTRL, VEX, VEXP, VST = 1, 2, 3, 4, 5, 6, 7
    X, SA, SB, G, WF, T = 8, 64, 96, 128, 144, 160
    p(f"""
    s_and_b32 s{S_RG}, s{S_W}, 3
    s_lshr_b32 s{S_HF}, s{S_W}, 2
    s_xor_b32 s{S_HF}, s{S_HF}, s8
    v_lshrrev_b32 v12, 2, v0            ; r16
    v_lshrrev_b32 v13, 4, v0            ; r16>>2
    v_xor_b32 v13, v13, v0
    v_and_b32 v13, 3, v13
    v_mul_u32_u24 v12, 896, v12
    v_lshl_add_u32 v12, v13, 4, v12
    s_lshl_b32 s9, s{S_RB}, 2
    s_add_u32 s{S_RT}, s9, s{S_RG}
    s_mul_i32 s9, s{S_RT}, {32*896}
    s_mul_i32 s10, s{S_HF}, 448
    s_add_u32 s9, s9, s10
    v_add_u32 v12, s9, v12
    s_mul_i32 s10, s{S_W}, 14336
    s_mov_b32 s11, {16*896}
    s_waitcnt lgkmcnt(0)
    """)
    srd(p, 44, P_DBG, 256)
    p(f"""
    s_add_u32 s12, s2, s{S_W}
    s_cmp_lg_u32 s12, 0
    s_cbranch_scc1 L_notagw
    s_memrealtime s[12:13]
    s_waitcnt lgkmcnt(0)
    s_or_b32 s12, s12, 1
    v_mov_b32 v16, s12
    v_mov_b32 v17, s13
    s_mov_b64 exec, 1
    buffer_store_dwordx2 v[16:17], off, s[44:47], 0 sc1
    s_mov_b64 exec, -1
    L_notagw:
    """)
    srd(p, 36, P_X, 2048 * 896)
    for cb in range(7):
        for rh in range(2):
            p(f"s_add_u32 m0, s10, {(rh*7+cb)*1024 - 64*cb}")
            p(f"buffer_load_dwordx4 v12, s[36:39], {'s11' if rh else '0'} offen offset:{64*cb} lds")
    srd(p, 40, P_WS, WS_USED)
    VXA, VXB, SUM, SQ, ONES, RS, NM, TG = T, T + 1, T + 2, T + 3, T + 4, G, G + 1, G + 2
    U = SB
    STAT = 7 * SLOT
    c0 = -2.0 * math.sqrt(2.0 / math.pi) * LOG2E
    c1 = c0 * 0.044715
    al = -((-c1) ** (1.0 / 3.0))
    p(f"""
    v_lshlrev_b32 v{VL16}, 4, v0
    s_lshl_b32 s3, s{S_HF}, 4
    v_xor_b32 v15, s3, v0
    v_lshlrev_b32 v{VST}, 4, v15
    s_lshl_b32 s12, s{S_HF}, 10
    v_add_u32 v{VST}, s12, v{VST}
    v_lshrrev_b32 v13, 5, v0
    v_lshlrev_b32 v13, 11, v13
    v_bfe_u32 v14, v0, 2, 2
    v_lshl_add_u32 v13, v14, 6, v13
    v_bfe_u32 v14, v15, 4, 1
    v_lshl_add_u32 v13, v14, 5, v13
    v_and_b32 v14, 3, v0
    v_lshl_add_u32 v13, v14, 3, v13
    s_lshl_b32 s12, s{S_HF}, 10
    v_add_u32 v{VTRL}, s12, v13
    v_add_u32 v{VA}, {8*SLOT}, v{VTRL}
    v_add_u32 v{VB}, {9*SLOT}, v{VTRL}
    s_lshl_b32 s12, s{S_W}, 12
    s_add_u32 s12, s12, {EXB}
    v_add_u32 v{VEX}, s12, v{VL16}
    v_xor_b32 v{VEXP}, 0x4100, v{VEX}
    v_bfe_u32 v13, v15, 4, 1
    v_mul_u32_u24 v13, 7168, v13
    v_and_b32 v14, 15, v0
    v_lshl_add_u32 v13, v14, 6, v13
    v_lshrrev_b32 v14, 5, v0            ; h
    v_bfe_u32 v15, v0, 2, 2             ; swz
    v_xor_b32 v14, v14, v15
    v_lshl_add_u32 v{VXA}, v14, 4, v13
    v_xor_b32 v14, 2, v14
    v_lshl_add_u32 v{VXB}, v14, 4, v13
    v_add_u32 v{VXA}, s10, v{VXA}
    v_add_u32 v{VXB}, s10, v{VXB}
    v_mov_b32 v{SUM}, 0
    v_mov_b32 v{SQ}, 0
    v_mov_b32 v{ONES}, 0x3f803f80
    s_mov_b32 s66, 0xffff0000
    s_mov_b32 s64, {f32(al)}
    s_mov_b32 s65, {f32(c0 / c1 * al * al)}
    v_and_b32 v{U+2}, 31, v0
    v_lshlrev_b32 v{U+2}, 3, v{U+2}
    s_lshl_b32 s12, s{S_W}, 8
    s_add_u32 s12, s12, {STAT}
    v_add_u32 v{U+3}, s12, v{U+2}
    v_xor_b32 v{U+2}, {1024+128}, v{U+3}
    """)
    p(f"""
    s_cmp_eq_u32 s8, 1
    s_cselect_b32 s69, {f32(QSCALE)}, 1.0
    s_cselect_b32 s4, 18, 19
    s_cselect_b32 s15, {QF_OFF}, {KV_OFF}
    s_cselect_b32 s73, 2048, 0
    s_cselect_b32 s14, 0, 4
    s_lshl_b32 s67, s7, s4
    s_sub_u32 s4, s4, 1
    s_lshl_b32 s68, 1, s4
    s_sub_u32 s4, s4, 6
    s_lshl_b32 s4, s{S_RT}, s4
    s_add_u32 s67, s67, s4
    s_add_u32 s67, s67, s15
    s_add_u32 s68, s68, s67
    s_add_u32 s72, s67, 2048
    s_add_u32 s75, s68, 2048
    s_lshl_b32 s12, s7, 12
    s_lshl_b32 s13, s{S_RT}, 4
    s_add_u32 s12, s12, s13
    s_lshl_b32 s13, s{S_HF}, 3
    s_add_u32 s12, s12, s13
    s_add_u32 s12, s12, {QKVF}          ; flags: [pair][K,V,Q][rowtile][hf]
    s_add_u32 s73, s73, s12
    s_add_u32 s74, s12, 1024
    s_mul_i32 s12, s7, 6
    s_add_u32 s14, s14, s12             ; first f tile
    s_add_u32 s58, s7, 48
    s_sub_u32 s58, s58, s14
    s_sub_u32 s58, s58, 2               ; from the tile after the first quad to the single tile (type A)
    s_lshl_b32 s70, s14, 11
    s_mul_i32 s4, s{S_RT}, 114688
    s_add_u32 s70, s70, s4
    s_add_u32 s70, s70, {H_OFF}
    s_lshl_b32 s71, s14, 4
    s_lshl_b32 s4, s{S_RT}, 10
    s_add_u32 s71, s71, s4
    s_add_u32 s71, s71, s13
    s_add_u32 s71, s71, {HFL}           ; flags: [rowtile][ftile][hf]
    ; pad masks: even head pads n=28..31 (hf=1 waves), odd head pads n=0..3 (hf=0 waves)
    s_cmp_eq_u32 s{S_HF}, 1
    s_mov_b32 s52, 0
    s_cselect_b32 s53, -1, 0            ; q/k even head: packed regs 2,3
    s_cselect_b32 s54, 0, -1            ; q/k odd head: packed regs 0,1
    s_mov_b32 s55, 0
    s_cselect_b32 s56, 0xf000, 0xf0000000 {';'} v even head: zero lanes
    """.replace("s_cselect_b32 s56, 0xf000, 0xf0000000 ;", "s_mov_b32 s56, 0xf0000000\n    s_cselect_b32 s56, 0xf000, s56 ;") + f"""
    s_mov_b32 s57, s56
    s_cselect_b32 s48, 0xf0000, 15      ; v odd head: zero lanes
    s_mov_b32 s49, s48
    s_lshr_b32 s50, s56, 3
    s_and_b32 s50, s50, s56             ; lowest lane of each group: the ones column
    s_mov_b32 s51, s50
    s_lshr_b32 s46, s48, 3
    s_and_b32 s46, s46, s48
    s_mov_b32 s47, s46
    """.replace("s46", "s78").replace("s47", "s79"))
    stamp(p, 1)

    def stat(cb):
        for d in range(8):
            r = X + 8 * cb + d
            p(f"v_dot2c_f32_bf16 v{SUM}, v{r}, v{ONES}")
            p(f"v_dot2c_f32_bf16 v{SQ}, v{r}, v{r}")
    for cb in range(7):
        p(f"s_waitcnt vmcnt({12 - 2*cb})")
        p(f"ds_read_b128 {vr(X+8*cb,4)}, v{VXA} offset:{cb*1024}")
        p(f"ds_read_b128 {vr(X+8*cb+4,4)}, v{VXB} offset:{cb*1024}")
        if cb:
            p("s_waitcnt lgkmcnt(2)")
            stat(cb - 1)
    p("s_waitcnt lgkmcnt(0)")
    stat(6)
    p(f"""
    v_mov_b32 v{U}, v{SUM}
    v_mov_b32 v{U+1}, v{SQ}
    v_permlane32_swap_b32 v{SUM}, v{U}
    v_permlane32_swap_b32 v{SQ}, v{U+1}
    v_add_f32 v{SUM}, v{SUM}, v{U}
    v_add_f32 v{SQ}, v{SQ}, v{U+1}
    ds_write_b64 v{U+3}, {vr(SUM,2)}
    s_waitcnt lgkmcnt(0)
    s_barrier
    ds_read_b64 {vr(U,2)}, v{U+2}
    s_waitcnt lgkmcnt(0)
    s_barrier
    v_add_f32 v{SUM}, v{SUM}, v{U}
    v_add_f32 v{SQ}, v{SQ}, v{U+1}
    v_mul_f32 v{SUM}, {f32(1.0/448)}, v{SUM}        ; mean
    v_mul_f32 v{SQ}, {f32(1.0/448)}, v{SQ}
    v_fma_f32 v{SQ}, -v{SUM}, v{SUM}, v{SQ}         ; var
    v_max_f32 v{SQ}, 0, v{SQ}
    v_add_f32 v{SQ}, {f32(1e-5)}, v{SQ}
    v_rsq_f32 v{RS}, v{SQ}                          ; rstd
    v_mul_f32 v{SUM}, v{SUM}, v{RS}
    v_sub_f32 v{NM}, 0, v{SUM}                      ; -mean*rstd
    """)
    stamp(p, 2)

    def normalise(kl):
        e = []
        tb = U + 8 * (kl & 1)
        for d in range(4):
            e += [f"v_lshlrev_b32 v{tb+2*d}, 16, v{X+4*kl+d}", f"v_and_b32 v{tb+2*d+1}, s66, v{X+4*kl+d}"]
        e += [f"v_fma_f32 v{tb+i}, v{tb+i}, v{RS}, v{NM}" for i in range(8)]
        e += [f"v_cvt_pk_bf16_f32 v{X+4*kl+d}, v{tb+2*d}, v{tb+2*d+1}" for d in range(4)]
        return e
    NPRE = int(ENV("NPRE", 3))
    for kl in range(NPRE):
        for i in normalise(kl):
            p(i)
    if ENV("CPRIO") == "young":
        p(f"s_cmp_lt_u32 s{S_W}, 4\ns_cbranch_scc1 L_noprio\ns_setprio 1\nL_noprio:")
    p("s_barrier")
    NB = 4

    def phys(c):
        return 8 if c == 0 else 9 if c == 1 else (c + 5) % 8

    def st(r, sreg):
        return f"buffer_store_dwordx4 {vr(r,4)}, v{VST}, s[40:43], s{sreg} offen sc1"

    def st2(r, sreg):
        return f"buffer_store_dwordx4 {vr(r,4)}, v{VST}, s[40:43], s{sreg} offen offset:2048 sc1"

    def flag(sreg, two=False):
        if ENV("NOFLAG"):
            return ["s_nop 0"]
        return [f"s_waitcnt vmcnt(0)\ns_mov_b64 exec, 1\nbuffer_store_dwordx2 v[0:1], off, s[40:43], s{sreg} sc1\n"
                + (f"buffer_store_dwordx2 v[0:1], off, s[40:43], s{sreg} offset:16 sc1\n" if two else "") + "s_mov_b64 exec, -1"]

    def epi_qk(acc):
        e = []
        for t in range(2):
            a = acc + 16 * t
            e += [f"v_mul_f32 v{a+i}, s69, v{a+i}" for i in range(8)]
            e += [f"v_cvt_pk_bf16_f32 v{T+4*t+i}, v{a+2*i}, v{a+2*i+1}" for i in range(4)]
            z = T + 2 if t == 0 else T + 4
            e += [f"s_mov_b64 exec, s[{52+2*t}:{53+2*t}]\nv_mov_b32 v{z}, 0\nv_mov_b32 v{z+1}, 0\ns_mov_b64 exec, -1"]
            e.append(st(T + 4 * t, 67 + t))
        return e

    def epi_v(acc):
        e = []
        for t in range(2):
            a = acc + 16 * t
            zm, om = ((56, 50), (48, 78))[t]
            e += [f"v_cvt_pk_bf16_f32 v{T+4*t+i}, v{a+2*i}, v{a+2*i+1}" for i in range(4)]
            e += [f"s_mov_b64 exec, s[{zm}:{zm+1}]\n" + "".join(f"v_mov_b32 v{T+4*t+i}, 0\n" for i in range(4))
                  + f"s_mov_b64 exec, s[{om}:{om+1}]\n"
                  + "".join(f"v_mov_b32 v{T+4*t+i}, 0x3f803f80\n" for i in range(4)) + "s_mov_b64 exec, -1"]
            e.append(st(T + 4 * t, (72, 75)[t]))
        return e

    def gelu(g, qs):
        e = []
        for q in qs:
            r = g[4 * q:4 * q + 4]
            t = [T + i for i in range(4)]
            u = [T + 4 + i for i in range(4)]
            e += [f"v_mul_f32 v{t[i]}, s64, v{r[i]}" for i in range(4)]
            e += [f"v_fma_f32 v{u[i]}, v{t[i]}, v{t[i]}, s65" for i in range(4)]
            e += [f"v_mul_f32 v{t[i]}, v{t[i]}, v{u[i]}" for i in range(4)]
            e += [f"v_exp_f32 v{t[i]}, v{t[i]}" for i in range(4)]
            e += [f"v_add_f32 v{t[i]}, 1.0, v{t[i]}" for i in range(4)]
            e += [f"v_rcp_f32 v{t[i]}, v{t[i]}" for i in range(4)]
            e += [f"v_mul_f32 v{r[i]}, v{r[i]}, v{t[i]}" for i in range(4)]
        return e
    GG = [G + i for i in range(16)]

    def prod2(acc):
        e = []
        for t in range(2):
            a = acc + 16 * t
            e += [f"v_mul_f32 v{a+i}, v{a+i}, v{G+8*t+i}" for i in range(8)]
            e += [f"v_cvt_pk_bf16_f32 v{T+4*t+i}, v{a+2*i}, v{a+2*i+1}" for i in range(4)]
            e.append((st, st2)[t](T + 4 * t, 70))
        return e + ["s_add_u32 s70, s70, 4096"]

    def epi_s(acc):
        g = [acc + i for i in range(8)]
        e = gelu(g, [0, 1])
        e += [f"v_mul_f32 v{g[i]}, v{g[i]}, v{acc+16+i}" for i in range(8)]
        e += [f"v_cvt_pk_bf16_f32 v{T+i}, v{g[2*i]}, v{g[2*i+1]}" for i in range(4)]
        return e + [st(T, 70)]

    tag_ld = [f"s_cmp_lg_u32 s{S_W}, 7\ns_cbranch_scc1 L_tl_@\n"
              f"buffer_load_dwordx2 {vr(TG,2)}, off, s[44:47], 0 sc1\nL_tl_@:"]
    tag_pub = [f"s_cmp_lg_u32 s{S_W}, 7\ns_cbranch_scc1 L_tp_@\ns_mov_b32 s12, {SPIN_MAX}\nL_tq_@:\ns_waitcnt vmcnt(0)\n"
               f"v_cmp_ne_u32 vcc, 0, v{TG}\ns_sub_u32 s12, s12, 1\ns_cbranch_scc1 L_tr_@\ns_cmp_lg_u64 vcc, 0\ns_cbranch_scc1 L_tr_@\n"
               f"buffer_load_dwordx2 {vr(TG,2)}, off, s[44:47], 0 sc1\ns_branch L_tq_@\nL_tr_@:\n"
               f"v_mov_b32 v{TG+2}, {TAGL}\nds_write_b64 v{TG+2}, {vr(TG,2)}\n"
               "s_waitcnt lgkmcnt(0)\nL_tp_@:"]
    XE = ([2, 3, 4, 5], [7, 8, 9, 10])
    XL = eval(ENV('XWR', '[2, 3, 4, 5], [7, 8, 9, 10]'))
    xreg = lambda acc, i: acc + 16 * (i >> 1) + 8 + 4 * (i & 1)

    def stream(kind):
        N = 140
        types = "VKGUS" if kind == "A" else "QGUGU"
        acc = [SA, SB, SA, SB, SA]
        win = []

        def W(a, b, ins):
            win.append((a, b, ins))
        for kl in range(NPRE, 14):
            W(2 * (kl - NPRE), 2 * (kl - NPRE) + 2, normalise(kl))
        W(8, 9, [x.replace("@", kind) for x in tag_ld])
        W(34, 35, [x.replace("@", kind) for x in tag_pub])
        FD = int(ENV("FLAGD", 13))
        E0, E1 = XE[1][-1] + 4, XL[1][-1] + 4
        hf2 = flag(71, True) + ["s_add_u32 s71, s71, 32"]
        if ENV("NOEPI"):
            pass
        elif kind == "A":
            W(28 + E0, 28 + E0 + 6, epi_v(SA))
            W(56 + FD, 56 + FD + 1, flag(74))
            W(56 + E0, 56 + E0 + 6, epi_qk(SB))
            W(84 + FD - 6, 84 + FD - 5, flag(73))
            W(84 + E1, 112 + E1 - 2, gelu(GG, [0, 1, 2, 3]))
            W(112 + E1, 140, prod2(SB) + ["s_lshl_b32 s12, s58, 11\ns_add_u32 s70, s70, s12"])
        else:
            W(28 + E0, 28 + E0 + 6, epi_qk(SA))
            W(56 + FD - 6, 56 + FD - 5, flag(73))
            W(56 + E1, 84 + E1 - 2, gelu(GG, [0, 1, 2, 3]))
            W(84 + E1, 112, prod2(SA))
            W(112 + E0 - 1, 112 + E0, hf2)
            W(112 + E0, 140, gelu(GG, [0, 1]) + gelu(GG, [2])[:12])
        xform = [None] + [XL if (types[ps - 1] in "GU" and not (kind == "B" and ps == 4)) else XE for ps in range(1, 5)]
        per = [[] for _ in range(N)]
        for (a, b, ins) in win:
            tot = sum(cost(i) for i in ins)
            c = 0
            for i in ins:
                g = a + min(b - a - 1, int((c + cost(i) / 2) * (b - a) / tot))
                per[g].append(i)
                c += cost(i)
        ds = DS(0)
        frag = {}
        out = []

        def rd(n):
            c = n // 28 * 4 + (n % 28 >> 3)
            j = n % 28
            imm = ((j >> 1) & 3) * 4096 + (j & 1) * 512
            b = WF + 4 * (n % NB)
            a = VA if c % 2 == 0 else VB
            out.extend([f"ds_read_b64_tr_b16 {vr(b,2)}, v{a} offset:{imm}", f"ds_read_b64_tr_b16 {vr(b+2,2)}, v{a} offset:{imm+256}"])
            ds.op()
            frag[n] = ds.op()
            nn = n + 1
            cn = nn // 28 * 4 + (nn % 28 >> 3)
            if cn != c and c + 2 < 20:
                out.append(f"v_add_u32 v{a}, {phys(c+2)*SLOT}, v{VTRL}")
        for n in range(NB):
            rd(n)
        wr = tagr = None
        rdx = {}
        for g in range(N):
            ps, j = divmod(g, 28)
            if g % 2 == 0:
                out += ds.need(frag[g + 1])
            w = vr(WF + 4 * (g % NB), 4)
            x = vr(X + 4 * (j >> 1), 4)
            a, b = (x, w) if types[ps] == "V" else (w, x)
            ac = vr(acc[ps] + 16 * (j & 1), 16)
            out.append(f"{MFMA} {ac}, {a}, {b}, {'0' if j < 2 else ac}")
            prev = acc[ps - 1] if ps else None
            XW, XR = xform[ps] if ps else ([], [])
            XB = XR[0] if ps else None
            if j in (7, 15, 23, 27) and g != N - 1:
                if j == XB and ps:
                    out += ds.need(wr)
                out.append("s_barrier")
                if ENV("CB"):
                    bi = ps * 4 + (7, 15, 23, 27).index(j) + 1 - int(ENV("CB"))
                    if 0 <= bi < 7:
                        out.append(f"s_memtime s[{80+2*bi}:{81+2*bi}]")
                if g == 35:
                    out.append(f"v_mov_b32 v0, {TAGL}\nds_read_b64 v[0:1], v0")
                    tagr = ds.op()
            if g + NB < N:
                rd(g + NB)
            if ps and j in XW:
                i = XW.index(j)
                if len(XW) == 4:
                    out.append(f"ds_write_b128 v{VEX}, {vr(xreg(prev, i),4)} offset:{1024*i}")
                else:
                    out.append(f"ds_write_b64 v{VEX}, {vr(xreg(prev, i >> 1) + 2*(i & 1),2)} offset:{1024*(i >> 1) + 8*(i & 1)}")
                wr = ds.op()
            if ps and j in XR:
                i = XR.index(j)
                out.append(f"ds_read_b128 {vr(xreg(prev, i),4)}, v{VEXP} offset:{1024*i}")
                rdx[i] = ds.op()
            if ps and j - 3 in XR:
                i = XR.index(j - 3)
                out += ds.need(rdx[i])
                r = xreg(prev, i)
                d = G + 4 * i if types[ps - 1] == "G" else r - 8
                out += [f"v_add_f32 v{d+k}, v{r-8+k}, v{r+k}" for k in range(4)]
            out += per[g]
            if ENV("CPRIO") == "tog":
                out.insert(len(out) - len(per[g]) - (2 if g + NB < N else 0), "s_setprio 0")
                out.append("s_setprio 1")
            if g == 27:
                out += stamp_txt(3)
        if ENV("NOXCHG"):
            out = [i for i in out if not i.startswith(("ds_write_b128", "ds_read_b128", "v_add_f32"))]
        if ENV("NOTR"):
            out = [i for i in out if not i.startswith("ds_read_b64_tr")]
        for i in out:
            p(i)
    def tail(pre, mid, post):
        stamp(p, 4)
        for i in pre:
            p(i)
        for i in range(4):
            p(f"ds_write_b128 v{VEX}, {vr(xreg(SA, i),4)} offset:{1024*i}")
        for i in mid[:12]:
            p(i)
        p("s_waitcnt lgkmcnt(0)\ns_barrier")
        for i in range(4):
            p(f"ds_read_b128 {vr(xreg(SA, i),4)}, v{VEXP} offset:{1024*i}")
        for i in mid[12:]:
            p(i)
        p("s_waitcnt lgkmcnt(0)\ns_barrier")
        for i in range(4):
            r = xreg(SA, i)
            for k in range(4):
                p(f"v_add_f32 v{r-8+k}, v{r-8+k}, v{r+k}")
        for i in post:
            p(i)
    p("s_cmp_eq_u32 s8, 1\ns_cbranch_scc1 L_btype")
    stream("A")
    tail([], [], epi_s(SA) + [flag(71, True)[0].replace("vmcnt(0)", "vmcnt(1)"),
                              "s_lshl_b32 s58, s58, 4\ns_add_u32 s71, s58, s71\ns_add_u32 s71, s71, 32\ns_mov_b32 s58, s71"])
    p("s_branch L_bdone")
    p.label("L_btype")
    stream("B")
    tail(gelu(GG, [2])[12:], gelu(GG, [3]), prod2(SA) + ["s_add_u32 s58, s71, 16"])
    p.label("L_bdone")
    p(f"""
    v_and_b32 v{VEXP}, 1023, v{VEX}
    v_mov_b32 v{T}, v0
    v_mov_b32 v{T+1}, v1
    v_mov_b32 v{VL16}, v{VEXP}
    """)
    if ENV("STOPB"):
        stamp(p, 5)
        endpgm(p)
    Q, KF, VF, S0, S1, PP, O = 8, 16, 24, 32, 48, 64, 72
    VCUR, VNXT, VKV, VCN, VONE, CK, E3 = 2, 3, 5, 6, 88, 90, 94
    p(f"""
    s_lshr_b32 s7, s6, 4
    s_lshl_b32 s8, s5, 1
    s_add_u32 s7, s7, s8                ; head
    s_and_b32 s8, s6, 15                ; q block
    s_lshl_b32 s11, s8, 2
    s_add_u32 s11, s11, s{S_RG}         ; q tile (0..63)
    s_lshl_b32 s12, s7, 18
    s_add_u32 s12, s12, {KV_OFF}
    s_lshl_b32 s46, s{S_HF}, 14         ; kh*16384
    v_add_u32 v{VCUR}, s46, v{VL16}
    v_add_u32 v{VNXT}, {3*SLOT}, v{VCUR}
    v_add_u32 v{VCUR}, {1*SLOT}, v{VCUR}
    s_cmp_eq_u32 s{S_HF}, 0
    s_cselect_b32 s47, {5*SLOT}, 0
    s_cselect_b32 s3, s47, {QL}
    s_lshl_b32 s13, s{S_RG}, 12         ; rg*4096
    v_add_u32 v{VKV}, s13, v{VL16}
    s_add_u32 s14, s46, {2*KVS}
    s_lshl_b32 s4, s{S_HF}, 7
    s_add_u32 s4, s4, {CNT}
    v_mov_b32 v{VCN}, s4
    v_mov_b32 v{VONE}, 1
    v_mov_b32 v{VONE+1}, 0
    s_mov_b32 s48, 1                    ; iteration
    s_mov_b32 s49, 0
    s_mov_b32 s50, 4
    s_mov_b32 s51, 4
    s_lshl_b32 s4, s{S_RG}, 11
    s_add_u32 s3, s3, s4
    v_add_u32 v{CK+2}, s3, v{VL16}
    """)
    srd(p, 36, P_WS, 262144, "s12")
    for r in list(range(PP, PP + 8)) + list(range(O, O + 16)) + list(range(E3, E3 + 4)):
        p(f"v_mov_b32 v{r}, 0")
    lds_spin(p, "L_w0", f"v{VCN} offset:4", CK, "4", 52)
    stamp(p, 5)
    p(f"""
    ds_read_b128 {vr(Q,4)}, v{CK+2}
    ds_read_b128 {vr(Q+4,4)}, v{CK+2} offset:1024
    ds_read_b128 {vr(KF,4)}, v{VCUR}
    ds_read_b128 {vr(KF+4,4)}, v{VCUR} offset:1024
    s_waitcnt lgkmcnt(0)
    {MFMA} {vr(S0,16)}, {vr(KF,4)}, {vr(Q,4)}, 0
    {MFMA} {vr(S0,16)}, {vr(KF+4,4)}, {vr(Q+4,4)}, {vr(S0,16)}
    ds_read_b128 {vr(KF,4)}, v{VCUR} offset:4096
    ds_read_b128 {vr(KF+4,4)}, v{VCUR} offset:5120
    ds_read_b128 {vr(VF+4,4)}, v{VCUR} offset:3072
    ds_read_b128 {vr(VF,4)}, v{VCUR} offset:2048
    s_nop 5
    """)

    def phase(k, mf, rd, sc, sp, extra=""):
        if k % 2 == 0:
            p("s_waitcnt lgkmcnt(2)")
        p(mf)
        p(rd)
        src, pk = (E3, 3) if k == 0 else (sc + 4 * (k - 1), k - 1)
        dst = E3 if k == 3 else sc + 4 * k
        e = [f"v_exp_f32 v{dst+i}, v{sc+4*k+i}" for i in range(4)]
        c = [f"v_cvt_pk_bf16_f32 v{PP+2*pk+i}, v{src+2*i}, v{src+2*i+1}" for i in range(2)]
        for x in (e[0], c[0], e[1], c[1]):
            p(x)
        if extra:
            p(extra)
        p(e[2]); p(e[3])

    def ta(u, off):
        return f"v{VCUR} offset:{u*4096+off}" if u < 4 else f"v{VNXT} offset:{(u-4)*4096+off}"

    def body(first, tag):
        sig = f"""
        s_mov_b64 exec, 1
        {'' if first else 's_waitcnt vmcnt(0)'}
        ds_add_u64 v{VCN}, {vr(VONE,2)}
        s_mov_b64 exec, -1
        """
        for u in range(4):
            sc, sn = (S0, S1) if u % 2 == 0 else (S1, S0)
            if u == 2:
                p(f"""
                s_waitcnt lgkmcnt(1)
                v_cmp_ne_u64 vcc, s[50:51], {vr(CK,2)}
                s_add_u32 m0, s47, s13
                s_cmp_lg_u64 vcc, 0
                s_cbranch_scc1 L_a_spin{tag}
                L_a_go{tag}:
                """)
                if first:
                    p(f"""
                    s_mov_b64 exec, 1
                    s_waitcnt vmcnt(0)
                    buffer_store_dwordx2 {vr(T,2)}, off, s[40:43], s71 sc1
                    buffer_store_dwordx2 {vr(T,2)}, off, s[40:43], s58 sc1
                    s_mov_b64 exec, -1
                    v_mov_b32 v{VONE+1}, 1
                    """)
                else:
                    p(f"s_cmp_gt_u32 s48, 5\ns_cbranch_scc1 L_a_nofill")
                for q in range(4):
                    p(f"buffer_load_dwordx4 v{VKV}, s[36:39], s14 offen offset:{q*1024} sc1 lds")
                p(f"s_add_u32 s14, s14, {KVS}")
                if not first:
                    p.label("L_a_nofill")
            phase(0, f"{MFMA} {vr(sn,16)}, {vr(KF,4)}, {vr(Q,4)}, 0", f"ds_read_b128 {vr(KF,4)}, {ta(u+2, 0)}", sc, sn)
            phase(1, f"{MFMA} {vr(sn,16)}, {vr(KF+4,4)}, {vr(Q+4,4)}, {vr(sn,16)}",
                  f"ds_read_b128 {vr(KF+4,4)}, {ta(u+2, 1024)}", sc, sn)
            phase(2, f"{MFMA} {vr(O,16)}, {vr(VF+4,4)}, {vr(PP+4,4)}, {vr(O,16)}",
                  f"ds_read_b128 {vr(VF+4,4)}, {ta(u, 3072)}", sc, sn,
                  f"ds_read_b64 {vr(CK,2)}, v{VCN}" if u == 1 else "")
            ex = sig if u == 0 else ""
            if u == 3:
                ex = f"""
                v_mov_b32 v{VCUR}, v{VNXT}
                v_add_u32 v{VNXT}, s47, v{VL16}
                v_add_u32 v{VCN}, 8, v{VCN}
                s_add_u32 s47, s47, {2*SLOT}
                s_cmp_ge_u32 s47, {6*SLOT}
                s_cselect_b32 s3, {6*SLOT}, 0
                s_sub_u32 s47, s47, s3
                """
                if not first:
                    ex += "s_add_u32 s48, s48, 1\ns_cmp_lt_u32 s48, 8"
            phase(3, f"{MFMA} {vr(O,16)}, {vr(VF,4)}, {vr(PP,4)}, {vr(O,16)}",
                  f"ds_read_b128 {vr(VF,4)}, {ta(u+1, 2048)}", sc, sn, ex)
    body(True, "f")
    p(".p2align 6")
    p.label("L_aloop")
    body(False, "")
    p("s_cbranch_scc1 L_aloop\ns_branch L_a_done")
    for tag in ("f", ""):
        p.label("L_a_spin" + tag)
        lds_spin(p, "L_a_sp" + tag, f"v{VCN}", CK, "s[50:51]", 52, wide=True)
        p("s_branch L_a_go" + tag)
    p.label("L_a_done")
    stamp(p, 6)
    p(f"""
    v_cvt_pk_bf16_f32 v{PP+6}, v{E3}, v{E3+1}
    v_cvt_pk_bf16_f32 v{PP+7}, v{E3+2}, v{E3+3}
    s_waitcnt lgkmcnt(0)
    {MFMA} {vr(O,16)}, {vr(VF+4,4)}, {vr(PP+4,4)}, {vr(O,16)}
    s_lshl_b32 s46, s{S_RG}, 12
    s_lshl_b32 s3, s{S_HF}, 14
    s_add_u32 s46, s46, s3
    s_add_u32 s46, s46, {SLOT}
    v_add_u32 v3, s46, v{VL16}
    s_lshl_b32 s3, s{S_RG}, 3
    s_add_u32 s3, s3, {CNT_COMB}
    v_mov_b32 v{VCN}, s3
    s_mov_b64 exec, 1
    ds_add_rtn_u32 v{CK}, v{VCN}, v{VONE}
    s_mov_b64 exec, -1
    s_waitcnt lgkmcnt(0)
    v_readfirstlane_b32 s3, v{CK}
    s_cmp_lg_u32 s3, 0
    s_cbranch_scc1 L_acomb
    """)
    for i in range(4):
        p(f"ds_write_b128 v3, {vr(O+4*i,4)} offset:{1024*i}")
    p(f"""
    s_mov_b64 exec, 1
    s_waitcnt lgkmcnt(0)
    ds_add_u32 v{VCN}, v{VONE} offset:4
    s_waitcnt lgkmcnt(0)
    """)
    endpgm(p)
    p.label("L_acomb")
    p(f"v_xor_b32 v3, {3*SLOT}, v3")
    lds_spin(p, "L_cw", f"v{VCN} offset:4", CK, "1", 52)
    for i in range(4):
        p(f"ds_read_b128 {vr(S0+4*i,4)}, v3 offset:{1024*i}")
    for q in range(4):
        p(f"s_waitcnt lgkmcnt({3-q})")
        for i in range(4 * q, 4 * q + 4):
            p(f"v_add_f32 v{O+i}, v{O+i}, v{S0+i}")
    p.label("L_afin")
    T2 = S1
    p(f"""
    s_mov_b32 s50, {f32(2.0**-60)}
    s_mov_b32 s51, {f32(2.0**100)}
    s_bitcmp1_b32 s7, 0
    s_cbranch_scc1 L_f_odd
    v_mov_b32 v{T2}, v{O+12}
    v_mov_b32 v{T2+1}, v{O+12}
    v_permlane32_swap_b32 v{T2}, v{T2+1}
    s_mov_b32 exec_lo, 0
    v_mov_b32 v{O+12}, 0
    v_mov_b32 v{O+13}, 0
    v_mov_b32 v{O+14}, 0
    v_mov_b32 v{O+15}, 0
    s_branch L_f_join
    L_f_odd:
    v_mov_b32 v{T2}, v{O}
    v_mov_b32 v{T2+1}, v{O}
    v_permlane32_swap_b32 v{T2+1}, v{T2}
    s_mov_b32 exec_hi, 0
    v_mov_b32 v{O}, 0
    v_mov_b32 v{O+1}, 0
    v_mov_b32 v{O+2}, 0
    v_mov_b32 v{O+3}, 0
    L_f_join:
    s_mov_b64 exec, -1
    v_rcp_f32 v{T2+2}, v{T2+1}
    v_cmp_ge_f32 s[52:53], v{T2+1}, s50
    v_cmp_le_f32 s[54:55], v{T2+1}, s51
    """)
    for i in range(16):
        p(f"v_mul_f32 v{O+i}, v{O+i}, v{T2+2}")
    p(f"v_mul_f32 v{T2+3}, 0, v{O}")
    for i in range(1, 16):
        p(f"v_fmac_f32 v{T2+3}, 0, v{O+i}")
    pack16(p, PP, O)
    p(f"""
    v_cmp_eq_f32 s[56:57], 0, v{T2+3}
    s_and_b64 s[52:53], s[52:53], s[54:55]
    s_lshl_b32 s45, s11, 15             ; rowtile*32K
    s_lshl_b32 s46, s7, 11              ; head*2K
    s_add_u32 s45, s45, s46
    s_add_u32 s45, s45, {O_OFF}
    s_and_b64 s[52:53], s[52:53], s[56:57]
    s_cmp_eq_u64 s[52:53], -1
    s_cbranch_scc1 L_aok
    s_cmp_eq_u32 s49, 0x5afe
    s_cbranch_scc0 L_fallback
    """)
    p.label("L_aok")
    p(f"""
    buffer_store_dwordx4 {vr(PP,4)}, v{VL16}, s[40:43], s45 offen sc1
    buffer_store_dwordx4 {vr(PP+4,4)}, v{VL16}, s[40:43], s45 offen offset:1024 sc1
    s_lshl_b32 s45, s11, 7
    s_lshl_b32 s46, s7, 3
    s_add_u32 s45, s45, s46
    s_add_u32 s45, s45, {OFL}
    s_mov_b64 exec, 1
    s_waitcnt vmcnt(0)
    buffer_store_dwordx2 {vr(T,2)}, off, s[40:43], s45 sc1
    """)
    endpgm(p)
    p.label("L_fallback")
    M, MN, AL, TM, T3 = 100, 101, 102, 103, 104
    p("s_mov_b32 s49, 0x5afe")
    for i in range(16):
        p(f"v_mov_b32 v{O+i}, 0")
    p(f"v_mov_b32 v{M}, 0xff800000\ns_mov_b32 s14, 0")
    p.label("L_fbloop")
    p(f"""
    buffer_load_dwordx4 {vr(KF,4)}, v{VL16}, s[36:39], s14 offen sc1
    buffer_load_dwordx4 {vr(KF+4,4)}, v{VL16}, s[36:39], s14 offen offset:1024 sc1
    buffer_load_dwordx4 {vr(VF,4)}, v{VL16}, s[36:39], s14 offen offset:2048 sc1
    buffer_load_dwordx4 {vr(VF+4,4)}, v{VL16}, s[36:39], s14 offen offset:3072 sc1
    s_waitcnt vmcnt(2)
    {MFMA} {vr(S0,16)}, {vr(KF,4)}, {vr(Q,4)}, 0
    {MFMA} {vr(S0,16)}, {vr(KF+4,4)}, {vr(Q+4,4)}, {vr(S0,16)}
    v_max3_f32 v{TM}, v{S0}, v{S0+1}, v{S0+2}
    """)
    for i in range(3, 15, 2):
        p(f"v_max3_f32 v{TM}, v{S0+i}, v{S0+i+1}, v{TM}")
    p(f"""
    v_max_f32 v{TM}, v{S0+15}, v{TM}
    v_mov_b32 v{T3}, v{TM}
    v_permlane32_swap_b32 v{TM}, v{T3}
    v_max3_f32 v{MN}, v{TM}, v{T3}, v{M}
    v_sub_f32 v{AL}, v{M}, v{MN}
    v_exp_f32 v{AL}, v{AL}
    v_mov_b32 v{M}, v{MN}
    """)
    for i in range(16):
        p(f"v_sub_f32 v{S0+i}, v{S0+i}, v{MN}")
    for i in range(16):
        p(f"v_exp_f32 v{S0+i}, v{S0+i}")
    for i in range(16):
        p(f"v_mul_f32 v{O+i}, v{O+i}, v{AL}")
    pack16(p, PP, S0)
    p(f"""
    s_waitcnt vmcnt(0)
    {MFMA} {vr(O,16)}, {vr(VF,4)}, {vr(PP,4)}, {vr(O,16)}
    {MFMA} {vr(O,16)}, {vr(VF+4,4)}, {vr(PP+4,4)}, {vr(O,16)}
    s_add_u32 s14, s14, 4096
    s_cmp_lt_u32 s14, 262144
    s_cbranch_scc1 L_fbloop
    s_branch L_afin
    """)


def gen_s(p, S_W):
    VL16, VQ, VF_, VS_ = 1, 2, 3, 7
    p(f"""
    s_sub_u32 s4, s{S_W}, 8
    s_and_b32 s9, s4, 1
    s_lshr_b32 s10, s4, 1
    v_bfe_u32 v13, v0, 2, 3
    s_mul_i32 s12, s9, 224
    s_lshl_b32 s13, s10, 3
    s_add_u32 s12, s12, s13
    v_add_u32 v13, s12, v13
    v_lshrrev_b32 v14, 5, v0
    v_and_b32 v15, 3, v0
    v_lshlrev_b32 v15, 4, v15
    v_mul_u32_u24 v{VS_}, 3584, v13
    v_add_u32 v{VS_}, v{VS_}, v15
    v_lshl_add_u32 v{VF_}, v14, 6, v{VS_}
    v_mul_u32_u24 v{VQ}, 2688, v13
    v_mul_u32_u24 v14, 48, v14
    v_add3_u32 v{VQ}, v{VQ}, v14, v15
    v_lshlrev_b32 v{VL16}, 4, v0
    s_lshl_b32 s56, s10, 11
    s_lshl_b32 s12, s9, 10
    s_add_u32 s56, s56, s12
    s_mul_i32 s64, s7, 112
    s_add_u32 s65, s64, 896
    s_cmp_eq_u32 s8, 1
    s_cselect_b32 s12, 0, 1792
    s_cselect_b32 s13, 0, 256
    s_add_u32 s64, s64, s12
    s_mul_i32 s66, s7, 384
    s_add_u32 s66, s66, s13
    s_lshl_b32 s67, s7, 6
    s_add_u32 s67, s67, {48*64}
    """)
    p.label("L_ld_p")
    p("s_waitcnt lgkmcnt(0)")
    if ENV("TLB"):
        TA = 44
        p(f"""
        s_cmp_lg_u32 s4, {ENV("TLBW", 0)}
        s_cbranch_scc1 L_notlb
        v_min_u32 v{TA}, {WS_USED // (2*MB) - 1}, v0
        v_lshlrev_b32 v{TA}, 21, v{TA}
        v_mov_b32 v{TA+1}, s{P_WS+1}
        v_add_co_u32 v{TA}, vcc, s{P_WS}, v{TA}
        v_addc_co_u32 v{TA+1}, vcc, 0, v{TA+1}, vcc
        """)
        bufs = [(P_WG, 448 * 3584), (P_WU, 448 * 3584), (P_WQKV, 448 * 2688), (P_WD, 1792 * 896), (P_WO, 448 * 896),
                (P_OUT, 2048 * 896), (P_DBG, 256), (P_X, 2048 * 896)]
        for i, (b, n) in enumerate(bufs):
            p(f"""
            v_writelane_b32 v{TA}, s{b}, {16+2*i}
            v_writelane_b32 v{TA+1}, s{b+1}, {16+2*i}
            s_add_u32 s12, s{b}, {n-4}
            s_addc_u32 s13, s{b+1}, 0
            v_writelane_b32 v{TA}, s12, {17+2*i}
            v_writelane_b32 v{TA+1}, s13, {17+2*i}
            """)
        p(f"global_load_dword v{TA+2}, {vr(TA,2)}, off")
        p.label("L_notlb")
    srd(p, 36, P_WQKV, 448 * 2688)
    srd(p, 40, P_WG, 448 * 3584)
    srd(p, 72, P_WU, 448 * 3584)
    srd(p, 48, P_WD, 1792 * 896)
    srd(p, 52, P_WO, 448 * 896)

    def phys(c):
        return 8 if c == 0 else 9 if c == 1 else (c + 5) % 8
    PF = 24

    VFQ, TGV, FL = 6, 4, 8
    PB = int(ENV('PB', 17))

    def qkv_poll(emit):
        emit(f"buffer_load_dwordx4 {vr(FL,4)}, v{VL16}, s[44:47], s62 offen sc1")
        emit(f"buffer_load_dwordx4 {vr(FL+4,4)}, v{VL16}, s[44:47], s62 offen offset:1024 sc1")
        emit(f"buffer_load_dwordx4 {vr(FL+8,4)}, v{VFQ}, s[44:47], s63 offen sc1")
    srd(p, 44, P_WS, WS_USED)
    p(f"""
    s_lshl_b32 s62, s5, 12
    s_add_u32 s62, s62, {QKVF}
    s_and_b32 s63, s6, 15
    s_lshl_b32 s63, s63, 6
    s_add_u32 s63, s63, s62
    s_add_u32 s63, s63, 2048
    v_and_b32 v{VFQ}, 3, v0
    v_lshlrev_b32 v{VFQ}, 4, v{VFQ}
    """)

    def stream(kinds):
        spec = {"V": (36, VQ, 64, 0), "Q": (36, VQ, 64, 0), "K": (36, VQ, 65, 0), "G": (40, VF_, 66, 0), "U": (72, VF_, 66, 0),
                "g": (40, VF_, 66, 128), "u": (72, VF_, 66, 128), "S": (40, VS_, 67, 0)}
        stages = [(kinds[ps], sl) for ps in range(5) for sl in range(4)]
        vm = VM(p)
        last = {}
        issued = 0

        nq = 0

        def issue1():
            nonlocal issued, nq
            kind, sl = stages[issued]
            s_, v, col, add = spec[kind]
            stride = 2688 if s_ == 36 else 3584
            q = nq
            p(f"s_add_u32 m0, s56, {phys(issued)*SLOT + q*4096}")
            p(f"s_add_u32 s13, s{col}, {(64*sl + 16*q)*stride + add}")
            if ENV("NOFILL"):
                last[issued] = None
            elif kind == "S":
                p("s_mov_b32 exec_hi, 0")
                vm.op(f"buffer_load_dwordx4 v{v}, s[40:43], s13 offen lds")
                p("s_not_b64 exec, exec")
                last[issued] = vm.op(f"buffer_load_dwordx4 v{v}, s[72:75], s13 offen lds")
                p("s_mov_b64 exec, -1")
            else:
                last[issued] = vm.op(f"buffer_load_dwordx4 v{v}, s[{s_}:{s_+3}], s13 offen lds")
            nq += 1
            if nq == (2 if sl == 3 else 4):
                nq = 0
                issued += 1

        def issue():
            c = issued
            while issued == c:
                issue1()
        if TL:
            p("v_mov_b32 v60, 0")
        tl(p, 0)
        if ENV("WPF", "1") == "1":
            p(f"s_lshl_b32 s13, s2, 2\ns_add_u32 s13, s13, s4\ns_lshl_b32 s13, s13, 10\ns_add_u32 s14, s13, {1 << 20}")
            for r in (36, 40, 72):
                vm.op(f"buffer_load_dwordx4 {vr(PF,4)}, v{VL16}, s[{r}:{r+3}], s13 offen")
                vm.op(f"buffer_load_dwordx4 {vr(PF,4)}, v{VL16}, s[{r}:{r+3}], s14 offen")
        issue(); issue()
        tl(p, 1)
        dbg = ENV("SDBG")
        p(f"s_barrier\ns_barrier\ns_setprio {ENV('SPRIO', 0)}")
        if dbg: stamp(p, 1)
        tl(p, 2)
        issue(); issue()
        vm.need(last[1])
        tl(p, 3)
        p("s_barrier")
        tl(p, 4)
        if dbg: stamp(p, 2)
        issue(); issue()
        if dbg: stamp(p, 3)
        for i in range(1, PB + 2):
            vm.need(last[min(i + 1, 19)])
            if dbg and i == int(dbg): stamp(p, 5)
            tl(p, 3 + 2 * i)
            p("s_barrier")
            tl(p, 4 + 2 * i)
            if dbg and i == int(dbg) - 1: stamp(p, 4)
            if dbg and i == int(dbg): stamp(p, 6)
            budget = 8 if i < 3 else int(ENV("SHORTB", 0)) if i % 4 == 3 else int(ENV("LONGB", 6))
            if i >= 3:
                budget = eval(ENV("BUD", "[0, 6, 6, 2]"))[i % 4]
            elif i % 4 == 0 and kinds[i // 4 - 1] in "VKQ":
                budget = int(ENV("XB", 2))
            while budget > 0:
                if issued < min(20, max(10, i + 8)):
                    budget -= 2 if stages[issued][0] == "S" else 1
                    issue1()
                else:
                    break
            if i == PB:
                p(f"v_mov_b32 v{TGV}, {TAGL}\nds_read_b64 {vr(TGV,2)}, v{TGV}")
                qkv_poll(vm.op)
            if i == int(ENV('PFI', 15)):
                PFMODE = ENV("PFMODE", "chip")
                if PFMODE == "chip":
                    p(f"s_lshl_b32 s13, s2, 2\ns_add_u32 s13, s13, s4\ns_lshl_b32 s14, s13, 11\ns_lshl_b32 s13, s13, 9")
                    vm.op(f"buffer_load_dwordx4 {vr(PF,4)}, v{VL16}, s[48:51], s14 offen")
                    vm.op(f"buffer_load_dwordx4 {vr(PF+4,4)}, v{VL16}, s[48:51], s14 offen offset:1024")
                    vm.op(f"buffer_load_dwordx4 {vr(PF+8,4)}, v{VL16}, s[52:55], s13 offen")
            if ENV("PFMODE", "chip") == "xcd" and 5 <= i < 9:
                k = i - 5
                if k == 0:
                    p(f"s_lshl_b32 s13, s6, 2\ns_add_u32 s13, s13, s4\ns_mul_i32 s57, s13, {13*1024}\ns_lshl_b32 s58, s13, 12")
                    for q in range(4):
                        vm.op(f"buffer_load_dwordx4 {vr(PF+4*q,4)}, v{VL16}, s[52:55], s58 offen offset:{q*1024}")
                    vm.op(f"buffer_load_dwordx4 {vr(PF+16,4)}, v{VL16}, s[48:51], s57 offen")
                    p("s_add_u32 s57, s57, 1024")
                else:
                    for q in range(4):
                        vm.op(f"buffer_load_dwordx4 {vr(PF+4*q,4)}, v{VL16}, s[48:51], s57 offen offset:{q*1024}")
                    p("s_add_u32 s57, s57, 4096")
        assert issued == 20
    p("s_cmp_eq_u32 s8, 1\ns_cbranch_scc1 L_ld_b")
    stream("VKGUS")
    p("s_branch L_ld_done")
    p.label("L_ld_b")
    stream("QGUgu")
    p.label("L_ld_done")
    if not ENV("SDBG"):
        stamp(p, 1)
    tl_dump(p)
    if ENV("STOPB"):
        endpgm(p)
    p(f"""
    s_lshr_b32 s7, s6, 4
    s_lshl_b32 s8, s5, 1
    s_add_u32 s7, s7, s8                ; head
    s_and_b32 s8, s6, 15                ; q block
    """)
    VKV = 2
    p(f"""
    s_lshl_b32 s12, s7, 18
    s_add_u32 s12, s12, {KV_OFF}
    s_lshl_b32 s13, s4, 12              ; s*4096
    v_add_u32 v{VKV}, s13, v{VL16}
    s_lshl_b32 s66, s7, 17
    s_lshl_b32 s3, s8, 13
    s_add_u32 s66, s66, s3
    s_lshl_b32 s3, s4, 11
    s_add_u32 s66, s66, s3
    s_add_u32 s66, s66, {QF_OFF}
    s_add_u32 s67, s3, {QL}
    s_mov_b32 s68, 0                    ; ready
    s_mov_b32 s69, 0
    s_mov_b32 s70, {PB+2}
    s_mov_b32 s71, {SPIN_MAX}
    """)
    srd(p, 36, P_WS, 262144, "s12")
    srd(p, 40, P_WS, WS_USED)
    p.label("L_pl")
    p(f"""
    s_cmp_lg_u32 s68, 0
    s_cbranch_scc1 L_pl_ready
    s_cmp_eq_u32 s70, {PB+2}
    s_cbranch_scc1 L_pl_eval
    s_cmp_lt_u32 s70, 22
    s_cbranch_scc1 L_pl_bar
    L_pl_eval:
    s_waitcnt vmcnt(0) lgkmcnt(0)
    v_cmp_eq_u64 s[76:77], {vr(FL,2)}, {vr(TGV,2)}
    """)
    for k in range(1, 6):
        p(f"v_cmp_eq_u64 vcc, {vr(FL+2*k,2)}, {vr(TGV,2)}\ns_and_b64 s[76:77], s[76:77], vcc")
    p(f"""
    s_sub_u32 s71, s71, 1
    s_cselect_b32 s68, 1, 0
    s_cmp_eq_u64 s[76:77], -1
    s_cselect_b32 s68, 1, s68
    s_cmp_lg_u32 s68, 0
    s_cbranch_scc1 L_pl_q
    """)
    qkv_poll(lambda t: p(t))
    p(f"""
    s_branch L_pl_bar
    L_pl_q:
    s_mov_b32 m0, s67
    s_nop 0
    buffer_load_dwordx4 v{VL16}, s[40:43], s66 offen sc1 lds
    buffer_load_dwordx4 v{VL16}, s[40:43], s66 offen offset:1024 sc1 lds
    s_add_u32 m0, s67, {5*SLOT - QL}
    s_nop 0
    buffer_load_dwordx4 v{VL16}, s[40:43], s66 offen sc1 lds
    buffer_load_dwordx4 v{VL16}, s[40:43], s66 offen offset:1024 sc1 lds
    L_pl_ready:
    s_add_u32 s3, s69, 14
    s_cmp_gt_u32 s3, s70
    s_cbranch_scc1 L_pl_bar
    s_cmp_ge_u32 s69, 4
    s_cbranch_scc1 L_pl_bar
    s_lshl_b32 s14, s69, 14
    s_add_u32 s3, s14, s13
    s_add_u32 m0, s3, {SLOT}
    s_add_u32 s69, s69, 1
    buffer_load_dwordx4 v{VKV}, s[36:39], s14 offen sc1 lds
    buffer_load_dwordx4 v{VKV}, s[36:39], s14 offen offset:1024 sc1 lds
    buffer_load_dwordx4 v{VKV}, s[36:39], s14 offen offset:2048 sc1 lds
    buffer_load_dwordx4 v{VKV}, s[36:39], s14 offen offset:3072 sc1 lds
    s_branch L_pl_ready
    L_pl_bar:
    s_cmp_ge_u32 s70, 22
    s_cbranch_scc1 L_pl_nobar
    s_cmp_lg_u32 s70, 20
    s_cbranch_scc1 L_pl_noinit
    s_cmp_lg_u32 s4, 0
    s_cbranch_scc1 L_pl_noinit
    v_lshlrev_b32 v22, 2, v0
    v_add_u32 v22, {CNT}, v22
    v_mov_b32 v23, 0
    ds_write_b32 v22, v23
    s_waitcnt lgkmcnt(0)
    L_pl_noinit:
    s_barrier
    s_add_u32 s70, s70, 1
    s_branch L_pl
    L_pl_nobar:
    s_cmp_ge_u32 s69, 4
    s_cbranch_scc1 L_pl_done
    s_sleep 4
    s_branch L_pl
    L_pl_done:
    v_mov_b32 v{FL}, {CNT}
    v_mov_b32 v{FL+1}, 1
    s_mov_b64 exec, 1
    s_waitcnt vmcnt(0)
    ds_add_u32 v{FL}, v{FL+1} offset:4
    ds_add_u32 v{FL}, v{FL+1} offset:132
    s_mov_b64 exec, -1
    s_mul_i32 s14, s8, {12*1024}
    s_mul_i32 s3, s4, {3*1024}
    s_add_u32 s14, s14, s3
    s_add_u32 s14, s14, {2*KVS}
    buffer_load_dwordx4 {vr(FL+4,4)}, v{VL16}, s[36:39], s14 offen sc1
    buffer_load_dwordx4 {vr(FL+4,4)}, v{VL16}, s[36:39], s14 offen offset:1024 sc1
    buffer_load_dwordx4 {vr(FL+4,4)}, v{VL16}, s[36:39], s14 offen offset:2048 sc1
    s_cmp_ge_u32 s6, {0 if ENV("NODOWN") else 28}
    s_cbranch_scc1 L_s_end
    s_setprio {ENV("DPRIO", 0)}
    """)
    stamp(p, 2)
    ACC, WF, HB = 8, 72, 88
    VD, VT0, VT1, VX = 2, 3, 6, 7
    GR, XF = 144, 160
    NRING = 7
    p(f"""
    s_and_b32 s9, s6, 3
    s_lshl_b32 s10, s5, 2
    s_add_u32 s9, s9, s10
    s_lshr_b32 s10, s6, 2
    s_lshr_b32 s11, s4, 1
    s_lshl_b32 s57, s9, 1
    s_add_u32 s57, s57, s11
    s_xor_b32 s58, s57, 1
    s_mul_i32 s3, s4, {12*2048}
    s_add_u32 s3, s3, {H_OFF}
    s_mul_i32 s60, s57, 114688
    s_add_u32 s60, s60, s3
    s_mul_i32 s61, s58, 114688
    s_add_u32 s61, s61, s3
    v_bfe_u32 v{VX}, v0, 2, 3
    v_mul_u32_u24 v{VX}, 896, v{VX}
    v_lshrrev_b32 v{VT0}, 5, v0
    v_lshl_add_u32 v{VX}, v{VT0}, 6, v{VX}
    v_and_b32 v{VT0}, 3, v0
    v_lshl_add_u32 v{VX}, v{VT0}, 4, v{VX}
    s_lshl_b32 s14, s10, 7
    v_add_u32 v{VD}, s14, v{VX}
    v_lshrrev_b32 v{VX}, 5, v0
    v_lshlrev_b32 v{VX}, 8, v{VX}
    v_bfe_u32 v{VT0}, v0, 2, 2
    v_lshl_add_u32 v{VX}, v{VT0}, 6, v{VX}
    v_bfe_u32 v{VT0}, v0, 4, 1
    v_lshl_add_u32 v{VX}, v{VT0}, 5, v{VX}
    v_and_b32 v{VT0}, 3, v0
    v_lshl_add_u32 v{VX}, v{VT0}, 3, v{VX}
    s_lshl_b32 s15, s4, 14
    s_add_u32 s15, s15, {PRIV}
    s_and_b32 s3, s4, 1
    s_lshl_b32 s3, s3, 9
    s_add_u32 s3, s3, s15
    v_add_u32 v{VT0}, s3, v{VX}
    v_xor_b32 v{VT1}, 512, v{VT0}
    s_mul_i32 s62, s4, {12*32*896}
    s_mul_i32 s63, s4, -10
    s_add_u32 s63, s63, 48
    s_lshl_b32 s64, s63, 11
    s_add_u32 s65, s64, s61
    s_add_u32 s64, s64, s60
    s_mul_i32 s63, s63, {32*896}
    s_add_u32 s63, s63, s62
    """)
    vm = VM(p)

    order = [0, 1, 6, 7, 4, 5, 10, 11, 2, 3, 8, 9, 12, 13]
    seg_end = [8, 16, 28]
    seg_mask = [0x0000F00F, 0x00F00F00, 0x0F0F00F0]

    def wload(ks):
        sl = ks % NRING
        t = order[ks >> 1]
        base, t = ("s62", t) if t < 12 else ("s63", t - 12)
        for o in range(2):
            p(f"s_add_u32 m0, s15, {sl*2048 + o*1024}")
            p(f"s_add_u32 s14, {base}, {(32*t + 16*(ks&1) + 8*o)*896}")
            wid[ks] = vm.op(f"buffer_load_dwordx4 v{VD}, s[48:51], s14 offen lds")

    def hload(ks):
        sl = ks % NRING
        t = order[ks >> 1]
        (b0, b1), t = (("s60", "s61"), t) if t < 12 else (("s64", "s65"), t - 12)
        off = t * 2048 + (ks & 1) * 1024
        for r, b_ in enumerate((b0, b1)):
            if off >= 4096:
                p(f"s_add_u32 s14, {b_}, {off & ~4095}")
            hid[ks] = vm.op(f"buffer_load_dwordx4 {vr(HB+8*sl+4*r,4)}, v{VL16}, s[40:43], {'s14' if off >= 4096 else b_} offen offset:{off & 4095} sc1")
    wid, hid = {}, {}
    for ks in range(NRING):
        wload(ks)
    VFA, FT = GR, GR + 2
    p(f"""
    v_and_b32 v{VFA}, 31, v0
    v_min_u32 v{VFA}, 27, v{VFA}
    v_cmp_lt_u32 vcc, 23, v{VFA}
    v_lshlrev_b32 v{VFA}, 3, v{VFA}
    s_mul_i32 s3, s4, -160
    s_add_u32 s3, s3, {48*16 - 192}
    v_mov_b32 v{VFA+1}, s3
    v_cndmask_b32 v{VFA+1}, 0, v{VFA+1}, vcc
    v_add_u32 v{VFA}, v{VFA}, v{VFA+1}
    v_lshrrev_b32 v{VFA+1}, 5, v0
    v_lshl_add_u32 v{VFA}, v{VFA+1}, 10, v{VFA}
    s_lshl_b32 s66, s9, 11
    s_mul_i32 s3, s4, 192
    s_add_u32 s66, s66, s3
    s_add_u32 s66, s66, {HFL}
    s_mov_b32 s71, {SPIN_MAX}
    """)

    def hpoll(k):
        label = f"L_hp{k}"
        p(f"s_mov_b32 s68, {seg_mask[k]}\ns_mov_b32 s69, s68")
        p.label(label)
        p(f"""
        buffer_load_dwordx2 {vr(FT,2)}, v{VFA}, s[40:43], s66 offen sc1
        s_sub_u32 s71, s71, 1
        s_waitcnt vmcnt(0)
        v_cmp_eq_u64 vcc, {vr(FT,2)}, {vr(TGV,2)}
        s_cmp_eq_u32 s71, 0
        s_cbranch_scc1 {label}_x
        s_and_b64 vcc, vcc, s[68:69]
        s_cmp_eq_u64 vcc, s[68:69]
        s_cbranch_scc1 {label}_x
        s_sleep 8
        s_branch {label}
        {label}_x:
        """)
        vm.done = vm.n

    def trd(wb, base, a0=VT0, a1=VT1):
        for c, a in enumerate((a0, a1)):
            for b in range(2):
                p(f"ds_read_b64_tr_b16 {vr(wb+4*c+2*b,2)}, v{a} offset:{base + b*1024}")
    LOOK = int(ENV("LOOK", 3))
    seg, hn = 0, 0

    def hfill(done):
        nonlocal hn
        while hn < min(seg_end[seg], done + NRING):
            hload(hn)
            hn += 1
    hpoll(0)
    stamp(p, 3)
    hfill(0)
    trd(WF, 0)
    for ks in range(28):
        sl = ks % NRING
        wb = WF + 8 * (ks & 1)
        if ks + 1 < 28:
            vm.need(wid[ks + 1])
            trd(WF + 8 * ((ks + 1) & 1), ((ks + 1) % NRING) * 2048)
        vm.need(hid[ks])
        p(f"s_waitcnt lgkmcnt({4 if ks + 1 < 28 else 0})")
        for a in range(4):
            ac = vr(ACC + 16 * a, 16)
            p(f"{MFMA} {ac}, {vr(wb+4*(a&1),4)}, {vr(HB+8*sl+4*(a>>1),4)}, {'0' if ks == 0 else ac}")
        if seg < 2 and ks + 1 + LOOK == seg_end[seg]:
            seg += 1
            hpoll(seg)
        hfill(ks + 1)
        if ks + NRING < 28:
            wload(ks + NRING)
    stamp(p, 4)

    def send():
        p(f"v_add_u32 v{VX}, s15, v{VL16}")
        for a in range(1, 4):
            for r in range(4):
                p(f"ds_write_b128 v{VX}, {vr(ACC+16*a+4*r,4)} offset:{(a-1)*4096 + r*1024}")

    def ssync(k):
        p(f"v_mov_b32 v{WF+1}, {CNT_S0 + 4*k}\nv_mov_b32 v{WF+2}, 1")
        p(f"s_mov_b64 exec, 1\ns_waitcnt lgkmcnt(0)\nds_add_u32 v{WF+1}, v{WF+2}\ns_mov_b64 exec, -1")
        lds_spin(p, f"L_ss{k}", f"v{WF+1}", WF, "4", 71)

    def recv():
        for a in range(1, 4):
            p(f"s_xor_b32 s3, s4, {a}\ns_lshl_b32 s3, s3, 14\ns_add_u32 s3, s3, {PRIV + (a-1)*4096}\nv_add_u32 v{VX}, s3, v{VL16}")
            for r in range(4):
                p(f"ds_read_b128 {vr(ACC+16*a+4*r,4)}, v{VX} offset:{r*1024}")

    def addup():
        for a in range(1, 4):
            p(f"s_waitcnt lgkmcnt({4*(3-a)})")
            for r in range(16):
                p(f"v_add_f32 v{ACC+r}, v{ACC+r}, v{ACC+16*a+r}")
    send()
    ssync(0)
    recv()
    addup()
    ssync(1)
    p(f"s_mul_i32 s62, s4, {112*896}")
    for o in range(14):
        p(f"s_add_u32 m0, s15, {o*1024}")
        p(f"s_add_u32 s14, s62, {8*o*896}")
        p(f"buffer_load_dwordx4 v{VD}, s[52:55], s14 offen lds")
    srd(p, 44, P_X, 2048 * 896)
    p(f"""
    v_and_b32 v{VX}, 31, v0
    s_lshl_b32 s14, s57, 5
    v_add_u32 v{VX}, s14, v{VX}
    v_mul_u32_u24 v{VX}, 896, v{VX}
    v_lshrrev_b32 v{VD}, 5, v0
    v_lshl_add_u32 v{VX}, v{VD}, 3, v{VX}
    s_and_b32 s14, s4, 1
    s_lshl_b32 s14, s14, 6
    s_lshl_b32 s3, s10, 7
    s_add_u32 s14, s14, s3
    v_add_u32 v{VD}, s14, v{VX}
    """)
    for g4 in range(4):
        p(f"buffer_load_dwordx2 {vr(XF+2*g4,2)}, v{VD}, s[44:47], 0 offen offset:{16*g4}")
    T = ACC + 16
    p(f"s_mov_b32 s3, {f32(-LOG2E)}")
    for i in range(16):
        p(f"v_mul_f32 v{T+i}, s3, v{ACC+i}")
    for i in range(16):
        p(f"v_exp_f32 v{T+i}, v{T+i}")
    for i in range(16):
        p(f"v_add_f32 v{T+i}, 1.0, v{T+i}")
    for i in range(16):
        p(f"v_rcp_f32 v{T+i}, v{T+i}")
    GREG = [GR + i for i in range(16)]
    for i in range(16):
        p(f"v_mul_f32 v{GREG[i]}, v{ACC+i}, v{T+i}")
    if ENV("DUMP_G"):
        for i in range(8):
            p(f"v_cvt_pk_bf16_f32 v{T+i}, v{GREG[2*i]}, v{GREG[2*i+1]}")
        p(f"""
        s_mul_i32 s14, s57, {14*2048}
        s_lshl_b32 s3, s10, 1
        s_and_b32 s63, s4, 1
        s_add_u32 s3, s3, s63
        s_lshl_b32 s3, s3, 11
        s_add_u32 s14, s14, s3
        s_add_u32 s14, s14, {G_OFF}
        buffer_store_dwordx4 {vr(T,4)}, v{VL16}, s[40:43], s14 offen
        buffer_store_dwordx4 {vr(T+4,4)}, v{VL16}, s[40:43], s14 offen offset:1024
        """)
    p(f"""
    v_and_b32 v{VX}, 3, v0
    v_lshlrev_b32 v{VX}, 3, v{VX}
    v_bfe_u32 v{WF}, v0, 2, 1
    v_lshl_add_u32 v{VX}, v{WF}, 7, v{VX}
    s_lshl_b32 s14, s9, 8
    s_lshl_b32 s3, s4, 5
    s_add_u32 s14, s14, s3
    s_add_u32 s14, s14, {OFL}
    s_mov_b32 s71, {SPIN_MAX}
    s_lshl_b32 s3, s4, 13
    s_add_u32 s3, s3, {O_OFF}
    s_lshl_b32 s60, s57, 15
    s_add_u32 s60, s60, s3
    s_lshl_b32 s61, s58, 15
    s_add_u32 s61, s61, s3
    s_add_u32 s62, s60, 4096
    s_add_u32 s63, s61, 4096
    """)
    stamp(p, 5)
    p.label("L_op")
    p(f"""
    buffer_load_dwordx2 {vr(WF,2)}, v{VX}, s[40:43], s14 offen sc1
    s_sub_u32 s71, s71, 1
    s_waitcnt vmcnt(0)
    v_cmp_eq_u64 vcc, {vr(WF,2)}, {vr(TGV,2)}
    s_cmp_eq_u32 s71, 0
    s_cbranch_scc1 L_op_x
    s_cmp_eq_u64 vcc, -1
    s_cbranch_scc1 L_op_x
    s_sleep 1
    s_branch L_op
    L_op_x:
    """)
    stamp(p, 6)
    vm = VM(p)
    OB = HB
    oid = {}

    def oload(kk, r):
        sreg = (("s60", "s61"), ("s62", "s63"))[kk >> 2][r]
        slot = (2 * kk + r) % 14
        oid[(kk, r)] = vm.op(f"buffer_load_dwordx4 {vr(OB+4*slot,4)}, v{VL16}, s[40:43], {sreg} offen offset:{(kk&3)*1024} sc1")
    for kk in range(7):
        oload(kk, 0); oload(kk, 1)

    def wrd(kk):
        hh, s_ = kk >> 1, kk & 1
        row = 28 * hh - 4 * (hh & 1) + 16 * s_
        trd(WF + 8 * (kk & 1), (row >> 3) * 1024)
    wrd(0)
    for kk in range(8):
        if kk + 1 < 8:
            wrd(kk + 1)
        wb = WF + 8 * (kk & 1)
        p(f"s_waitcnt lgkmcnt({4 if kk + 1 < 8 else 0})")
        for a in range(4):
            vm.need(oid[(kk, a >> 1)])
            ac = vr(ACC + 16 * a, 16)
            p(f"{MFMA} {ac}, {vr(wb+4*(a&1),4)}, {vr(OB+4*((2*kk+(a>>1))%14),4)}, {'0' if kk == 0 else ac}")
        if kk == 0:
            oload(7, 0); oload(7, 1)
    send()
    srd(p, 44, P_OUT, 2048 * 896)
    XE = HB
    for i in range(8):
        p(f"v_lshlrev_b32 v{XE+2*i}, 16, v{XF+i}")
        p(f"v_and_b32 v{XE+2*i+1}, 0xffff0000, v{XF+i}")
    ssync(2)
    recv()
    addup()
    for i in range(16):
        p(f"v_fma_f32 v{ACC+i}, v{ACC+i}, v{GREG[i]}, v{XE+i}")
    pack16(p, WF, ACC)
    for g4 in range(4):
        p(f"buffer_store_dwordx2 {vr(WF+2*g4,2)}, v{VD}, s[44:47], 0 offen offset:{16*g4}")
    p.label("L_s_end")
    endpgm(p)


def main():
    ref = open("cdna_kernels/" + NAME + ".s.ref").read().split("\n")
    head = [l for l in ref if l.startswith(";") and "@launch" not in l and "Override launch" not in l and "grid=ceil" not in l]
    p = Prog()
    gen(p)
    body = p.finalize()
    out = head[:]
    out.append("; @launch grid=(256,1,1) block=(768,1,1) lds=163840")
    out.append('.amdgcn_target "amdgcn-amd-amdhsa--gfx950"\n.text')
    out.append(body)
    out.append(f""".section .rodata,"a"
.p2align 6
.amdhsa_kernel {KN}
  .amdhsa_next_free_vgpr 168
  .amdhsa_next_free_sgpr 100
  .amdhsa_accum_offset 168
  .amdhsa_group_segment_fixed_size 0
  .amdhsa_kernarg_size 80
  .amdhsa_user_sgpr_count 2
  .amdhsa_user_sgpr_kernarg_segment_ptr 1
  .amdhsa_system_sgpr_workgroup_id_x 1
.end_amdhsa_kernel""")
    if ENV("PLAINLD"):
        import re
        out = [re.sub(r"(buffer_load_dwordx4 .*) sc1( lds)?$", r"\1\2", l, flags=re.M) if "s[44:47], s6" not in l else l for l in "\n".join(out).split("\n")]
    path = sys.argv[1] if len(sys.argv) > 1 else "cdna_kernels/" + NAME + ".s"
    open(path, "w").write("\n".join(out) + "\n")
    print("wrote", path, "nops inserted:", p.total_nops)


main()
```

```python
import math, struct, sys, os
from asmlib import Prog

NAME = "recurrent_scan__mha_block__geglu_ffn__prompt"
KN = NAME + "_kernel"
MB = 1 << 20
QF_OFF, KV_OFF, H_OFF, O_OFF, G_OFF = 0, 2 * MB, 6 * MB, 13 * MB, 15 * MB
FLAG_OFF = 17 * MB
QKVF, HFL, OFL = FLAG_OFF, FLAG_OFF + 65536, FLAG_OFF + 131072
WS_USED = 18 * MB
LOG2E = math.log2(math.e)
QSCALE = LOG2E / math.sqrt(28.0)
SPIN_MAX = 1 << 12
ENV = os.environ.get
STAMPS = bool(ENV("STAMPS"))
STAMP_OFF = 24 * MB
MFMA = "v_mfma_f32_32x32x16_bf16"
P_X, P_WQKV, P_WO, P_WG, P_WU, P_WD, P_OUT, P_DBG, P_WS = 16, 18, 20, 24, 26, 28, 30, 32, 34
SLOT = 16384
EXB = 8 * SLOT
TAGL = 4 * SLOT + 8192
QL = 8192
PRIV = 6 * SLOT
CNT = PRIV + 15360
CNT_COMB, CNT_S0 = CNT + 64, CNT + 220
KVS = 32768
CNT_TAG = CNT + 224


def f32(x):
    return "0x%08x" % struct.unpack("<I", struct.pack("<f", x))[0]


def vr(b, n=1):
    return f"v{b}" if n == 1 else f"v[{b}:{b+n-1}]"


def srd(p, d, base, nrec, add=None):
    if add is None:
        p(f"s_mov_b32 s{d}, s{base}\ns_mov_b32 s{d+1}, s{base+1}")
    else:
        p(f"s_add_u32 s{d}, s{base}, {add}\ns_addc_u32 s{d+1}, s{base+1}, 0")
    p(f"s_mov_b32 s{d+2}, {nrec}\ns_mov_b32 s{d+3}, 0x20000")


def pack16(p, dst, src):
    for i in range(8):
        p(f"v_cvt_pk_bf16_f32 v{dst+i}, v{src+2*i}, v{src+2*i+1}")


def stamp_txt(i):
    if STAMPS and not (ENV("CB") and i < 7):
        assert i < 8
        return [f"{ENV('STAMP_INS', 's_memrealtime')} s[{80+2*i}:{81+2*i}]"]
    return []


def stamp(p, i):
    for x in stamp_txt(i):
        p(x)


TL = bool(ENV("TL"))


def tl(p, idx):
    if TL:
        p(f"{ENV('STAMP_INS', 's_memrealtime')} s[94:95]\ns_waitcnt lgkmcnt(0)\nv_writelane_b32 v60, s94, {idx}")


def tl_dump(p):
    if TL:
        p(f"""
        s_lshl_b32 s94, s2, 4
        s_add_u32 s94, s94, s59
        s_lshl_b32 s94, s94, 8
        s_add_u32 s94, s94, {STAMP_OFF + MB}
        s_mov_b32 s96, s{P_WS}
        s_mov_b32 s97, s{P_WS+1}
        s_mov_b32 s98, {32*MB}
        s_mov_b32 s99, 0x20000
        v_lshlrev_b32 v61, 2, v0
        buffer_store_dword v60, v61, s[96:99], s94 offen
        """)


def endpgm(p):
    if STAMPS and ENV("DBGMAX"):
        stamp(p, 7)
        p(f"""
        s_mov_b64 exec, -1
        s_mov_b32 s96, s{P_DBG}
        s_mov_b32 s97, s{P_DBG+1}
        s_mov_b32 s98, 256
        s_mov_b32 s99, 0x20000
        buffer_load_dword v10, off, s[96:99], 0 sc1
        s_waitcnt vmcnt(0) lgkmcnt(0)
        """)
        for i in range(8):
            p(f"v_writelane_b32 v8, s{80+2*((i+1) % 8)}, {i}")
        p(f"""
        v_cmp_ne_u32 vcc, 0, v8
        v_sub_u32 v8, v8, v10
        v_add_u32 v8, 1000, v8
        v_cndmask_b32 v8, 0, v8, vcc
        s_cmp_ge_u32 s59, 8
        s_cselect_b32 s4, 36, 8
        v_mbcnt_lo_u32_b32 v9, -1, 0
        v_lshlrev_b32 v9, 2, v9
        s_mov_b64 exec, 0x7f
        buffer_atomic_umax v8, v9, s[96:99], s4 offen
        s_waitcnt vmcnt(0)
        """)
    elif STAMPS:
        stamp(p, 7)
        p("s_waitcnt vmcnt(0) lgkmcnt(0)\ns_mov_b64 exec, -1")
        for i in range(8):
            p(f"v_writelane_b32 v8, s{80+2*i}, {i}")
        p(f"""
        s_lshl_b32 s4, s2, 4
        s_add_u32 s4, s4, s59
        s_lshl_b32 s4, s4, 5
        s_add_u32 s4, s4, {STAMP_OFF}
        s_mov_b32 s96, s{P_WS}
        s_mov_b32 s97, s{P_WS+1}
        s_mov_b32 s98, {32*MB}
        s_mov_b32 s99, 0x20000
        v_mbcnt_lo_u32_b32 v9, -1, 0
        v_lshlrev_b32 v9, 2, v9
        s_mov_b64 exec, 0xff
        buffer_store_dword v8, v9, s[96:99], s4 offen
        """)
    p("s_endpgm")


class DS:
    def __init__(self, pending):
        self.n, self.done = pending, 0

    def op(self):
        self.n += 1
        return self.n - 1

    def need(self, i):
        if i < self.done:
            return []
        self.done = i + 1
        return [f"s_waitcnt lgkmcnt({min(15, self.n - 1 - i)})"]


class VM:
    def __init__(self, p):
        self.p, self.n, self.done = p, 0, 0

    def op(self, txt):
        self.p(txt)
        self.n += 1
        return self.n - 1

    def need(self, i):
        if i is None or i < self.done:
            return
        self.done = i + 1
        k = self.n - 1 - i
        assert k <= 63
        self.p(f"s_waitcnt vmcnt({k})")


def cost(ins):
    c = 0
    for l in ins.strip().split("\n"):
        m = l.strip().split()[0]
        c += 8 if m.startswith(("v_exp", "v_rcp", "v_rsq", "ds_")) else 16 if m.startswith("buffer_") else 4
    return c


def lds_spin(p, label, addr_v, tmp, want, sreg, wide=False):
    p(f"s_mov_b32 s{sreg}, {SPIN_MAX*8}")
    p.label(label)
    if wide:
        p(f"ds_read_b64 {vr(tmp,2)}, {addr_v}\ns_sub_u32 s{sreg}, s{sreg}, 1\ns_waitcnt lgkmcnt(0)\nv_cmp_ne_u64 vcc, {want}, {vr(tmp,2)}")
    else:
        p(f"ds_read_b32 v{tmp}, {addr_v}\ns_sub_u32 s{sreg}, s{sreg}, 1\ns_waitcnt lgkmcnt(0)\nv_cmp_ne_u32 vcc, {want}, v{tmp}")
    p(f"""
    s_cmp_eq_u32 s{sreg}, 0
    s_cbranch_scc1 {label}_x
    s_cmp_eq_u64 vcc, 0
    s_cbranch_scc1 {label}_x
    s_sleep 1
    s_branch {label}
    {label}_x:
    """)


def gen(p):
    p(f".globl {KN}\n.p2align 8\n.type {KN},@function")
    p.label(KN)
    S_W, S_RG, S_HF, S_RB, S_RT = 59, 60, 61, 62, 63
    p(f"""
    s_cmp_ge_u32 s2, 256
    s_cbranch_scc1 L_exit
    s_load_dwordx16 s[16:31], s[0:1], 0
    s_load_dwordx4 s[32:35], s[0:1], 64
    """)
    if STAMPS:
        for i in range(16):
            p(f"s_mov_b32 s{80+i}, 0")
        stamp(p, 0)
    p(f"""
    v_lshrrev_b32 v2, 6, v0
    v_and_b32 v0, 63, v0
    v_readfirstlane_b32 s{S_W}, v2
    s_and_b32 s5, s2, 7                 ; xcd
    s_lshr_b32 s6, s2, 3                ; j
    s_and_b32 s7, s5, 3
    s_lshl_b32 s7, s7, 2
    s_and_b32 s8, s6, 3
    s_add_u32 s{S_RB}, s7, s8           ; rb = 4*(x&3) + (j&3)
    s_lshr_b32 s7, s5, 2
    s_lshl_b32 s7, s7, 3
    s_lshr_b32 s8, s6, 2
    s_add_u32 s7, s7, s8                ; cg = 8*(x>>2) + (j>>2)
    s_and_b32 s8, s7, 1
    s_lshr_b32 s7, s7, 1
    s_cmp_ge_u32 s{S_W}, 8
    s_cbranch_scc1 L_service
    """)
    gen_c(p, S_W, S_RG, S_HF, S_RB, S_RT)
    p.label("L_service")
    gen_s(p, S_W)
    p.label("L_exit")
    p("s_endpgm")


def gen_c(p, S_W, S_RG, S_HF, S_RB, S_RT):
    VL16, VA, VB, VTRL, VEX, VEXP, VST = 1, 2, 3, 4, 5, 6, 7
    X, SA, SB, G, WF, T = 8, 64, 96, 128, 144, 160
    p(f"""
    s_and_b32 s{S_RG}, s{S_W}, 3
    s_lshr_b32 s{S_HF}, s{S_W}, 2
    s_xor_b32 s{S_HF}, s{S_HF}, s8
    v_lshrrev_b32 v12, 2, v0            ; r16
    v_lshrrev_b32 v13, 4, v0            ; r16>>2
    v_xor_b32 v13, v13, v0
    v_and_b32 v13, 3, v13
    v_mul_u32_u24 v12, 896, v12
    v_lshl_add_u32 v12, v13, 4, v12
    s_lshl_b32 s9, s{S_RB}, 2
    s_add_u32 s{S_RT}, s9, s{S_RG}
    s_mul_i32 s9, s{S_RT}, {32*896}
    s_mul_i32 s10, s{S_HF}, 448
    s_add_u32 s9, s9, s10
    v_add_u32 v12, s9, v12
    s_mul_i32 s10, s{S_W}, 14336
    s_mov_b32 s11, {16*896}
    s_waitcnt lgkmcnt(0)
    """)
    srd(p, 44, P_DBG, 256)
    p(f"""
    s_add_u32 s12, s2, s{S_W}
    s_cmp_lg_u32 s12, 0
    s_cbranch_scc1 L_notagw
    s_memrealtime s[12:13]
    s_waitcnt lgkmcnt(0)
    s_or_b32 s12, s12, 1
    v_mov_b32 v16, s12
    v_mov_b32 v17, s13
    s_mov_b64 exec, 1
    buffer_store_dwordx2 v[16:17], off, s[44:47], 0 sc1
    s_mov_b64 exec, -1
    L_notagw:
    """)
    srd(p, 36, P_X, 2048 * 896)
    for cb in range(7):
        for rh in range(2):
            p(f"s_add_u32 m0, s10, {(rh*7+cb)*1024 - 64*cb}")
            p(f"buffer_load_dwordx4 v12, s[36:39], {'s11' if rh else '0'} offen offset:{64*cb} lds")
    srd(p, 40, P_WS, WS_USED)
    VXA, VXB, SUM, SQ, ONES, RS, NM, TG = T, T + 1, T + 2, T + 3, T + 4, G, G + 1, G + 2
    U = SB
    STAT = 7 * SLOT
    c0 = -2.0 * math.sqrt(2.0 / math.pi) * LOG2E
    c1 = c0 * 0.044715
    al = -((-c1) ** (1.0 / 3.0))
    p(f"""
    v_lshlrev_b32 v{VL16}, 4, v0
    s_lshl_b32 s3, s{S_HF}, 4
    v_xor_b32 v15, s3, v0
    v_lshlrev_b32 v{VST}, 4, v15
    s_lshl_b32 s12, s{S_HF}, 10
    v_add_u32 v{VST}, s12, v{VST}
    v_lshrrev_b32 v13, 5, v0
    v_lshlrev_b32 v13, 11, v13
    v_bfe_u32 v14, v0, 2, 2
    v_lshl_add_u32 v13, v14, 6, v13
    v_bfe_u32 v14, v15, 4, 1
    v_lshl_add_u32 v13, v14, 5, v13
    v_and_b32 v14, 3, v0
    v_lshl_add_u32 v13, v14, 3, v13
    s_lshl_b32 s12, s{S_HF}, 10
    v_add_u32 v{VTRL}, s12, v13
    v_add_u32 v{VA}, {8*SLOT}, v{VTRL}
    v_add_u32 v{VB}, {9*SLOT}, v{VTRL}
    s_lshl_b32 s12, s{S_W}, 12
    s_add_u32 s12, s12, {EXB}
    v_add_u32 v{VEX}, s12, v{VL16}
    v_xor_b32 v{VEXP}, 0x4100, v{VEX}
    v_bfe_u32 v13, v15, 4, 1
    v_mul_u32_u24 v13, 7168, v13
    v_and_b32 v14, 15, v0
    v_lshl_add_u32 v13, v14, 6, v13
    v_lshrrev_b32 v14, 5, v0            ; h
    v_bfe_u32 v15, v0, 2, 2             ; swz
    v_xor_b32 v14, v14, v15
    v_lshl_add_u32 v{VXA}, v14, 4, v13
    v_xor_b32 v14, 2, v14
    v_lshl_add_u32 v{VXB}, v14, 4, v13
    v_add_u32 v{VXA}, s10, v{VXA}
    v_add_u32 v{VXB}, s10, v{VXB}
    v_mov_b32 v{SUM}, 0
    v_mov_b32 v{SQ}, 0
    v_mov_b32 v{ONES}, 0x3f803f80
    s_mov_b32 s66, 0xffff0000
    s_mov_b32 s64, {f32(al)}
    s_mov_b32 s65, {f32(c0 / c1 * al * al)}
    v_and_b32 v{U+2}, 31, v0
    v_lshlrev_b32 v{U+2}, 3, v{U+2}
    s_lshl_b32 s12, s{S_W}, 8
    s_add_u32 s12, s12, {STAT}
    v_add_u32 v{U+3}, s12, v{U+2}
    v_xor_b32 v{U+2}, {1024+128}, v{U+3}
    """)
    p(f"""
    s_cmp_eq_u32 s8, 1
    s_cselect_b32 s69, {f32(QSCALE)}, 1.0
    s_cselect_b32 s4, 18, 19
    s_cselect_b32 s15, {QF_OFF}, {KV_OFF}
    s_cselect_b32 s73, 2048, 0
    s_cselect_b32 s14, 0, 4
    s_lshl_b32 s67, s7, s4
    s_sub_u32 s4, s4, 1
    s_lshl_b32 s68, 1, s4
    s_sub_u32 s4, s4, 6
    s_lshl_b32 s4, s{S_RT}, s4
    s_add_u32 s67, s67, s4
    s_add_u32 s67, s67, s15
    s_add_u32 s68, s68, s67
    s_add_u32 s72, s67, 2048
    s_add_u32 s75, s68, 2048
    s_lshl_b32 s12, s7, 12
    s_lshl_b32 s13, s{S_RT}, 4
    s_add_u32 s12, s12, s13
    s_lshl_b32 s13, s{S_HF}, 3
    s_add_u32 s12, s12, s13
    s_add_u32 s12, s12, {QKVF}          ; flags: [pair][K,V,Q][rowtile][hf]
    s_add_u32 s73, s73, s12
    s_add_u32 s74, s12, 1024
    s_mul_i32 s12, s7, 6
    s_add_u32 s14, s14, s12             ; first f tile
    s_add_u32 s58, s7, 48
    s_sub_u32 s58, s58, s14
    s_sub_u32 s58, s58, 2               ; from the tile after the first quad to the single tile (type A)
    s_lshl_b32 s70, s14, 11
    s_mul_i32 s4, s{S_RT}, 114688
    s_add_u32 s70, s70, s4
    s_add_u32 s70, s70, {H_OFF}
    s_lshl_b32 s71, s14, 4
    s_lshl_b32 s4, s{S_RT}, 10
    s_add_u32 s71, s71, s4
    s_add_u32 s71, s71, s13
    s_add_u32 s71, s71, {HFL}           ; flags: [rowtile][ftile][hf]
    ; pad masks: even head pads n=28..31 (hf=1 waves), odd head pads n=0..3 (hf=0 waves)
    s_cmp_eq_u32 s{S_HF}, 1
    s_mov_b32 s52, 0
    s_cselect_b32 s53, -1, 0            ; q/k even head: packed regs 2,3
    s_cselect_b32 s54, 0, -1            ; q/k odd head: packed regs 0,1
    s_mov_b32 s55, 0
    s_cselect_b32 s56, 0xf000, 0xf0000000 {';'} v even head: zero lanes
    """.replace("s_cselect_b32 s56, 0xf000, 0xf0000000 ;", "s_mov_b32 s56, 0xf0000000\n    s_cselect_b32 s56, 0xf000, s56 ;") + f"""
    s_mov_b32 s57, s56
    s_cselect_b32 s48, 0xf0000, 15      ; v odd head: zero lanes
    s_mov_b32 s49, s48
    s_lshr_b32 s50, s56, 3
    s_and_b32 s50, s50, s56             ; lowest lane of each group: the ones column
    s_mov_b32 s51, s50
    s_lshr_b32 s46, s48, 3
    s_and_b32 s46, s46, s48
    s_mov_b32 s47, s46
    """.replace("s46", "s78").replace("s47", "s79"))
    stamp(p, 1)

    def stat(cb):
        for d in range(8):
            r = X + 8 * cb + d
            p(f"v_dot2c_f32_bf16 v{SUM}, v{r}, v{ONES}")
            p(f"v_dot2c_f32_bf16 v{SQ}, v{r}, v{r}")
    for cb in range(7):
        p(f"s_waitcnt vmcnt({12 - 2*cb})")
        p(f"ds_read_b128 {vr(X+8*cb,4)}, v{VXA} offset:{cb*1024}")
        p(f"ds_read_b128 {vr(X+8*cb+4,4)}, v{VXB} offset:{cb*1024}")
        if cb:
            p("s_waitcnt lgkmcnt(2)")
            stat(cb - 1)
    p("s_waitcnt lgkmcnt(0)")
    stat(6)
    p(f"""
    v_mov_b32 v{U}, v{SUM}
    v_mov_b32 v{U+1}, v{SQ}
    v_permlane32_swap_b32 v{SUM}, v{U}
    v_permlane32_swap_b32 v{SQ}, v{U+1}
    v_add_f32 v{SUM}, v{SUM}, v{U}
    v_add_f32 v{SQ}, v{SQ}, v{U+1}
    ds_write_b64 v{U+3}, {vr(SUM,2)}
    s_waitcnt lgkmcnt(0)
    s_barrier
    ds_read_b64 {vr(U,2)}, v{U+2}
    s_waitcnt lgkmcnt(0)
    s_barrier
    v_add_f32 v{SUM}, v{SUM}, v{U}
    v_add_f32 v{SQ}, v{SQ}, v{U+1}
    v_mul_f32 v{SUM}, {f32(1.0/448)}, v{SUM}        ; mean
    v_mul_f32 v{SQ}, {f32(1.0/448)}, v{SQ}
    v_fma_f32 v{SQ}, -v{SUM}, v{SUM}, v{SQ}         ; var
    v_max_f32 v{SQ}, 0, v{SQ}
    v_add_f32 v{SQ}, {f32(1e-5)}, v{SQ}
    v_rsq_f32 v{RS}, v{SQ}                          ; rstd
    v_mul_f32 v{SUM}, v{SUM}, v{RS}
    v_sub_f32 v{NM}, 0, v{SUM}                      ; -mean*rstd
    """)
    stamp(p, 2)

    def normalise(kl):
        e = []
        tb = U + 8 * (kl & 1)
        for d in range(4):
            e += [f"v_lshlrev_b32 v{tb+2*d}, 16, v{X+4*kl+d}", f"v_and_b32 v{tb+2*d+1}, s66, v{X+4*kl+d}"]
        e += [f"v_fma_f32 v{tb+i}, v{tb+i}, v{RS}, v{NM}" for i in range(8)]
        e += [f"v_cvt_pk_bf16_f32 v{X+4*kl+d}, v{tb+2*d}, v{tb+2*d+1}" for d in range(4)]
        return e
    NPRE = int(ENV("NPRE", 3))
    for kl in range(NPRE):
        for i in normalise(kl):
            p(i)
    if ENV("CPRIO") == "young":
        p(f"s_cmp_lt_u32 s{S_W}, 4\ns_cbranch_scc1 L_noprio\ns_setprio 1\nL_noprio:")
    p("s_barrier")
    NB = 4

    def phys(c):
        return 8 if c == 0 else 9 if c == 1 else (c + 5) % 8

    def st(r, sreg):
        return f"buffer_store_dwordx4 {vr(r,4)}, v{VST}, s[40:43], s{sreg} offen sc1"

    def st2(r, sreg):
        return f"buffer_store_dwordx4 {vr(r,4)}, v{VST}, s[40:43], s{sreg} offen offset:2048 sc1"

    def flag(sreg, two=False):
        if ENV("NOFLAG"):
            return ["s_nop 0"]
        return [f"s_waitcnt vmcnt(0)\ns_mov_b64 exec, 1\nbuffer_store_dwordx2 v[0:1], off, s[40:43], s{sreg} sc1\n"
                + (f"buffer_store_dwordx2 v[0:1], off, s[40:43], s{sreg} offset:16 sc1\n" if two else "") + "s_mov_b64 exec, -1"]

    def epi_qk(acc):
        e = []
        for t in range(2):
            a = acc + 16 * t
            e += [f"v_mul_f32 v{a+i}, s69, v{a+i}" for i in range(8)]
            e += [f"v_cvt_pk_bf16_f32 v{T+4*t+i}, v{a+2*i}, v{a+2*i+1}" for i in range(4)]
            z = T + 2 if t == 0 else T + 4
            e += [f"s_mov_b64 exec, s[{52+2*t}:{53+2*t}]\nv_mov_b32 v{z}, 0\nv_mov_b32 v{z+1}, 0\ns_mov_b64 exec, -1"]
            e.append(st(T + 4 * t, 67 + t))
        return e

    def epi_v(acc):
        e = []
        for t in range(2):
            a = acc + 16 * t
            zm, om = ((56, 50), (48, 78))[t]
            e += [f"v_cvt_pk_bf16_f32 v{T+4*t+i}, v{a+2*i}, v{a+2*i+1}" for i in range(4)]
            e += [f"s_mov_b64 exec, s[{zm}:{zm+1}]\n" + "".join(f"v_mov_b32 v{T+4*t+i}, 0\n" for i in range(4))
                  + f"s_mov_b64 exec, s[{om}:{om+1}]\n"
                  + "".join(f"v_mov_b32 v{T+4*t+i}, 0x3f803f80\n" for i in range(4)) + "s_mov_b64 exec, -1"]
            e.append(st(T + 4 * t, (72, 75)[t]))
        return e

    def gelu(g, qs):
        e = []
        for q in qs:
            r = g[4 * q:4 * q + 4]
            t = [T + i for i in range(4)]
            u = [T + 4 + i for i in range(4)]
            e += [f"v_mul_f32 v{t[i]}, s64, v{r[i]}" for i in range(4)]
            e += [f"v_fma_f32 v{u[i]}, v{t[i]}, v{t[i]}, s65" for i in range(4)]
            e += [f"v_mul_f32 v{t[i]}, v{t[i]}, v{u[i]}" for i in range(4)]
            e += [f"v_exp_f32 v{t[i]}, v{t[i]}" for i in range(4)]
            e += [f"v_add_f32 v{t[i]}, 1.0, v{t[i]}" for i in range(4)]
            e += [f"v_rcp_f32 v{t[i]}, v{t[i]}" for i in range(4)]
            e += [f"v_mul_f32 v{r[i]}, v{r[i]}, v{t[i]}" for i in range(4)]
        return e
    GG = [G + i for i in range(16)]

    def prod2(acc):
        e = []
        for t in range(2):
            a = acc + 16 * t
            e += [f"v_mul_f32 v{a+i}, v{a+i}, v{G+8*t+i}" for i in range(8)]
            e += [f"v_cvt_pk_bf16_f32 v{T+4*t+i}, v{a+2*i}, v{a+2*i+1}" for i in range(4)]
            e.append((st, st2)[t](T + 4 * t, 70))
        return e + ["s_add_u32 s70, s70, 4096"]

    def epi_s(acc):
        g = [acc + i for i in range(8)]
        e = gelu(g, [0, 1])
        e += [f"v_mul_f32 v{g[i]}, v{g[i]}, v{acc+16+i}" for i in range(8)]
        e += [f"v_cvt_pk_bf16_f32 v{T+i}, v{g[2*i]}, v{g[2*i+1]}" for i in range(4)]
        return e + [st(T, 70)]

    tag_ld = [f"s_cmp_lg_u32 s{S_W}, 7\ns_cbranch_scc1 L_tl_@\n"
              f"buffer_load_dwordx2 {vr(TG,2)}, off, s[44:47], 0 sc1\nL_tl_@:"]
    tag_pub = [f"s_cmp_lg_u32 s{S_W}, 7\ns_cbranch_scc1 L_tp_@\ns_mov_b32 s12, {SPIN_MAX}\nL_tq_@:\ns_waitcnt vmcnt(0)\n"
               f"v_cmp_ne_u32 vcc, 0, v{TG}\ns_sub_u32 s12, s12, 1\ns_cbranch_scc1 L_tr_@\ns_cmp_lg_u64 vcc, 0\ns_cbranch_scc1 L_tr_@\n"
               f"buffer_load_dwordx2 {vr(TG,2)}, off, s[44:47], 0 sc1\ns_branch L_tq_@\nL_tr_@:\n"
               f"v_mov_b32 v{TG+2}, {TAGL}\nds_write_b64 v{TG+2}, {vr(TG,2)}\n"
               "s_waitcnt lgkmcnt(0)\nL_tp_@:"]
    XE = ([2, 3, 4, 5], [7, 8, 9, 10])
    XL = eval(ENV('XWR', '[2, 3, 4, 5], [7, 8, 9, 10]'))
    xreg = lambda acc, i: acc + 16 * (i >> 1) + 8 + 4 * (i & 1)

    def stream(kind):
        N = 140
        types = "VKGUS" if kind == "A" else "QGUGU"
        acc = [SA, SB, SA, SB, SA]
        win = []

        def W(a, b, ins):
            win.append((a, b, ins))
        for kl in range(NPRE, 14):
            W(2 * (kl - NPRE), 2 * (kl - NPRE) + 2, normalise(kl))
        W(8, 9, [x.replace("@", kind) for x in tag_ld])
        W(34, 35, [x.replace("@", kind) for x in tag_pub])
        FD = int(ENV("FLAGD", 13))
        KD = int(ENV("KD", 7))
        E0, E1 = XE[1][-1] + 4, XL[1][-1] + 4
        hf2 = flag(71, True) + ["s_add_u32 s71, s71, 32"]
        if ENV("NOEPI"):
            pass
        elif kind == "A":
            W(28 + E0, 28 + E0 + 6, epi_v(SA))
            W(56 + FD, 56 + FD + 1, flag(74))
            W(56 + E0, 56 + E0 + int(ENV('KW', 6)), epi_qk(SB))
            W(84 + KD, 84 + KD + 1, flag(73))
            W(84 + E1, 112 + E1 - 2, gelu(GG, [0, 1, 2, 3]))
            W(112 + E1, 140, prod2(SB) + ["s_lshl_b32 s12, s58, 11\ns_add_u32 s70, s70, s12"])
        else:
            W(28 + E0, 28 + E0 + 6, epi_qk(SA))
            W(56 + FD - 6, 56 + FD - 5, flag(73))
            W(56 + E1, 84 + E1 - 2, gelu(GG, [0, 1, 2, 3]))
            W(84 + E1, 112, prod2(SA))
            W(112 + E0 - 1, 112 + E0, hf2)
            W(112 + E0, 140, gelu(GG, [0, 1]) + gelu(GG, [2])[:12])
        xform = [None] + [XL if (types[ps - 1] in "GU" and not (kind == "B" and ps == 4)) else XE for ps in range(1, 5)]
        per = [[] for _ in range(N)]
        for (a, b, ins) in win:
            tot = sum(cost(i) for i in ins)
            c = 0
            for i in ins:
                g = a + min(b - a - 1, int((c + cost(i) / 2) * (b - a) / tot))
                per[g].append(i)
                c += cost(i)
        ds = DS(0)
        frag = {}
        out = []

        def rd(n):
            c = n // 28 * 4 + (n % 28 >> 3)
            j = n % 28
            imm = ((j >> 1) & 3) * 4096 + (j & 1) * 512
            b = WF + 4 * (n % NB)
            a = VA if c % 2 == 0 else VB
            out.extend([f"ds_read_b64_tr_b16 {vr(b,2)}, v{a} offset:{imm}", f"ds_read_b64_tr_b16 {vr(b+2,2)}, v{a} offset:{imm+256}"])
            ds.op()
            frag[n] = ds.op()
            nn = n + 1
            cn = nn // 28 * 4 + (nn % 28 >> 3)
            if cn != c and c + 2 < 20:
                out.append(f"v_add_u32 v{a}, {phys(c+2)*SLOT}, v{VTRL}")
        for n in range(NB):
            rd(n)
        wr = tagr = None
        rdx = {}
        for g in range(N):
            ps, j = divmod(g, 28)
            if g % 2 == 0:
                out += ds.need(frag[g + 1])
            w = vr(WF + 4 * (g % NB), 4)
            x = vr(X + 4 * (j >> 1), 4)
            a, b = (x, w) if types[ps] == "V" else (w, x)
            ac = vr(acc[ps] + 16 * (j & 1), 16)
            out.append(f"{MFMA} {ac}, {a}, {b}, {'0' if j < 2 else ac}")
            prev = acc[ps - 1] if ps else None
            XW, XR = xform[ps] if ps else ([], [])
            XB = XR[0] if ps else None
            if j in (7, 15, 23, 27) and g != N - 1:
                if j == XB and ps:
                    out += ds.need(wr)
                out.append("s_barrier")
                if ENV("CB"):
                    bi = ps * 4 + (7, 15, 23, 27).index(j) + 1 - int(ENV("CB"))
                    if 0 <= bi < 7:
                        out.append(f"s_memtime s[{80+2*bi}:{81+2*bi}]")
                if g == 35:
                    out.append(f"v_mov_b32 v0, {TAGL}\nds_read_b64 v[0:1], v0")
                    tagr = ds.op()
            if g + NB < N:
                rd(g + NB)
            if ps and j in XW:
                i = XW.index(j)
                if len(XW) == 4:
                    out.append(f"ds_write_b128 v{VEX}, {vr(xreg(prev, i),4)} offset:{1024*i}")
                else:
                    out.append(f"ds_write_b64 v{VEX}, {vr(xreg(prev, i >> 1) + 2*(i & 1),2)} offset:{1024*(i >> 1) + 8*(i & 1)}")
                wr = ds.op()
            if ps and j in XR:
                i = XR.index(j)
                out.append(f"ds_read_b128 {vr(xreg(prev, i),4)}, v{VEXP} offset:{1024*i}")
                rdx[i] = ds.op()
            if ps and j - 3 in XR:
                i = XR.index(j - 3)
                out += ds.need(rdx[i])
                r = xreg(prev, i)
                d = G + 4 * i if types[ps - 1] == "G" else r - 8
                out += [f"v_add_f32 v{d+k}, v{r-8+k}, v{r+k}" for k in range(4)]
            out += per[g]
            if ENV("CPRIO") == "tog":
                out.insert(len(out) - len(per[g]) - (2 if g + NB < N else 0), "s_setprio 0")
                out.append("s_setprio 1")
            if g == 27:
                out += stamp_txt(3)
        if ENV("NOXCHG"):
            out = [i for i in out if not i.startswith(("ds_write_b128", "ds_read_b128", "v_add_f32"))]
        if ENV("NOTR"):
            out = [i for i in out if not i.startswith("ds_read_b64_tr")]
        for i in out:
            p(i)
    def tail(pre, mid, post):
        stamp(p, 4)
        for i in pre:
            p(i)
        for i in range(4):
            p(f"ds_write_b128 v{VEX}, {vr(xreg(SA, i),4)} offset:{1024*i}")
        for i in mid[:12]:
            p(i)
        p("s_waitcnt lgkmcnt(0)\ns_barrier")
        for i in range(4):
            p(f"ds_read_b128 {vr(xreg(SA, i),4)}, v{VEXP} offset:{1024*i}")
        for i in mid[12:]:
            p(i)
        p("s_waitcnt lgkmcnt(0)\ns_barrier")
        for i in range(4):
            r = xreg(SA, i)
            for k in range(4):
                p(f"v_add_f32 v{r-8+k}, v{r-8+k}, v{r+k}")
        for i in post:
            p(i)
    p("s_cmp_eq_u32 s8, 1\ns_cbranch_scc1 L_btype")
    stream("A")
    tail([], [], epi_s(SA) + [flag(71, True)[0].replace("vmcnt(0)", "vmcnt(1)"),
                              "s_lshl_b32 s58, s58, 4\ns_add_u32 s71, s58, s71\ns_add_u32 s71, s71, 32\ns_mov_b32 s58, s71"])
    p("s_branch L_bdone")
    p.label("L_btype")
    stream("B")
    tail(gelu(GG, [2])[12:], gelu(GG, [3]), prod2(SA) + ["s_add_u32 s58, s71, 16"])
    p.label("L_bdone")
    p(f"""
    v_and_b32 v{VEXP}, 1023, v{VEX}
    v_mov_b32 v{T}, v0
    v_mov_b32 v{T+1}, v1
    v_mov_b32 v{VL16}, v{VEXP}
    """)
    if ENV("STOPB"):
        stamp(p, 5)
        endpgm(p)
    Q, KF, VF, S0, S1, PP, O = 8, 16, 24, 32, 48, 64, 72
    VCUR, VNXT, VKV, VCN, VONE, CK, E3, VCO = 2, 3, 5, 6, 88, 90, 94, 4
    BAL = ENV('BAL', '1') == '1'
    p(f"""
    s_lshr_b32 s7, s6, 4
    s_lshl_b32 s8, s5, 1
    s_add_u32 s7, s7, s8                ; head
    s_and_b32 s8, s6, 15                ; q block
    s_lshl_b32 s11, s8, 2
    s_add_u32 s11, s11, s{S_RG}         ; q tile (0..63)
    s_lshl_b32 s12, s7, 18
    s_add_u32 s12, s12, {KV_OFF}
    s_lshl_b32 s46, s{S_HF}, 14         ; kh*16384
    v_add_u32 v{VCUR}, s46, v{VL16}
    v_add_u32 v{VNXT}, {3*SLOT}, v{VCUR}
    v_add_u32 v{VCUR}, {1*SLOT}, v{VCUR}
    s_cmp_eq_u32 s{S_HF}, 0
    s_cselect_b32 s47, {5*SLOT}, 0
    s_cselect_b32 s3, s47, {QL}
    s_lshl_b32 s13, s{S_RG}, 12         ; rg*4096
    v_add_u32 v{VKV}, s13, v{VL16}
    s_add_u32 s14, s46, {2*KVS}
    s_lshl_b32 s4, s{S_HF}, 7
    s_add_u32 s4, s4, {CNT}
    v_mov_b32 v{VCN}, s4
    v_xor_b32 v{VCO}, 128, v{VCN}
    v_mov_b32 v{VONE}, 1
    v_mov_b32 v{VONE+1}, 0
    s_mov_b32 s48, 1                    ; iteration
    s_mov_b32 s49, 0
    s_mov_b32 s50, 4
    s_mov_b32 s51, 4
    s_lshl_b32 s4, s{S_RG}, 11
    s_add_u32 s3, s3, s4
    v_add_u32 v{CK+2}, s3, v{VL16}
    """)
    srd(p, 36, P_WS, 262144, "s12")
    for r in list(range(PP, PP + 8)) + list(range(O, O + 16)) + list(range(E3, E3 + 4)):
        p(f"v_mov_b32 v{r}, 0")
    lds_spin(p, "L_w0", f"v{VCN} offset:4", CK, "4", 52)
    stamp(p, 5)
    p(f"""
    ds_read_b128 {vr(Q,4)}, v{CK+2}
    ds_read_b128 {vr(Q+4,4)}, v{CK+2} offset:1024
    ds_read_b128 {vr(KF,4)}, v{VCUR}
    ds_read_b128 {vr(KF+4,4)}, v{VCUR} offset:1024
    s_waitcnt lgkmcnt(0)
    {MFMA} {vr(S0,16)}, {vr(KF,4)}, {vr(Q,4)}, 0
    {MFMA} {vr(S0,16)}, {vr(KF+4,4)}, {vr(Q+4,4)}, {vr(S0,16)}
    ds_read_b128 {vr(KF,4)}, v{VCUR} offset:4096
    ds_read_b128 {vr(KF+4,4)}, v{VCUR} offset:5120
    ds_read_b128 {vr(VF+4,4)}, v{VCUR} offset:3072
    ds_read_b128 {vr(VF,4)}, v{VCUR} offset:2048
    s_nop 5
    """)

    def phase(k, mf, rd, sc, sp, extra=""):
        if k % 2 == 0:
            p("s_waitcnt lgkmcnt(2)")
        p(mf)
        p(rd)
        src, pk = (E3, 3) if k == 0 else (sc + 4 * (k - 1), k - 1)
        dst = E3 if k == 3 else sc + 4 * k
        e = [f"v_exp_f32 v{dst+i}, v{sc+4*k+i}" for i in range(4)]
        c = [f"v_cvt_pk_bf16_f32 v{PP+2*pk+i}, v{src+2*i}, v{src+2*i+1}" for i in range(2)]
        for x in (e[0], c[0], e[1], c[1]):
            p(x)
        if extra:
            p(extra)
        p(e[2]); p(e[3])

    def ta(u, off):
        return f"v{VCUR} offset:{u*4096+off}" if u < 4 else f"v{VNXT} offset:{(u-4)*4096+off}"

    def body(first, tag):
        sig = f"""
        s_mov_b64 exec, 1
        {'' if first else 's_waitcnt vmcnt(0)'}
        ds_add_u64 v{VCN}, {vr(VONE,2)}
        s_mov_b64 exec, -1
        """
        for u in range(4):
            sc, sn = (S0, S1) if u % 2 == 0 else (S1, S0)
            if u == 2:
                p(f"""
                s_waitcnt lgkmcnt(1)
                v_cmp_ne_u64 vcc, s[50:51], {vr(CK,2)}
                s_add_u32 m0, s47, s13
                s_cmp_lg_u64 vcc, 0
                s_cbranch_scc1 L_a_spin{tag}
                L_a_go{tag}:
                """)
                if BAL:
                    p(f"""
                    v_cmp_eq_u32 vcc, 4, v{CK+2}
                    s_setprio 0
                    s_cmp_eq_u64 vcc, 0
                    s_cbranch_scc1 L_a_pr{tag}
                    s_setprio 1
                    L_a_pr{tag}:
                    """)
                if first:
                    p(f"""
                    s_mov_b64 exec, 1
                    s_waitcnt vmcnt(0)
                    buffer_store_dwordx2 {vr(T,2)}, off, s[40:43], s71 sc1
                    buffer_store_dwordx2 {vr(T,2)}, off, s[40:43], s58 sc1
                    s_mov_b64 exec, -1
                    v_mov_b32 v{VONE+1}, 1
                    """)
                else:
                    p(f"s_cmp_gt_u32 s48, 5\ns_cbranch_scc1 L_a_nofill")
                for q in range(4):
                    p(f"buffer_load_dwordx4 v{VKV}, s[36:39], s14 offen offset:{q*1024} sc1 lds")
                p(f"s_add_u32 s14, s14, {KVS}")
                if not first:
                    p.label("L_a_nofill")
            phase(0, f"{MFMA} {vr(sn,16)}, {vr(KF,4)}, {vr(Q,4)}, 0", f"ds_read_b128 {vr(KF,4)}, {ta(u+2, 0)}", sc, sn)
            phase(1, f"{MFMA} {vr(sn,16)}, {vr(KF+4,4)}, {vr(Q+4,4)}, {vr(sn,16)}",
                  f"ds_read_b128 {vr(KF+4,4)}, {ta(u+2, 1024)}", sc, sn)
            phase(2, f"{MFMA} {vr(O,16)}, {vr(VF+4,4)}, {vr(PP+4,4)}, {vr(O,16)}",
                  f"ds_read_b128 {vr(VF+4,4)}, {ta(u, 3072)}", sc, sn,
                  (f"ds_read_b64 {vr(CK,2)}, v{VCN}" + (f"\nds_read_b32 v{CK+2}, v{VCO}" if BAL else "")) if u == 1 else "")
            ex = sig if u == 0 else ""
            if u == 3:
                ex = f"""
                v_mov_b32 v{VCUR}, v{VNXT}
                v_add_u32 v{VNXT}, s47, v{VL16}
                v_add_u32 v{VCN}, 8, v{VCN}
                v_xor_b32 v{VCO}, 128, v{VCN}
                s_add_u32 s47, s47, {2*SLOT}
                s_cmp_ge_u32 s47, {6*SLOT}
                s_cselect_b32 s3, {6*SLOT}, 0
                s_sub_u32 s47, s47, s3
                """
                if not first:
                    ex += "s_add_u32 s48, s48, 1\ns_cmp_lt_u32 s48, 8"
            phase(3, f"{MFMA} {vr(O,16)}, {vr(VF,4)}, {vr(PP,4)}, {vr(O,16)}",
                  f"ds_read_b128 {vr(VF,4)}, {ta(u+1, 2048)}", sc, sn, ex)
    body(True, "f")
    p(".p2align 6")
    p.label("L_aloop")
    body(False, "")
    p("s_cbranch_scc1 L_aloop\ns_branch L_a_done")
    for tag in ("f", ""):
        p.label("L_a_spin" + tag)
        lds_spin(p, "L_a_sp" + tag, f"v{VCN}", CK, "s[50:51]", 52, wide=True)
        p("s_branch L_a_go" + tag)
    p.label("L_a_done")
    stamp(p, 6)
    p(f"""
    v_cvt_pk_bf16_f32 v{PP+6}, v{E3}, v{E3+1}
    v_cvt_pk_bf16_f32 v{PP+7}, v{E3+2}, v{E3+3}
    s_waitcnt lgkmcnt(0)
    {MFMA} {vr(O,16)}, {vr(VF+4,4)}, {vr(PP+4,4)}, {vr(O,16)}
    s_lshl_b32 s46, s{S_RG}, 12
    s_lshl_b32 s3, s{S_HF}, 14
    s_add_u32 s46, s46, s3
    s_add_u32 s46, s46, {SLOT}
    v_add_u32 v3, s46, v{VL16}
    s_lshl_b32 s3, s{S_RG}, 3
    s_add_u32 s3, s3, {CNT_COMB}
    v_mov_b32 v{VCN}, s3
    s_mov_b64 exec, 1
    ds_add_rtn_u32 v{CK}, v{VCN}, v{VONE}
    s_mov_b64 exec, -1
    s_waitcnt lgkmcnt(0)
    v_readfirstlane_b32 s3, v{CK}
    s_cmp_lg_u32 s3, 0
    s_cbranch_scc1 L_acomb
    """)
    for i in range(4):
        p(f"ds_write_b128 v3, {vr(O+4*i,4)} offset:{1024*i}")
    p(f"""
    s_mov_b64 exec, 1
    s_waitcnt lgkmcnt(0)
    ds_add_u32 v{VCN}, v{VONE} offset:4
    s_waitcnt lgkmcnt(0)
    """)
    endpgm(p)
    p.label("L_acomb")
    p(f"v_xor_b32 v3, {3*SLOT}, v3")
    lds_spin(p, "L_cw", f"v{VCN} offset:4", CK, "1", 52)
    for i in range(4):
        p(f"ds_read_b128 {vr(S0+4*i,4)}, v3 offset:{1024*i}")
    for q in range(4):
        p(f"s_waitcnt lgkmcnt({3-q})")
        for i in range(4 * q, 4 * q + 4):
            p(f"v_add_f32 v{O+i}, v{O+i}, v{S0+i}")
    p.label("L_afin")
    T2 = S1
    p(f"""
    s_mov_b32 s50, {f32(2.0**-60)}
    s_mov_b32 s51, {f32(2.0**100)}
    s_bitcmp1_b32 s7, 0
    s_cbranch_scc1 L_f_odd
    v_mov_b32 v{T2}, v{O+12}
    v_mov_b32 v{T2+1}, v{O+12}
    v_permlane32_swap_b32 v{T2}, v{T2+1}
    s_mov_b32 exec_lo, 0
    v_mov_b32 v{O+12}, 0
    v_mov_b32 v{O+13}, 0
    v_mov_b32 v{O+14}, 0
    v_mov_b32 v{O+15}, 0
    s_branch L_f_join
    L_f_odd:
    v_mov_b32 v{T2}, v{O}
    v_mov_b32 v{T2+1}, v{O}
    v_permlane32_swap_b32 v{T2+1}, v{T2}
    s_mov_b32 exec_hi, 0
    v_mov_b32 v{O}, 0
    v_mov_b32 v{O+1}, 0
    v_mov_b32 v{O+2}, 0
    v_mov_b32 v{O+3}, 0
    L_f_join:
    s_mov_b64 exec, -1
    v_rcp_f32 v{T2+2}, v{T2+1}
    v_cmp_ge_f32 s[52:53], v{T2+1}, s50
    v_cmp_le_f32 s[54:55], v{T2+1}, s51
    """)
    for i in range(16):
        p(f"v_mul_f32 v{O+i}, v{O+i}, v{T2+2}")
    p(f"v_mul_f32 v{T2+3}, 0, v{O}")
    for i in range(1, 16):
        p(f"v_fmac_f32 v{T2+3}, 0, v{O+i}")
    pack16(p, PP, O)
    p(f"""
    v_cmp_eq_f32 s[56:57], 0, v{T2+3}
    s_and_b64 s[52:53], s[52:53], s[54:55]
    s_lshl_b32 s45, s11, 15             ; rowtile*32K
    s_lshl_b32 s46, s7, 11              ; head*2K
    s_add_u32 s45, s45, s46
    s_add_u32 s45, s45, {O_OFF}
    s_and_b64 s[52:53], s[52:53], s[56:57]
    s_cmp_eq_u64 s[52:53], -1
    s_cbranch_scc1 L_aok
    s_cmp_eq_u32 s49, 0x5afe
    s_cbranch_scc0 L_fallback
    """)
    p.label("L_aok")
    p(f"""
    buffer_store_dwordx4 {vr(PP,4)}, v{VL16}, s[40:43], s45 offen sc1
    buffer_store_dwordx4 {vr(PP+4,4)}, v{VL16}, s[40:43], s45 offen offset:1024 sc1
    s_lshl_b32 s45, s11, 7
    s_lshl_b32 s46, s7, 3
    s_add_u32 s45, s45, s46
    s_add_u32 s45, s45, {OFL}
    s_mov_b64 exec, 1
    s_waitcnt vmcnt(0)
    buffer_store_dwordx2 {vr(T,2)}, off, s[40:43], s45 sc1
    """)
    endpgm(p)
    p.label("L_fallback")
    M, MN, AL, TM, T3 = 100, 101, 102, 103, 104
    p("s_mov_b32 s49, 0x5afe")
    for i in range(16):
        p(f"v_mov_b32 v{O+i}, 0")
    p(f"v_mov_b32 v{M}, 0xff800000\ns_mov_b32 s14, 0")
    p.label("L_fbloop")
    p(f"""
    buffer_load_dwordx4 {vr(KF,4)}, v{VL16}, s[36:39], s14 offen sc1
    buffer_load_dwordx4 {vr(KF+4,4)}, v{VL16}, s[36:39], s14 offen offset:1024 sc1
    buffer_load_dwordx4 {vr(VF,4)}, v{VL16}, s[36:39], s14 offen offset:2048 sc1
    buffer_load_dwordx4 {vr(VF+4,4)}, v{VL16}, s[36:39], s14 offen offset:3072 sc1
    s_waitcnt vmcnt(2)
    {MFMA} {vr(S0,16)}, {vr(KF,4)}, {vr(Q,4)}, 0
    {MFMA} {vr(S0,16)}, {vr(KF+4,4)}, {vr(Q+4,4)}, {vr(S0,16)}
    v_max3_f32 v{TM}, v{S0}, v{S0+1}, v{S0+2}
    """)
    for i in range(3, 15, 2):
        p(f"v_max3_f32 v{TM}, v{S0+i}, v{S0+i+1}, v{TM}")
    p(f"""
    v_max_f32 v{TM}, v{S0+15}, v{TM}
    v_mov_b32 v{T3}, v{TM}
    v_permlane32_swap_b32 v{TM}, v{T3}
    v_max3_f32 v{MN}, v{TM}, v{T3}, v{M}
    v_sub_f32 v{AL}, v{M}, v{MN}
    v_exp_f32 v{AL}, v{AL}
    v_mov_b32 v{M}, v{MN}
    """)
    for i in range(16):
        p(f"v_sub_f32 v{S0+i}, v{S0+i}, v{MN}")
    for i in range(16):
        p(f"v_exp_f32 v{S0+i}, v{S0+i}")
    for i in range(16):
        p(f"v_mul_f32 v{O+i}, v{O+i}, v{AL}")
    pack16(p, PP, S0)
    p(f"""
    s_waitcnt vmcnt(0)
    {MFMA} {vr(O,16)}, {vr(VF,4)}, {vr(PP,4)}, {vr(O,16)}
    {MFMA} {vr(O,16)}, {vr(VF+4,4)}, {vr(PP+4,4)}, {vr(O,16)}
    s_add_u32 s14, s14, 4096
    s_cmp_lt_u32 s14, 262144
    s_cbranch_scc1 L_fbloop
    s_branch L_afin
    """)


def gen_s(p, S_W):
    VL16, VQ, VF_, VS_ = 1, 2, 3, 7
    p(f"""
    s_sub_u32 s4, s{S_W}, 8
    s_and_b32 s9, s4, 1
    s_lshr_b32 s10, s4, 1
    v_bfe_u32 v13, v0, 2, 3
    s_mul_i32 s12, s9, 224
    s_lshl_b32 s13, s10, 3
    s_add_u32 s12, s12, s13
    v_add_u32 v13, s12, v13
    v_lshrrev_b32 v14, 5, v0
    v_and_b32 v15, 3, v0
    v_lshlrev_b32 v15, 4, v15
    v_mul_u32_u24 v{VS_}, 3584, v13
    v_add_u32 v{VS_}, v{VS_}, v15
    v_lshl_add_u32 v{VF_}, v14, 6, v{VS_}
    v_mul_u32_u24 v{VQ}, 2688, v13
    v_mul_u32_u24 v14, 48, v14
    v_add3_u32 v{VQ}, v{VQ}, v14, v15
    v_lshlrev_b32 v{VL16}, 4, v0
    s_lshl_b32 s56, s10, 11
    s_lshl_b32 s12, s9, 10
    s_add_u32 s56, s56, s12
    s_mul_i32 s64, s7, 112
    s_add_u32 s65, s64, 896
    s_cmp_eq_u32 s8, 1
    s_cselect_b32 s12, 0, 1792
    s_cselect_b32 s13, 0, 256
    s_add_u32 s64, s64, s12
    s_mul_i32 s66, s7, 384
    s_add_u32 s66, s66, s13
    s_lshl_b32 s67, s7, 6
    s_add_u32 s67, s67, {48*64}
    """)
    p.label("L_ld_p")
    p("s_waitcnt lgkmcnt(0)")
    if ENV("TLB"):
        TA = 44
        p(f"""
        s_cmp_lg_u32 s4, {ENV("TLBW", 0)}
        s_cbranch_scc1 L_notlb
        v_min_u32 v{TA}, {WS_USED // (2*MB) - 1}, v0
        v_lshlrev_b32 v{TA}, 21, v{TA}
        v_mov_b32 v{TA+1}, s{P_WS+1}
        v_add_co_u32 v{TA}, vcc, s{P_WS}, v{TA}
        v_addc_co_u32 v{TA+1}, vcc, 0, v{TA+1}, vcc
        """)
        bufs = [(P_WG, 448 * 3584), (P_WU, 448 * 3584), (P_WQKV, 448 * 2688), (P_WD, 1792 * 896), (P_WO, 448 * 896),
                (P_OUT, 2048 * 896), (P_DBG, 256), (P_X, 2048 * 896)]
        for i, (b, n) in enumerate(bufs):
            p(f"""
            v_writelane_b32 v{TA}, s{b}, {16+2*i}
            v_writelane_b32 v{TA+1}, s{b+1}, {16+2*i}
            s_add_u32 s12, s{b}, {n-4}
            s_addc_u32 s13, s{b+1}, 0
            v_writelane_b32 v{TA}, s12, {17+2*i}
            v_writelane_b32 v{TA+1}, s13, {17+2*i}
            """)
        p(f"global_load_dword v{TA+2}, {vr(TA,2)}, off")
        p.label("L_notlb")
    srd(p, 36, P_WQKV, 448 * 2688)
    srd(p, 40, P_WG, 448 * 3584)
    srd(p, 72, P_WU, 448 * 3584)
    srd(p, 48, P_WD, 1792 * 896)
    srd(p, 52, P_WO, 448 * 896)

    def phys(c):
        return 8 if c == 0 else 9 if c == 1 else (c + 5) % 8
    PF = 24

    VFQ, TGV, FL = 6, 4, 8
    PB = int(ENV('PB', 17))

    def qkv_poll(emit):
        emit(f"buffer_load_dwordx4 {vr(FL,4)}, v{VL16}, s[44:47], s62 offen sc1")
        emit(f"buffer_load_dwordx4 {vr(FL+4,4)}, v{VL16}, s[44:47], s62 offen offset:1024 sc1")
        emit(f"buffer_load_dwordx4 {vr(FL+8,4)}, v{VFQ}, s[44:47], s63 offen sc1")
    srd(p, 44, P_WS, WS_USED)
    p(f"""
    s_lshl_b32 s62, s5, 12
    s_add_u32 s62, s62, {QKVF}
    s_and_b32 s63, s6, 15
    s_lshl_b32 s63, s63, 6
    s_add_u32 s63, s63, s62
    s_add_u32 s63, s63, 2048
    v_and_b32 v{VFQ}, 3, v0
    v_lshlrev_b32 v{VFQ}, 4, v{VFQ}
    """)

    def stream(kinds):
        spec = {"V": (36, VQ, 64, 0), "Q": (36, VQ, 64, 0), "K": (36, VQ, 65, 0), "G": (40, VF_, 66, 0), "U": (72, VF_, 66, 0),
                "g": (40, VF_, 66, 128), "u": (72, VF_, 66, 128), "S": (40, VS_, 67, 0)}
        stages = [(kinds[ps], sl) for ps in range(5) for sl in range(4)]
        vm = VM(p)
        last = {}
        issued = 0

        nq = 0

        def issue1():
            nonlocal issued, nq
            kind, sl = stages[issued]
            s_, v, col, add = spec[kind]
            stride = 2688 if s_ == 36 else 3584
            q = nq
            p(f"s_add_u32 m0, s56, {phys(issued)*SLOT + q*4096}")
            p(f"s_add_u32 s13, s{col}, {(64*sl + 16*q)*stride + add}")
            if ENV("NOFILL"):
                last[issued] = None
            elif kind == "S":
                p("s_mov_b32 exec_hi, 0")
                vm.op(f"buffer_load_dwordx4 v{v}, s[40:43], s13 offen lds")
                p("s_not_b64 exec, exec")
                last[issued] = vm.op(f"buffer_load_dwordx4 v{v}, s[72:75], s13 offen lds")
                p("s_mov_b64 exec, -1")
            else:
                last[issued] = vm.op(f"buffer_load_dwordx4 v{v}, s[{s_}:{s_+3}], s13 offen lds")
            nq += 1
            if nq == (2 if sl == 3 else 4):
                nq = 0
                issued += 1

        def issue():
            c = issued
            while issued == c:
                issue1()
        if TL:
            p("v_mov_b32 v60, 0")
        tl(p, 0)
        if ENV("WPF", "1") == "1":
            p(f"s_lshl_b32 s13, s2, 2\ns_add_u32 s13, s13, s4\ns_lshl_b32 s13, s13, 10\ns_add_u32 s14, s13, {1 << 20}")
            for r in (36, 40, 72):
                vm.op(f"buffer_load_dwordx4 {vr(PF,4)}, v{VL16}, s[{r}:{r+3}], s13 offen")
                vm.op(f"buffer_load_dwordx4 {vr(PF,4)}, v{VL16}, s[{r}:{r+3}], s14 offen")
        issue(); issue()
        tl(p, 1)
        dbg = ENV("SDBG")
        p(f"s_barrier\ns_barrier\ns_setprio {ENV('SPRIO', 0)}")
        if dbg: stamp(p, 1)
        tl(p, 2)
        issue(); issue()
        vm.need(last[1])
        tl(p, 3)
        p("s_barrier")
        tl(p, 4)
        if dbg: stamp(p, 2)
        issue(); issue()
        if dbg: stamp(p, 3)
        for i in range(1, PB + 2):
            vm.need(last[min(i + 1, 19)])
            if dbg and i == int(dbg): stamp(p, 5)
            tl(p, 3 + 2 * i)
            p("s_barrier")
            tl(p, 4 + 2 * i)
            if dbg and i == int(dbg) - 1: stamp(p, 4)
            if dbg and i == int(dbg): stamp(p, 6)
            budget = 8 if i < 3 else int(ENV("SHORTB", 0)) if i % 4 == 3 else int(ENV("LONGB", 6))
            if i >= 3:
                budget = eval(ENV("BUD", "[0, 6, 6, 2]"))[i % 4]
            elif i % 4 == 0 and kinds[i // 4 - 1] in "VKQ":
                budget = int(ENV("XB", 2))
            while budget > 0:
                if issued < min(20, max(10, i + 8)):
                    budget -= 2 if stages[issued][0] == "S" else 1
                    issue1()
                else:
                    break
            if i == PB:
                p(f"v_mov_b32 v{TGV}, {TAGL}\nds_read_b64 {vr(TGV,2)}, v{TGV}")
                qkv_poll(vm.op)
            if i == int(ENV('PFI', 15)):
                PFMODE = ENV("PFMODE", "chip")
                if PFMODE == "chip":
                    p(f"s_lshl_b32 s13, s2, 2\ns_add_u32 s13, s13, s4\ns_lshl_b32 s14, s13, 11\ns_lshl_b32 s13, s13, 9")
                    vm.op(f"buffer_load_dwordx4 {vr(PF,4)}, v{VL16}, s[48:51], s14 offen")
                    vm.op(f"buffer_load_dwordx4 {vr(PF+4,4)}, v{VL16}, s[48:51], s14 offen offset:1024")
                    vm.op(f"buffer_load_dwordx4 {vr(PF+8,4)}, v{VL16}, s[52:55], s13 offen")
            if ENV("PFMODE", "chip") == "xcd" and 5 <= i < 9:
                k = i - 5
                if k == 0:
                    p(f"s_lshl_b32 s13, s6, 2\ns_add_u32 s13, s13, s4\ns_mul_i32 s57, s13, {13*1024}\ns_lshl_b32 s58, s13, 12")
                    for q in range(4):
                        vm.op(f"buffer_load_dwordx4 {vr(PF+4*q,4)}, v{VL16}, s[52:55], s58 offen offset:{q*1024}")
                    vm.op(f"buffer_load_dwordx4 {vr(PF+16,4)}, v{VL16}, s[48:51], s57 offen")
                    p("s_add_u32 s57, s57, 1024")
                else:
                    for q in range(4):
                        vm.op(f"buffer_load_dwordx4 {vr(PF+4*q,4)}, v{VL16}, s[48:51], s57 offen offset:{q*1024}")
                    p("s_add_u32 s57, s57, 4096")
        assert issued == 20
    p("s_cmp_eq_u32 s8, 1\ns_cbranch_scc1 L_ld_b")
    stream("VKGUS")
    p("s_branch L_ld_done")
    p.label("L_ld_b")
    stream("QGUgu")
    p.label("L_ld_done")
    if not ENV("SDBG"):
        stamp(p, 1)
    tl_dump(p)
    if ENV("STOPB"):
        endpgm(p)
    p(f"""
    s_lshr_b32 s7, s6, 4
    s_lshl_b32 s8, s5, 1
    s_add_u32 s7, s7, s8                ; head
    s_and_b32 s8, s6, 15                ; q block
    """)
    VKV = 2
    p(f"""
    s_lshl_b32 s12, s7, 18
    s_add_u32 s12, s12, {KV_OFF}
    s_lshl_b32 s13, s4, 12              ; s*4096
    v_add_u32 v{VKV}, s13, v{VL16}
    s_lshl_b32 s66, s7, 17
    s_lshl_b32 s3, s8, 13
    s_add_u32 s66, s66, s3
    s_lshl_b32 s3, s4, 11
    s_add_u32 s66, s66, s3
    s_add_u32 s66, s66, {QF_OFF}
    s_add_u32 s67, s3, {QL}
    s_mov_b32 s68, 0                    ; ready
    s_mov_b32 s69, 0
    s_mov_b32 s70, {PB+2}
    s_mov_b32 s71, {SPIN_MAX}
    """)
    srd(p, 36, P_WS, 262144, "s12")
    srd(p, 40, P_WS, WS_USED)
    p.label("L_pl")
    p(f"""
    s_cmp_lg_u32 s68, 0
    s_cbranch_scc1 L_pl_ready
    s_cmp_ge_u32 s70, 22
    s_cbranch_scc1 L_pl_eval
    s_bitcmp1_b32 s70, 0
    s_cbranch_scc{1 - PB % 2} L_pl_bar
    L_pl_eval:
    s_waitcnt vmcnt(0) lgkmcnt(0)
    v_cmp_eq_u64 s[76:77], {vr(FL,2)}, {vr(TGV,2)}
    """)
    for k in range(1, 6):
        p(f"v_cmp_eq_u64 vcc, {vr(FL+2*k,2)}, {vr(TGV,2)}\ns_and_b64 s[76:77], s[76:77], vcc")
    p(f"""
    s_sub_u32 s71, s71, 1
    s_cselect_b32 s68, 1, 0
    s_cmp_eq_u64 s[76:77], -1
    s_cselect_b32 s68, 1, s68
    s_cmp_lg_u32 s68, 0
    s_cbranch_scc1 L_pl_q
    """)
    qkv_poll(lambda t: p(t))
    p(f"""
    s_branch L_pl_bar
    L_pl_q:
    s_mov_b32 m0, s67
    s_nop 0
    buffer_load_dwordx4 v{VL16}, s[40:43], s66 offen sc1 lds
    buffer_load_dwordx4 v{VL16}, s[40:43], s66 offen offset:1024 sc1 lds
    L_pl_ready:
    s_add_u32 s3, s69, 14
    s_cmp_gt_u32 s3, s70
    s_cbranch_scc1 L_pl_bar
    s_cmp_ge_u32 s69, 5
    s_cbranch_scc1 L_pl_bar
    s_cmp_lt_u32 s69, 4
    s_cbranch_scc1 L_pl_kv
    s_add_u32 m0, s67, {5*SLOT - QL}
    s_mov_b32 s69, 5
    buffer_load_dwordx4 v{VL16}, s[40:43], s66 offen sc1 lds
    buffer_load_dwordx4 v{VL16}, s[40:43], s66 offen offset:1024 sc1 lds
    s_branch L_pl_bar
    L_pl_kv:
    s_lshl_b32 s14, s69, 14
    s_add_u32 s3, s14, s13
    s_add_u32 m0, s3, {SLOT}
    s_add_u32 s69, s69, 1
    buffer_load_dwordx4 v{VKV}, s[36:39], s14 offen sc1 lds
    buffer_load_dwordx4 v{VKV}, s[36:39], s14 offen offset:1024 sc1 lds
    buffer_load_dwordx4 v{VKV}, s[36:39], s14 offen offset:2048 sc1 lds
    buffer_load_dwordx4 v{VKV}, s[36:39], s14 offen offset:3072 sc1 lds
    s_branch L_pl_ready
    L_pl_bar:
    s_cmp_ge_u32 s70, 22
    s_cbranch_scc1 L_pl_nobar
    s_cmp_lg_u32 s70, 20
    s_cbranch_scc1 L_pl_noinit
    s_cmp_lg_u32 s4, 0
    s_cbranch_scc1 L_pl_noinit
    v_lshlrev_b32 v22, 2, v0
    v_add_u32 v22, {CNT}, v22
    v_mov_b32 v23, 0
    ds_write_b32 v22, v23
    s_waitcnt lgkmcnt(0)
    L_pl_noinit:
    s_barrier
    s_add_u32 s70, s70, 1
    s_branch L_pl
    L_pl_nobar:
    s_cmp_ge_u32 s69, 5
    s_cbranch_scc1 L_pl_done
    s_sleep 4
    s_branch L_pl
    L_pl_done:
    v_mov_b32 v{FL}, {CNT}
    v_mov_b32 v{FL+1}, 1
    s_mov_b64 exec, 1
    s_waitcnt vmcnt(0)
    ds_add_u32 v{FL}, v{FL+1} offset:4
    ds_add_u32 v{FL}, v{FL+1} offset:132
    s_mov_b64 exec, -1
    s_mul_i32 s14, s8, {12*1024}
    s_mul_i32 s3, s4, {3*1024}
    s_add_u32 s14, s14, s3
    s_add_u32 s14, s14, {2*KVS}
    buffer_load_dwordx4 {vr(FL+4,4)}, v{VL16}, s[36:39], s14 offen sc1
    buffer_load_dwordx4 {vr(FL+4,4)}, v{VL16}, s[36:39], s14 offen offset:1024 sc1
    buffer_load_dwordx4 {vr(FL+4,4)}, v{VL16}, s[36:39], s14 offen offset:2048 sc1
    s_cmp_ge_u32 s6, {0 if ENV("NODOWN") else 28}
    s_cbranch_scc1 L_s_end
    s_setprio {ENV("DPRIO0", 0)}
    """)
    stamp(p, 2)
    ACC, WF, HB = 8, 72, 88
    VD, VT0, VT1, VX = 2, 3, 6, 7
    GR, XF = 144, 160
    NRING = 7
    p(f"""
    s_and_b32 s9, s6, 3
    s_lshl_b32 s10, s5, 2
    s_add_u32 s9, s9, s10
    s_lshr_b32 s10, s6, 2
    s_lshr_b32 s11, s4, 1
    s_lshl_b32 s57, s9, 1
    s_add_u32 s57, s57, s11
    s_xor_b32 s58, s57, 1
    s_mul_i32 s3, s4, {12*2048}
    s_add_u32 s3, s3, {H_OFF}
    s_mul_i32 s60, s57, 114688
    s_add_u32 s60, s60, s3
    s_mul_i32 s61, s58, 114688
    s_add_u32 s61, s61, s3
    v_bfe_u32 v{VX}, v0, 2, 3
    v_mul_u32_u24 v{VX}, 896, v{VX}
    v_lshrrev_b32 v{VT0}, 5, v0
    v_lshl_add_u32 v{VX}, v{VT0}, 6, v{VX}
    v_and_b32 v{VT0}, 3, v0
    v_lshl_add_u32 v{VX}, v{VT0}, 4, v{VX}
    s_lshl_b32 s14, s10, 7
    v_add_u32 v{VD}, s14, v{VX}
    v_lshrrev_b32 v{VX}, 5, v0
    v_lshlrev_b32 v{VX}, 8, v{VX}
    v_bfe_u32 v{VT0}, v0, 2, 2
    v_lshl_add_u32 v{VX}, v{VT0}, 6, v{VX}
    v_bfe_u32 v{VT0}, v0, 4, 1
    v_lshl_add_u32 v{VX}, v{VT0}, 5, v{VX}
    v_and_b32 v{VT0}, 3, v0
    v_lshl_add_u32 v{VX}, v{VT0}, 3, v{VX}
    s_lshl_b32 s15, s4, 14
    s_add_u32 s15, s15, {PRIV}
    s_and_b32 s3, s4, 1
    s_lshl_b32 s3, s3, 9
    s_add_u32 s3, s3, s15
    v_add_u32 v{VT0}, s3, v{VX}
    v_xor_b32 v{VT1}, 512, v{VT0}
    s_mul_i32 s62, s4, {12*32*896}
    s_mul_i32 s63, s4, -10
    s_add_u32 s63, s63, 48
    s_lshl_b32 s64, s63, 11
    s_add_u32 s65, s64, s61
    s_add_u32 s64, s64, s60
    s_mul_i32 s63, s63, {32*896}
    s_add_u32 s63, s63, s62
    """)
    vm = VM(p)

    order = [0, 1, 6, 7, 4, 5, 10, 11, 2, 3, 8, 9, 12, 13]
    seg_end = [8, 16, 28]
    seg_mask = [0x0000F00F, 0x00F00F00, 0x0F0F00F0]

    def wload(ks):
        sl = ks % NRING
        if ks >= 28:
            for o in range(2):
                p(f"s_add_u32 m0, s15, {sl*2048 + o*1024}")
                p(f"s_add_u32 s14, s67, {(16*sl + 8*o)*896}")
                vm.op(f"buffer_load_dwordx4 v{VD}, s[52:55], s14 offen lds")
            return
        t = order[ks >> 1]
        base, t = ("s62", t) if t < 12 else ("s63", t - 12)
        for o in range(2):
            p(f"s_add_u32 m0, s15, {sl*2048 + o*1024}")
            p(f"s_add_u32 s14, {base}, {(32*t + 16*(ks&1) + 8*o)*896}")
            wid[ks] = vm.op(f"buffer_load_dwordx4 v{VD}, s[48:51], s14 offen lds")

    def hload(ks):
        sl = ks % NRING
        t = order[ks >> 1]
        (b0, b1), t = (("s60", "s61"), t) if t < 12 else (("s64", "s65"), t - 12)
        off = t * 2048 + (ks & 1) * 1024
        for r, b_ in enumerate((b0, b1)):
            if off >= 4096:
                p(f"s_add_u32 s14, {b_}, {off & ~4095}")
            hid[ks] = vm.op(f"buffer_load_dwordx4 {vr(HB+8*sl+4*r,4)}, v{VL16}, s[40:43], {'s14' if off >= 4096 else b_} offen offset:{off & 4095} sc1")
    wid, hid = {}, {}
    VFA, FT = GR, GR + 2
    p(f"""
    v_and_b32 v{VFA}, 31, v0
    v_min_u32 v{VFA}, 27, v{VFA}
    v_cmp_lt_u32 vcc, 23, v{VFA}
    v_lshlrev_b32 v{VFA}, 3, v{VFA}
    s_mul_i32 s3, s4, -160
    s_add_u32 s3, s3, {48*16 - 192}
    v_mov_b32 v{VFA+1}, s3
    v_cndmask_b32 v{VFA+1}, 0, v{VFA+1}, vcc
    v_add_u32 v{VFA}, v{VFA}, v{VFA+1}
    v_lshrrev_b32 v{VFA+1}, 5, v0
    v_lshl_add_u32 v{VFA}, v{VFA+1}, 10, v{VFA}
    s_lshl_b32 s66, s9, 11
    s_mul_i32 s3, s4, 192
    s_add_u32 s66, s66, s3
    s_add_u32 s66, s66, {HFL}
    s_mov_b32 s71, {SPIN_MAX}
    s_mul_i32 s67, s4, {112*896}
    v_and_b32 v{VX}, 31, v0
    s_lshl_b32 s14, s57, 5
    v_add_u32 v{VX}, s14, v{VX}
    v_mul_u32_u24 v{VX}, 896, v{VX}
    v_lshrrev_b32 v0, 5, v0
    v_lshl_add_u32 v{VX}, v0, 3, v{VX}
    s_and_b32 s14, s4, 1
    s_lshl_b32 s14, s14, 6
    s_lshl_b32 s3, s10, 7
    s_add_u32 s14, s14, s3
    v_add_u32 v0, s14, v{VX}
    """)
    VXO = 0
    srd(p, 44, P_X, 2048 * 896)
    for g4 in range(4):
        vm.op(f"buffer_load_dwordx2 {vr(XF+2*g4,2)}, v{VXO}, s[44:47], 0 offen offset:{16*g4}")

    def hpoll(k):
        label = f"L_hp{k}"
        p(f"s_mov_b32 s68, {seg_mask[k]}\ns_mov_b32 s69, s68")
        p.label(label)
        p(f"""
        buffer_load_dwordx2 {vr(FT,2)}, v{VFA}, s[40:43], s66 offen sc1
        s_sub_u32 s71, s71, 1
        s_waitcnt vmcnt(0)
        v_cmp_eq_u64 vcc, {vr(FT,2)}, {vr(TGV,2)}
        s_cmp_eq_u32 s71, 0
        s_cbranch_scc1 {label}_x
        s_and_b64 vcc, vcc, s[68:69]
        s_cmp_eq_u64 vcc, s[68:69]
        s_cbranch_scc1 {label}_x
        s_sleep 8
        s_branch {label}
        {label}_x:
        """)
        vm.done = vm.n

    def trd(wb, base, a0=VT0, a1=VT1):
        for c, a in enumerate((a0, a1)):
            for b in range(2):
                p(f"ds_read_b64_tr_b16 {vr(wb+4*c+2*b,2)}, v{a} offset:{base + b*1024}")
    LOOK = int(ENV("LOOK", 3))
    seg, hn = 0, 0

    def hfill(done):
        nonlocal hn
        while hn < min(seg_end[seg], done + NRING):
            hload(hn)
            hn += 1
    for ks in range(2):
        wload(ks)
    hpoll(0)
    stamp(p, 3)
    for ks in range(NRING):
        hload(ks)
        if ks + 2 < NRING:
            wload(ks + 2)
    hn = NRING
    p(f"s_setprio {ENV('DPRIO', 0)}")
    trd(WF, 0)
    for ks in range(28):
        sl = ks % NRING
        wb = WF + 8 * (ks & 1)
        if ks + 1 < 28:
            vm.need(wid[ks + 1])
            trd(WF + 8 * ((ks + 1) & 1), ((ks + 1) % NRING) * 2048)
        vm.need(hid[ks])
        p(f"s_waitcnt lgkmcnt({4 if ks + 1 < 28 else 0})")
        for a in range(4):
            ac = vr(ACC + 16 * a, 16)
            p(f"{MFMA} {ac}, {vr(wb+4*(a&1),4)}, {vr(HB+8*sl+4*(a>>1),4)}, {'0' if ks == 0 else ac}")
            if ENV("DINT") and a == 0 and ks >= 1:
                hfill(ks)
            if ENV("DINT") and a == 1 and ks + NRING < 28:
                wload(ks + NRING)
        if seg < 2 and ks + 1 + LOOK == seg_end[seg]:
            seg += 1
            hpoll(seg)
            hfill(ks + 1)
        if not ENV("DINT"):
            hfill(ks + 1)
            wload(ks + NRING)
    stamp(p, 4)

    def send():
        p(f"v_add_u32 v{VX}, s15, v{VL16}")
        for a in range(1, 4):
            for r in range(4):
                p(f"ds_write_b128 v{VX}, {vr(ACC+16*a+4*r,4)} offset:{(a-1)*4096 + r*1024}")

    def ssync(k):
        p(f"v_mov_b32 v{WF+1}, {CNT_S0 + 4*k}\nv_mov_b32 v{WF+2}, 1")
        p(f"s_mov_b64 exec, 1\ns_waitcnt lgkmcnt(0)\nds_add_u32 v{WF+1}, v{WF+2}\ns_mov_b64 exec, -1")
        lds_spin(p, f"L_ss{k}", f"v{WF+1}", WF, "4", 71)

    def recv():
        for a in range(1, 4):
            p(f"s_xor_b32 s3, s4, {a}\ns_lshl_b32 s3, s3, 14\ns_add_u32 s3, s3, {PRIV + (a-1)*4096}\nv_add_u32 v{VX}, s3, v{VL16}")
            for r in range(4):
                p(f"ds_read_b128 {vr(ACC+16*a+4*r,4)}, v{VX} offset:{r*1024}")

    def addup():
        for a in range(1, 4):
            p(f"s_waitcnt lgkmcnt({4*(3-a)})")
            for r in range(16):
                p(f"v_add_f32 v{ACC+r}, v{ACC+r}, v{ACC+16*a+r}")
    d7 = ENV("SD7")
    if d7: stamp(p, 1)
    p(f"""
    v_mov_b32 v{WF+1}, {CNT}
    v_mov_b32 v{WF+2}, 1
    s_lshl_b32 s3, s4, 2
    v_mov_b32 v{WF+3}, s3
    v_add_u32 v{WF+3}, {CNT_S0 + 4}, v{WF+3}
    v_xor_b32 v{WF+4}, 8, v{WF+3}
    v_xor_b32 v{WF+5}, 4, v{WF+3}
    s_and_b32 s3, s4, 1
    s_lshl_b32 s3, s3, 13
    s_cmp_lt_u32 s4, 2
    s_cselect_b32 s14, {5*SLOT}, 0
    s_add_u32 s3, s3, s14
    v_add_u32 v{VX}, s3, v{VL16}                    ; area(kq)
    v_xor_b32 v{VD}, {5*SLOT}, v{VX}                ; area(kq^2)
    """)
    lds_spin(p, "L_g0", f"v{WF+1} offset:48", WF, "4", 71)
    lds_spin(p, "L_g1", f"v{WF+1} offset:176", WF, "4", 71)
    for i in range(8):
        p(f"ds_write_b128 v{VX}, {vr(ACC+32+4*i,4)} offset:{i*1024}")
    p(f"s_waitcnt lgkmcnt(0)\nds_write_b32 v{WF+3}, v{WF+2}")
    lds_spin(p, "L_h1", f"v{WF+4}", WF, "1", 71)
    if d7: stamp(p, 2)
    for i in (4, 5, 6, 7, 0, 1, 2, 3):
        p(f"ds_read_b128 {vr(ACC+32+4*i,4)}, v{VD} offset:{i*1024}")
    p("s_waitcnt lgkmcnt(4)")
    for r in range(16):
        p(f"v_add_f32 v{ACC+16+r}, v{ACC+16+r}, v{ACC+48+r}")
    p("s_waitcnt lgkmcnt(0)")
    for i in range(4):
        p(f"ds_write_b128 v{VD}, {vr(ACC+16+4*i,4)} offset:{i*1024}")
    for r in range(16):
        p(f"v_add_f32 v{ACC+r}, v{ACC+r}, v{ACC+32+r}")
    p(f"v_xor_b32 v{VX}, 8192, v{VX}\ns_waitcnt lgkmcnt(0)\nds_write_b32 v{WF+3}, v{WF+2} offset:16")
    if d7: stamp(p, 3)
    lds_spin(p, "L_h2", f"v{WF+5} offset:16", WF, "1", 71)
    p(f"v_xor_b32 v{VX}, {5*SLOT}, v{VX}")
    for i in range(4):
        p(f"ds_read_b128 {vr(ACC+16+4*i,4)}, v{VX} offset:{i*1024}")
    for i in range(4):
        p(f"s_waitcnt lgkmcnt({3-i})")
        for r in range(4 * i, 4 * i + 4):
            p(f"v_add_f32 v{ACC+r}, v{ACC+r}, v{ACC+16+r}")
    if d7: stamp(p, 4)
    T = ACC + 16
    p(f"s_mov_b32 s3, {f32(-LOG2E)}")
    for i in range(16):
        p(f"v_mul_f32 v{T+i}, s3, v{ACC+i}")
    for i in range(16):
        p(f"v_exp_f32 v{T+i}, v{T+i}")
    for i in range(16):
        p(f"v_add_f32 v{T+i}, 1.0, v{T+i}")
    for i in range(16):
        p(f"v_rcp_f32 v{T+i}, v{T+i}")
    GREG = [GR + i for i in range(16)]
    for i in range(16):
        p(f"v_mul_f32 v{GREG[i]}, v{ACC+i}, v{T+i}")
    if ENV("DUMP_G"):
        for i in range(8):
            p(f"v_cvt_pk_bf16_f32 v{T+i}, v{GREG[2*i]}, v{GREG[2*i+1]}")
        p(f"""
        s_mul_i32 s14, s57, {14*2048}
        s_lshl_b32 s3, s10, 1
        s_and_b32 s63, s4, 1
        s_add_u32 s3, s3, s63
        s_lshl_b32 s3, s3, 11
        s_add_u32 s14, s14, s3
        s_add_u32 s14, s14, {G_OFF}
        buffer_store_dwordx4 {vr(T,4)}, v{VL16}, s[40:43], s14 offen
        buffer_store_dwordx4 {vr(T+4,4)}, v{VL16}, s[40:43], s14 offen offset:1024
        """)
    p(f"""
    v_bfe_u32 v{VX}, v{VL16}, 4, 2
    v_lshlrev_b32 v{VX}, 3, v{VX}
    v_bfe_u32 v{WF}, v{VL16}, 6, 1
    v_lshl_add_u32 v{VX}, v{WF}, 7, v{VX}
    s_lshl_b32 s14, s9, 8
    s_lshl_b32 s3, s4, 5
    s_add_u32 s14, s14, s3
    s_add_u32 s14, s14, {OFL}
    s_mov_b32 s71, {SPIN_MAX}
    s_lshl_b32 s3, s4, 13
    s_add_u32 s3, s3, {O_OFF}
    s_lshl_b32 s60, s57, 15
    s_add_u32 s60, s60, s3
    s_lshl_b32 s61, s58, 15
    s_add_u32 s61, s61, s3
    s_add_u32 s62, s60, 4096
    s_add_u32 s63, s61, 4096
    v_and_b32 v{WF+4}, 24, v{VX}
    v_add_u32 v{WF+4}, {CNT_COMB}, v{WF+4}
    """)
    stamp(p, 5)
    p(f"s_setprio {ENV('DPRIO3', 0)}")
    p.label("L_op")
    p(f"""
    buffer_load_dwordx2 {vr(WF,2)}, v{VX}, s[40:43], s14 offen sc1
    s_sub_u32 s71, s71, 1
    s_waitcnt vmcnt(0)
    v_cmp_eq_u64 vcc, {vr(WF,2)}, {vr(TGV,2)}
    s_cmp_eq_u32 s71, 0
    s_cbranch_scc1 L_op_x
    s_cmp_eq_u64 vcc, -1
    s_cbranch_scc1 L_op_x
    ds_read_b32 v{WF+2}, v{WF+4}
    s_waitcnt lgkmcnt(0)
    v_cmp_eq_u32 vcc, 2, v{WF+2}
    s_cmp_eq_u64 vcc, -1
    s_cbranch_scc1 L_op
    s_sleep {ENV("OSLEEP", 2)}
    s_branch L_op
    L_op_x:
    """)
    stamp(p, 6)
    vm = VM(p)
    OB = HB
    oid = {}

    def oload(kk, r):
        sreg = (("s60", "s61"), ("s62", "s63"))[kk >> 2][r]
        slot = (2 * kk + r) % 14
        oid[(kk, r)] = vm.op(f"buffer_load_dwordx4 {vr(OB+4*slot,4)}, v{VL16}, s[40:43], {sreg} offen offset:{(kk&3)*1024} sc1")
    for kk in range(7):
        oload(kk, 0); oload(kk, 1)

    def wrd(kk):
        hh, s_ = kk >> 1, kk & 1
        row = 28 * hh - 4 * (hh & 1) + 16 * s_
        trd(WF + 8 * (kk & 1), (row >> 3) * 1024)
    wrd(0)
    for kk in range(8):
        if kk + 1 < 8:
            wrd(kk + 1)
        wb = WF + 8 * (kk & 1)
        p(f"s_waitcnt lgkmcnt({4 if kk + 1 < 8 else 0})")
        for a in range(4):
            vm.need(oid[(kk, a >> 1)])
            ac = vr(ACC + 16 * a, 16)
            p(f"{MFMA} {ac}, {vr(wb+4*(a&1),4)}, {vr(OB+4*((2*kk+(a>>1))%14),4)}, {'0' if kk == 0 else ac}")
        if kk == 0:
            oload(7, 0); oload(7, 1)
    if ENV("SD8"): stamp(p, 1)
    send()
    srd(p, 44, P_OUT, 2048 * 896)
    XE = HB
    for i in range(8):
        p(f"v_lshlrev_b32 v{XE+2*i}, 16, v{XF+i}")
        p(f"v_and_b32 v{XE+2*i+1}, 0xffff0000, v{XF+i}")
    ssync(0)
    if ENV("SD8"): stamp(p, 2)
    recv()
    addup()
    if ENV("SD8"): stamp(p, 3)
    for i in range(16):
        p(f"v_fma_f32 v{ACC+i}, v{ACC+i}, v{GREG[i]}, v{XE+i}")
    pack16(p, WF, ACC)
    for g4 in range(4):
        p(f"buffer_store_dwordx2 {vr(WF+2*g4,2)}, v{VXO}, s[44:47], 0 offen offset:{16*g4}")
    p.label("L_s_end")
    endpgm(p)


def main():
    ref = open("cdna_kernels/" + NAME + ".s.ref").read().split("\n")
    head = [l for l in ref if l.startswith(";") and "@launch" not in l and "Override launch" not in l and "grid=ceil" not in l]
    p = Prog()
    gen(p)
    body = p.finalize()
    out = head[:]
    out.append("; @launch grid=(256,1,1) block=(768,1,1) lds=163840")
    out.append('.amdgcn_target "amdgcn-amd-amdhsa--gfx950"\n.text')
    out.append(body)
    out.append(f""".section .rodata,"a"
.p2align 6
.amdhsa_kernel {KN}
  .amdhsa_next_free_vgpr 168
  .amdhsa_next_free_sgpr 100
  .amdhsa_accum_offset 168
  .amdhsa_group_segment_fixed_size 0
  .amdhsa_kernarg_size 80
  .amdhsa_user_sgpr_count 2
  .amdhsa_user_sgpr_kernarg_segment_ptr 1
  .amdhsa_system_sgpr_workgroup_id_x 1
.end_amdhsa_kernel""")
    if ENV("PLAINLD"):
        import re
        out = [re.sub(r"(buffer_load_dwordx4 .*) sc1( lds)?$", r"\1\2", l, flags=re.M) if "s[44:47], s6" not in l else l for l in "\n".join(out).split("\n")]
    path = sys.argv[1] if len(sys.argv) > 1 else "cdna_kernels/" + NAME + ".s"
    open(path, "w").write("\n".join(out) + "\n")
    print("wrote", path, "nops inserted:", p.total_nops)


main()
```

```python
import math, struct, sys, os
from asmlib import Prog

NAME = "recurrent_scan__mha_block__geglu_ffn__prompt"
KN = NAME + "_kernel"
MB = 1 << 20
QF_OFF, KV_OFF, H_OFF, O_OFF, G_OFF = 0, 2 * MB, 6 * MB, 13 * MB, 15 * MB
FLAG_OFF = 17 * MB
QKVF, HFL, OFL = FLAG_OFF, FLAG_OFF + 65536, FLAG_OFF + 131072
WS_USED = 18 * MB
LOG2E = math.log2(math.e)
QSCALE = LOG2E / math.sqrt(28.0)
SPIN_MAX = 1 << 12
ENV = os.environ.get
STAMPS = bool(ENV("STAMPS"))
STAMP_OFF = 24 * MB
MFMA = "v_mfma_f32_32x32x16_bf16"
P_X, P_WQKV, P_WO, P_WG, P_WU, P_WD, P_OUT, P_DBG, P_WS = 16, 18, 20, 24, 26, 28, 30, 32, 34
SLOT = 16384
EXB = 8 * SLOT
TAGL = 4 * SLOT + 8192
QL = 8192
PRIV = 6 * SLOT
CNT = PRIV + 15360
CNT_COMB, CNT_S0 = CNT + 64, CNT + 220
KVS = 32768
CNT_TAG = CNT + 224


def f32(x):
    return "0x%08x" % struct.unpack("<I", struct.pack("<f", x))[0]


def vr(b, n=1):
    return f"v{b}" if n == 1 else f"v[{b}:{b+n-1}]"


def srd(p, d, base, nrec, add=None):
    if add is None:
        p(f"s_mov_b32 s{d}, s{base}\ns_mov_b32 s{d+1}, s{base+1}")
    else:
        p(f"s_add_u32 s{d}, s{base}, {add}\ns_addc_u32 s{d+1}, s{base+1}, 0")
    p(f"s_mov_b32 s{d+2}, {nrec}\ns_mov_b32 s{d+3}, 0x20000")


def pack16(p, dst, src):
    for i in range(8):
        p(f"v_cvt_pk_bf16_f32 v{dst+i}, v{src+2*i}, v{src+2*i+1}")


def stamp_txt(i):
    if STAMPS and not (ENV("CB") and i < 7):
        assert i < 8
        return [f"{ENV('STAMP_INS', 's_memrealtime')} s[{80+2*i}:{81+2*i}]"]
    return []


def stamp(p, i):
    for x in stamp_txt(i):
        p(x)


TL = bool(ENV("TL"))


def tl(p, idx):
    if TL:
        p(f"{ENV('STAMP_INS', 's_memrealtime')} s[94:95]\ns_waitcnt lgkmcnt(0)\nv_writelane_b32 v60, s94, {idx}")


def tl_dump(p):
    if TL:
        p(f"""
        s_lshl_b32 s94, s2, 4
        s_add_u32 s94, s94, s59
        s_lshl_b32 s94, s94, 8
        s_add_u32 s94, s94, {STAMP_OFF + MB}
        s_mov_b32 s96, s{P_WS}
        s_mov_b32 s97, s{P_WS+1}
        s_mov_b32 s98, {32*MB}
        s_mov_b32 s99, 0x20000
        v_lshlrev_b32 v61, 2, v0
        buffer_store_dword v60, v61, s[96:99], s94 offen
        """)


def endpgm(p):
    if STAMPS and ENV("DBGMAX"):
        stamp(p, 7)
        p(f"""
        s_mov_b64 exec, -1
        s_mov_b32 s96, s{P_DBG}
        s_mov_b32 s97, s{P_DBG+1}
        s_mov_b32 s98, 256
        s_mov_b32 s99, 0x20000
        buffer_load_dword v10, off, s[96:99], 0 sc1
        s_waitcnt vmcnt(0) lgkmcnt(0)
        """)
        for i in range(8):
            p(f"v_writelane_b32 v8, s{80+2*((i+1) % 8)}, {i}")
        p(f"""
        v_cmp_ne_u32 vcc, 0, v8
        v_sub_u32 v8, v8, v10
        v_add_u32 v8, 1000, v8
        v_cndmask_b32 v8, 0, v8, vcc
        s_cmp_ge_u32 s59, 8
        s_cselect_b32 s4, 36, 8
        v_mbcnt_lo_u32_b32 v9, -1, 0
        v_lshlrev_b32 v9, 2, v9
        s_mov_b64 exec, 0x7f
        buffer_atomic_umax v8, v9, s[96:99], s4 offen
        s_waitcnt vmcnt(0)
        """)
    elif STAMPS:
        stamp(p, 7)
        p("s_waitcnt vmcnt(0) lgkmcnt(0)\ns_mov_b64 exec, -1")
        for i in range(8):
            p(f"v_writelane_b32 v8, s{80+2*i}, {i}")
        p(f"""
        s_lshl_b32 s4, s2, 4
        s_add_u32 s4, s4, s59
        s_lshl_b32 s4, s4, 5
        s_add_u32 s4, s4, {STAMP_OFF}
        s_mov_b32 s96, s{P_WS}
        s_mov_b32 s97, s{P_WS+1}
        s_mov_b32 s98, {32*MB}
        s_mov_b32 s99, 0x20000
        v_mbcnt_lo_u32_b32 v9, -1, 0
        v_lshlrev_b32 v9, 2, v9
        s_mov_b64 exec, 0xff
        buffer_store_dword v8, v9, s[96:99], s4 offen
        """)
    p("s_endpgm")


class DS:
    def __init__(self, pending):
        self.n, self.done = pending, 0

    def op(self):
        self.n += 1
        return self.n - 1

    def need(self, i):
        if i < self.done:
            return []
        self.done = i + 1
        return [f"s_waitcnt lgkmcnt({min(15, self.n - 1 - i)})"]


class VM:
    def __init__(self, p):
        self.p, self.n, self.done = p, 0, 0

    def op(self, txt):
        self.p(txt)
        self.n += 1
        return self.n - 1

    def need(self, i):
        if i is None or i < self.done:
            return
        self.done = i + 1
        k = self.n - 1 - i
        assert k <= 63
        self.p(f"s_waitcnt vmcnt({k})")


def cost(ins):
    c = 0
    for l in ins.strip().split("\n"):
        m = l.strip().split()[0]
        c += 8 if m.startswith(("v_exp", "v_rcp", "v_rsq", "ds_")) else 16 if m.startswith("buffer_") else 4
    return c


def lds_spin(p, label, addr_v, tmp, want, sreg, wide=False):
    p(f"s_mov_b32 s{sreg}, {SPIN_MAX*8}")
    p.label(label)
    if wide:
        p(f"ds_read_b64 {vr(tmp,2)}, {addr_v}\ns_sub_u32 s{sreg}, s{sreg}, 1\ns_waitcnt lgkmcnt(0)\nv_cmp_ne_u64 vcc, {want}, {vr(tmp,2)}")
    else:
        p(f"ds_read_b32 v{tmp}, {addr_v}\ns_sub_u32 s{sreg}, s{sreg}, 1\ns_waitcnt lgkmcnt(0)\nv_cmp_ne_u32 vcc, {want}, v{tmp}")
    p(f"""
    s_cmp_eq_u32 s{sreg}, 0
    s_cbranch_scc1 {label}_x
    s_cmp_eq_u64 vcc, 0
    s_cbranch_scc1 {label}_x
    s_sleep 1
    s_branch {label}
    {label}_x:
    """)


def gen(p):
    p(f".globl {KN}\n.p2align 8\n.type {KN},@function")
    p.label(KN)
    S_W, S_RG, S_HF, S_RB, S_RT = 59, 60, 61, 62, 63
    p(f"""
    s_cmp_ge_u32 s2, 256
    s_cbranch_scc1 L_exit
    s_load_dwordx16 s[16:31], s[0:1], 0
    s_load_dwordx4 s[32:35], s[0:1], 64
    """)
    if STAMPS:
        for i in range(16):
            p(f"s_mov_b32 s{80+i}, 0")
        stamp(p, 0)
    p(f"""
    v_lshrrev_b32 v2, 6, v0
    v_and_b32 v0, 63, v0
    v_readfirstlane_b32 s{S_W}, v2
    s_and_b32 s5, s2, 7                 ; xcd
    s_lshr_b32 s6, s2, 3                ; j
    s_and_b32 s7, s5, 3
    s_lshl_b32 s7, s7, 2
    s_and_b32 s8, s6, 3
    s_add_u32 s{S_RB}, s7, s8           ; rb = 4*(x&3) + (j&3)
    s_lshr_b32 s7, s5, 2
    s_lshl_b32 s7, s7, 3
    s_lshr_b32 s8, s6, 2
    s_add_u32 s7, s7, s8                ; cg = 8*(x>>2) + (j>>2)
    s_and_b32 s8, s7, 1
    s_lshr_b32 s7, s7, 1
    s_cmp_ge_u32 s{S_W}, 8
    s_cbranch_scc1 L_service
    """)
    gen_c(p, S_W, S_RG, S_HF, S_RB, S_RT)
    p.label("L_service")
    gen_s(p, S_W)
    p.label("L_exit")
    p("s_endpgm")


def gen_c(p, S_W, S_RG, S_HF, S_RB, S_RT):
    VL16, VA, VB, VTRL, VEX, VEXP, VST = 1, 2, 3, 4, 5, 6, 7
    X, SA, SB, G, WF, T = 8, 64, 96, 128, 144, 160
    p(f"""
    s_and_b32 s{S_RG}, s{S_W}, 3
    s_lshr_b32 s{S_HF}, s{S_W}, 2
    s_xor_b32 s{S_HF}, s{S_HF}, s8
    v_lshrrev_b32 v12, 2, v0            ; r16
    v_lshrrev_b32 v13, 4, v0            ; r16>>2
    v_xor_b32 v13, v13, v0
    v_and_b32 v13, 3, v13
    v_mul_u32_u24 v12, 896, v12
    v_lshl_add_u32 v12, v13, 4, v12
    s_lshl_b32 s9, s{S_RB}, 2
    s_add_u32 s{S_RT}, s9, s{S_RG}
    s_mul_i32 s9, s{S_RT}, {32*896}
    s_mul_i32 s10, s{S_HF}, 448
    s_add_u32 s9, s9, s10
    v_add_u32 v12, s9, v12
    s_mul_i32 s10, s{S_W}, 14336
    s_mov_b32 s11, {16*896}
    s_waitcnt lgkmcnt(0)
    """)
    srd(p, 44, P_DBG, 256)
    p(f"""
    s_add_u32 s12, s2, s{S_W}
    s_cmp_lg_u32 s12, 0
    s_cbranch_scc1 L_notagw
    s_memrealtime s[12:13]
    s_waitcnt lgkmcnt(0)
    s_or_b32 s12, s12, 1
    v_mov_b32 v16, s12
    v_mov_b32 v17, s13
    s_mov_b64 exec, 1
    buffer_store_dwordx2 v[16:17], off, s[44:47], 0 sc1
    s_mov_b64 exec, -1
    L_notagw:
    """)
    srd(p, 36, P_X, 2048 * 896)
    for cb in range(7):
        for rh in range(2):
            p(f"s_add_u32 m0, s10, {(rh*7+cb)*1024 - 64*cb}")
            p(f"buffer_load_dwordx4 v12, s[36:39], {'s11' if rh else '0'} offen offset:{64*cb} lds")
    srd(p, 40, P_WS, WS_USED)
    VXA, VXB, SUM, SQ, ONES, RS, NM, TG = T, T + 1, T + 2, T + 3, T + 4, G, G + 1, G + 2
    U = SB
    STAT = 7 * SLOT
    c0 = -2.0 * math.sqrt(2.0 / math.pi) * LOG2E
    c1 = c0 * 0.044715
    al = -((-c1) ** (1.0 / 3.0))
    p(f"""
    v_lshlrev_b32 v{VL16}, 4, v0
    s_lshl_b32 s3, s{S_HF}, 4
    v_xor_b32 v15, s3, v0
    v_lshlrev_b32 v{VST}, 4, v15
    s_lshl_b32 s12, s{S_HF}, 10
    v_add_u32 v{VST}, s12, v{VST}
    v_lshrrev_b32 v13, 5, v0
    v_lshlrev_b32 v13, 11, v13
    v_bfe_u32 v14, v0, 2, 2
    v_lshl_add_u32 v13, v14, 6, v13
    v_bfe_u32 v14, v15, 4, 1
    v_lshl_add_u32 v13, v14, 5, v13
    v_and_b32 v14, 3, v0
    v_lshl_add_u32 v13, v14, 3, v13
    s_lshl_b32 s12, s{S_HF}, 10
    v_add_u32 v{VTRL}, s12, v13
    v_add_u32 v{VA}, {8*SLOT}, v{VTRL}
    v_add_u32 v{VB}, {9*SLOT}, v{VTRL}
    s_lshl_b32 s12, s{S_W}, 12
    s_add_u32 s12, s12, {EXB}
    v_add_u32 v{VEX}, s12, v{VL16}
    v_xor_b32 v{VEXP}, 0x4100, v{VEX}
    v_bfe_u32 v13, v15, 4, 1
    v_mul_u32_u24 v13, 7168, v13
    v_and_b32 v14, 15, v0
    v_lshl_add_u32 v13, v14, 6, v13
    v_lshrrev_b32 v14, 5, v0            ; h
    v_bfe_u32 v15, v0, 2, 2             ; swz
    v_xor_b32 v14, v14, v15
    v_lshl_add_u32 v{VXA}, v14, 4, v13
    v_xor_b32 v14, 2, v14
    v_lshl_add_u32 v{VXB}, v14, 4, v13
    v_add_u32 v{VXA}, s10, v{VXA}
    v_add_u32 v{VXB}, s10, v{VXB}
    v_mov_b32 v{SUM}, 0
    v_mov_b32 v{SQ}, 0
    v_mov_b32 v{ONES}, 0x3f803f80
    s_mov_b32 s66, 0xffff0000
    s_mov_b32 s64, {f32(al)}
    s_mov_b32 s65, {f32(c0 / c1 * al * al)}
    v_and_b32 v{U+2}, 31, v0
    v_lshlrev_b32 v{U+2}, 3, v{U+2}
    s_lshl_b32 s12, s{S_W}, 8
    s_add_u32 s12, s12, {STAT}
    v_add_u32 v{U+3}, s12, v{U+2}
    v_xor_b32 v{U+2}, {1024+128}, v{U+3}
    """)
    p(f"""
    s_cmp_eq_u32 s8, 1
    s_cselect_b32 s69, {f32(QSCALE)}, 1.0
    s_cselect_b32 s4, 18, 19
    s_cselect_b32 s15, {QF_OFF}, {KV_OFF}
    s_cselect_b32 s73, 2048, 0
    s_cselect_b32 s14, 0, 4
    s_lshl_b32 s67, s7, s4
    s_sub_u32 s4, s4, 1
    s_lshl_b32 s68, 1, s4
    s_sub_u32 s4, s4, 6
    s_lshl_b32 s4, s{S_RT}, s4
    s_add_u32 s67, s67, s4
    s_add_u32 s67, s67, s15
    s_add_u32 s68, s68, s67
    s_add_u32 s72, s67, 2048
    s_add_u32 s75, s68, 2048
    s_lshl_b32 s12, s7, 12
    s_lshl_b32 s13, s{S_RT}, 4
    s_add_u32 s12, s12, s13
    s_lshl_b32 s13, s{S_HF}, 3
    s_add_u32 s12, s12, s13
    s_add_u32 s12, s12, {QKVF}          ; flags: [pair][K,V,Q][rowtile][hf]
    s_add_u32 s73, s73, s12
    s_add_u32 s74, s12, 1024
    s_mul_i32 s12, s7, 6
    s_add_u32 s14, s14, s12             ; first f tile
    s_add_u32 s58, s7, 48
    s_sub_u32 s58, s58, s14
    s_sub_u32 s58, s58, 2               ; from the tile after the first quad to the single tile (type A)
    s_lshl_b32 s70, s14, 11
    s_mul_i32 s4, s{S_RT}, 114688
    s_add_u32 s70, s70, s4
    s_add_u32 s70, s70, {H_OFF}
    s_lshl_b32 s71, s14, 4
    s_lshl_b32 s4, s{S_RT}, 10
    s_add_u32 s71, s71, s4
    s_add_u32 s71, s71, s13
    s_add_u32 s71, s71, {HFL}           ; flags: [rowtile][ftile][hf]
    ; pad masks: even head pads n=28..31 (hf=1 waves), odd head pads n=0..3 (hf=0 waves)
    s_cmp_eq_u32 s{S_HF}, 1
    s_mov_b32 s52, 0
    s_cselect_b32 s53, -1, 0            ; q/k even head: packed regs 2,3
    s_cselect_b32 s54, 0, -1            ; q/k odd head: packed regs 0,1
    s_mov_b32 s55, 0
    s_cselect_b32 s56, 0xf000, 0xf0000000 {';'} v even head: zero lanes
    """.replace("s_cselect_b32 s56, 0xf000, 0xf0000000 ;", "s_mov_b32 s56, 0xf0000000\n    s_cselect_b32 s56, 0xf000, s56 ;") + f"""
    s_mov_b32 s57, s56
    s_cselect_b32 s48, 0xf0000, 15      ; v odd head: zero lanes
    s_mov_b32 s49, s48
    s_lshr_b32 s50, s56, 3
    s_and_b32 s50, s50, s56             ; lowest lane of each group: the ones column
    s_mov_b32 s51, s50
    s_lshr_b32 s46, s48, 3
    s_and_b32 s46, s46, s48
    s_mov_b32 s47, s46
    """.replace("s46", "s78").replace("s47", "s79"))
    stamp(p, 1)

    def stat(cb):
        for d in range(8):
            r = X + 8 * cb + d
            p(f"v_dot2c_f32_bf16 v{SUM}, v{r}, v{ONES}")
            p(f"v_dot2c_f32_bf16 v{SQ}, v{r}, v{r}")
    for cb in range(7):
        p(f"s_waitcnt vmcnt({12 - 2*cb})")
        p(f"ds_read_b128 {vr(X+8*cb,4)}, v{VXA} offset:{cb*1024}")
        p(f"ds_read_b128 {vr(X+8*cb+4,4)}, v{VXB} offset:{cb*1024}")
        if cb:
            p("s_waitcnt lgkmcnt(2)")
            stat(cb - 1)
    p("s_waitcnt lgkmcnt(0)")
    stat(6)
    p(f"""
    v_mov_b32 v{U}, v{SUM}
    v_mov_b32 v{U+1}, v{SQ}
    v_permlane32_swap_b32 v{SUM}, v{U}
    v_permlane32_swap_b32 v{SQ}, v{U+1}
    v_add_f32 v{SUM}, v{SUM}, v{U}
    v_add_f32 v{SQ}, v{SQ}, v{U+1}
    ds_write_b64 v{U+3}, {vr(SUM,2)}
    s_waitcnt lgkmcnt(0)
    s_barrier
    ds_read_b64 {vr(U,2)}, v{U+2}
    s_waitcnt lgkmcnt(0)
    s_barrier
    v_add_f32 v{SUM}, v{SUM}, v{U}
    v_add_f32 v{SQ}, v{SQ}, v{U+1}
    v_mul_f32 v{SUM}, {f32(1.0/448)}, v{SUM}        ; mean
    v_mul_f32 v{SQ}, {f32(1.0/448)}, v{SQ}
    v_fma_f32 v{SQ}, -v{SUM}, v{SUM}, v{SQ}         ; var
    v_max_f32 v{SQ}, 0, v{SQ}
    v_add_f32 v{SQ}, {f32(1e-5)}, v{SQ}
    v_rsq_f32 v{RS}, v{SQ}                          ; rstd
    v_mul_f32 v{SUM}, v{SUM}, v{RS}
    v_sub_f32 v{NM}, 0, v{SUM}                      ; -mean*rstd
    """)
    stamp(p, 2)

    def normalise(kl):
        e = []
        tb = U + 8 * (kl & 1)
        for d in range(4):
            e += [f"v_lshlrev_b32 v{tb+2*d}, 16, v{X+4*kl+d}", f"v_and_b32 v{tb+2*d+1}, s66, v{X+4*kl+d}"]
        e += [f"v_fma_f32 v{tb+i}, v{tb+i}, v{RS}, v{NM}" for i in range(8)]
        e += [f"v_cvt_pk_bf16_f32 v{X+4*kl+d}, v{tb+2*d}, v{tb+2*d+1}" for d in range(4)]
        return e
    NPRE = int(ENV("NPRE", 3))
    for kl in range(NPRE):
        for i in normalise(kl):
            p(i)
    if ENV("CPRIO") == "young":
        p(f"s_cmp_lt_u32 s{S_W}, 4\ns_cbranch_scc1 L_noprio\ns_setprio 1\nL_noprio:")
    p("s_barrier")
    NB = 4

    def phys(c):
        return 8 if c == 0 else 9 if c == 1 else (c + 5) % 8

    def st(r, sreg):
        return f"buffer_store_dwordx4 {vr(r,4)}, v{VST}, s[40:43], s{sreg} offen sc1"

    def st2(r, sreg):
        return f"buffer_store_dwordx4 {vr(r,4)}, v{VST}, s[40:43], s{sreg} offen offset:2048 sc1"

    def flag(sreg, two=False):
        if ENV("NOFLAG"):
            return ["s_nop 0"]
        return [f"s_waitcnt vmcnt(0)\ns_mov_b64 exec, 1\nbuffer_store_dwordx2 v[0:1], off, s[40:43], s{sreg} sc1\n"
                + (f"buffer_store_dwordx2 v[0:1], off, s[40:43], s{sreg} offset:16 sc1\n" if two else "") + "s_mov_b64 exec, -1"]

    def epi_qk(acc):
        e = []
        for t in range(2):
            a = acc + 16 * t
            e += [f"v_mul_f32 v{a+i}, s69, v{a+i}" for i in range(8)]
            e += [f"v_cvt_pk_bf16_f32 v{T+4*t+i}, v{a+2*i}, v{a+2*i+1}" for i in range(4)]
            z = T + 2 if t == 0 else T + 4
            e += [f"s_mov_b64 exec, s[{52+2*t}:{53+2*t}]\nv_mov_b32 v{z}, 0\nv_mov_b32 v{z+1}, 0\ns_mov_b64 exec, -1"]
            e.append(st(T + 4 * t, 67 + t))
        return e

    def epi_v(acc):
        e = []
        for t in range(2):
            a = acc + 16 * t
            zm, om = ((56, 50), (48, 78))[t]
            e += [f"v_cvt_pk_bf16_f32 v{T+4*t+i}, v{a+2*i}, v{a+2*i+1}" for i in range(4)]
            e += [f"s_mov_b64 exec, s[{zm}:{zm+1}]\n" + "".join(f"v_mov_b32 v{T+4*t+i}, 0\n" for i in range(4))
                  + f"s_mov_b64 exec, s[{om}:{om+1}]\n"
                  + "".join(f"v_mov_b32 v{T+4*t+i}, 0x3f803f80\n" for i in range(4)) + "s_mov_b64 exec, -1"]
            e.append(st(T + 4 * t, (72, 75)[t]))
        return e

    def gelu(g, qs):
        e = []
        for q in qs:
            r = g[4 * q:4 * q + 4]
            t = [T + i for i in range(4)]
            u = [T + 4 + i for i in range(4)]
            e += [f"v_mul_f32 v{t[i]}, s64, v{r[i]}" for i in range(4)]
            e += [f"v_fma_f32 v{u[i]}, v{t[i]}, v{t[i]}, s65" for i in range(4)]
            e += [f"v_mul_f32 v{t[i]}, v{t[i]}, v{u[i]}" for i in range(4)]
            e += [f"v_exp_f32 v{t[i]}, v{t[i]}" for i in range(4)]
            e += [f"v_add_f32 v{t[i]}, 1.0, v{t[i]}" for i in range(4)]
            e += [f"v_rcp_f32 v{t[i]}, v{t[i]}" for i in range(4)]
            e += [f"v_mul_f32 v{r[i]}, v{r[i]}, v{t[i]}" for i in range(4)]
        return e
    GG = [G + i for i in range(16)]

    def prod2(acc):
        e = []
        for t in range(2):
            a = acc + 16 * t
            e += [f"v_mul_f32 v{a+i}, v{a+i}, v{G+8*t+i}" for i in range(8)]
            e += [f"v_cvt_pk_bf16_f32 v{T+4*t+i}, v{a+2*i}, v{a+2*i+1}" for i in range(4)]
            e.append((st, st2)[t](T + 4 * t, 70))
        return e + ["s_add_u32 s70, s70, 4096"]

    def epi_s(acc):
        g = [acc + i for i in range(8)]
        e = gelu(g, [0, 1])
        e += [f"v_mul_f32 v{g[i]}, v{g[i]}, v{acc+16+i}" for i in range(8)]
        e += [f"v_cvt_pk_bf16_f32 v{T+i}, v{g[2*i]}, v{g[2*i+1]}" for i in range(4)]
        return e + [st(T, 70)]

    tag_ld = [f"s_cmp_lg_u32 s{S_W}, 7\ns_cbranch_scc1 L_tl_@\n"
              f"buffer_load_dwordx2 {vr(TG,2)}, off, s[44:47], 0 sc1\nL_tl_@:"]
    tag_pub = [f"s_cmp_lg_u32 s{S_W}, 7\ns_cbranch_scc1 L_tp_@\ns_mov_b32 s12, {SPIN_MAX}\nL_tq_@:\ns_waitcnt vmcnt(0)\n"
               f"v_cmp_ne_u32 vcc, 0, v{TG}\ns_sub_u32 s12, s12, 1\ns_cbranch_scc1 L_tr_@\ns_cmp_lg_u64 vcc, 0\ns_cbranch_scc1 L_tr_@\n"
               f"buffer_load_dwordx2 {vr(TG,2)}, off, s[44:47], 0 sc1\ns_branch L_tq_@\nL_tr_@:\n"
               f"v_mov_b32 v{TG+2}, {TAGL}\nds_write_b64 v{TG+2}, {vr(TG,2)}\n"
               "s_waitcnt lgkmcnt(0)\nL_tp_@:"]
    XE = ([2, 3, 4, 5], [7, 8, 9, 10])
    XL = eval(ENV('XWR', '[2, 3, 4, 5], [7, 8, 9, 10]'))
    xreg = lambda acc, i: acc + 16 * (i >> 1) + 8 + 4 * (i & 1)

    def stream(kind):
        N = 140
        types = "VKGUS" if kind == "A" else "QGUGU"
        acc = [SA, SB, SA, SB, SA]
        win = []

        def W(a, b, ins):
            win.append((a, b, ins))
        for kl in range(NPRE, 14):
            W(2 * (kl - NPRE), 2 * (kl - NPRE) + 2, normalise(kl))
        W(8, 9, [x.replace("@", kind) for x in tag_ld])
        W(34, 35, [x.replace("@", kind) for x in tag_pub])
        FD = int(ENV("FLAGD", 13))
        KD = int(ENV("KD", 7))
        E0, E1 = XE[1][-1] + 4, XL[1][-1] + 4
        hf2 = flag(71, True) + ["s_add_u32 s71, s71, 32"]
        if ENV("NOEPI"):
            pass
        elif kind == "A":
            W(28 + E0, 28 + E0 + 6, epi_v(SA))
            W(56 + FD, 56 + FD + 1, flag(74))
            W(56 + E0, 56 + E0 + int(ENV('KW', 6)), epi_qk(SB))
            W(84 + KD, 84 + KD + 1, flag(73))
            W(84 + E1, 112 + E1 - 2, gelu(GG, [0, 1, 2, 3]))
            W(112 + E1, 140, prod2(SB) + ["s_lshl_b32 s12, s58, 11\ns_add_u32 s70, s70, s12"])
        else:
            W(28 + E0, 28 + E0 + 6, epi_qk(SA))
            W(56 + FD - 6, 56 + FD - 5, flag(73))
            W(56 + E1, 84 + E1 - 2, gelu(GG, [0, 1, 2, 3]))
            W(84 + E1, 112, prod2(SA))
            W(112 + E0 - 1, 112 + E0, hf2)
            W(112 + E0, 140, gelu(GG, [0, 1]) + gelu(GG, [2])[:12])
        xform = [None] + [XL if (types[ps - 1] in "GU" and not (kind == "B" and ps == 4)) else XE for ps in range(1, 5)]
        per = [[] for _ in range(N)]
        for (a, b, ins) in win:
            tot = sum(cost(i) for i in ins)
            c = 0
            for i in ins:
                g = a + min(b - a - 1, int((c + cost(i) / 2) * (b - a) / tot))
                per[g].append(i)
                c += cost(i)
        ds = DS(0)
        frag = {}
        out = []

        def rd(n):
            c = n // 28 * 4 + (n % 28 >> 3)
            j = n % 28
            imm = ((j >> 1) & 3) * 4096 + (j & 1) * 512
            b = WF + 4 * (n % NB)
            a = VA if c % 2 == 0 else VB
            out.extend([f"ds_read_b64_tr_b16 {vr(b,2)}, v{a} offset:{imm}", f"ds_read_b64_tr_b16 {vr(b+2,2)}, v{a} offset:{imm+256}"])
            ds.op()
            frag[n] = ds.op()
            nn = n + 1
            cn = nn // 28 * 4 + (nn % 28 >> 3)
            if cn != c and c + 2 < 20:
                out.append(f"v_add_u32 v{a}, {phys(c+2)*SLOT}, v{VTRL}")
        for n in range(NB):
            rd(n)
        wr = tagr = None
        rdx = {}
        for g in range(N):
            ps, j = divmod(g, 28)
            if g % 2 == 0:
                out += ds.need(frag[g + 1])
            w = vr(WF + 4 * (g % NB), 4)
            x = vr(X + 4 * (j >> 1), 4)
            a, b = (x, w) if types[ps] == "V" else (w, x)
            ac = vr(acc[ps] + 16 * (j & 1), 16)
            out.append(f"{MFMA} {ac}, {a}, {b}, {'0' if j < 2 else ac}")
            prev = acc[ps - 1] if ps else None
            XW, XR = xform[ps] if ps else ([], [])
            XB = XR[0] if ps else None
            if j in (7, 15, 23, 27) and g != N - 1:
                if j == XB and ps:
                    out += ds.need(wr)
                out.append("s_barrier")
                if ENV("CB"):
                    bi = ps * 4 + (7, 15, 23, 27).index(j) + 1 - int(ENV("CB"))
                    if 0 <= bi < 7:
                        out.append(f"s_memtime s[{80+2*bi}:{81+2*bi}]")
                if g == 35:
                    out.append(f"v_mov_b32 v0, {TAGL}\nds_read_b64 v[0:1], v0")
                    tagr = ds.op()
            if g + NB < N:
                rd(g + NB)
            if ps and j in XW:
                i = XW.index(j)
                if len(XW) == 4:
                    out.append(f"ds_write_b128 v{VEX}, {vr(xreg(prev, i),4)} offset:{1024*i}")
                else:
                    out.append(f"ds_write_b64 v{VEX}, {vr(xreg(prev, i >> 1) + 2*(i & 1),2)} offset:{1024*(i >> 1) + 8*(i & 1)}")
                wr = ds.op()
            if ps and j in XR:
                i = XR.index(j)
                out.append(f"ds_read_b128 {vr(xreg(prev, i),4)}, v{VEXP} offset:{1024*i}")
                rdx[i] = ds.op()
            if ps and j - 3 in XR:
                i = XR.index(j - 3)
                out += ds.need(rdx[i])
                r = xreg(prev, i)
                d = G + 4 * i if types[ps - 1] == "G" else r - 8
                out += [f"v_add_f32 v{d+k}, v{r-8+k}, v{r+k}" for k in range(4)]
            out += per[g]
            if ENV("CPRIO") == "tog":
                out.insert(len(out) - len(per[g]) - (2 if g + NB < N else 0), "s_setprio 0")
                out.append("s_setprio 1")
            if g == 27:
                out += stamp_txt(3)
        if ENV("NOXCHG"):
            out = [i for i in out if not i.startswith(("ds_write_b128", "ds_read_b128", "v_add_f32"))]
        if ENV("NOTR"):
            out = [i for i in out if not i.startswith("ds_read_b64_tr")]
        for i in out:
            p(i)
    Q, KF, VF, S0, S1, PP, O = 8, 16, 24, 32, 48, 96, 104
    VCUR, VNXT, VCO, VKV, VCN, VONE, CK, CKO, VLN, VQA, E3 = 2, 3, 4, 127, 6, 120, 122, 124, 125, 126, 128
    BAL = ENV('BAL', '1') == '1'
    setup = f"""
    v_and_b32 v{VLN}, 1023, v{VEX}      ; lane*16
    s_lshr_b32 s7, s6, 4
    s_lshl_b32 s8, s5, 1
    s_add_u32 s7, s7, s8                ; head
    s_and_b32 s8, s6, 15                ; q block
    s_lshl_b32 s11, s8, 2
    s_add_u32 s11, s11, s{S_RG}         ; q tile (0..63)
    s_lshl_b32 s12, s7, 18
    s_add_u32 s12, s12, {KV_OFF}
    s_lshl_b32 s46, s{S_HF}, 14         ; kh*16384
    v_add_u32 v{VCUR}, s46, v{VLN}
    v_add_u32 v{VNXT}, {3*SLOT}, v{VCUR}
    v_add_u32 v{VCUR}, {1*SLOT}, v{VCUR}
    s_cmp_eq_u32 s{S_HF}, 0
    s_cselect_b32 s47, {5*SLOT}, 0
    s_cselect_b32 s3, s47, {QL}
    s_lshl_b32 s13, s{S_RG}, 12         ; rg*4096
    v_add_u32 v{VKV}, s13, v{VLN}
    s_add_u32 s14, s46, {2*KVS}
    s_lshl_b32 s4, s{S_HF}, 7
    s_xor_b32 s4, s4, 128
    s_add_u32 s4, s4, {CNT}
    v_mov_b32 v{VCO}, s4
    v_mov_b32 v{VONE}, 1
    v_mov_b32 v{VONE+1}, 0
    s_mov_b32 s48, 1                    ; iteration
    s_mov_b32 s49, 0
    s_mov_b32 s50, 4
    s_mov_b32 s51, 4
    s_lshl_b32 s4, s{S_RG}, 11
    s_add_u32 s3, s3, s4
    v_add_u32 v{VQA}, s3, v{VLN}
    s_add_u32 s36, s{P_WS}, s12
    s_addc_u32 s37, s{P_WS+1}, 0
    s_mov_b32 s38, 262144
    """

    def tail(pre, mid, post, tag):
        stamp(p, 4)
        for i in pre:
            p(i)
        for i in range(4):
            p(f"ds_write_b128 v{VEX}, {vr(xreg(SA, i),4)} offset:{1024*i}")
        for i in mid[:12]:
            p(i)
        p(setup)
        p("s_waitcnt lgkmcnt(0)\ns_barrier")
        for i in range(4):
            p(f"ds_read_b128 {vr(xreg(SA, i),4)}, v{VEXP} offset:{1024*i}")
        for i in mid[12:]:
            p(i)
        p("s_waitcnt lgkmcnt(0)\ns_barrier")
        p(f"v_xor_b32 v{VCN}, 128, v{VCO}")
        for i in range(4):
            r = xreg(SA, i)
            for k in range(4):
                p(f"v_add_f32 v{r-8+k}, v{r-8+k}, v{r+k}")
        n1 = len(post) // 3
        for i in post[:n1]:
            p(i)
        if ENV("STOPB"):
            for i in post[n1:]:
                p(i)
            stamp(p, 5)
            endpgm(p)
        lds_spin(p, "L_w0" + tag, f"v{VCN} offset:4", CK, "4", 52)
        stamp(p, 5)
        p(f"""
        ds_read_b128 {vr(Q,4)}, v{VQA}
        ds_read_b128 {vr(Q+4,4)}, v{VQA} offset:1024
        ds_read_b128 {vr(KF,4)}, v{VCUR}
        ds_read_b128 {vr(KF+4,4)}, v{VCUR} offset:1024
        """)
        for i in post[n1:2*n1]:
            p(i)
        p(f"""
        s_waitcnt lgkmcnt(0)
        {MFMA} {vr(S0,16)}, {vr(KF,4)}, {vr(Q,4)}, 0
        {MFMA} {vr(S0,16)}, {vr(KF+4,4)}, {vr(Q+4,4)}, {vr(S0,16)}
        ds_read_b128 {vr(KF,4)}, v{VCUR} offset:4096
        ds_read_b128 {vr(KF+4,4)}, v{VCUR} offset:5120
        ds_read_b128 {vr(VF+4,4)}, v{VCUR} offset:3072
        ds_read_b128 {vr(VF,4)}, v{VCUR} offset:2048
        """)
        for i in post[2*n1:]:
            p(i)
    p("s_cmp_eq_u32 s8, 1\ns_cbranch_scc1 L_btype")
    stream("A")
    tail([], [], epi_s(SA) + [flag(71, True)[0].replace("vmcnt(0)", "vmcnt(1)"),
                              "s_lshl_b32 s58, s58, 4\ns_add_u32 s71, s58, s71\ns_add_u32 s71, s71, 32\ns_mov_b32 s58, s71"], "a")
    p("s_branch L_bdone")
    p.label("L_btype")
    stream("B")
    tail(gelu(GG, [2])[12:], gelu(GG, [3]), prod2(SA) + ["s_add_u32 s58, s71, 16"], "b")
    p.label("L_bdone")
    VL16 = VLN
    T = 0

    def phase(k, mf, rd, sc, sp, extra=""):
        if k % 2 == 0:
            p("s_waitcnt lgkmcnt(2)")
        if mf:
            p(mf)
        p(rd)
        src, pk = (E3, 3) if k == 0 else (sc + 4 * (k - 1), k - 1)
        dst = E3 if k == 3 else sc + 4 * k
        e = [f"v_exp_f32 v{dst+i}, v{sc+4*k+i}" for i in range(4)]
        c = [f"v_cvt_pk_bf16_f32 v{PP+2*pk+i}, v{src+2*i}, v{src+2*i+1}" for i in range(2)]
        for x in (e[0], c[0], e[1], c[1]) if sp is not None else (e[0], e[1]):
            p(x)
        if extra:
            p(extra)
        p(e[2]); p(e[3])

    def ta(u, off):
        return f"v{VCUR} offset:{u*4096+off}" if u < 4 else f"v{VNXT} offset:{(u-4)*4096+off}"

    def body(first, tag):
        sig = f"""
        s_mov_b64 exec, 1
        {'' if first else 's_waitcnt vmcnt(0)'}
        ds_add_u64 v{VCN}, {vr(VONE,2)}
        s_mov_b64 exec, -1
        """
        for u in range(4):
            sc, sn = (S0, S1) if u % 2 == 0 else (S1, S0)
            if u == 2:
                p(f"""
                s_waitcnt lgkmcnt(1)
                v_cmp_ne_u64 vcc, s[50:51], {vr(CK,2)}
                s_add_u32 m0, s47, s13
                s_cmp_lg_u64 vcc, 0
                s_cbranch_scc1 L_a_spin{tag}
                L_a_go{tag}:
                """)
                if BAL:
                    p(f"""
                    v_cmp_eq_u32 vcc, 4, v{CKO}
                    s_setprio 0
                    s_cmp_eq_u64 vcc, 0
                    s_cbranch_scc1 L_a_pr{tag}
                    s_setprio 1
                    L_a_pr{tag}:
                    """)
                if first:
                    p(f"""
                    s_mov_b64 exec, 1
                    s_waitcnt vmcnt(0)
                    buffer_store_dwordx2 {vr(T,2)}, off, s[40:43], s71 sc1
                    buffer_store_dwordx2 {vr(T,2)}, off, s[40:43], s58 sc1
                    s_mov_b64 exec, -1
                    v_mov_b32 v{VONE+1}, 1
                    """)
                else:
                    p(f"s_cmp_gt_u32 s48, 5\ns_cbranch_scc1 L_a_nofill")
                for q in range(4):
                    p(f"buffer_load_dwordx4 v{VKV}, s[36:39], s14 offen offset:{q*1024} sc1 lds")
                p(f"s_add_u32 s14, s14, {KVS}")
                if not first:
                    p.label("L_a_nofill")
            phase(0, f"{MFMA} {vr(sn,16)}, {vr(KF,4)}, {vr(Q,4)}, 0", f"ds_read_b128 {vr(KF,4)}, {ta(u+2, 0)}", sc, None if (first and u == 0) else sn)
            phase(1, f"{MFMA} {vr(sn,16)}, {vr(KF+4,4)}, {vr(Q+4,4)}, {vr(sn,16)}",
                  f"ds_read_b128 {vr(KF+4,4)}, {ta(u+2, 1024)}", sc, sn)
            phase(2, None if (first and u == 0) else f"{MFMA} {vr(O,16)}, {vr(VF+4,4)}, {vr(PP+4,4)}, {vr(O,16)}",
                  f"ds_read_b128 {vr(VF+4,4)}, {ta(u, 3072)}", sc, sn,
                  (f"ds_read_b64 {vr(CK,2)}, v{VCN}" + (f"\nds_read_b32 v{CKO}, v{VCO}" if BAL else "")) if u == 1 else "")
            ex = sig if u == 0 else ""
            if u == 3:
                ex = f"""
                v_mov_b32 v{VCUR}, v{VNXT}
                v_add_u32 v{VNXT}, s47, v{VL16}
                v_add_u32 v{VCN}, 8, v{VCN}
                v_xor_b32 v{VCO}, 128, v{VCN}
                s_add_u32 s47, s47, {2*SLOT}
                s_cmp_ge_u32 s47, {6*SLOT}
                s_cselect_b32 s3, {6*SLOT}, 0
                s_sub_u32 s47, s47, s3
                """
                if not first:
                    ex += "s_add_u32 s48, s48, 1\ns_cmp_lt_u32 s48, 8"
            phase(3, f"{MFMA} {vr(O,16)}, {vr(VF,4)}, {vr(PP,4)}, {'0' if (first and u == 0) else vr(O,16)}",
                  f"ds_read_b128 {vr(VF,4)}, {ta(u+1, 2048)}", sc, sn, ex)
    body(True, "f")
    p(".p2align 6")
    p.label("L_aloop")
    body(False, "")
    p("s_cbranch_scc1 L_aloop\ns_branch L_a_done")
    for tag in ("f", ""):
        p.label("L_a_spin" + tag)
        lds_spin(p, "L_a_sp" + tag, f"v{VCN}", CK, "s[50:51]", 52, wide=True)
        p("s_branch L_a_go" + tag)
    p.label("L_a_done")
    stamp(p, 6)
    p(f"""
    v_cvt_pk_bf16_f32 v{PP+6}, v{E3}, v{E3+1}
    v_cvt_pk_bf16_f32 v{PP+7}, v{E3+2}, v{E3+3}
    s_waitcnt lgkmcnt(0)
    {MFMA} {vr(O,16)}, {vr(VF+4,4)}, {vr(PP+4,4)}, {vr(O,16)}
    s_lshl_b32 s46, s{S_RG}, 12
    s_lshl_b32 s3, s{S_HF}, 14
    s_add_u32 s46, s46, s3
    s_add_u32 s46, s46, {SLOT}
    v_add_u32 v3, s46, v{VL16}
    s_lshl_b32 s3, s{S_RG}, 3
    s_add_u32 s3, s3, {CNT_COMB}
    v_mov_b32 v{VCN}, s3
    s_mov_b64 exec, 1
    ds_add_rtn_u32 v{CK}, v{VCN}, v{VONE}
    s_mov_b64 exec, -1
    s_waitcnt lgkmcnt(0)
    v_readfirstlane_b32 s3, v{CK}
    s_cmp_lg_u32 s3, 0
    s_cbranch_scc1 L_acomb
    """)
    for i in range(4):
        p(f"ds_write_b128 v3, {vr(O+4*i,4)} offset:{1024*i}")
    p(f"""
    s_mov_b64 exec, 1
    s_waitcnt lgkmcnt(0)
    ds_add_u32 v{VCN}, v{VONE} offset:4
    s_waitcnt lgkmcnt(0)
    """)
    endpgm(p)
    p.label("L_acomb")
    p(f"v_xor_b32 v3, {3*SLOT}, v3")
    lds_spin(p, "L_cw", f"v{VCN} offset:4", CK, "1", 52)
    for i in range(4):
        p(f"ds_read_b128 {vr(S0+4*i,4)}, v3 offset:{1024*i}")
    for q in range(4):
        p(f"s_waitcnt lgkmcnt({3-q})")
        for i in range(4 * q, 4 * q + 4):
            p(f"v_add_f32 v{O+i}, v{O+i}, v{S0+i}")
    p.label("L_afin")
    T2 = S1
    p(f"""
    s_mov_b32 s50, {f32(2.0**-60)}
    s_mov_b32 s51, {f32(2.0**100)}
    s_bitcmp1_b32 s7, 0
    s_cbranch_scc1 L_f_odd
    v_mov_b32 v{T2}, v{O+12}
    v_mov_b32 v{T2+1}, v{O+12}
    v_permlane32_swap_b32 v{T2}, v{T2+1}
    s_mov_b32 exec_lo, 0
    v_mov_b32 v{O+12}, 0
    v_mov_b32 v{O+13}, 0
    v_mov_b32 v{O+14}, 0
    v_mov_b32 v{O+15}, 0
    s_branch L_f_join
    L_f_odd:
    v_mov_b32 v{T2}, v{O}
    v_mov_b32 v{T2+1}, v{O}
    v_permlane32_swap_b32 v{T2+1}, v{T2}
    s_mov_b32 exec_hi, 0
    v_mov_b32 v{O}, 0
    v_mov_b32 v{O+1}, 0
    v_mov_b32 v{O+2}, 0
    v_mov_b32 v{O+3}, 0
    L_f_join:
    s_mov_b64 exec, -1
    v_rcp_f32 v{T2+2}, v{T2+1}
    v_cmp_ge_f32 s[52:53], v{T2+1}, s50
    v_cmp_le_f32 s[54:55], v{T2+1}, s51
    """)
    for i in range(16):
        p(f"v_mul_f32 v{O+i}, v{O+i}, v{T2+2}")
    p(f"v_mul_f32 v{T2+3}, 0, v{O}")
    for i in range(1, 16):
        p(f"v_fmac_f32 v{T2+3}, 0, v{O+i}")
    pack16(p, PP, O)
    p(f"""
    v_cmp_eq_f32 s[56:57], 0, v{T2+3}
    s_and_b64 s[52:53], s[52:53], s[54:55]
    s_lshl_b32 s45, s11, 15             ; rowtile*32K
    s_lshl_b32 s46, s7, 11              ; head*2K
    s_add_u32 s45, s45, s46
    s_add_u32 s45, s45, {O_OFF}
    s_and_b64 s[52:53], s[52:53], s[56:57]
    s_cmp_eq_u64 s[52:53], -1
    s_cbranch_scc1 L_aok
    s_cmp_eq_u32 s49, 0x5afe
    s_cbranch_scc0 L_fallback
    """)
    p.label("L_aok")
    p(f"""
    buffer_store_dwordx4 {vr(PP,4)}, v{VL16}, s[40:43], s45 offen sc1
    buffer_store_dwordx4 {vr(PP+4,4)}, v{VL16}, s[40:43], s45 offen offset:1024 sc1
    s_lshl_b32 s45, s11, 7
    s_lshl_b32 s46, s7, 3
    s_add_u32 s45, s45, s46
    s_add_u32 s45, s45, {OFL}
    s_mov_b64 exec, 1
    s_waitcnt vmcnt(0)
    buffer_store_dwordx2 {vr(T,2)}, off, s[40:43], s45 sc1
    """)
    endpgm(p)
    p.label("L_fallback")
    M, MN, AL, TM, T3 = 64, 65, 66, 67, 68
    p("s_mov_b32 s49, 0x5afe")
    for i in range(16):
        p(f"v_mov_b32 v{O+i}, 0")
    p(f"v_mov_b32 v{M}, 0xff800000\ns_mov_b32 s14, 0")
    p.label("L_fbloop")
    p(f"""
    buffer_load_dwordx4 {vr(KF,4)}, v{VL16}, s[36:39], s14 offen sc1
    buffer_load_dwordx4 {vr(KF+4,4)}, v{VL16}, s[36:39], s14 offen offset:1024 sc1
    buffer_load_dwordx4 {vr(VF,4)}, v{VL16}, s[36:39], s14 offen offset:2048 sc1
    buffer_load_dwordx4 {vr(VF+4,4)}, v{VL16}, s[36:39], s14 offen offset:3072 sc1
    s_waitcnt vmcnt(2)
    {MFMA} {vr(S0,16)}, {vr(KF,4)}, {vr(Q,4)}, 0
    {MFMA} {vr(S0,16)}, {vr(KF+4,4)}, {vr(Q+4,4)}, {vr(S0,16)}
    v_max3_f32 v{TM}, v{S0}, v{S0+1}, v{S0+2}
    """)
    for i in range(3, 15, 2):
        p(f"v_max3_f32 v{TM}, v{S0+i}, v{S0+i+1}, v{TM}")
    p(f"""
    v_max_f32 v{TM}, v{S0+15}, v{TM}
    v_mov_b32 v{T3}, v{TM}
    v_permlane32_swap_b32 v{TM}, v{T3}
    v_max3_f32 v{MN}, v{TM}, v{T3}, v{M}
    v_sub_f32 v{AL}, v{M}, v{MN}
    v_exp_f32 v{AL}, v{AL}
    v_mov_b32 v{M}, v{MN}
    """)
    for i in range(16):
        p(f"v_sub_f32 v{S0+i}, v{S0+i}, v{MN}")
    for i in range(16):
        p(f"v_exp_f32 v{S0+i}, v{S0+i}")
    for i in range(16):
        p(f"v_mul_f32 v{O+i}, v{O+i}, v{AL}")
    pack16(p, PP, S0)
    p(f"""
    s_waitcnt vmcnt(0)
    {MFMA} {vr(O,16)}, {vr(VF,4)}, {vr(PP,4)}, {vr(O,16)}
    {MFMA} {vr(O,16)}, {vr(VF+4,4)}, {vr(PP+4,4)}, {vr(O,16)}
    s_add_u32 s14, s14, 4096
    s_cmp_lt_u32 s14, 262144
    s_cbranch_scc1 L_fbloop
    s_branch L_afin
    """)


def gen_s(p, S_W):
    VL16, VQ, VF_, VS_ = 1, 2, 3, 7
    p(f"""
    s_sub_u32 s4, s{S_W}, 8
    s_and_b32 s9, s4, 1
    s_lshr_b32 s10, s4, 1
    v_bfe_u32 v13, v0, 2, 3
    s_mul_i32 s12, s9, 224
    s_lshl_b32 s13, s10, 3
    s_add_u32 s12, s12, s13
    v_add_u32 v13, s12, v13
    v_lshrrev_b32 v14, 5, v0
    v_and_b32 v15, 3, v0
    v_lshlrev_b32 v15, 4, v15
    v_mul_u32_u24 v{VS_}, 3584, v13
    v_add_u32 v{VS_}, v{VS_}, v15
    v_lshl_add_u32 v{VF_}, v14, 6, v{VS_}
    v_mul_u32_u24 v{VQ}, 2688, v13
    v_mul_u32_u24 v14, 48, v14
    v_add3_u32 v{VQ}, v{VQ}, v14, v15
    v_lshlrev_b32 v{VL16}, 4, v0
    s_lshl_b32 s56, s10, 11
    s_lshl_b32 s12, s9, 10
    s_add_u32 s56, s56, s12
    s_mul_i32 s64, s7, 112
    s_add_u32 s65, s64, 896
    s_cmp_eq_u32 s8, 1
    s_cselect_b32 s12, 0, 1792
    s_cselect_b32 s13, 0, 256
    s_add_u32 s64, s64, s12
    s_mul_i32 s66, s7, 384
    s_add_u32 s66, s66, s13
    s_lshl_b32 s67, s7, 6
    s_add_u32 s67, s67, {48*64}
    """)
    p.label("L_ld_p")
    p("s_waitcnt lgkmcnt(0)")
    if ENV("TLB"):
        TA = 44
        p(f"""
        s_cmp_lg_u32 s4, {ENV("TLBW", 0)}
        s_cbranch_scc1 L_notlb
        v_min_u32 v{TA}, {WS_USED // (2*MB) - 1}, v0
        v_lshlrev_b32 v{TA}, 21, v{TA}
        v_mov_b32 v{TA+1}, s{P_WS+1}
        v_add_co_u32 v{TA}, vcc, s{P_WS}, v{TA}
        v_addc_co_u32 v{TA+1}, vcc, 0, v{TA+1}, vcc
        """)
        bufs = [(P_WG, 448 * 3584), (P_WU, 448 * 3584), (P_WQKV, 448 * 2688), (P_WD, 1792 * 896), (P_WO, 448 * 896),
                (P_OUT, 2048 * 896), (P_DBG, 256), (P_X, 2048 * 896)]
        for i, (b, n) in enumerate(bufs):
            p(f"""
            v_writelane_b32 v{TA}, s{b}, {16+2*i}
            v_writelane_b32 v{TA+1}, s{b+1}, {16+2*i}
            s_add_u32 s12, s{b}, {n-4}
            s_addc_u32 s13, s{b+1}, 0
            v_writelane_b32 v{TA}, s12, {17+2*i}
            v_writelane_b32 v{TA+1}, s13, {17+2*i}
            """)
        p(f"global_load_dword v{TA+2}, {vr(TA,2)}, off")
        p.label("L_notlb")
    srd(p, 36, P_WQKV, 448 * 2688)
    srd(p, 40, P_WG, 448 * 3584)
    srd(p, 72, P_WU, 448 * 3584)
    srd(p, 48, P_WD, 1792 * 896)
    srd(p, 52, P_WO, 448 * 896)

    def phys(c):
        return 8 if c == 0 else 9 if c == 1 else (c + 5) % 8
    PF = 24

    VFQ, TGV, FL = 6, 4, 8
    PB = int(ENV('PB', 17))

    def qkv_poll(emit):
        emit(f"buffer_load_dwordx4 {vr(FL,4)}, v{VL16}, s[44:47], s62 offen sc1")
        emit(f"buffer_load_dwordx4 {vr(FL+4,4)}, v{VL16}, s[44:47], s62 offen offset:1024 sc1")
        emit(f"buffer_load_dwordx4 {vr(FL+8,4)}, v{VFQ}, s[44:47], s63 offen sc1")
    srd(p, 44, P_WS, WS_USED)
    p(f"""
    s_lshl_b32 s62, s5, 12
    s_add_u32 s62, s62, {QKVF}
    s_and_b32 s63, s6, 15
    s_lshl_b32 s63, s63, 6
    s_add_u32 s63, s63, s62
    s_add_u32 s63, s63, 2048
    v_and_b32 v{VFQ}, 3, v0
    v_lshlrev_b32 v{VFQ}, 4, v{VFQ}
    """)

    def stream(kinds):
        spec = {"V": (36, VQ, 64, 0), "Q": (36, VQ, 64, 0), "K": (36, VQ, 65, 0), "G": (40, VF_, 66, 0), "U": (72, VF_, 66, 0),
                "g": (40, VF_, 66, 128), "u": (72, VF_, 66, 128), "S": (40, VS_, 67, 0)}
        stages = [(kinds[ps], sl) for ps in range(5) for sl in range(4)]
        vm = VM(p)
        last = {}
        issued = 0

        nq = 0

        def issue1():
            nonlocal issued, nq
            kind, sl = stages[issued]
            s_, v, col, add = spec[kind]
            stride = 2688 if s_ == 36 else 3584
            q = nq
            p(f"s_add_u32 m0, s56, {phys(issued)*SLOT + q*4096}")
            p(f"s_add_u32 s13, s{col}, {(64*sl + 16*q)*stride + add}")
            if ENV("NOFILL"):
                last[issued] = None
            elif kind == "S":
                p("s_mov_b32 exec_hi, 0")
                vm.op(f"buffer_load_dwordx4 v{v}, s[40:43], s13 offen lds")
                p("s_not_b64 exec, exec")
                last[issued] = vm.op(f"buffer_load_dwordx4 v{v}, s[72:75], s13 offen lds")
                p("s_mov_b64 exec, -1")
            else:
                last[issued] = vm.op(f"buffer_load_dwordx4 v{v}, s[{s_}:{s_+3}], s13 offen lds")
            nq += 1
            if nq == (2 if sl == 3 else 4):
                nq = 0
                issued += 1

        def issue():
            c = issued
            while issued == c:
                issue1()
        if TL:
            p("v_mov_b32 v60, 0")
        tl(p, 0)
        if ENV("WPF", "1") == "1":
            p(f"s_lshl_b32 s13, s2, 2\ns_add_u32 s13, s13, s4\ns_lshl_b32 s13, s13, 10\ns_add_u32 s14, s13, {1 << 20}")
            for r in (36, 40, 72):
                vm.op(f"buffer_load_dwordx4 {vr(PF,4)}, v{VL16}, s[{r}:{r+3}], s13 offen")
                vm.op(f"buffer_load_dwordx4 {vr(PF,4)}, v{VL16}, s[{r}:{r+3}], s14 offen")
        issue(); issue()
        tl(p, 1)
        dbg = ENV("SDBG")
        p(f"s_barrier\ns_barrier\ns_setprio {ENV('SPRIO', 0)}")
        if dbg: stamp(p, 1)
        tl(p, 2)
        issue(); issue()
        vm.need(last[1])
        tl(p, 3)
        p("s_barrier")
        tl(p, 4)
        if dbg: stamp(p, 2)
        issue(); issue()
        if dbg: stamp(p, 3)
        for i in range(1, PB + 2):
            vm.need(last[min(i + 1, 19)])
            if dbg and i == int(dbg): stamp(p, 5)
            tl(p, 3 + 2 * i)
            p("s_barrier")
            tl(p, 4 + 2 * i)
            if dbg and i == int(dbg) - 1: stamp(p, 4)
            if dbg and i == int(dbg): stamp(p, 6)
            budget = 8 if i < 3 else int(ENV("SHORTB", 0)) if i % 4 == 3 else int(ENV("LONGB", 6))
            if i >= 3:
                budget = eval(ENV("BUD", "[0, 6, 6, 2]"))[i % 4]
            elif i % 4 == 0 and kinds[i // 4 - 1] in "VKQ":
                budget = int(ENV("XB", 2))
            while budget > 0:
                if issued < min(20, max(10, i + 8)):
                    budget -= 2 if stages[issued][0] == "S" else 1
                    issue1()
                else:
                    break
            if i == PB:
                p(f"v_mov_b32 v{TGV}, {TAGL}\nds_read_b64 {vr(TGV,2)}, v{TGV}")
                qkv_poll(vm.op)
            if i == int(ENV('PFI', 15)):
                PFMODE = ENV("PFMODE", "chip")
                if PFMODE == "chip":
                    p(f"s_lshl_b32 s13, s2, 2\ns_add_u32 s13, s13, s4\ns_lshl_b32 s14, s13, 11\ns_lshl_b32 s13, s13, 9")
                    vm.op(f"buffer_load_dwordx4 {vr(PF,4)}, v{VL16}, s[48:51], s14 offen")
                    vm.op(f"buffer_load_dwordx4 {vr(PF+4,4)}, v{VL16}, s[48:51], s14 offen offset:1024")
                    vm.op(f"buffer_load_dwordx4 {vr(PF+8,4)}, v{VL16}, s[52:55], s13 offen")
            if ENV("PFMODE", "chip") == "xcd" and 5 <= i < 9:
                k = i - 5
                if k == 0:
                    p(f"s_lshl_b32 s13, s6, 2\ns_add_u32 s13, s13, s4\ns_mul_i32 s57, s13, {13*1024}\ns_lshl_b32 s58, s13, 12")
                    for q in range(4):
                        vm.op(f"buffer_load_dwordx4 {vr(PF+4*q,4)}, v{VL16}, s[52:55], s58 offen offset:{q*1024}")
                    vm.op(f"buffer_load_dwordx4 {vr(PF+16,4)}, v{VL16}, s[48:51], s57 offen")
                    p("s_add_u32 s57, s57, 1024")
                else:
                    for q in range(4):
                        vm.op(f"buffer_load_dwordx4 {vr(PF+4*q,4)}, v{VL16}, s[48:51], s57 offen offset:{q*1024}")
                    p("s_add_u32 s57, s57, 4096")
        assert issued == 20
    p("s_cmp_eq_u32 s8, 1\ns_cbranch_scc1 L_ld_b")
    stream("VKGUS")
    p("s_branch L_ld_done")
    p.label("L_ld_b")
    stream("QGUgu")
    p.label("L_ld_done")
    if not ENV("SDBG"):
        stamp(p, 1)
    tl_dump(p)
    if ENV("STOPB"):
        endpgm(p)
    p(f"""
    s_lshr_b32 s7, s6, 4
    s_lshl_b32 s8, s5, 1
    s_add_u32 s7, s7, s8                ; head
    s_and_b32 s8, s6, 15                ; q block
    """)
    VKV = 2
    p(f"""
    s_lshl_b32 s12, s7, 18
    s_add_u32 s12, s12, {KV_OFF}
    s_lshl_b32 s13, s4, 12              ; s*4096
    v_add_u32 v{VKV}, s13, v{VL16}
    s_lshl_b32 s66, s7, 17
    s_lshl_b32 s3, s8, 13
    s_add_u32 s66, s66, s3
    s_lshl_b32 s3, s4, 11
    s_add_u32 s66, s66, s3
    s_add_u32 s66, s66, {QF_OFF}
    s_add_u32 s67, s3, {QL}
    s_mov_b32 s68, 0                    ; ready
    s_mov_b32 s69, 0
    s_mov_b32 s70, {PB+2}
    s_mov_b32 s71, {SPIN_MAX}
    """)
    srd(p, 36, P_WS, 262144, "s12")
    srd(p, 40, P_WS, WS_USED)
    p.label("L_pl")
    p(f"""
    s_cmp_lg_u32 s68, 0
    s_cbranch_scc1 L_pl_ready
    s_cmp_ge_u32 s70, 22
    s_cbranch_scc1 L_pl_eval
    s_bitcmp1_b32 s70, 0
    s_cbranch_scc{1 - PB % 2} L_pl_bar
    L_pl_eval:
    s_waitcnt vmcnt(0) lgkmcnt(0)
    v_cmp_eq_u64 s[76:77], {vr(FL,2)}, {vr(TGV,2)}
    """)
    for k in range(1, 6):
        p(f"v_cmp_eq_u64 vcc, {vr(FL+2*k,2)}, {vr(TGV,2)}\ns_and_b64 s[76:77], s[76:77], vcc")
    p(f"""
    s_sub_u32 s71, s71, 1
    s_cselect_b32 s68, 1, 0
    s_cmp_eq_u64 s[76:77], -1
    s_cselect_b32 s68, 1, s68
    s_cmp_lg_u32 s68, 0
    s_cbranch_scc1 L_pl_q
    """)
    qkv_poll(lambda t: p(t))
    p(f"""
    s_branch L_pl_bar
    L_pl_q:
    s_mov_b32 m0, s67
    s_nop 0
    buffer_load_dwordx4 v{VL16}, s[40:43], s66 offen sc1 lds
    buffer_load_dwordx4 v{VL16}, s[40:43], s66 offen offset:1024 sc1 lds
    L_pl_ready:
    s_add_u32 s3, s69, 14
    s_cmp_gt_u32 s3, s70
    s_cbranch_scc1 L_pl_bar
    s_cmp_ge_u32 s69, 5
    s_cbranch_scc1 L_pl_bar
    s_cmp_lt_u32 s69, 4
    s_cbranch_scc1 L_pl_kv
    s_add_u32 m0, s67, {5*SLOT - QL}
    s_mov_b32 s69, 5
    buffer_load_dwordx4 v{VL16}, s[40:43], s66 offen sc1 lds
    buffer_load_dwordx4 v{VL16}, s[40:43], s66 offen offset:1024 sc1 lds
    s_branch L_pl_bar
    L_pl_kv:
    s_lshl_b32 s14, s69, 14
    s_add_u32 s3, s14, s13
    s_add_u32 m0, s3, {SLOT}
    s_add_u32 s69, s69, 1
    buffer_load_dwordx4 v{VKV}, s[36:39], s14 offen sc1 lds
    buffer_load_dwordx4 v{VKV}, s[36:39], s14 offen offset:1024 sc1 lds
    buffer_load_dwordx4 v{VKV}, s[36:39], s14 offen offset:2048 sc1 lds
    buffer_load_dwordx4 v{VKV}, s[36:39], s14 offen offset:3072 sc1 lds
    s_branch L_pl_ready
    L_pl_bar:
    s_cmp_ge_u32 s70, 22
    s_cbranch_scc1 L_pl_nobar
    s_cmp_lg_u32 s70, 20
    s_cbranch_scc1 L_pl_noinit
    s_cmp_lg_u32 s4, 0
    s_cbranch_scc1 L_pl_noinit
    v_lshlrev_b32 v22, 2, v0
    v_add_u32 v22, {CNT}, v22
    v_mov_b32 v23, 0
    ds_write_b32 v22, v23
    s_waitcnt lgkmcnt(0)
    L_pl_noinit:
    s_barrier
    s_add_u32 s70, s70, 1
    s_branch L_pl
    L_pl_nobar:
    s_cmp_ge_u32 s69, 5
    s_cbranch_scc1 L_pl_done
    s_sleep 4
    s_branch L_pl
    L_pl_done:
    v_mov_b32 v{FL}, {CNT}
    v_mov_b32 v{FL+1}, 1
    s_mov_b64 exec, 1
    s_waitcnt vmcnt(0)
    ds_add_u32 v{FL}, v{FL+1} offset:4
    ds_add_u32 v{FL}, v{FL+1} offset:132
    s_mov_b64 exec, -1
    s_mul_i32 s14, s8, {12*1024}
    s_mul_i32 s3, s4, {3*1024}
    s_add_u32 s14, s14, s3
    s_add_u32 s14, s14, {2*KVS}
    buffer_load_dwordx4 {vr(FL+4,4)}, v{VL16}, s[36:39], s14 offen sc1
    buffer_load_dwordx4 {vr(FL+4,4)}, v{VL16}, s[36:39], s14 offen offset:1024 sc1
    buffer_load_dwordx4 {vr(FL+4,4)}, v{VL16}, s[36:39], s14 offen offset:2048 sc1
    s_cmp_ge_u32 s6, {0 if ENV("NODOWN") else 28}
    s_cbranch_scc1 L_s_end
    s_setprio {ENV("DPRIO0", 0)}
    """)
    stamp(p, 2)
    ACC, WF, HB = 8, 72, 88
    VD, VT0, VT1, VX = 2, 3, 6, 7
    GR, XF = 144, 160
    NRING = 7
    p(f"""
    s_and_b32 s9, s6, 3
    s_lshl_b32 s10, s5, 2
    s_add_u32 s9, s9, s10
    s_lshr_b32 s10, s6, 2
    s_lshr_b32 s11, s4, 1
    s_lshl_b32 s57, s9, 1
    s_add_u32 s57, s57, s11
    s_xor_b32 s58, s57, 1
    s_mul_i32 s3, s4, {12*2048}
    s_add_u32 s3, s3, {H_OFF}
    s_mul_i32 s60, s57, 114688
    s_add_u32 s60, s60, s3
    s_mul_i32 s61, s58, 114688
    s_add_u32 s61, s61, s3
    v_bfe_u32 v{VX}, v0, 2, 3
    v_mul_u32_u24 v{VX}, 896, v{VX}
    v_lshrrev_b32 v{VT0}, 5, v0
    v_lshl_add_u32 v{VX}, v{VT0}, 6, v{VX}
    v_and_b32 v{VT0}, 3, v0
    v_lshl_add_u32 v{VX}, v{VT0}, 4, v{VX}
    s_lshl_b32 s14, s10, 7
    v_add_u32 v{VD}, s14, v{VX}
    v_lshrrev_b32 v{VX}, 5, v0
    v_lshlrev_b32 v{VX}, 8, v{VX}
    v_bfe_u32 v{VT0}, v0, 2, 2
    v_lshl_add_u32 v{VX}, v{VT0}, 6, v{VX}
    v_bfe_u32 v{VT0}, v0, 4, 1
    v_lshl_add_u32 v{VX}, v{VT0}, 5, v{VX}
    v_and_b32 v{VT0}, 3, v0
    v_lshl_add_u32 v{VX}, v{VT0}, 3, v{VX}
    s_lshl_b32 s15, s4, 14
    s_add_u32 s15, s15, {PRIV}
    s_and_b32 s3, s4, 1
    s_lshl_b32 s3, s3, 9
    s_add_u32 s3, s3, s15
    v_add_u32 v{VT0}, s3, v{VX}
    v_xor_b32 v{VT1}, 512, v{VT0}
    s_mul_i32 s62, s4, {12*32*896}
    s_mul_i32 s63, s4, -10
    s_add_u32 s63, s63, 48
    s_lshl_b32 s64, s63, 11
    s_add_u32 s65, s64, s61
    s_add_u32 s64, s64, s60
    s_mul_i32 s63, s63, {32*896}
    s_add_u32 s63, s63, s62
    """)
    vm = VM(p)

    order = [0, 1, 6, 7, 4, 5, 10, 11, 2, 3, 8, 9, 12, 13]
    seg_end = [8, 16, 28]
    seg_mask = [0x0000F00F, 0x00F00F00, 0x0F0F00F0]

    def wload(ks):
        sl = ks % NRING
        if ks >= 28:
            for o in range(2):
                p(f"s_add_u32 m0, s15, {sl*2048 + o*1024}")
                p(f"s_add_u32 s14, s67, {(16*sl + 8*o)*896}")
                vm.op(f"buffer_load_dwordx4 v{VD}, s[52:55], s14 offen lds")
            return
        t = order[ks >> 1]
        base, t = ("s62", t) if t < 12 else ("s63", t - 12)
        for o in range(2):
            p(f"s_add_u32 m0, s15, {sl*2048 + o*1024}")
            p(f"s_add_u32 s14, {base}, {(32*t + 16*(ks&1) + 8*o)*896}")
            wid[ks] = vm.op(f"buffer_load_dwordx4 v{VD}, s[48:51], s14 offen lds")

    def hload(ks):
        sl = ks % NRING
        t = order[ks >> 1]
        (b0, b1), t = (("s60", "s61"), t) if t < 12 else (("s64", "s65"), t - 12)
        off = t * 2048 + (ks & 1) * 1024
        for r, b_ in enumerate((b0, b1)):
            if off >= 4096:
                p(f"s_add_u32 s14, {b_}, {off & ~4095}")
            hid[ks] = vm.op(f"buffer_load_dwordx4 {vr(HB+8*sl+4*r,4)}, v{VL16}, s[40:43], {'s14' if off >= 4096 else b_} offen offset:{off & 4095} sc1")
    wid, hid = {}, {}
    VFA, FT = GR, GR + 2
    p(f"""
    v_and_b32 v{VFA}, 31, v0
    v_min_u32 v{VFA}, 27, v{VFA}
    v_cmp_lt_u32 vcc, 23, v{VFA}
    v_lshlrev_b32 v{VFA}, 3, v{VFA}
    s_mul_i32 s3, s4, -160
    s_add_u32 s3, s3, {48*16 - 192}
    v_mov_b32 v{VFA+1}, s3
    v_cndmask_b32 v{VFA+1}, 0, v{VFA+1}, vcc
    v_add_u32 v{VFA}, v{VFA}, v{VFA+1}
    v_lshrrev_b32 v{VFA+1}, 5, v0
    v_lshl_add_u32 v{VFA}, v{VFA+1}, 10, v{VFA}
    s_lshl_b32 s66, s9, 11
    s_mul_i32 s3, s4, 192
    s_add_u32 s66, s66, s3
    s_add_u32 s66, s66, {HFL}
    s_mov_b32 s71, {SPIN_MAX}
    s_mul_i32 s67, s4, {112*896}
    v_and_b32 v{VX}, 31, v0
    s_lshl_b32 s14, s57, 5
    v_add_u32 v{VX}, s14, v{VX}
    v_mul_u32_u24 v{VX}, 896, v{VX}
    v_lshrrev_b32 v0, 5, v0
    v_lshl_add_u32 v{VX}, v0, 3, v{VX}
    s_and_b32 s14, s4, 1
    s_lshl_b32 s14, s14, 6
    s_lshl_b32 s3, s10, 7
    s_add_u32 s14, s14, s3
    v_add_u32 v0, s14, v{VX}
    """)
    VXO = 0
    srd(p, 44, P_X, 2048 * 896)
    for g4 in range(4):
        vm.op(f"buffer_load_dwordx2 {vr(XF+2*g4,2)}, v{VXO}, s[44:47], 0 offen offset:{16*g4}")

    def hpoll(k):
        label = f"L_hp{k}"
        p(f"s_mov_b32 s68, {seg_mask[k]}\ns_mov_b32 s69, s68")
        p.label(label)
        p(f"""
        buffer_load_dwordx2 {vr(FT,2)}, v{VFA}, s[40:43], s66 offen sc1
        s_sub_u32 s71, s71, 1
        s_waitcnt vmcnt(0)
        v_cmp_eq_u64 vcc, {vr(FT,2)}, {vr(TGV,2)}
        s_cmp_eq_u32 s71, 0
        s_cbranch_scc1 {label}_x
        s_and_b64 vcc, vcc, s[68:69]
        s_cmp_eq_u64 vcc, s[68:69]
        s_cbranch_scc1 {label}_x
        s_sleep 8
        s_branch {label}
        {label}_x:
        """)
        vm.done = vm.n

    def trd(wb, base, a0=VT0, a1=VT1):
        for c, a in enumerate((a0, a1)):
            for b in range(2):
                p(f"ds_read_b64_tr_b16 {vr(wb+4*c+2*b,2)}, v{a} offset:{base + b*1024}")
    LOOK = int(ENV("LOOK", 3))
    seg, hn = 0, 0

    def hfill(done):
        nonlocal hn
        while hn < min(seg_end[seg], done + NRING):
            hload(hn)
            hn += 1
    for ks in range(2):
        wload(ks)
    hpoll(0)
    stamp(p, 3)
    for ks in range(NRING):
        hload(ks)
        if ks + 2 < NRING:
            wload(ks + 2)
    hn = NRING
    p(f"s_setprio {ENV('DPRIO', 0)}")
    trd(WF, 0)
    for ks in range(28):
        sl = ks % NRING
        wb = WF + 8 * (ks & 1)
        if ks + 1 < 28:
            vm.need(wid[ks + 1])
            trd(WF + 8 * ((ks + 1) & 1), ((ks + 1) % NRING) * 2048)
        vm.need(hid[ks])
        p(f"s_waitcnt lgkmcnt({4 if ks + 1 < 28 else 0})")
        for a in range(4):
            ac = vr(ACC + 16 * a, 16)
            p(f"{MFMA} {ac}, {vr(wb+4*(a&1),4)}, {vr(HB+8*sl+4*(a>>1),4)}, {'0' if ks == 0 else ac}")
            if ENV("DINT") and a == 0 and ks >= 1:
                hfill(ks)
            if ENV("DINT") and a == 1 and ks + NRING < 28:
                wload(ks + NRING)
        if seg < 2 and ks + 1 + LOOK == seg_end[seg]:
            seg += 1
            hpoll(seg)
            hfill(ks + 1)
        if not ENV("DINT"):
            hfill(ks + 1)
            wload(ks + NRING)
    stamp(p, 4)

    def send():
        p(f"v_add_u32 v{VX}, s15, v{VL16}")
        for a in range(1, 4):
            for r in range(4):
                p(f"ds_write_b128 v{VX}, {vr(ACC+16*a+4*r,4)} offset:{(a-1)*4096 + r*1024}")

    def ssync(k):
        p(f"v_mov_b32 v{WF+1}, {CNT_S0 + 4*k}\nv_mov_b32 v{WF+2}, 1")
        p(f"s_mov_b64 exec, 1\ns_waitcnt lgkmcnt(0)\nds_add_u32 v{WF+1}, v{WF+2}\ns_mov_b64 exec, -1")
        lds_spin(p, f"L_ss{k}", f"v{WF+1}", WF, "4", 71)

    def recv():
        for a in range(1, 4):
            p(f"s_xor_b32 s3, s4, {a}\ns_lshl_b32 s3, s3, 14\ns_add_u32 s3, s3, {PRIV + (a-1)*4096}\nv_add_u32 v{VX}, s3, v{VL16}")
            for r in range(4):
                p(f"ds_read_b128 {vr(ACC+16*a+4*r,4)}, v{VX} offset:{r*1024}")

    def addup():
        for a in range(1, 4):
            p(f"s_waitcnt lgkmcnt({4*(3-a)})")
            for r in range(16):
                p(f"v_add_f32 v{ACC+r}, v{ACC+r}, v{ACC+16*a+r}")
    d7 = ENV("SD7")
    if d7: stamp(p, 1)
    p(f"""
    v_mov_b32 v{WF+1}, {CNT}
    v_mov_b32 v{WF+2}, 1
    s_lshl_b32 s3, s4, 2
    v_mov_b32 v{WF+3}, s3
    v_add_u32 v{WF+3}, {CNT_S0 + 4}, v{WF+3}
    v_xor_b32 v{WF+4}, 8, v{WF+3}
    v_xor_b32 v{WF+5}, 4, v{WF+3}
    s_and_b32 s3, s4, 1
    s_lshl_b32 s3, s3, 13
    s_cmp_lt_u32 s4, 2
    s_cselect_b32 s14, {5*SLOT}, 0
    s_add_u32 s3, s3, s14
    v_add_u32 v{VX}, s3, v{VL16}                    ; area(kq)
    v_xor_b32 v{VD}, {5*SLOT}, v{VX}                ; area(kq^2)
    """)
    lds_spin(p, "L_g0", f"v{WF+1} offset:48", WF, "4", 71)
    lds_spin(p, "L_g1", f"v{WF+1} offset:176", WF, "4", 71)
    for i in range(8):
        p(f"ds_write_b128 v{VX}, {vr(ACC+32+4*i,4)} offset:{i*1024}")
    p(f"s_waitcnt lgkmcnt(0)\nds_write_b32 v{WF+3}, v{WF+2}")
    lds_spin(p, "L_h1", f"v{WF+4}", WF, "1", 71)
    if d7: stamp(p, 2)
    for i in (4, 5, 6, 7, 0, 1, 2, 3):
        p(f"ds_read_b128 {vr(ACC+32+4*i,4)}, v{VD} offset:{i*1024}")
    p("s_waitcnt lgkmcnt(4)")
    for r in range(16):
        p(f"v_add_f32 v{ACC+16+r}, v{ACC+16+r}, v{ACC+48+r}")
    p("s_waitcnt lgkmcnt(0)")
    for i in range(4):
        p(f"ds_write_b128 v{VD}, {vr(ACC+16+4*i,4)} offset:{i*1024}")
    for r in range(16):
        p(f"v_add_f32 v{ACC+r}, v{ACC+r}, v{ACC+32+r}")
    p(f"v_xor_b32 v{VX}, 8192, v{VX}\ns_waitcnt lgkmcnt(0)\nds_write_b32 v{WF+3}, v{WF+2} offset:16")
    if d7: stamp(p, 3)
    lds_spin(p, "L_h2", f"v{WF+5} offset:16", WF, "1", 71)
    p(f"v_xor_b32 v{VX}, {5*SLOT}, v{VX}")
    for i in range(4):
        p(f"ds_read_b128 {vr(ACC+16+4*i,4)}, v{VX} offset:{i*1024}")
    for i in range(4):
        p(f"s_waitcnt lgkmcnt({3-i})")
        for r in range(4 * i, 4 * i + 4):
            p(f"v_add_f32 v{ACC+r}, v{ACC+r}, v{ACC+16+r}")
    if d7: stamp(p, 4)
    T = ACC + 16
    p(f"s_mov_b32 s3, {f32(-LOG2E)}")
    for i in range(16):
        p(f"v_mul_f32 v{T+i}, s3, v{ACC+i}")
    for i in range(16):
        p(f"v_exp_f32 v{T+i}, v{T+i}")
    for i in range(16):
        p(f"v_add_f32 v{T+i}, 1.0, v{T+i}")
    for i in range(16):
        p(f"v_rcp_f32 v{T+i}, v{T+i}")
    GREG = [GR + i for i in range(16)]
    for i in range(16):
        p(f"v_mul_f32 v{GREG[i]}, v{ACC+i}, v{T+i}")
    if ENV("DUMP_G"):
        for i in range(8):
            p(f"v_cvt_pk_bf16_f32 v{T+i}, v{GREG[2*i]}, v{GREG[2*i+1]}")
        p(f"""
        s_mul_i32 s14, s57, {14*2048}
        s_lshl_b32 s3, s10, 1
        s_and_b32 s63, s4, 1
        s_add_u32 s3, s3, s63
        s_lshl_b32 s3, s3, 11
        s_add_u32 s14, s14, s3
        s_add_u32 s14, s14, {G_OFF}
        buffer_store_dwordx4 {vr(T,4)}, v{VL16}, s[40:43], s14 offen
        buffer_store_dwordx4 {vr(T+4,4)}, v{VL16}, s[40:43], s14 offen offset:1024
        """)
    p(f"""
    v_bfe_u32 v{VX}, v{VL16}, 4, 2
    v_lshlrev_b32 v{VX}, 3, v{VX}
    v_bfe_u32 v{WF}, v{VL16}, 6, 1
    v_lshl_add_u32 v{VX}, v{WF}, 7, v{VX}
    s_lshl_b32 s14, s9, 8
    s_lshl_b32 s3, s4, 5
    s_add_u32 s14, s14, s3
    s_add_u32 s14, s14, {OFL}
    s_mov_b32 s71, {SPIN_MAX}
    s_lshl_b32 s3, s4, 13
    s_add_u32 s3, s3, {O_OFF}
    s_lshl_b32 s60, s57, 15
    s_add_u32 s60, s60, s3
    s_lshl_b32 s61, s58, 15
    s_add_u32 s61, s61, s3
    s_add_u32 s62, s60, 4096
    s_add_u32 s63, s61, 4096
    v_and_b32 v{WF+4}, 24, v{VX}
    v_add_u32 v{WF+4}, {CNT_COMB}, v{WF+4}
    """)
    stamp(p, 5)
    p(f"s_setprio {ENV('DPRIO3', 0)}")
    p.label("L_op")
    p(f"""
    buffer_load_dwordx2 {vr(WF,2)}, v{VX}, s[40:43], s14 offen sc1
    s_sub_u32 s71, s71, 1
    s_waitcnt vmcnt(0)
    v_cmp_eq_u64 vcc, {vr(WF,2)}, {vr(TGV,2)}
    s_cmp_eq_u32 s71, 0
    s_cbranch_scc1 L_op_x
    s_cmp_eq_u64 vcc, -1
    s_cbranch_scc1 L_op_x
    ds_read_b32 v{WF+2}, v{WF+4}
    s_waitcnt lgkmcnt(0)
    v_cmp_eq_u32 vcc, 2, v{WF+2}
    s_cmp_eq_u64 vcc, -1
    s_cbranch_scc1 L_op
    s_sleep {ENV("OSLEEP", 2)}
    s_branch L_op
    L_op_x:
    """)
    stamp(p, 6)
    vm = VM(p)
    OB = HB
    oid = {}

    def oload(kk, r):
        sreg = (("s60", "s61"), ("s62", "s63"))[kk >> 2][r]
        slot = (2 * kk + r) % 14
        oid[(kk, r)] = vm.op(f"buffer_load_dwordx4 {vr(OB+4*slot,4)}, v{VL16}, s[40:43], {sreg} offen offset:{(kk&3)*1024} sc1")
    for kk in range(7):
        oload(kk, 0); oload(kk, 1)

    def wrd(kk):
        hh, s_ = kk >> 1, kk & 1
        row = 28 * hh - 4 * (hh & 1) + 16 * s_
        trd(WF + 8 * (kk & 1), (row >> 3) * 1024)
    wrd(0)
    for kk in range(8):
        if kk + 1 < 8:
            wrd(kk + 1)
        wb = WF + 8 * (kk & 1)
        p(f"s_waitcnt lgkmcnt({4 if kk + 1 < 8 else 0})")
        for a in range(4):
            vm.need(oid[(kk, a >> 1)])
            ac = vr(ACC + 16 * a, 16)
            p(f"{MFMA} {ac}, {vr(wb+4*(a&1),4)}, {vr(OB+4*((2*kk+(a>>1))%14),4)}, {'0' if kk == 0 else ac}")
        if kk == 0:
            oload(7, 0); oload(7, 1)
    if ENV("SD8"): stamp(p, 1)
    send()
    srd(p, 44, P_OUT, 2048 * 896)
    XE = HB
    for i in range(8):
        p(f"v_lshlrev_b32 v{XE+2*i}, 16, v{XF+i}")
        p(f"v_and_b32 v{XE+2*i+1}, 0xffff0000, v{XF+i}")
    ssync(0)
    if ENV("SD8"): stamp(p, 2)
    recv()
    addup()
    if ENV("SD8"): stamp(p, 3)
    for i in range(16):
        p(f"v_fma_f32 v{ACC+i}, v{ACC+i}, v{GREG[i]}, v{XE+i}")
    pack16(p, WF, ACC)
    for g4 in range(4):
        p(f"buffer_store_dwordx2 {vr(WF+2*g4,2)}, v{VXO}, s[44:47], 0 offen offset:{16*g4}")
    p.label("L_s_end")
    endpgm(p)


def main():
    ref = open("cdna_kernels/" + NAME + ".s.ref").read().split("\n")
    head = [l for l in ref if l.startswith(";") and "@launch" not in l and "Override launch" not in l and "grid=ceil" not in l]
    p = Prog()
    gen(p)
    body = p.finalize()
    out = head[:]
    out.append("; @launch grid=(256,1,1) block=(768,1,1) lds=163840")
    out.append('.amdgcn_target "amdgcn-amd-amdhsa--gfx950"\n.text')
    out.append(body)
    out.append(f""".section .rodata,"a"
.p2align 6
.amdhsa_kernel {KN}
  .amdhsa_next_free_vgpr 168
  .amdhsa_next_free_sgpr 100
  .amdhsa_accum_offset 168
  .amdhsa_group_segment_fixed_size 0
  .amdhsa_kernarg_size 80
  .amdhsa_user_sgpr_count 2
  .amdhsa_user_sgpr_kernarg_segment_ptr 1
  .amdhsa_system_sgpr_workgroup_id_x 1
.end_amdhsa_kernel""")
    if ENV("PLAINLD"):
        import re
        out = [re.sub(r"(buffer_load_dwordx4 .*) sc1( lds)?$", r"\1\2", l, flags=re.M) if "s[44:47], s6" not in l else l for l in "\n".join(out).split("\n")]
    path = sys.argv[1] if len(sys.argv) > 1 else "cdna_kernels/" + NAME + ".s"
    open(path, "w").write("\n".join(out) + "\n")
    print("wrote", path, "nops inserted:", p.total_nops)


main()
```

```python
import math, struct, sys, os
from asmlib import Prog

NAME = "recurrent_scan__mha_block__geglu_ffn__prompt"
KN = NAME + "_kernel"
MB = 1 << 20
QF_OFF, KV_OFF, H_OFF, O_OFF, G_OFF = 0, 2 * MB, 6 * MB, 13 * MB, 15 * MB
FLAG_OFF = 17 * MB
QKVF, HFL, OFL = FLAG_OFF, FLAG_OFF + 65536, FLAG_OFF + 131072
WS_USED = 18 * MB
LOG2E = math.log2(math.e)
QSCALE = LOG2E / math.sqrt(28.0)
SPIN_MAX = 1 << 12
ENV = os.environ.get
STAMPS = bool(ENV("STAMPS"))
STAMP_OFF = 24 * MB
MFMA = "v_mfma_f32_32x32x16_bf16"
P_X, P_WQKV, P_WO, P_WG, P_WU, P_WD, P_OUT, P_DBG, P_WS = 16, 18, 20, 24, 26, 28, 30, 32, 34
SLOT = 16384
EXB = 8 * SLOT
TAGL = 6 * SLOT
QL = 3 * SLOT + 8192
NST = 19


def phys(c):
    return (8, 9, 7)[c] if c < 3 else (c - 3) % 6
PRIV = 6 * SLOT
CNT = PRIV + 15360
CNT_COMB, CNT_S0 = CNT + 64, CNT + 220
KVS = 32768
CNT_GO = CNT + 96
CNT_H = CNT + 100


def f32(x):
    return "0x%08x" % struct.unpack("<I", struct.pack("<f", x))[0]


def vr(b, n=1):
    return f"v{b}" if n == 1 else f"v[{b}:{b+n-1}]"


def srd(p, d, base, nrec, add=None):
    if add is None:
        p(f"s_mov_b32 s{d}, s{base}\ns_mov_b32 s{d+1}, s{base+1}")
    else:
        p(f"s_add_u32 s{d}, s{base}, {add}\ns_addc_u32 s{d+1}, s{base+1}, 0")
    p(f"s_mov_b32 s{d+2}, {nrec}\ns_mov_b32 s{d+3}, 0x20000")


def pack16(p, dst, src):
    for i in range(8):
        p(f"v_cvt_pk_bf16_f32 v{dst+i}, v{src+2*i}, v{src+2*i+1}")


def stamp_txt(i):
    if STAMPS and not (ENV("CB") and i < 7):
        assert i < 8
        return [f"{ENV('STAMP_INS', 's_memrealtime')} s[{80+2*i}:{81+2*i}]"]
    return []


def stamp(p, i):
    for x in stamp_txt(i):
        p(x)


TL = bool(ENV("TL"))


def tl(p, idx):
    if TL:
        p(f"{ENV('STAMP_INS', 's_memrealtime')} s[94:95]\ns_waitcnt lgkmcnt(0)\nv_writelane_b32 v60, s94, {idx}")


def tl_dump(p):
    if TL:
        p(f"""
        s_lshl_b32 s94, s2, 4
        s_add_u32 s94, s94, s59
        s_lshl_b32 s94, s94, 8
        s_add_u32 s94, s94, {STAMP_OFF + MB}
        s_mov_b32 s96, s{P_WS}
        s_mov_b32 s97, s{P_WS+1}
        s_mov_b32 s98, {32*MB}
        s_mov_b32 s99, 0x20000
        v_lshlrev_b32 v61, 2, v0
        buffer_store_dword v60, v61, s[96:99], s94 offen
        """)


def endpgm(p):
    if STAMPS and ENV("DBGMAX"):
        stamp(p, 7)
        p(f"""
        s_mov_b64 exec, -1
        s_mov_b32 s96, s{P_DBG}
        s_mov_b32 s97, s{P_DBG+1}
        s_mov_b32 s98, 256
        s_mov_b32 s99, 0x20000
        buffer_load_dword v10, off, s[96:99], 0 sc1
        s_waitcnt vmcnt(0) lgkmcnt(0)
        """)
        for i in range(8):
            p(f"v_writelane_b32 v8, s{80+2*((i+1) % 8)}, {i}")
        p(f"""
        v_cmp_ne_u32 vcc, 0, v8
        v_sub_u32 v8, v8, v10
        v_add_u32 v8, 1000, v8
        v_cndmask_b32 v8, 0, v8, vcc
        s_cmp_ge_u32 s59, 8
        s_cselect_b32 s4, 36, 8
        v_mbcnt_lo_u32_b32 v9, -1, 0
        v_lshlrev_b32 v9, 2, v9
        s_mov_b64 exec, 0x7f
        buffer_atomic_umax v8, v9, s[96:99], s4 offen
        s_waitcnt vmcnt(0)
        """)
    elif STAMPS:
        stamp(p, 7)
        p("s_waitcnt vmcnt(0) lgkmcnt(0)\ns_mov_b64 exec, -1")
        for i in range(8):
            p(f"v_writelane_b32 v8, s{80+2*i}, {i}")
        p(f"""
        s_lshl_b32 s4, s2, 4
        s_add_u32 s4, s4, s59
        s_lshl_b32 s4, s4, 5
        s_add_u32 s4, s4, {STAMP_OFF}
        s_mov_b32 s96, s{P_WS}
        s_mov_b32 s97, s{P_WS+1}
        s_mov_b32 s98, {32*MB}
        s_mov_b32 s99, 0x20000
        v_mbcnt_lo_u32_b32 v9, -1, 0
        v_lshlrev_b32 v9, 2, v9
        s_mov_b64 exec, 0xff
        buffer_store_dword v8, v9, s[96:99], s4 offen
        """)
    p("s_endpgm")


class DS:
    def __init__(self, pending):
        self.n, self.done = pending, 0

    def op(self):
        self.n += 1
        return self.n - 1

    def need(self, i):
        if i < self.done:
            return []
        self.done = i + 1
        return [f"s_waitcnt lgkmcnt({min(15, self.n - 1 - i)})"]


class VM:
    def __init__(self, p):
        self.p, self.n, self.done = p, 0, 0

    def op(self, txt):
        self.p(txt)
        self.n += 1
        return self.n - 1

    def need(self, i):
        if i is None or i < self.done:
            return
        self.done = i + 1
        k = self.n - 1 - i
        assert k <= 63
        self.p(f"s_waitcnt vmcnt({k})")


def cost(ins):
    c = 0
    for l in ins.strip().split("\n"):
        m = l.strip().split()[0]
        c += 8 if m.startswith(("v_exp", "v_rcp", "v_rsq", "ds_")) else 16 if m.startswith("buffer_") else 4
    return c


def lds_spin(p, label, addr_v, tmp, want, sreg, wide=False):
    p(f"s_mov_b32 s{sreg}, {SPIN_MAX*8}")
    p.label(label)
    if wide:
        p(f"ds_read_b64 {vr(tmp,2)}, {addr_v}\ns_sub_u32 s{sreg}, s{sreg}, 1\ns_waitcnt lgkmcnt(0)\nv_cmp_ne_u64 vcc, {want}, {vr(tmp,2)}")
    else:
        p(f"ds_read_b32 v{tmp}, {addr_v}\ns_sub_u32 s{sreg}, s{sreg}, 1\ns_waitcnt lgkmcnt(0)\nv_cmp_ne_u32 vcc, {want}, v{tmp}")
    p(f"""
    s_cmp_eq_u32 s{sreg}, 0
    s_cbranch_scc1 {label}_x
    s_cmp_eq_u64 vcc, 0
    s_cbranch_scc1 {label}_x
    s_sleep 1
    s_branch {label}
    {label}_x:
    """)


def gen(p):
    p(f".globl {KN}\n.p2align 8\n.type {KN},@function")
    p.label(KN)
    S_W, S_RG, S_HF, S_RB, S_RT = 59, 60, 61, 62, 63
    p(f"""
    s_cmp_ge_u32 s2, 256
    s_cbranch_scc1 L_exit
    s_load_dwordx16 s[16:31], s[0:1], 0
    s_load_dwordx4 s[32:35], s[0:1], 64
    """)
    if STAMPS:
        for i in range(16):
            p(f"s_mov_b32 s{80+i}, 0")
        stamp(p, 0)
    p(f"""
    v_lshrrev_b32 v2, 6, v0
    v_and_b32 v0, 63, v0
    v_readfirstlane_b32 s{S_W}, v2
    s_and_b32 s5, s2, 7                 ; xcd
    s_lshr_b32 s6, s2, 3                ; j
    s_and_b32 s7, s5, 3
    s_lshl_b32 s7, s7, 2
    s_and_b32 s8, s6, 3
    s_add_u32 s{S_RB}, s7, s8           ; rb = 4*(x&3) + (j&3)
    s_lshr_b32 s7, s5, 2
    s_lshl_b32 s7, s7, 3
    s_lshr_b32 s8, s6, 2
    s_add_u32 s7, s7, s8                ; cg = 8*(x>>2) + (j>>2)
    s_and_b32 s8, s7, 1
    s_lshr_b32 s7, s7, 1
    s_cmp_ge_u32 s{S_W}, 8
    s_cbranch_scc1 L_service
    """)
    gen_c(p, S_W, S_RG, S_HF, S_RB, S_RT)
    p.label("L_service")
    gen_s(p, S_W)
    p.label("L_exit")
    p("s_endpgm")


def gen_c(p, S_W, S_RG, S_HF, S_RB, S_RT):
    VL16, VA, VB, VTRL, VEX, VEXP, VST = 1, 2, 3, 4, 5, 6, 7
    X, SA, SB, G, WF, T = 8, 64, 96, 128, 144, 160
    p(f"""
    s_and_b32 s{S_RG}, s{S_W}, 3
    s_lshr_b32 s{S_HF}, s{S_W}, 2
    s_xor_b32 s{S_HF}, s{S_HF}, s8
    v_lshrrev_b32 v12, 2, v0            ; r16
    v_lshrrev_b32 v13, 4, v0            ; r16>>2
    v_xor_b32 v13, v13, v0
    v_and_b32 v13, 3, v13
    v_mul_u32_u24 v12, 896, v12
    v_lshl_add_u32 v12, v13, 4, v12
    s_lshl_b32 s9, s{S_RB}, 2
    s_add_u32 s{S_RT}, s9, s{S_RG}
    s_mul_i32 s9, s{S_RT}, {32*896}
    s_mul_i32 s10, s{S_HF}, 448
    s_add_u32 s9, s9, s10
    v_add_u32 v12, s9, v12
    s_mul_i32 s10, s{S_W}, 14336
    s_mov_b32 s11, {16*896}
    s_waitcnt lgkmcnt(0)
    """)
    srd(p, 44, P_DBG, 256)
    p(f"""
    s_add_u32 s12, s2, s{S_W}
    s_cmp_lg_u32 s12, 0
    s_cbranch_scc1 L_notagw
    s_memrealtime s[12:13]
    s_waitcnt lgkmcnt(0)
    s_or_b32 s12, s12, 1
    v_mov_b32 v16, s12
    v_mov_b32 v17, s13
    s_mov_b64 exec, 1
    buffer_store_dwordx2 v[16:17], off, s[44:47], 0 sc1
    s_mov_b64 exec, -1
    L_notagw:
    """)
    srd(p, 36, P_X, 2048 * 896)
    for cb in range(7):
        for rh in range(2):
            p(f"s_add_u32 m0, s10, {(rh*7+cb)*1024 - 64*cb}")
            p(f"buffer_load_dwordx4 v12, s[36:39], {'s11' if rh else '0'} offen offset:{64*cb} lds")
    if ENV("B0"):
        p("s_barrier")
    srd(p, 40, P_WS, WS_USED)
    VXA, VXB, SUM, SQ, ONES, RS, NM, TG = T, T + 1, T + 2, T + 3, T + 4, G, G + 1, G + 2
    U = SB
    STAT = 7 * SLOT
    c0 = -2.0 * math.sqrt(2.0 / math.pi) * LOG2E
    c1 = c0 * 0.044715
    al = -((-c1) ** (1.0 / 3.0))
    p(f"""
    v_lshlrev_b32 v{VL16}, 4, v0
    s_lshl_b32 s3, s{S_HF}, 4
    v_xor_b32 v15, s3, v0
    v_lshlrev_b32 v{VST}, 4, v15
    s_lshl_b32 s12, s{S_HF}, 10
    v_add_u32 v{VST}, s12, v{VST}
    v_lshrrev_b32 v13, 5, v0
    v_lshlrev_b32 v13, 11, v13
    v_bfe_u32 v14, v0, 2, 2
    v_lshl_add_u32 v13, v14, 6, v13
    v_bfe_u32 v14, v15, 4, 1
    v_lshl_add_u32 v13, v14, 5, v13
    v_and_b32 v14, 3, v0
    v_lshl_add_u32 v13, v14, 3, v13
    s_lshl_b32 s12, s{S_HF}, 10
    v_add_u32 v{VTRL}, s12, v13
    v_add_u32 v{VA}, {8*SLOT}, v{VTRL}
    v_add_u32 v{VB}, {9*SLOT}, v{VTRL}
    s_lshl_b32 s12, s{S_W}, 12
    s_add_u32 s12, s12, {EXB}
    v_add_u32 v{VEX}, s12, v{VL16}
    v_xor_b32 v{VEXP}, 0x4100, v{VEX}
    v_bfe_u32 v13, v15, 4, 1
    v_mul_u32_u24 v13, 7168, v13
    v_and_b32 v14, 15, v0
    v_lshl_add_u32 v13, v14, 6, v13
    v_lshrrev_b32 v14, 5, v0            ; h
    v_bfe_u32 v15, v0, 2, 2             ; swz
    v_xor_b32 v14, v14, v15
    v_lshl_add_u32 v{VXA}, v14, 4, v13
    v_xor_b32 v14, 2, v14
    v_lshl_add_u32 v{VXB}, v14, 4, v13
    v_add_u32 v{VXA}, s10, v{VXA}
    v_add_u32 v{VXB}, s10, v{VXB}
    v_mov_b32 v{SUM}, 0
    v_mov_b32 v{SQ}, 0
    v_mov_b32 v{ONES}, 0x3f803f80
    s_mov_b32 s66, 0xffff0000
    s_mov_b32 s64, {f32(al)}
    s_mov_b32 s65, {f32(c0 / c1 * al * al)}
    v_and_b32 v{U+2}, 31, v0
    v_lshlrev_b32 v{U+2}, 3, v{U+2}
    s_lshl_b32 s12, s{S_W}, 8
    s_add_u32 s12, s12, {STAT}
    v_add_u32 v{U+3}, s12, v{U+2}
    v_xor_b32 v{U+2}, {1024+128}, v{U+3}
    """)
    p(f"""
    s_cmp_eq_u32 s8, 1
    s_cselect_b32 s69, {f32(QSCALE)}, 1.0
    s_cselect_b32 s4, 18, 19
    s_cselect_b32 s15, {QF_OFF}, {KV_OFF}
    s_cselect_b32 s73, 2048, 0
    s_cselect_b32 s14, 0, 4
    s_lshl_b32 s67, s7, s4
    s_sub_u32 s4, s4, 1
    s_lshl_b32 s68, 1, s4
    s_sub_u32 s4, s4, 6
    s_lshl_b32 s4, s{S_RT}, s4
    s_add_u32 s67, s67, s4
    s_add_u32 s67, s67, s15
    s_add_u32 s68, s68, s67
    s_add_u32 s72, s67, 2048
    s_add_u32 s75, s68, 2048
    s_lshl_b32 s12, s7, 12
    s_lshl_b32 s13, s{S_RB}, 7
    s_add_u32 s12, s12, s13
    s_add_u32 s12, s12, {QKVF}
    s_add_u32 s73, s73, s12             ; flag of this workgroup's q or k,v result
    s_mul_i32 s12, s7, 6
    s_add_u32 s14, s14, s12             ; first f tile
    s_add_u32 s58, s7, 48
    s_sub_u32 s58, s58, s14
    s_sub_u32 s58, s58, 2               ; from the tile after the first quad to the single tile (type A)
    s_lshl_b32 s70, s14, 11
    s_mul_i32 s4, s{S_RT}, 114688
    s_add_u32 s70, s70, s4
    s_add_u32 s70, s70, {H_OFF}
    s_lshl_b32 s71, s{S_RB}, 12
    s_lshl_b32 s4, s7, 9
    s_add_u32 s71, s71, s4
    s_xor_b32 s4, s8, 1
    s_lshl_b32 s4, s4, 7
    s_add_u32 s71, s71, s4
    s_add_u32 s71, s71, {HFL}           ; units: 0 first quad of B, 1 quad of A, 2 second quad of B, 3 single tile of A
    ; pad masks: even head pads n=28..31 (hf=1 waves), odd head pads n=0..3 (hf=0 waves)
    s_cmp_eq_u32 s{S_HF}, 1
    s_mov_b32 s52, 0
    s_cselect_b32 s53, -1, 0            ; q/k even head: packed regs 2,3
    s_cselect_b32 s54, 0, -1            ; q/k odd head: packed regs 0,1
    s_mov_b32 s55, 0
    s_cselect_b32 s56, 0xf000, 0xf0000000 {';'} v even head: zero lanes
    """.replace("s_cselect_b32 s56, 0xf000, 0xf0000000 ;", "s_mov_b32 s56, 0xf0000000\n    s_cselect_b32 s56, 0xf000, s56 ;") + f"""
    s_mov_b32 s57, s56
    s_cselect_b32 s48, 0xf0000, 15      ; v odd head: zero lanes
    s_mov_b32 s49, s48
    s_lshr_b32 s50, s56, 3
    s_and_b32 s50, s50, s56             ; lowest lane of each group: the ones column
    s_mov_b32 s51, s50
    s_lshr_b32 s46, s48, 3
    s_and_b32 s46, s46, s48
    s_mov_b32 s47, s46
    """.replace("s46", "s78").replace("s47", "s79"))
    stamp(p, 1)

    def stat(cb):
        for d in range(8):
            r = X + 8 * cb + d
            p(f"v_dot2c_f32_bf16 v{SUM}, v{r}, v{ONES}")
            p(f"v_dot2c_f32_bf16 v{SQ}, v{r}, v{r}")
    for cb in range(7):
        p(f"s_waitcnt vmcnt({12 - 2*cb})")
        p(f"ds_read_b128 {vr(X+8*cb,4)}, v{VXA} offset:{cb*1024}")
        p(f"ds_read_b128 {vr(X+8*cb+4,4)}, v{VXB} offset:{cb*1024}")
        if cb:
            p("s_waitcnt lgkmcnt(2)")
            stat(cb - 1)
    p("s_waitcnt lgkmcnt(0)")
    stat(6)
    p(f"""
    v_mov_b32 v{U}, v{SUM}
    v_mov_b32 v{U+1}, v{SQ}
    v_permlane32_swap_b32 v{SUM}, v{U}
    v_permlane32_swap_b32 v{SQ}, v{U+1}
    v_add_f32 v{SUM}, v{SUM}, v{U}
    v_add_f32 v{SQ}, v{SQ}, v{U+1}
    ds_write_b64 v{U+3}, {vr(SUM,2)}
    s_waitcnt lgkmcnt(0)
    s_barrier
    ds_read_b64 {vr(U,2)}, v{U+2}
    s_waitcnt lgkmcnt(0)
    s_barrier
    v_add_f32 v{SUM}, v{SUM}, v{U}
    v_add_f32 v{SQ}, v{SQ}, v{U+1}
    v_mul_f32 v{SUM}, {f32(1.0/448)}, v{SUM}        ; mean
    v_mul_f32 v{SQ}, {f32(1.0/448)}, v{SQ}
    v_fma_f32 v{SQ}, -v{SUM}, v{SUM}, v{SQ}         ; var
    v_max_f32 v{SQ}, 0, v{SQ}
    v_add_f32 v{SQ}, {f32(1e-5)}, v{SQ}
    v_rsq_f32 v{RS}, v{SQ}                          ; rstd
    v_mul_f32 v{SUM}, v{SUM}, v{RS}
    v_sub_f32 v{NM}, 0, v{SUM}                      ; -mean*rstd
    """)
    stamp(p, 2)

    def normalise(kl, tb):
        e = []
        for d in range(4):
            e += [f"v_lshlrev_b32 v{tb+2*d}, 16, v{X+4*kl+d}", f"v_and_b32 v{tb+2*d+1}, s66, v{X+4*kl+d}"]
        e += [f"v_fma_f32 v{tb+i}, v{tb+i}, v{RS}, v{NM}" for i in range(8)]
        e += [f"v_cvt_pk_bf16_f32 v{X+4*kl+d}, v{tb+2*d}, v{tb+2*d+1}" for d in range(4)]
        return e
    NPRE = int(ENV("NPRE", 2))
    for kl in range(NPRE):
        for i in normalise(kl, U + 8 * kl):
            p(i)
    p("s_barrier")
    NB = 4

    def st(r, sreg, off=0):
        return f"buffer_store_dwordx4 {vr(r,4)}, v{VST}, s[40:43], s{sreg} offen{' offset:%d' % off if off else ''} sc1"

    fl_n = [0]

    def flag0(sreg):
        fl_n[0] += 1
        return (f"s_cmp_lg_u32 s{S_W}, 0\ns_cbranch_scc1 L_fl{fl_n[0]}\ns_mov_b64 exec, 1\n"
                f"buffer_store_dwordx2 v[0:1], off, s[40:43], s{sreg} sc1\ns_mov_b64 exec, -1\nL_fl{fl_n[0]}:")

    def pack8(a):
        return [f"v_cvt_pk_bf16_f32 v{a+i}, v{a+2*i}, v{a+2*i+1}" for i in range(4)]

    def epi_qk(h0, h1):
        e = []
        for t, a in enumerate((h0, h1)):
            e += [f"v_mul_f32 v{a+i}, s69, v{a+i}" for i in range(8)] + pack8(a)
            z = a + 2 if t == 0 else a
            e += [f"s_mov_b64 exec, s[{52+2*t}:{53+2*t}]\nv_mov_b32 v{z}, 0\nv_mov_b32 v{z+1}, 0\ns_mov_b64 exec, -1"]
            e.append(st(a, 67 + t))
        return e

    def epi_v(h0, h1):
        e = []
        for t, a in enumerate((h0, h1)):
            zm, om = ((56, 50), (48, 78))[t]
            e += pack8(a)
            e += [f"s_mov_b64 exec, s[{zm}:{zm+1}]\n" + "".join(f"v_mov_b32 v{a+i}, 0\n" for i in range(4))
                  + f"s_mov_b64 exec, s[{om}:{om+1}]\n"
                  + "".join(f"v_mov_b32 v{a+i}, 0x3f803f80\n" for i in range(4)) + "s_mov_b64 exec, -1"]
            e.append(st(a, (72, 75)[t]))
        return e

    def gelu(g, qs):
        e = []
        for q in qs:
            r = g[4 * q:4 * q + 4]
            t = [T + i for i in range(4)]
            u = [T + 4 + i for i in range(4)]
            e += [f"v_mul_f32 v{t[i]}, s64, v{r[i]}" for i in range(4)]
            e += [f"v_fma_f32 v{u[i]}, v{t[i]}, v{t[i]}, s65" for i in range(4)]
            e += [f"v_mul_f32 v{t[i]}, v{t[i]}, v{u[i]}" for i in range(4)]
            e += [f"v_exp_f32 v{t[i]}, v{t[i]}" for i in range(4)]
            e += [f"v_add_f32 v{t[i]}, 1.0, v{t[i]}" for i in range(4)]
            e += [f"v_rcp_f32 v{t[i]}, v{t[i]}" for i in range(4)]
            e += [f"v_mul_f32 v{r[i]}, v{r[i]}, v{t[i]}" for i in range(4)]
        return e
    GG = [G + i for i in range(16)]

    def prod2(acc):
        e = []
        for t in range(2):
            a = acc + 16 * t
            e += [f"v_mul_f32 v{a+i}, v{a+i}, v{G+8*t+i}" for i in range(8)] + pack8(a)
            e.append(st(a, 70, 2048 * t))
        return e + ["s_add_u32 s70, s70, 4096"]

    def epi_s(acc):
        g = [acc + i for i in range(8)]
        e = gelu(g, [0, 1])
        e += [f"v_mul_f32 v{g[i]}, v{g[i]}, v{acc+16+i}" for i in range(8)] + pack8(acc)
        return e + [st(acc, 70)]

    tag_ld = [f"s_cmp_lg_u32 s{S_W}, 7\ns_cbranch_scc1 L_tl_@\n"
              f"buffer_load_dwordx2 {vr(TG,2)}, off, s[44:47], 0 sc1\nL_tl_@:"]
    tag_pub = [f"s_cmp_lg_u32 s{S_W}, 7\ns_cbranch_scc1 L_tp_@\ns_mov_b32 s12, {SPIN_MAX}\nL_tq_@:\ns_waitcnt vmcnt(0)\n"
               f"v_cmp_ne_u32 vcc, 0, v{TG}\ns_sub_u32 s12, s12, 1\ns_cbranch_scc1 L_tr_@\ns_cmp_lg_u64 vcc, 0\ns_cbranch_scc1 L_tr_@\n"
               f"buffer_load_dwordx2 {vr(TG,2)}, off, s[44:47], 0 sc1\ns_branch L_tq_@\nL_tr_@:\n"
               f"v_mov_b32 v{TG+2}, {TAGL}\nds_write_b64 v{TG+2}, {vr(TG,2)}\n"
               "s_waitcnt lgkmcnt(0)\nL_tp_@:"]
    XW, XR = [2, 3, 4, 5], [7, 8, 9, 10]
    xreg = lambda acc, i: acc + 16 * (i >> 1) + 8 + 4 * (i & 1)

    def stream(kind, late):
        N = 140
        types = "VKGUS" if kind == "A" else "QGUGU"
        G_ = []
        for kl in range(14):
            for ps in range(2):
                for t in range(2):
                    G_.append((kl >> 1, ps * 8192 + (kl & 1) * 4096 + t * 512, kl, (SA, SB)[ps] + 16 * t, kl == 0, types[ps] == "V"))
        acc = {2: SB, 3: SA, 4: SB}
        for ps in range(2, 5):
            for j in range(28):
                G_.append((7 + 4 * (ps - 2) + (j >> 3), ((j >> 1) & 3) * 4096 + (j & 1) * (1024 if types[ps] == "S" else 512),
                           j >> 1, acc[ps] + 16 * (j & 1), j < 2, False))
        win = []

        def W(a, b, ins):
            win.append((a, b, ins))
        for kl in range(NPRE, 14):
            W(4 * (kl - NPRE), 4 * (kl - NPRE) + 4, normalise(kl, T))
        W(16, 17, [x.replace("@", kind) for x in tag_ld])
        W(46, 47, [x.replace("@", kind) for x in tag_pub])
        E0 = 14
        pub = {}
        KB = int(ENV("KB", 91))
        if ENV("NOEPI"):
            pass
        elif kind == "A":
            W(56 + E0, 56 + E0 + 5, epi_v(SA, SA + 16))
            W(56 + 19, 56 + 25, epi_qk(G, G + 8))
            pub[KB] = 73
            W(84 + E0, 112 + E0 - 2, gelu(GG, [0, 1, 2, 3]))
            W(112 + E0, 112 + E0 + 8, prod2(SA) + ["s_lshl_b32 s12, s58, 11\ns_add_u32 s70, s70, s12"])
        else:
            W(56 + E0, 56 + E0 + 5, epi_qk(SA, SA + 16))
            W(56 + 19, 84 + E0 - 2, gelu(GG, [0, 1, 2, 3]))
            pub[91] = 73
            W(84 + E0, 84 + E0 + 8, prod2(SB))
            pub[127] = 71
            W(112 + E0, 140, gelu(GG, [0, 1]) + gelu(GG, [2])[:12])
        W(112 + 24 if kind == "A" else 112 + 6, 112 + 27 if kind == "A" else 112 + 12, late)
        per = [[] for _ in range(N)]
        for (a, b, ins) in win:
            tot = sum(cost(i) for i in ins)
            c = 0
            for i in ins:
                g = a + min(b - a - 1, int((c + cost(i) / 2) * (b - a) / tot))
                per[g].append(i)
                c += cost(i)
        ds = DS(0)
        frag = {}
        out = []

        def rd(n):
            c, imm = G_[n][0], G_[n][1]
            b = WF + 4 * (n % NB)
            a = VA if c % 2 == 0 else VB
            out.extend([f"ds_read_b64_tr_b16 {vr(b,2)}, v{a} offset:{imm}", f"ds_read_b64_tr_b16 {vr(b+2,2)}, v{a} offset:{imm+256}"])
            ds.op()
            frag[n] = ds.op()
            if n + 1 < N and G_[n + 1][0] != c and c + 2 < NST:
                if c + 2 == 15 and types[4] == "S":
                    out.append(f"v_bfe_u32 v{a}, v{VTRL}, 11, 1\nv_mul_u32_u24 v{a}, 1536, v{a}\nv_sub_u32 v{VTRL}, v{VTRL}, v{a}\n"
                               f"s_lshl_b32 s12, s{S_HF}, 10\nv_add_u32 v{VTRL}, s12, v{VTRL}")
                out.append(f"v_add_u32 v{a}, {phys(c+2)*SLOT}, v{VTRL}")
        for n in range(NB):
            rd(n)
        wr = None
        rdx, rdy = {}, {}
        for g in range(N):
            c, imm, xf, ac, first, swap = G_[g]
            ps, j = (0, g) if g < 56 else divmod(g, 28)
            if g % 2 == 0:
                out += ds.need(frag[g + 1])
            w, x = vr(WF + 4 * (g % NB), 4), vr(X + 4 * xf, 4)
            a, b = (x, w) if swap else (w, x)
            out.append(f"{MFMA} {vr(ac,16)}, {a}, {b}, {'0' if first else vr(ac,16)}")
            prev = None if ps < 2 else SA if ps == 2 else acc[ps - 1]
            if g + 1 < N and G_[g + 1][0] != c:
                if prev is not None and j == 7:
                    out += ds.need(wr)
                if g in pub:
                    out.append("s_waitcnt vmcnt(0)")
                out.append("s_barrier")
                if g in pub:
                    out.append(flag0(pub[g]))
                if ENV("CB"):
                    bi = c + 1 - int(ENV("CB"))
                    if 0 <= bi < 7:
                        out.append(f"s_memtime s[{80+2*bi}:{81+2*bi}]")
                if g == 47:
                    out.append(f"v_mov_b32 v0, {TAGL}\nds_read_b64 v[0:1], v0")
                    ds.op()
            if g + NB < N:
                rd(g + NB)
            xo = -2 * SLOT if ps == 2 else 0
            if prev is not None and j in XW:
                i = XW.index(j)
                if ps == 2 and i == 0:
                    out.append(f"v_add_u32 v{VEX}, {xo & 0xffffffff}, v{VEX}")
                out.append(f"ds_write_b128 v{VEX}, {vr(xreg(prev, i),4)} offset:{1024*i}")
                wr = ds.op()
                if ps == 2 and i == 3:
                    out.append(f"v_add_u32 v{VEX}, {-xo}, v{VEX}\nv_add_u32 v{VEXP}, {xo & 0xffffffff}, v{VEXP}")
            if prev is not None and j in XR:
                i = XR.index(j)
                out.append(f"ds_read_b128 {vr(xreg(prev, i),4)}, v{VEXP} offset:{1024*i}")
                rdx[i] = ds.op()
                if ps == 2 and i == 3:
                    out.append(f"v_add_u32 v{VEXP}, {-xo}, v{VEXP}")
            if prev is not None and j - 3 in XR:
                i = XR.index(j - 3)
                out += ds.need(rdx[i])
                r = xreg(prev, i)
                d = G + 4 * i if (ps > 2 and types[ps - 1] == "G") else r - 8
                out += [f"v_add_f32 v{d+k}, v{r-8+k}, v{r+k}" for k in range(4)]
            if ps == 2 and 11 <= j < 19:
                i, ph = (j - 11) // 4 * 2 + ((j - 11) & 1), ((j - 11) >> 1) & 1
                if ph == 0:
                    out.append(f"ds_read_b128 {vr(T+4*(i&1),4)}, v{VEXP} offset:{1024*i}")
                    rdy[i] = ds.op()
                else:
                    out += ds.need(rdy[i])
                    out += [f"v_add_f32 v{G+4*i+k}, v{G+4*i+k}, v{T+4*(i&1)+k}" for k in range(4)]
            out += per[g]
            if g == 55:
                out += stamp_txt(3)
                for i in (0, 1, 2, 3):
                    out.append(f"ds_write_b128 v{VEX}, {vr(xreg(SB, i),4)} offset:{1024*i}")
                    ds.op()
                    out += [f"v_mov_b32 v{G+4*i+k}, v{xreg(SB, i)-8+k}" for k in range(4)]
        for i in out:
            p(i)

    Q, KF, VF, S0, S1, PP, O = 8, 16, 24, 32, 48, 64, 72
    VCUR, VNXT, VCO, VKV, VCN, VONE, CK, CKO, VLN, VQA, E3 = 146, 147, 148, 149, 150, 88, 90, 92, 93, 94, 156
    BAL = ENV('BAL', '1') == '1'
    SPR = ENV('SPR', '0') == '1'
    XL = SB
    setup_s = f"""s_lshr_b32 s7, s6, 4
    s_lshl_b32 s8, s5, 1
    s_add_u32 s7, s7, s8                ; head
    s_and_b32 s8, s6, 15                ; q block
    s_lshl_b32 s11, s8, 2
    s_add_u32 s11, s11, s{S_RG}         ; q tile (0..63)
    s_lshl_b32 s9, s7, 18
    s_add_u32 s9, s9, {KV_OFF}
    s_lshl_b32 s46, s{S_HF}, 14         ; kh*16384
    s_add_u32 s47, s46, {2*SLOT}        ; slot of stage i+2
    s_lshl_b32 s13, s{S_RG}, 12         ; rg*4096
    s_add_u32 s14, s46, {2*KVS}         ; source offset of the next fill
    s_lshl_b32 s15, s{S_HF}, 7
    s_add_u32 s15, s15, {CNT}
    s_mov_b32 s48, 1                    ; iteration
    s_mov_b32 s49, 0
    s_mov_b32 s50, 4
    s_mov_b32 s51, 4
    s_lshl_b32 s10, s{S_RG}, 11
    s_add_u32 s10, s10, {QL}
    s_add_u32 s36, s{P_WS}, s9
    s_addc_u32 s37, s{P_WS+1}, 0
    s_mov_b32 s38, 262144""".split("\n")
    setup_s = [setup_s[i] if not setup_s[i].strip().startswith("s_add_u32 s36") else setup_s[i] + "\n" + setup_s[i+1]
               for i in range(len(setup_s)) if not setup_s[i].strip().startswith("s_addc")]

    def start(tag):
        stamp(p, 4)
        p(f"""
        v_and_b32 v{VLN}, 1023, v{VEX}      ; lane*16
        v_mov_b32 v{CKO}, {CNT_GO}
        v_add_u32 v{VQA}, s10, v{VLN}
        v_add_u32 v{VONE}, s46, v{VLN}
        v_add_u32 v{VONE+1}, {4*SLOT}, v{VONE}
        """)
        lds_spin(p, "L_w0" + tag, f"v{CKO}", CK, "4", 52)
        stamp(p, 5)
        p(f"""
        ds_read_b128 {vr(Q,4)}, v{VQA}
        ds_read_b128 {vr(Q+4,4)}, v{VQA} offset:1024
        ds_read_b128 {vr(KF,4)}, v{VONE+1}
        ds_read_b128 {vr(KF+4,4)}, v{VONE+1} offset:1024
        v_mov_b32 v{VNXT}, v{VONE}
        v_mov_b32 v{VCUR}, v{VONE+1}
        v_add_u32 v{VKV}, s13, v{VLN}
        v_mov_b32 v{VCN}, s15
        v_xor_b32 v{VCO}, 128, v{VCN}
        v_mov_b32 v{VONE}, 1
        v_mov_b32 v{VONE+1}, 0
        """)
        for i in range(4):
            p(f"ds_write_b128 v{VEX}, {vr(xreg(XL, i),4)} offset:{1024*i}")
        p(f"""
        s_waitcnt lgkmcnt(4)
        {MFMA} {vr(S0,16)}, {vr(KF,4)}, {vr(Q,4)}, 0
        {MFMA} {vr(S0,16)}, {vr(KF+4,4)}, {vr(Q+4,4)}, {vr(S0,16)}
        ds_read_b128 {vr(KF,4)}, v{VCUR} offset:4096
        ds_read_b128 {vr(KF+4,4)}, v{VCUR} offset:5120
        ds_read_b128 {vr(VF+4,4)}, v{VCUR} offset:3072
        ds_read_b128 {vr(VF,4)}, v{VCUR} offset:2048
        """)
    adds = []
    for i in range(4):
        r = xreg(XL, i)
        adds += [f"v_add_f32 v{r-8+k}, v{r-8+k}, v{r+k}" for k in range(4)]
    xrd = "s_waitcnt lgkmcnt(4)\ns_barrier\n" + "".join(f"ds_read_b128 {vr(xreg(XL, i),4)}, v{VEXP} offset:{1024*i}\n" for i in range(4))

    def fillers(pre, post, pub20=False):
        f = {}
        slots = [(0, 0), (0, 1), (0, 2)]
        for k, sl in enumerate(slots):
            f[sl] = "\n".join(pre[len(pre) * k // 3:len(pre) * (k + 1) // 3])
        f[(0, 0)] = xrd + f[(0, 0)]
        f[(0, 2)] = f[(0, 2)] + f"\ns_waitcnt {'vmcnt(0) ' if pub20 else ''}lgkmcnt(2)\ns_barrier\n"
        if pub20:
            f[(0, 2)] += flag0(71) + "\n"
        post = adds + post
        slots = [(0, 3), (1, 0), (1, 1), (1, 2)]
        for k, sl in enumerate(slots):
            f[sl] = "\n".join(post[len(post) * k // 4:len(post) * (k + 1) // 4])
        return f
    VL16 = VLN
    TT = T
    T_TAG = 0

    def phase(k, mf, rd, sc, sp, extra=""):
        if k % 2 == 0:
            p("s_waitcnt lgkmcnt(2)")
        if mf:
            p(mf)
        p(rd)
        src, pk = (E3, 3) if k == 0 else (sc + 4 * (k - 1), k - 1)
        dst = E3 if k == 3 else sc + 4 * k
        e = [f"v_exp_f32 v{dst+i}, v{sc+4*k+i}" for i in range(4)]
        c = [f"v_cvt_pk_bf16_f32 v{PP+2*pk+i}, v{src+2*i}, v{src+2*i+1}" for i in range(2)]
        for x in (e[0], c[0], e[1], c[1]) if sp is not None else (e[0], e[1]):
            p(x)
        if extra.strip():
            p(extra)
        p(e[2]); p(e[3])

    def ta(u, off):
        return f"v{VCUR} offset:{u*4096+off}" if u < 4 else f"v{VNXT} offset:{(u-4)*4096+off}"

    def body(first, tag, fil=None):
        fil = fil or {}
        T = T_TAG
        sig = f"""
        s_mov_b64 exec, 1
        {'' if (first or ENV('NOSIGW')) else 's_waitcnt vmcnt(0)'}
        ds_add_u64 v{VCN}, {vr(VONE,2)}
        s_mov_b64 exec, -1
        """
        for u in range(4):
            sc, sn = (S0, S1) if u % 2 == 0 else (S1, S0)
            if u == 2:
                p(f"""
                s_waitcnt lgkmcnt(1)
                v_cmp_ne_u64 vcc, s[50:51], {vr(CK,2)}
                s_add_u32 m0, s47, s13
                s_cmp_lg_u64 vcc, 0
                s_cbranch_scc1 L_a_spin{tag}
                L_a_go{tag}:
                """)
                if BAL:
                    p(f"""
                    v_cmp_eq_u32 vcc, 4, v{CKO}
                    s_setprio 0
                    s_cmp_eq_u64 vcc, 0
                    s_cbranch_scc1 L_a_pr{tag}
                    s_setprio 1
                    L_a_pr{tag}:
                    """)
                if SPR and not first:
                    p("s_cmp_le_u32 s48, 5\ns_cselect_b64 vcc, -1, 0")
                if not SPR:
                    if not first:
                        p(f"s_cmp_gt_u32 s48, 5\ns_cbranch_scc1 L_a_nofill")
                    for q in range(4):
                        p(f"buffer_load_dwordx4 v{VKV}, s[36:39], s14 offen offset:{q*1024} sc1 lds")
                    p(f"s_add_u32 s14, s14, {KVS}")
                    if not first:
                        p.label("L_a_nofill")

            def dma(q):
                if not SPR:
                    return ""
                t = f"buffer_load_dwordx4 v{VKV}, s[36:39], s14 offen offset:{q*1024} sc1 lds\n"
                if not first:
                    t = f"s_cbranch_vccz L_a_nf{q}\n" + t + f"L_a_nf{q}:\n"
                return t
            phase(0, f"{MFMA} {vr(sn,16)}, {vr(KF,4)}, {vr(Q,4)}, 0", f"ds_read_b128 {vr(KF,4)}, {ta(u+2, 0)}", sc, None if (first and u == 0) else sn,
                  dma(2 * (u - 2)) if u >= 2 else fil.get((u, 0), ""))
            phase(1, f"{MFMA} {vr(sn,16)}, {vr(KF+4,4)}, {vr(Q+4,4)}, {vr(sn,16)}",
                  f"ds_read_b128 {vr(KF+4,4)}, {ta(u+2, 1024)}", sc, sn, fil.get((u, 1), ""))
            phase(2, None if (first and u == 0) else f"{MFMA} {vr(O,16)}, {vr(VF+4,4)}, {vr(PP+4,4)}, {vr(O,16)}",
                  f"ds_read_b128 {vr(VF+4,4)}, {ta(u, 3072)}", sc, sn,
                  fil.get((u, 2), "") + "\n" + ((f"ds_read_b64 {vr(CK,2)}, v{VCN}" + (f"\nds_read_b32 v{CKO}, v{VCO}" if BAL else "")) if u == 1 else dma(2 * (u - 2) + 1) if u >= 2 else ""))
            ex = (sig if u == 0 else "") + fil.get((u, 3), "")
            if u == 3:
                ex = f"""
                v_mov_b32 v{VCUR}, v{VNXT}
                v_add_u32 v{VNXT}, s47, v{VL16}
                v_add_u32 v{VCN}, 8, v{VCN}
                v_xor_b32 v{VCO}, 128, v{VCN}
                s_add_u32 s47, s47, {2*SLOT}
                s_cmp_ge_u32 s47, {6*SLOT}
                s_cselect_b32 s3, {6*SLOT}, 0
                s_sub_u32 s47, s47, s3
                """
                if SPR:
                    ex += f"s_add_u32 s14, s14, {KVS}\n"
                if not first:
                    ex += "s_add_u32 s48, s48, 1\ns_cmp_lt_u32 s48, 8"
                else:
                    ex += f"""
                    s_mov_b64 exec, 1
                    v_mov_b32 v{CKO}, {CNT_H}
                    s_waitcnt vmcnt(4)
                    ds_add_rtn_u32 v{CK}, v{CKO}, v{VONE}
                    s_waitcnt lgkmcnt(0)
                    v_cmp_eq_u32 vcc, 7, v{CK}
                    s_and_b64 exec, exec, vcc
                    s_cbranch_execz L_nh{tag}
                    buffer_store_dwordx2 {vr(T,2)}, off, s[40:43], s71 offset:256 sc1
                    L_nh{tag}:
                    s_mov_b64 exec, -1
                    v_mov_b32 v{VONE+1}, 1
                    """
            phase(3, f"{MFMA} {vr(O,16)}, {vr(VF,4)}, {vr(PP,4)}, {'0' if (first and u == 0) else vr(O,16)}",
                  f"ds_read_b128 {vr(VF,4)}, {ta(u+1, 2048)}", sc, sn, ex)
    p("s_cmp_eq_u32 s8, 1\ns_cbranch_scc1 L_btype")
    stream("A", setup_s)
    start("a")
    body(True, "fa", fillers([], epi_s(XL), True))
    p("s_branch L_aloop")
    p.label("L_btype")
    stream("B", setup_s)
    start("b")
    body(True, "fb", fillers(gelu(GG, [2])[12:] + gelu(GG, [3]), prod2(XL)))
    T = T_TAG
    p(".p2align 6")
    p.label("L_aloop")
    body(False, "")
    p("s_cbranch_scc1 L_aloop\ns_branch L_a_done")
    for tag in ("fa", "fb", ""):
        p.label("L_a_spin" + tag)
        lds_spin(p, "L_a_sp" + tag, f"v{VCN}", CK, "s[50:51]", 52, wide=True)
        p("s_branch L_a_go" + tag)
    p.label("L_a_done")
    stamp(p, 6)
    p(f"""
    v_cvt_pk_bf16_f32 v{PP+6}, v{E3}, v{E3+1}
    v_cvt_pk_bf16_f32 v{PP+7}, v{E3+2}, v{E3+3}
    s_waitcnt lgkmcnt(0)
    {MFMA} {vr(O,16)}, {vr(VF+4,4)}, {vr(PP+4,4)}, {vr(O,16)}
    s_lshl_b32 s46, s{S_RG}, 12
    s_lshl_b32 s3, s{S_HF}, 14
    s_add_u32 s46, s46, s3
    s_add_u32 s46, s46, {4*SLOT}
    v_add_u32 v3, s46, v{VL16}
    s_lshl_b32 s3, s{S_RG}, 3
    s_add_u32 s3, s3, {CNT_COMB}
    v_mov_b32 v{VCN}, s3
    s_mov_b64 exec, 1
    ds_add_rtn_u32 v{CK}, v{VCN}, v{VONE}
    s_mov_b64 exec, -1
    s_waitcnt lgkmcnt(0)
    v_readfirstlane_b32 s3, v{CK}
    s_cmp_lg_u32 s3, 0
    s_cbranch_scc1 L_acomb
    """)
    for i in range(4):
        p(f"ds_write_b128 v3, {vr(O+4*i,4)} offset:{1024*i}")
    p(f"""
    s_mov_b64 exec, 1
    s_waitcnt lgkmcnt(0)
    ds_add_u32 v{VCN}, v{VONE} offset:4
    s_waitcnt lgkmcnt(0)
    """)
    endpgm(p)
    p.label("L_acomb")
    p(f"v_xor_b32 v3, {SLOT}, v3")
    lds_spin(p, "L_cw", f"v{VCN} offset:4", CK, "1", 52)
    for i in range(4):
        p(f"ds_read_b128 {vr(S0+4*i,4)}, v3 offset:{1024*i}")
    for q in range(4):
        p(f"s_waitcnt lgkmcnt({3-q})")
        for i in range(4 * q, 4 * q + 4):
            p(f"v_add_f32 v{O+i}, v{O+i}, v{S0+i}")
    p.label("L_afin")
    T2 = S1
    p(f"""
    s_mov_b32 s50, {f32(2.0**-60)}
    s_mov_b32 s51, {f32(2.0**100)}
    s_bitcmp1_b32 s7, 0
    s_cbranch_scc1 L_f_odd
    v_mov_b32 v{T2}, v{O+12}
    v_mov_b32 v{T2+1}, v{O+12}
    v_permlane32_swap_b32 v{T2}, v{T2+1}
    s_mov_b32 exec_lo, 0
    v_mov_b32 v{O+12}, 0
    v_mov_b32 v{O+13}, 0
    v_mov_b32 v{O+14}, 0
    v_mov_b32 v{O+15}, 0
    s_branch L_f_join
    L_f_odd:
    v_mov_b32 v{T2}, v{O}
    v_mov_b32 v{T2+1}, v{O}
    v_permlane32_swap_b32 v{T2+1}, v{T2}
    s_mov_b32 exec_hi, 0
    v_mov_b32 v{O}, 0
    v_mov_b32 v{O+1}, 0
    v_mov_b32 v{O+2}, 0
    v_mov_b32 v{O+3}, 0
    L_f_join:
    s_mov_b64 exec, -1
    v_rcp_f32 v{T2+2}, v{T2+1}
    v_cmp_ge_f32 s[52:53], v{T2+1}, s50
    v_cmp_le_f32 s[54:55], v{T2+1}, s51
    """)
    for i in range(16):
        p(f"v_mul_f32 v{O+i}, v{O+i}, v{T2+2}")
    p(f"v_mul_f32 v{T2+3}, 0, v{O}")
    for i in range(1, 16):
        p(f"v_fmac_f32 v{T2+3}, 0, v{O+i}")
    pack16(p, PP, O)
    p(f"""
    v_cmp_eq_f32 s[56:57], 0, v{T2+3}
    s_and_b64 s[52:53], s[52:53], s[54:55]
    s_lshl_b32 s45, s11, 15             ; rowtile*32K
    s_lshl_b32 s46, s7, 11              ; head*2K
    s_add_u32 s45, s45, s46
    s_add_u32 s45, s45, {O_OFF}
    s_and_b64 s[52:53], s[52:53], s[56:57]
    s_cmp_eq_u64 s[52:53], -1
    s_cbranch_scc1 L_aok
    s_cmp_eq_u32 s49, 0x5afe
    s_cbranch_scc0 L_fallback
    """)
    p.label("L_aok")
    p(f"""
    buffer_store_dwordx4 {vr(PP,4)}, v{VL16}, s[40:43], s45 offen sc1
    buffer_store_dwordx4 {vr(PP+4,4)}, v{VL16}, s[40:43], s45 offen offset:1024 sc1
    s_lshl_b32 s45, s11, 11
    s_lshl_b32 s46, s7, 7
    s_add_u32 s45, s45, s46
    s_add_u32 s45, s45, {OFL}
    s_mov_b64 exec, 1
    s_waitcnt vmcnt(0)
    buffer_store_dwordx2 {vr(T,2)}, off, s[40:43], s45 sc1
    """)
    endpgm(p)
    p.label("L_fallback")
    M, MN, AL, TM, T3 = 100, 101, 102, 103, 104
    p("s_mov_b32 s49, 0x5afe")
    for i in range(16):
        p(f"v_mov_b32 v{O+i}, 0")
    p(f"v_mov_b32 v{M}, 0xff800000\ns_mov_b32 s14, 0")
    p.label("L_fbloop")
    p(f"""
    buffer_load_dwordx4 {vr(KF,4)}, v{VL16}, s[36:39], s14 offen sc1
    buffer_load_dwordx4 {vr(KF+4,4)}, v{VL16}, s[36:39], s14 offen offset:1024 sc1
    buffer_load_dwordx4 {vr(VF,4)}, v{VL16}, s[36:39], s14 offen offset:2048 sc1
    buffer_load_dwordx4 {vr(VF+4,4)}, v{VL16}, s[36:39], s14 offen offset:3072 sc1
    s_waitcnt vmcnt(2)
    {MFMA} {vr(S0,16)}, {vr(KF,4)}, {vr(Q,4)}, 0
    {MFMA} {vr(S0,16)}, {vr(KF+4,4)}, {vr(Q+4,4)}, {vr(S0,16)}
    v_max3_f32 v{TM}, v{S0}, v{S0+1}, v{S0+2}
    """)
    for i in range(3, 15, 2):
        p(f"v_max3_f32 v{TM}, v{S0+i}, v{S0+i+1}, v{TM}")
    p(f"""
    v_max_f32 v{TM}, v{S0+15}, v{TM}
    v_mov_b32 v{T3}, v{TM}
    v_permlane32_swap_b32 v{TM}, v{T3}
    v_max3_f32 v{MN}, v{TM}, v{T3}, v{M}
    v_sub_f32 v{AL}, v{M}, v{MN}
    v_exp_f32 v{AL}, v{AL}
    v_mov_b32 v{M}, v{MN}
    """)
    for i in range(16):
        p(f"v_sub_f32 v{S0+i}, v{S0+i}, v{MN}")
    for i in range(16):
        p(f"v_exp_f32 v{S0+i}, v{S0+i}")
    for i in range(16):
        p(f"v_mul_f32 v{O+i}, v{O+i}, v{AL}")
    pack16(p, PP, S0)
    p(f"""
    s_waitcnt vmcnt(0)
    {MFMA} {vr(O,16)}, {vr(VF,4)}, {vr(PP,4)}, {vr(O,16)}
    {MFMA} {vr(O,16)}, {vr(VF+4,4)}, {vr(PP+4,4)}, {vr(O,16)}
    s_add_u32 s14, s14, 4096
    s_cmp_lt_u32 s14, 262144
    s_cbranch_scc1 L_fbloop
    s_branch L_afin
    """)


def gen_s(p, S_W):
    VL16, VQ, VF_, VS_ = 1, 2, 3, 7
    p(f"""
    s_sub_u32 s4, s{S_W}, 8
    s_and_b32 s9, s4, 1
    s_lshr_b32 s10, s4, 1
    v_bfe_u32 v13, v0, 2, 3
    s_mul_i32 s12, s9, 224
    s_lshl_b32 s13, s10, 3
    s_add_u32 s12, s12, s13
    v_add_u32 v13, s12, v13
    v_lshrrev_b32 v14, 5, v0
    v_and_b32 v15, 3, v0
    v_lshlrev_b32 v15, 4, v15
    v_mul_u32_u24 v{VF_}, 3584, v13
    v_add_u32 v{VF_}, v{VF_}, v15
    v_lshl_add_u32 v{VF_}, v14, 6, v{VF_}
    v_lshrrev_b32 v{VS_}, 2, v0
    s_mul_i32 s12, s9, 224
    v_add_u32 v{VS_}, s12, v{VS_}
    v_mul_u32_u24 v{VS_}, 3584, v{VS_}
    v_add_u32 v{VS_}, v{VS_}, v15
    v_mul_u32_u24 v{VQ}, 2688, v13
    v_mul_u32_u24 v14, 48, v14
    v_add3_u32 v{VQ}, v{VQ}, v14, v15
    v_lshlrev_b32 v{VL16}, 4, v0
    s_lshl_b32 s56, s10, 11
    s_lshl_b32 s12, s9, 10
    s_add_u32 s56, s56, s12
    s_mul_i32 s64, s7, 112
    s_add_u32 s65, s64, 896
    s_cmp_eq_u32 s8, 1
    s_cselect_b32 s12, 0, 1792
    s_cselect_b32 s13, 0, 256
    s_add_u32 s64, s64, s12
    s_mul_i32 s66, s7, 384
    s_add_u32 s66, s66, s13
    s_lshl_b32 s67, s7, 6
    s_add_u32 s67, s67, {48*64}
    """)
    p.label("L_ld_p")
    p("s_waitcnt lgkmcnt(0)")
    if ENV("TLB"):
        TA = 44
        p(f"""
        s_cmp_lg_u32 s4, {ENV("TLBW", 0)}
        s_cbranch_scc1 L_notlb
        v_min_u32 v{TA}, {WS_USED // (2*MB) - 1}, v0
        v_lshlrev_b32 v{TA}, 21, v{TA}
        v_mov_b32 v{TA+1}, s{P_WS+1}
        v_add_co_u32 v{TA}, vcc, s{P_WS}, v{TA}
        v_addc_co_u32 v{TA+1}, vcc, 0, v{TA+1}, vcc
        """)
        bufs = [(P_WG, 448 * 3584), (P_WU, 448 * 3584), (P_WQKV, 448 * 2688), (P_WD, 1792 * 896), (P_WO, 448 * 896),
                (P_OUT, 2048 * 896), (P_DBG, 256), (P_X, 2048 * 896)]
        for i, (b, n) in enumerate(bufs):
            p(f"""
            v_writelane_b32 v{TA}, s{b}, {16+2*i}
            v_writelane_b32 v{TA+1}, s{b+1}, {16+2*i}
            s_add_u32 s12, s{b}, {n-4}
            s_addc_u32 s13, s{b+1}, 0
            v_writelane_b32 v{TA}, s12, {17+2*i}
            v_writelane_b32 v{TA+1}, s13, {17+2*i}
            """)
        p(f"global_load_dword v{TA+2}, {vr(TA,2)}, off")
        p.label("L_notlb")
    srd(p, 36, P_WQKV, 448 * 2688)
    srd(p, 40, P_WG, 448 * 3584)
    srd(p, 72, P_WU, 448 * 3584)
    srd(p, 48, P_WD, 1792 * 896)
    srd(p, 52, P_WO, 448 * 896)
    p(f"""
    s_cmp_eq_u32 s10, 0
    s_cselect_b32 s76, s{P_WG}, s{P_WU}
    s_cselect_b32 s77, s{P_WG+1}, s{P_WU+1}
    s_mov_b32 s78, {448*3584}
    s_mov_b32 s79, 0x20000
    s_lshl_b32 s57, s9, 11
    s_lshl_b32 s12, s10, 10
    s_add_u32 s57, s57, s12
    """)

    PF = 24

    VFQ, TGV, FL = 6, 4, 8
    PB = int(ENV('PB', 14))
    EVD = int(ENV('EVD', 2))

    def qkv_poll(emit):
        return emit(f"buffer_load_dwordx2 {vr(FL,2)}, v{VFQ}, s[44:47], s62 offen sc1")
    srd(p, 44, P_WS, WS_USED)
    p(f"""
    s_lshl_b32 s62, s5, 12
    s_add_u32 s62, s62, {QKVF}
    s_and_b32 s63, s6, 15
    s_add_u32 s63, s63, 16
    v_mov_b32 v{VFQ}, s63
    v_cmp_gt_u32 vcc, 16, v0
    v_cndmask_b32 v{VFQ}, v{VFQ}, v0, vcc
    v_lshlrev_b32 v{VFQ}, 7, v{VFQ}
    """)

    def stream(kinds):
        spec = {"V": (36, VQ, 64, 0), "Q": (36, VQ, 64, 0), "K": (36, VQ, 65, 0), "G": (40, VF_, 66, 0), "U": (72, VF_, 66, 0),
                "g": (40, VF_, 66, 128), "u": (72, VF_, 66, 128), "S": (76, VS_, 67, 0)}
        stages = [[(kinds[q >> 1], 32 * c + 16 * (q & 1)) for q in range(4)] for c in range(7)]
        stages += [[(kinds[ps], 64 * sl + 16 * q) for q in range(2 if sl == 3 else 4)] for ps in range(2, 5) for sl in range(4)]
        vm = VM(p)
        last = {}
        issued = 0
        nq = 0

        def issue1():
            nonlocal issued, nq
            kind, row = stages[issued][nq]
            s_, v, col, add = spec[kind]
            stride = 2688 if s_ == 36 else 3584
            p(f"s_add_u32 m0, {'s57' if kind == 'S' else 's56'}, {phys(issued)*SLOT + nq*4096}")
            p(f"s_add_u32 s13, s{col}, {row*stride + add}")
            if ENV("NOFILL"):
                last[issued] = None
            else:
                last[issued] = vm.op(f"buffer_load_dwordx4 v{v}, s[{s_}:{s_+3}], s13 offen lds")
            nq += 1
            if nq == len(stages[issued]):
                nq = 0
                issued += 1

        def issue():
            c = issued
            while issued == c:
                issue1()
        if TL:
            p("v_mov_b32 v60, 0")
        tl(p, 0)
        def wpf():
            p(f"s_lshl_b32 s13, s2, 2\ns_add_u32 s13, s13, s4\ns_lshl_b32 s13, s13, 10\ns_add_u32 s14, s13, {1 << 20}")
            for r in (36, 40, 72) + ((48,) if ENV("WDPF", "1") == "1" else ()):
                vm.op(f"buffer_load_dwordx4 {vr(PF,4)}, v{VL16}, s[{r}:{r+3}], s13 offen")
                vm.op(f"buffer_load_dwordx4 {vr(PF,4)}, v{VL16}, s[{r}:{r+3}], s14 offen")
        B0 = ENV("B0")
        if B0 == "a":
            p("s_barrier")
        if ENV("WPF", "1") == "1":
            wpf()
        issue()
        if B0 == "b":
            p("s_barrier")
        issue()
        if B0 == "c":
            p("s_barrier")
        if ENV("WPF", "1") == "2":
            wpf()
        tl(p, 1)
        dbg = ENV("SDBG")
        p(f"s_barrier\ns_barrier\ns_setprio {ENV('SPRIO', 0)}")
        if dbg: stamp(p, 1)
        tl(p, 2)
        issue(); issue()
        vm.need(last[1])
        tl(p, 3)
        p("s_barrier")
        tl(p, 4)
        if dbg: stamp(p, 2)
        issue(); issue()
        if dbg: stamp(p, 3)
        for i in range(1, PB + EVD):
            assert issued > i + 1
            vm.need(last[i + 1])
            tl(p, 3 + 2 * i)
            p("s_barrier")
            tl(p, 4 + 2 * i)
            budget = 6 if i < 7 else eval(ENV("BUD", "[2, 8, 8, 3]"))[(i - 7) % 4]
            while budget > 0 and issued < min(NST, max(9, i + 6)):
                budget -= 1
                issue1()
            if i == 6:
                p(f"v_mov_b32 v{TGV}, {TAGL}\nds_read_b64 {vr(TGV,2)}, v{TGV}\ns_waitcnt lgkmcnt(0)")
            if i == 10:
                p(f"""
                s_cmp_lg_u32 s4, 0
                s_cbranch_scc1 L_noinit{kinds}
                v_lshlrev_b32 v22, 2, v0
                v_add_u32 v22, {CNT}, v22
                v_mov_b32 v23, 0
                ds_write_b32 v22, v23
                s_waitcnt lgkmcnt(0)
                L_noinit{kinds}:
                """)
            if i == PB:
                pollid = qkv_poll(vm.op)
            if i == int(ENV('PFI', 99)):
                PFMODE = ENV("PFMODE", "chip")
                if PFMODE == "chip":
                    p(f"s_lshl_b32 s13, s2, 2\ns_add_u32 s13, s13, s4\ns_lshl_b32 s14, s13, 11\ns_lshl_b32 s13, s13, 9")
                    vm.op(f"buffer_load_dwordx4 {vr(PF,4)}, v{VL16}, s[48:51], s14 offen")
                    vm.op(f"buffer_load_dwordx4 {vr(PF+4,4)}, v{VL16}, s[48:51], s14 offen offset:1024")
                    vm.op(f"buffer_load_dwordx4 {vr(PF+8,4)}, v{VL16}, s[52:55], s13 offen")
            if ENV("PFMODE", "chip") == "xcd" and 5 <= i < 9:
                k = i - 5
                if k == 0:
                    p(f"s_lshl_b32 s13, s6, 2\ns_add_u32 s13, s13, s4\ns_mul_i32 s57, s13, {13*1024}\ns_lshl_b32 s58, s13, 12")
                    for q in range(4):
                        vm.op(f"buffer_load_dwordx4 {vr(PF+4*q,4)}, v{VL16}, s[52:55], s58 offen offset:{q*1024}")
                    vm.op(f"buffer_load_dwordx4 {vr(PF+16,4)}, v{VL16}, s[48:51], s57 offen")
                    p("s_add_u32 s57, s57, 1024")
                else:
                    for q in range(4):
                        vm.op(f"buffer_load_dwordx4 {vr(PF+4*q,4)}, v{VL16}, s[48:51], s57 offen offset:{q*1024}")
                    p("s_add_u32 s57, s57, 4096")
        assert issued == NST
    p("s_cmp_eq_u32 s8, 1\ns_cbranch_scc1 L_ld_b")
    stream("VKGUS")
    p("s_branch L_ld_done")
    p.label("L_ld_b")
    stream("QGUgu")
    p.label("L_ld_done")
    if not ENV("SDBG"):
        stamp(p, 1)
    tl_dump(p)
    if ENV("STOPB"):
        endpgm(p)
    p(f"""
    s_lshr_b32 s7, s6, 4
    s_lshl_b32 s8, s5, 1
    s_add_u32 s7, s7, s8                ; head
    s_and_b32 s8, s6, 15                ; q block
    """)
    VKV = 2
    p(f"""
    s_lshl_b32 s12, s7, 18
    s_add_u32 s12, s12, {KV_OFF}
    s_lshl_b32 s13, s4, 12              ; s*4096
    v_add_u32 v{VKV}, s13, v{VL16}
    s_lshl_b32 s66, s7, 17
    s_lshl_b32 s3, s8, 13
    s_add_u32 s66, s66, s3
    s_lshl_b32 s3, s4, 11
    s_add_u32 s66, s66, s3
    s_add_u32 s66, s66, {QF_OFF}
    s_add_u32 s67, s3, {QL}
    s_mov_b32 s68, 0                    ; ready
    s_mov_b32 s69, 0
    s_mov_b32 s70, {PB+EVD}
    s_mov_b32 s71, {SPIN_MAX}
    s_add_u32 s64, s13, {4*SLOT}
    """)
    srd(p, 36, P_WS, 262144, "s12")
    srd(p, 40, P_WS, WS_USED)
    p.label("L_pl")
    p(f"""
    s_cmp_lg_u32 s68, 0
    s_cbranch_scc1 L_pl_ready
    s_cmp_ge_u32 s70, 19
    s_cbranch_scc1 L_pl_eval
    s_cmp_lg_u32 s70, {PB+EVD}
    s_cbranch_scc1 L_pl_bar
    L_pl_eval:
    s_waitcnt vmcnt(0)
    v_cmp_eq_u64 s[60:61], {vr(FL,2)}, {vr(TGV,2)}
    """)
    p(f"""
    s_sub_u32 s71, s71, 1
    s_cselect_b32 s68, 1, 0
    s_cmp_eq_u64 s[60:61], -1
    s_cselect_b32 s68, 1, s68
    s_cmp_lg_u32 s68, 0
    s_cbranch_scc1 L_pl_q
    """)
    qkv_poll(lambda t: p(t))
    p(f"""
    s_branch L_pl_bar
    L_pl_q:
    s_mov_b32 m0, s67
    s_nop 0
    buffer_load_dwordx4 v{VL16}, s[40:43], s66 offen sc1 lds
    buffer_load_dwordx4 v{VL16}, s[40:43], s66 offen offset:1024 sc1 lds
    L_pl_ready:
    s_add_u32 s3, s69, 15
    s_cmp_gt_u32 s3, s70
    s_cbranch_scc1 L_pl_bar
    s_cmp_ge_u32 s69, 4
    s_cbranch_scc1 L_pl_bar
    s_lshl_b32 s14, s69, 14
    s_mov_b32 m0, s64
    s_add_u32 s69, s69, 1
    buffer_load_dwordx4 v{VKV}, s[36:39], s14 offen sc1 lds
    buffer_load_dwordx4 v{VKV}, s[36:39], s14 offen offset:1024 sc1 lds
    buffer_load_dwordx4 v{VKV}, s[36:39], s14 offen offset:2048 sc1 lds
    buffer_load_dwordx4 v{VKV}, s[36:39], s14 offen offset:3072 sc1 lds
    s_add_u32 s64, s64, {SLOT}
    s_cmp_eq_u32 s69, 2
    s_cselect_b32 s64, s13, s64
    s_branch L_pl_ready
    L_pl_bar:
    s_cmp_ge_u32 s70, 19
    s_cbranch_scc1 L_pl_nobar
    s_barrier
    s_add_u32 s70, s70, 1
    s_branch L_pl
    L_pl_nobar:
    s_cmp_ge_u32 s69, 4
    s_cbranch_scc1 L_pl_done
    s_sleep 4
    s_branch L_pl
    L_pl_done:
    v_mov_b32 v{FL}, {CNT}
    v_mov_b32 v{FL+1}, 1
    s_mov_b64 exec, 1
    s_waitcnt vmcnt(8)
    ds_add_u32 v{FL}, v{FL+1} offset:96
    s_waitcnt vmcnt(0)
    ds_add_u32 v{FL}, v{FL+1} offset:4
    ds_add_u32 v{FL}, v{FL+1} offset:132
    s_mov_b64 exec, -1
    s_mul_i32 s14, s8, {12*1024}
    s_mul_i32 s3, s4, {3*1024}
    s_add_u32 s14, s14, s3
    s_add_u32 s14, s14, {2*KVS}
    buffer_load_dwordx4 {vr(FL+4,4)}, v{VL16}, s[36:39], s14 offen sc1
    buffer_load_dwordx4 {vr(FL+4,4)}, v{VL16}, s[36:39], s14 offen offset:1024 sc1
    buffer_load_dwordx4 {vr(FL+4,4)}, v{VL16}, s[36:39], s14 offen offset:2048 sc1
    s_lshl_b32 s3, s2, 2
    s_add_u32 s3, s3, s4
    s_lshl_b32 s3, s3, 9
    buffer_load_dwordx4 {vr(FL+4,4)}, v{VL16}, s[52:55], s3 offen
    s_cmp_ge_u32 s6, {0 if ENV("NODOWN") else 28}
    s_cbranch_scc1 L_s_end
    s_barrier                           ; barrier(19)
    s_barrier
    s_setprio {ENV("DPRIO0", 0)}
    """)
    stamp(p, 2)
    ACC, WF, HB = 8, 72, 88
    VD, VT0, VT1, VX = 2, 3, 6, 7
    GR, XF = 144, 160
    NRING = 7
    p(f"""
    s_and_b32 s9, s6, 3
    s_lshl_b32 s10, s5, 2
    s_add_u32 s9, s9, s10
    s_lshr_b32 s10, s6, 2
    s_lshr_b32 s11, s4, 1
    s_lshl_b32 s57, s9, 1
    s_add_u32 s57, s57, s11
    s_xor_b32 s58, s57, 1
    s_mul_i32 s3, s4, {12*2048}
    s_add_u32 s3, s3, {H_OFF}
    s_mul_i32 s60, s57, 114688
    s_add_u32 s60, s60, s3
    s_mul_i32 s61, s58, 114688
    s_add_u32 s61, s61, s3
    v_bfe_u32 v{VX}, v0, 2, 3
    v_mul_u32_u24 v{VX}, 896, v{VX}
    v_lshrrev_b32 v{VT0}, 5, v0
    v_lshl_add_u32 v{VX}, v{VT0}, 6, v{VX}
    v_and_b32 v{VT0}, 3, v0
    v_lshl_add_u32 v{VX}, v{VT0}, 4, v{VX}
    s_lshl_b32 s14, s10, 7
    v_add_u32 v{VD}, s14, v{VX}
    v_lshrrev_b32 v{VX}, 5, v0
    v_lshlrev_b32 v{VX}, 8, v{VX}
    v_bfe_u32 v{VT0}, v0, 2, 2
    v_lshl_add_u32 v{VX}, v{VT0}, 6, v{VX}
    v_bfe_u32 v{VT0}, v0, 4, 1
    v_lshl_add_u32 v{VX}, v{VT0}, 5, v{VX}
    v_and_b32 v{VT0}, 3, v0
    v_lshl_add_u32 v{VX}, v{VT0}, 3, v{VX}
    s_lshl_b32 s15, s4, 14
    s_add_u32 s15, s15, {PRIV}
    s_and_b32 s3, s4, 1
    s_lshl_b32 s3, s3, 9
    s_add_u32 s3, s3, s15
    v_add_u32 v{VT0}, s3, v{VX}
    v_xor_b32 v{VT1}, 512, v{VT0}
    s_mul_i32 s62, s4, {12*32*896}
    s_mul_i32 s63, s4, -10
    s_add_u32 s63, s63, 48
    s_lshl_b32 s64, s63, 11
    s_add_u32 s65, s64, s61
    s_add_u32 s64, s64, s60
    s_mul_i32 s63, s63, {32*896}
    s_add_u32 s63, s63, s62
    """)
    vm = VM(p)

    order = [0, 1, 6, 7, 4, 5, 10, 11, 2, 3, 8, 9, 12, 13]
    seg_end = [8, 16, 28]
    seg_mask = [0x11, 0x22, 0xCC]

    def wload(ks):
        sl = ks % NRING
        if ks >= 28:
            for o in range(2):
                p(f"s_add_u32 m0, s15, {sl*2048 + o*1024}")
                p(f"s_add_u32 s14, s67, {(16*sl + 8*o)*896}")
                vm.op(f"buffer_load_dwordx4 v{VD}, s[52:55], s14 offen lds")
            return
        t = order[ks >> 1]
        base, t = ("s62", t) if t < 12 else ("s63", t - 12)
        for o in range(2):
            p(f"s_add_u32 m0, s15, {sl*2048 + o*1024}")
            p(f"s_add_u32 s14, {base}, {(32*t + 16*(ks&1) + 8*o)*896}")
            wid[ks] = vm.op(f"buffer_load_dwordx4 v{VD}, s[48:51], s14 offen lds")

    def hload(ks):
        sl = ks % NRING
        t = order[ks >> 1]
        (b0, b1), t = (("s60", "s61"), t) if t < 12 else (("s64", "s65"), t - 12)
        off = t * 2048 + (ks & 1) * 1024
        for r, b_ in enumerate((b0, b1)):
            if off >= 4096:
                p(f"s_add_u32 s14, {b_}, {off & ~4095}")
            hid[ks] = vm.op(f"buffer_load_dwordx4 {vr(HB+8*sl+4*r,4)}, v{VL16}, s[40:43], {'s14' if off >= 4096 else b_} offen offset:{off & 4095} sc1")
    wid, hid = {}, {}
    VFA, FT = GR, GR + 2
    p(f"""
    v_and_b32 v{VFA}, 7, v0
    v_lshlrev_b32 v{VFA}, 7, v{VFA}
    s_lshr_b32 s66, s9, 1
    s_lshl_b32 s66, s66, 12
    s_lshl_b32 s3, s4, 10
    s_add_u32 s66, s66, s3
    s_add_u32 s66, s66, {HFL}
    s_mov_b32 s71, {SPIN_MAX}
    s_mul_i32 s67, s4, {112*896}
    v_and_b32 v{VX}, 31, v0
    s_lshl_b32 s14, s57, 5
    v_add_u32 v{VX}, s14, v{VX}
    v_mul_u32_u24 v{VX}, 896, v{VX}
    v_lshrrev_b32 v0, 5, v0
    v_lshl_add_u32 v{VX}, v0, 3, v{VX}
    s_and_b32 s14, s4, 1
    s_lshl_b32 s14, s14, 6
    s_lshl_b32 s3, s10, 7
    s_add_u32 s14, s14, s3
    v_add_u32 v0, s14, v{VX}
    """)
    VXO = 0
    srd(p, 44, P_X, 2048 * 896)
    for g4 in range(4):
        vm.op(f"buffer_load_dwordx2 {vr(XF+2*g4,2)}, v{VXO}, s[44:47], 0 offen offset:{16*g4}")

    def hpoll(k):
        label = f"L_hp{k}"
        p(f"s_mov_b32 s68, {seg_mask[k]}\ns_mov_b32 s69, 0")
        p.label(label)
        p(f"""
        buffer_load_dwordx2 {vr(FT,2)}, v{VFA}, s[40:43], s66 offen sc1
        s_sub_u32 s71, s71, 1
        s_waitcnt vmcnt(0)
        v_cmp_eq_u64 vcc, {vr(FT,2)}, {vr(TGV,2)}
        s_cmp_eq_u32 s71, 0
        s_cbranch_scc1 {label}_x
        s_and_b64 vcc, vcc, s[68:69]
        s_cmp_eq_u64 vcc, s[68:69]
        s_cbranch_scc1 {label}_x
        s_sleep 8
        s_branch {label}
        {label}_x:
        """)
        vm.done = vm.n

    def trd(wb, base, a0=VT0, a1=VT1):
        for c, a in enumerate((a0, a1)):
            for b in range(2):
                p(f"ds_read_b64_tr_b16 {vr(wb+4*c+2*b,2)}, v{a} offset:{base + b*1024}")
    LOOK = int(ENV("LOOK", 3))
    seg, hn = 0, 0

    def hfill(done):
        nonlocal hn
        while hn < min(seg_end[seg], done + NRING):
            hload(hn)
            hn += 1
    for ks in range(2):
        wload(ks)
    hpoll(0)
    stamp(p, 3)
    for ks in range(NRING):
        hload(ks)
        if ks + 2 < NRING:
            wload(ks + 2)
    hn = NRING
    p(f"s_setprio {ENV('DPRIO', 0)}")
    trd(WF, 0)
    for ks in range(28):
        sl = ks % NRING
        wb = WF + 8 * (ks & 1)
        if ks + 1 < 28:
            vm.need(wid[ks + 1])
            trd(WF + 8 * ((ks + 1) & 1), ((ks + 1) % NRING) * 2048)
        vm.need(hid[ks])
        p(f"s_waitcnt lgkmcnt({4 if ks + 1 < 28 else 0})")
        for a in range(4):
            ac = vr(ACC + 16 * a, 16)
            p(f"{MFMA} {ac}, {vr(wb+4*(a&1),4)}, {vr(HB+8*sl+4*(a>>1),4)}, {'0' if ks == 0 else ac}")
            if ENV("DINT") and a == 0 and ks >= 1:
                hfill(ks)
            if ENV("DINT") and a == 1 and ks + NRING < 28:
                wload(ks + NRING)
        if seg < 2 and ks + 1 + LOOK == seg_end[seg]:
            seg += 1
            hpoll(seg)
            hfill(ks + 1)
        if not ENV("DINT"):
            hfill(ks + 1)
            wload(ks + NRING)
    stamp(p, 4)

    def send():
        p(f"v_add_u32 v{VX}, s15, v{VL16}")
        for a in range(1, 4):
            for r in range(4):
                p(f"ds_write_b128 v{VX}, {vr(ACC+16*a+4*r,4)} offset:{(a-1)*4096 + r*1024}")

    def ssync(k):
        p(f"v_mov_b32 v{WF+1}, {CNT_S0 + 4*k}\nv_mov_b32 v{WF+2}, 1")
        p(f"s_mov_b64 exec, 1\ns_waitcnt lgkmcnt(0)\nds_add_u32 v{WF+1}, v{WF+2}\ns_mov_b64 exec, -1")
        lds_spin(p, f"L_ss{k}", f"v{WF+1}", WF, "4", 71)

    def recv():
        for a in range(1, 4):
            p(f"s_xor_b32 s3, s4, {a}\ns_lshl_b32 s3, s3, 14\ns_add_u32 s3, s3, {PRIV + (a-1)*4096}\nv_add_u32 v{VX}, s3, v{VL16}")
            for r in range(4):
                p(f"ds_read_b128 {vr(ACC+16*a+4*r,4)}, v{VX} offset:{r*1024}")

    def addup():
        for a in range(1, 4):
            p(f"s_waitcnt lgkmcnt({4*(3-a)})")
            for r in range(16):
                p(f"v_add_f32 v{ACC+r}, v{ACC+r}, v{ACC+16*a+r}")
    d7 = ENV("SD7")
    if d7: stamp(p, 1)
    p(f"""
    v_mov_b32 v{WF+1}, {CNT}
    v_mov_b32 v{WF+2}, 1
    s_lshl_b32 s3, s4, 2
    v_mov_b32 v{WF+3}, s3
    v_add_u32 v{WF+3}, {CNT_S0 + 4}, v{WF+3}
    v_xor_b32 v{WF+4}, 8, v{WF+3}
    v_xor_b32 v{WF+5}, 4, v{WF+3}
    s_and_b32 s3, s4, 1
    s_lshl_b32 s3, s3, 13
    s_cmp_lt_u32 s4, 2
    s_cselect_b32 s14, 0, {SLOT}
    s_add_u32 s3, s3, s14
    s_add_u32 s3, s3, {2*SLOT}
    v_add_u32 v{VX}, s3, v{VL16}                    ; area(kq)
    v_xor_b32 v{VD}, {SLOT}, v{VX}                  ; area(kq^2)
    """)
    lds_spin(p, "L_g0", f"v{WF+1} offset:48", WF, "4", 71)
    lds_spin(p, "L_g1", f"v{WF+1} offset:176", WF, "4", 71)
    for i in range(8):
        p(f"ds_write_b128 v{VX}, {vr(ACC+32+4*i,4)} offset:{i*1024}")
    p(f"s_waitcnt lgkmcnt(0)\nds_write_b32 v{WF+3}, v{WF+2}")
    lds_spin(p, "L_h1", f"v{WF+4}", WF, "1", 71)
    if d7: stamp(p, 2)
    for i in (4, 5, 6, 7, 0, 1, 2, 3):
        p(f"ds_read_b128 {vr(ACC+32+4*i,4)}, v{VD} offset:{i*1024}")
    p("s_waitcnt lgkmcnt(4)")
    for r in range(16):
        p(f"v_add_f32 v{ACC+16+r}, v{ACC+16+r}, v{ACC+48+r}")
    p("s_waitcnt lgkmcnt(0)")
    for i in range(4):
        p(f"ds_write_b128 v{VD}, {vr(ACC+16+4*i,4)} offset:{i*1024}")
    for r in range(16):
        p(f"v_add_f32 v{ACC+r}, v{ACC+r}, v{ACC+32+r}")
    p(f"v_xor_b32 v{VX}, 8192, v{VX}\ns_waitcnt lgkmcnt(0)\nds_write_b32 v{WF+3}, v{WF+2} offset:16")
    if d7: stamp(p, 3)
    lds_spin(p, "L_h2", f"v{WF+5} offset:16", WF, "1", 71)
    p(f"v_xor_b32 v{VX}, {SLOT}, v{VX}")
    for i in range(4):
        p(f"ds_read_b128 {vr(ACC+16+4*i,4)}, v{VX} offset:{i*1024}")
    for i in range(4):
        p(f"s_waitcnt lgkmcnt({3-i})")
        for r in range(4 * i, 4 * i + 4):
            p(f"v_add_f32 v{ACC+r}, v{ACC+r}, v{ACC+16+r}")
    if d7: stamp(p, 4)
    T = ACC + 16
    p(f"s_mov_b32 s3, {f32(-LOG2E)}")
    for i in range(16):
        p(f"v_mul_f32 v{T+i}, s3, v{ACC+i}")
    for i in range(16):
        p(f"v_exp_f32 v{T+i}, v{T+i}")
    for i in range(16):
        p(f"v_add_f32 v{T+i}, 1.0, v{T+i}")
    for i in range(16):
        p(f"v_rcp_f32 v{T+i}, v{T+i}")
    GREG = [GR + i for i in range(16)]
    for i in range(16):
        p(f"v_mul_f32 v{GREG[i]}, v{ACC+i}, v{T+i}")
    if ENV("DUMP_G"):
        for i in range(8):
            p(f"v_cvt_pk_bf16_f32 v{T+i}, v{GREG[2*i]}, v{GREG[2*i+1]}")
        p(f"""
        s_mul_i32 s14, s57, {14*2048}
        s_lshl_b32 s3, s10, 1
        s_and_b32 s63, s4, 1
        s_add_u32 s3, s3, s63
        s_lshl_b32 s3, s3, 11
        s_add_u32 s14, s14, s3
        s_add_u32 s14, s14, {G_OFF}
        buffer_store_dwordx4 {vr(T,4)}, v{VL16}, s[40:43], s14 offen
        buffer_store_dwordx4 {vr(T+4,4)}, v{VL16}, s[40:43], s14 offen offset:1024
        """)
    p(f"""
    v_bfe_u32 v{WF+4}, v{VL16}, 4, 2
    v_lshlrev_b32 v{VX}, 7, v{WF+4}
    v_bfe_u32 v{WF}, v{VL16}, 6, 1
    v_lshl_add_u32 v{VX}, v{WF}, 11, v{VX}
    s_lshl_b32 s14, s9, 12
    s_lshl_b32 s3, s4, 9
    s_add_u32 s14, s14, s3
    s_add_u32 s14, s14, {OFL}
    s_mov_b32 s71, {SPIN_MAX}
    s_lshl_b32 s3, s4, 13
    s_add_u32 s3, s3, {O_OFF}
    s_lshl_b32 s60, s57, 15
    s_add_u32 s60, s60, s3
    s_lshl_b32 s61, s58, 15
    s_add_u32 s61, s61, s3
    s_add_u32 s62, s60, 4096
    s_add_u32 s63, s61, 4096
    v_lshlrev_b32 v{WF+4}, 3, v{WF+4}
    v_add_u32 v{WF+4}, {CNT_COMB}, v{WF+4}
    """)
    stamp(p, 5)
    p(f"s_setprio {ENV('DPRIO3', 0)}")
    p.label("L_op")
    p(f"""
    buffer_load_dwordx2 {vr(WF,2)}, v{VX}, s[40:43], s14 offen sc1
    s_sub_u32 s71, s71, 1
    s_waitcnt vmcnt(0)
    v_cmp_eq_u64 vcc, {vr(WF,2)}, {vr(TGV,2)}
    s_cmp_eq_u32 s71, 0
    s_cbranch_scc1 L_op_x
    s_cmp_eq_u64 vcc, -1
    s_cbranch_scc1 L_op_x
    ds_read_b32 v{WF+2}, v{WF+4}
    s_waitcnt lgkmcnt(0)
    v_cmp_eq_u32 vcc, 2, v{WF+2}
    s_cmp_eq_u64 vcc, -1
    s_cbranch_scc1 L_op
    s_sleep {ENV("OSLEEP", 2)}
    s_branch L_op
    L_op_x:
    """)
    stamp(p, 6)
    vm = VM(p)
    OB = HB
    oid = {}

    def oload(kk, r):
        sreg = (("s60", "s61"), ("s62", "s63"))[kk >> 2][r]
        slot = (2 * kk + r) % 14
        oid[(kk, r)] = vm.op(f"buffer_load_dwordx4 {vr(OB+4*slot,4)}, v{VL16}, s[40:43], {sreg} offen offset:{(kk&3)*1024} sc1")
    for kk in range(7):
        oload(kk, 0); oload(kk, 1)

    def wrd(kk):
        hh, s_ = kk >> 1, kk & 1
        row = 28 * hh - 4 * (hh & 1) + 16 * s_
        trd(WF + 8 * (kk & 1), (row >> 3) * 1024)
    wrd(0)
    for kk in range(8):
        if kk + 1 < 8:
            wrd(kk + 1)
        wb = WF + 8 * (kk & 1)
        p(f"s_waitcnt lgkmcnt({4 if kk + 1 < 8 else 0})")
        for a in range(4):
            vm.need(oid[(kk, a >> 1)])
            ac = vr(ACC + 16 * a, 16)
            p(f"{MFMA} {ac}, {vr(wb+4*(a&1),4)}, {vr(OB+4*((2*kk+(a>>1))%14),4)}, {'0' if kk == 0 else ac}")
        if kk == 0:
            oload(7, 0); oload(7, 1)
    if ENV("SD8"): stamp(p, 1)
    send()
    srd(p, 44, P_OUT, 2048 * 896)
    XE = HB
    for i in range(8):
        p(f"v_lshlrev_b32 v{XE+2*i}, 16, v{XF+i}")
        p(f"v_and_b32 v{XE+2*i+1}, 0xffff0000, v{XF+i}")
    ssync(0)
    if ENV("SD8"): stamp(p, 2)
    recv()
    addup()
    if ENV("SD8"): stamp(p, 3)
    for i in range(16):
        p(f"v_fma_f32 v{ACC+i}, v{ACC+i}, v{GREG[i]}, v{XE+i}")
    pack16(p, WF, ACC)
    for g4 in range(4):
        p(f"buffer_store_dwordx2 {vr(WF+2*g4,2)}, v{VXO}, s[44:47], 0 offen offset:{16*g4}")
    p.label("L_s_end")
    endpgm(p)


def main():
    ref = open("cdna_kernels/" + NAME + ".s.ref").read().split("\n")
    head = [l for l in ref if l.startswith(";") and "@launch" not in l and "Override launch" not in l and "grid=ceil" not in l]
    p = Prog()
    gen(p)
    body = p.finalize()
    out = head[:]
    out.append("; @launch grid=(256,1,1) block=(768,1,1) lds=163840")
    out.append('.amdgcn_target "amdgcn-amd-amdhsa--gfx950"\n.text')
    out.append(body)
    out.append(f""".section .rodata,"a"
.p2align 6
.amdhsa_kernel {KN}
  .amdhsa_next_free_vgpr 168
  .amdhsa_next_free_sgpr 100
  .amdhsa_accum_offset 168
  .amdhsa_group_segment_fixed_size 0
  .amdhsa_kernarg_size 80
  .amdhsa_user_sgpr_count 2
  .amdhsa_user_sgpr_kernarg_segment_ptr 1
  .amdhsa_system_sgpr_workgroup_id_x 1
.end_amdhsa_kernel""")
    if ENV("PLAINLD"):
        import re
        out = [re.sub(r"(buffer_load_dwordx4 .*) sc1( lds)?$", r"\1\2", l, flags=re.M) if "s[44:47], s6" not in l else l for l in "\n".join(out).split("\n")]
    path = sys.argv[1] if len(sys.argv) > 1 else "cdna_kernels/" + NAME + ".s"
    open(path, "w").write("\n".join(out) + "\n")
    print("wrote", path, "nops inserted:", p.total_nops)


main()
```

```python
import math, struct, sys, os
from asmlib import Prog

NAME = "recurrent_scan__mha_block__geglu_ffn__prompt"
KN = NAME + "_kernel"
MB = 1 << 20
QF_OFF, KV_OFF, H_OFF, O_OFF, G_OFF = 0, 2 * MB, 6 * MB, 13 * MB, 15 * MB
FLAG_OFF = 17 * MB
QKVF, HFL, OFL = FLAG_OFF, FLAG_OFF + 65536, FLAG_OFF + 131072
WS_USED = 18 * MB
LOG2E = math.log2(math.e)
QSCALE = LOG2E / math.sqrt(28.0)
SPIN_MAX = 1 << 12
ENV = os.environ.get
STAMPS = bool(ENV("STAMPS"))
STAMP_OFF = 24 * MB
MFMA = "v_mfma_f32_32x32x16_bf16"
P_X, P_WQKV, P_WO, P_WG, P_WU, P_WD, P_OUT, P_DBG, P_WS = 16, 18, 20, 24, 26, 28, 30, 32, 34
SLOT = 16384
EXB = 8 * SLOT
TAGL = 6 * SLOT
QL = 3 * SLOT + 8192
NST = 19


def phys(c):
    return (8, 9, 7)[c] if c < 3 else (c - 3) % 6
PRIV = 6 * SLOT
CNT = PRIV + 15360
CNT_COMB, CNT_S0 = CNT + 64, CNT + 220
KVS = 32768
CNT_GO = CNT + 96
CNT_H = CNT + 100


def f32(x):
    return "0x%08x" % struct.unpack("<I", struct.pack("<f", x))[0]


def vr(b, n=1):
    return f"v{b}" if n == 1 else f"v[{b}:{b+n-1}]"


def srd(p, d, base, nrec, add=None):
    if add is None:
        p(f"s_mov_b32 s{d}, s{base}\ns_mov_b32 s{d+1}, s{base+1}")
    else:
        p(f"s_add_u32 s{d}, s{base}, {add}\ns_addc_u32 s{d+1}, s{base+1}, 0")
    p(f"s_mov_b32 s{d+2}, {nrec}\ns_mov_b32 s{d+3}, 0x20000")


def pack16(p, dst, src):
    for i in range(8):
        p(f"v_cvt_pk_bf16_f32 v{dst+i}, v{src+2*i}, v{src+2*i+1}")


def stamp_txt(i):
    if STAMPS and not (ENV("CB") and i < 7):
        assert i < 8
        return [f"{ENV('STAMP_INS', 's_memrealtime')} s[{80+2*i}:{81+2*i}]"]
    return []


def stamp(p, i):
    for x in stamp_txt(i):
        p(x)


TL = bool(ENV("TL"))


def tl(p, idx):
    if TL:
        p(f"{ENV('STAMP_INS', 's_memrealtime')} s[94:95]\ns_waitcnt lgkmcnt(0)\nv_writelane_b32 v60, s94, {idx}")


def tl_dump(p):
    if TL:
        p(f"""
        s_lshl_b32 s94, s2, 4
        s_add_u32 s94, s94, s59
        s_lshl_b32 s94, s94, 8
        s_add_u32 s94, s94, {STAMP_OFF + MB}
        s_mov_b32 s96, s{P_WS}
        s_mov_b32 s97, s{P_WS+1}
        s_mov_b32 s98, {32*MB}
        s_mov_b32 s99, 0x20000
        v_lshlrev_b32 v61, 2, v0
        buffer_store_dword v60, v61, s[96:99], s94 offen
        """)


def endpgm(p):
    if STAMPS and ENV("DBGMAX"):
        stamp(p, 7)
        p(f"""
        s_mov_b64 exec, -1
        s_mov_b32 s96, s{P_DBG}
        s_mov_b32 s97, s{P_DBG+1}
        s_mov_b32 s98, 256
        s_mov_b32 s99, 0x20000
        buffer_load_dword v10, off, s[96:99], 0 sc1
        s_waitcnt vmcnt(0) lgkmcnt(0)
        """)
        for i in range(8):
            p(f"v_writelane_b32 v8, s{80+2*((i+1) % 8)}, {i}")
        p(f"""
        v_cmp_ne_u32 vcc, 0, v8
        v_sub_u32 v8, v8, v10
        v_add_u32 v8, 1000, v8
        v_cndmask_b32 v8, 0, v8, vcc
        s_cmp_ge_u32 s59, 8
        s_cselect_b32 s4, 36, 8
        v_mbcnt_lo_u32_b32 v9, -1, 0
        v_lshlrev_b32 v9, 2, v9
        s_mov_b64 exec, 0x7f
        buffer_atomic_umax v8, v9, s[96:99], s4 offen
        s_waitcnt vmcnt(0)
        """)
    elif STAMPS:
        stamp(p, 7)
        p("s_waitcnt vmcnt(0) lgkmcnt(0)\ns_mov_b64 exec, -1")
        for i in range(8):
            p(f"v_writelane_b32 v8, s{80+2*i}, {i}")
        p(f"""
        s_lshl_b32 s4, s2, 4
        s_add_u32 s4, s4, s59
        s_lshl_b32 s4, s4, 5
        s_add_u32 s4, s4, {STAMP_OFF}
        s_mov_b32 s96, s{P_WS}
        s_mov_b32 s97, s{P_WS+1}
        s_mov_b32 s98, {32*MB}
        s_mov_b32 s99, 0x20000
        v_mbcnt_lo_u32_b32 v9, -1, 0
        v_lshlrev_b32 v9, 2, v9
        s_mov_b64 exec, 0xff
        buffer_store_dword v8, v9, s[96:99], s4 offen
        """)
    p("s_endpgm")


class DS:
    def __init__(self, pending):
        self.n, self.done = pending, 0

    def op(self):
        self.n += 1
        return self.n - 1

    def need(self, i):
        if i < self.done:
            return []
        self.done = i + 1
        return [f"s_waitcnt lgkmcnt({min(15, self.n - 1 - i)})"]


class VM:
    def __init__(self, p):
        self.p, self.n, self.done = p, 0, 0

    def op(self, txt):
        self.p(txt)
        self.n += 1
        return self.n - 1

    def need(self, i):
        if i is None or i < self.done:
            return
        self.done = i + 1
        k = self.n - 1 - i
        assert k <= 63
        self.p(f"s_waitcnt vmcnt({k})")


def cost(ins):
    c = 0
    for l in ins.strip().split("\n"):
        m = l.strip().split()[0]
        c += 8 if m.startswith(("v_exp", "v_rcp", "v_rsq", "ds_")) else 16 if m.startswith("buffer_") else 4
    return c


def lds_spin(p, label, addr_v, tmp, want, sreg, wide=False):
    p(f"s_mov_b32 s{sreg}, {SPIN_MAX*8}")
    p.label(label)
    if wide:
        p(f"ds_read_b64 {vr(tmp,2)}, {addr_v}\ns_sub_u32 s{sreg}, s{sreg}, 1\ns_waitcnt lgkmcnt(0)\nv_cmp_ne_u64 vcc, {want}, {vr(tmp,2)}")
    else:
        p(f"ds_read_b32 v{tmp}, {addr_v}\ns_sub_u32 s{sreg}, s{sreg}, 1\ns_waitcnt lgkmcnt(0)\nv_cmp_ne_u32 vcc, {want}, v{tmp}")
    p(f"""
    s_cmp_eq_u32 s{sreg}, 0
    s_cbranch_scc1 {label}_x
    s_cmp_eq_u64 vcc, 0
    s_cbranch_scc1 {label}_x
    s_sleep 1
    s_branch {label}
    {label}_x:
    """)


def gen(p):
    p(f".globl {KN}\n.p2align 8\n.type {KN},@function")
    p.label(KN)
    S_W, S_RG, S_HF, S_RB, S_RT = 59, 60, 61, 62, 63
    p(f"""
    s_cmp_ge_u32 s2, 256
    s_cbranch_scc1 L_exit
    s_load_dwordx16 s[16:31], s[0:1], 0
    s_load_dwordx4 s[32:35], s[0:1], 64
    """)
    if STAMPS:
        for i in range(16):
            p(f"s_mov_b32 s{80+i}, 0")
        stamp(p, 0)
    p(f"""
    v_lshrrev_b32 v2, 6, v0
    v_and_b32 v0, 63, v0
    v_readfirstlane_b32 s{S_W}, v2
    s_and_b32 s5, s2, 7                 ; xcd
    s_lshr_b32 s6, s2, 3                ; j
    s_and_b32 s7, s5, 3
    s_lshl_b32 s7, s7, 2
    s_and_b32 s8, s6, 3
    s_add_u32 s{S_RB}, s7, s8           ; rb = 4*(x&3) + (j&3)
    s_lshr_b32 s7, s5, 2
    s_lshl_b32 s7, s7, 3
    s_lshr_b32 s8, s6, 2
    s_add_u32 s7, s7, s8                ; cg = 8*(x>>2) + (j>>2)
    s_and_b32 s8, s7, 1
    s_lshr_b32 s7, s7, 1
    s_cmp_ge_u32 s{S_W}, 8
    s_cbranch_scc1 L_service
    """)
    gen_c(p, S_W, S_RG, S_HF, S_RB, S_RT)
    p.label("L_service")
    gen_s(p, S_W)
    p.label("L_exit")
    p("s_endpgm")


def gen_c(p, S_W, S_RG, S_HF, S_RB, S_RT):
    VL16, VA, VB, VTRL, VEX, VEXP, VST = 1, 2, 3, 4, 5, 6, 7
    X, SA, SB, G, WF, T = 8, 64, 96, 128, 144, 160
    p(f"""
    s_and_b32 s{S_RG}, s{S_W}, 3
    s_lshr_b32 s{S_HF}, s{S_W}, 2
    s_xor_b32 s{S_HF}, s{S_HF}, s8
    v_lshrrev_b32 v12, 2, v0            ; r16
    v_lshrrev_b32 v13, 4, v0            ; r16>>2
    v_xor_b32 v13, v13, v0
    v_and_b32 v13, 3, v13
    v_mul_u32_u24 v12, 896, v12
    v_lshl_add_u32 v12, v13, 4, v12
    s_lshl_b32 s9, s{S_RB}, 2
    s_add_u32 s{S_RT}, s9, s{S_RG}
    s_mul_i32 s9, s{S_RT}, {32*896}
    s_mul_i32 s10, s{S_HF}, 448
    s_add_u32 s9, s9, s10
    v_add_u32 v12, s9, v12
    s_mul_i32 s10, s{S_W}, 14336
    s_mov_b32 s11, {16*896}
    s_waitcnt lgkmcnt(0)
    """)
    srd(p, 44, P_DBG, 256)
    p(f"""
    s_add_u32 s12, s2, s{S_W}
    s_cmp_lg_u32 s12, 0
    s_cbranch_scc1 L_notagw
    s_memrealtime s[12:13]
    s_waitcnt lgkmcnt(0)
    s_or_b32 s12, s12, 1
    v_mov_b32 v16, s12
    v_mov_b32 v17, s13
    s_mov_b64 exec, 1
    buffer_store_dwordx2 v[16:17], off, s[44:47], 0 sc1
    s_mov_b64 exec, -1
    L_notagw:
    """)
    srd(p, 36, P_X, 2048 * 896)
    for cb in range(7):
        for rh in range(2):
            p(f"s_add_u32 m0, s10, {(rh*7+cb)*1024 - 64*cb}")
            p(f"buffer_load_dwordx4 v12, s[36:39], {'s11' if rh else '0'} offen offset:{64*cb} lds")
    if ENV("B0"):
        p("s_barrier")
    srd(p, 40, P_WS, WS_USED)
    VXA, VXB, SUM, SQ, ONES, RS, NM, TG = T, T + 1, T + 2, T + 3, T + 4, G, G + 1, G + 2
    U = SB
    STAT = 7 * SLOT
    c0 = -2.0 * math.sqrt(2.0 / math.pi) * LOG2E
    c1 = c0 * 0.044715
    al = -((-c1) ** (1.0 / 3.0))
    p(f"""
    v_lshlrev_b32 v{VL16}, 4, v0
    s_lshl_b32 s3, s{S_HF}, 4
    v_xor_b32 v15, s3, v0
    v_lshlrev_b32 v{VST}, 4, v15
    s_lshl_b32 s12, s{S_HF}, 10
    v_add_u32 v{VST}, s12, v{VST}
    v_lshrrev_b32 v13, 5, v0
    v_lshlrev_b32 v13, 11, v13
    v_bfe_u32 v14, v0, 2, 2
    v_lshl_add_u32 v13, v14, 6, v13
    v_bfe_u32 v14, v15, 4, 1
    v_lshl_add_u32 v13, v14, 5, v13
    v_and_b32 v14, 3, v0
    v_lshl_add_u32 v13, v14, 3, v13
    s_lshl_b32 s12, s{S_HF}, 10
    v_add_u32 v{VTRL}, s12, v13
    v_add_u32 v{VA}, {8*SLOT}, v{VTRL}
    v_add_u32 v{VB}, {9*SLOT}, v{VTRL}
    s_lshl_b32 s12, s{S_W}, 12
    s_add_u32 s12, s12, {EXB}
    v_add_u32 v{VEX}, s12, v{VL16}
    v_xor_b32 v{VEXP}, 0x4100, v{VEX}
    v_bfe_u32 v13, v15, 4, 1
    v_mul_u32_u24 v13, 7168, v13
    v_and_b32 v14, 15, v0
    v_lshl_add_u32 v13, v14, 6, v13
    v_lshrrev_b32 v14, 5, v0            ; h
    v_bfe_u32 v15, v0, 2, 2             ; swz
    v_xor_b32 v14, v14, v15
    v_lshl_add_u32 v{VXA}, v14, 4, v13
    v_xor_b32 v14, 2, v14
    v_lshl_add_u32 v{VXB}, v14, 4, v13
    v_add_u32 v{VXA}, s10, v{VXA}
    v_add_u32 v{VXB}, s10, v{VXB}
    v_mov_b32 v{SUM}, 0
    v_mov_b32 v{SQ}, 0
    v_mov_b32 v{ONES}, 0x3f803f80
    s_mov_b32 s66, 0xffff0000
    s_mov_b32 s64, {f32(al)}
    s_mov_b32 s65, {f32(c0 / c1 * al * al)}
    v_and_b32 v{U+2}, 31, v0
    v_lshlrev_b32 v{U+2}, 3, v{U+2}
    s_lshl_b32 s12, s{S_W}, 8
    s_add_u32 s12, s12, {STAT}
    v_add_u32 v{U+3}, s12, v{U+2}
    v_xor_b32 v{U+2}, {1024+128}, v{U+3}
    """)
    p(f"""
    s_cmp_eq_u32 s8, 1
    s_cselect_b32 s69, {f32(QSCALE)}, 1.0
    s_cselect_b32 s4, 18, 19
    s_cselect_b32 s15, {QF_OFF}, {KV_OFF}
    s_cselect_b32 s73, 2048, 0
    s_cselect_b32 s14, 0, 4
    s_lshl_b32 s67, s7, s4
    s_sub_u32 s4, s4, 1
    s_lshl_b32 s68, 1, s4
    s_sub_u32 s4, s4, 6
    s_lshl_b32 s4, s{S_RT}, s4
    s_add_u32 s67, s67, s4
    s_add_u32 s67, s67, s15
    s_add_u32 s68, s68, s67
    s_add_u32 s72, s67, 2048
    s_add_u32 s75, s68, 2048
    s_lshl_b32 s12, s7, 12
    s_lshl_b32 s13, s{S_RB}, 7
    s_add_u32 s12, s12, s13
    s_add_u32 s12, s12, {QKVF}
    s_add_u32 s73, s73, s12             ; flag of this workgroup's q or k,v result
    s_mul_i32 s12, s7, 6
    s_add_u32 s14, s14, s12             ; first f tile
    s_add_u32 s58, s7, 48
    s_sub_u32 s58, s58, s14
    s_sub_u32 s58, s58, 2               ; from the tile after the first quad to the single tile (type A)
    s_lshl_b32 s70, s14, 11
    s_mul_i32 s4, s{S_RT}, 114688
    s_add_u32 s70, s70, s4
    s_add_u32 s70, s70, {H_OFF}
    s_lshl_b32 s71, s{S_RB}, 12
    s_lshl_b32 s4, s7, 9
    s_add_u32 s71, s71, s4
    s_xor_b32 s4, s8, 1
    s_lshl_b32 s4, s4, 7
    s_add_u32 s71, s71, s4
    s_add_u32 s71, s71, {HFL}           ; units: 0 first quad of B, 1 quad of A, 2 second quad of B, 3 single tile of A
    ; pad masks: even head pads n=28..31 (hf=1 waves), odd head pads n=0..3 (hf=0 waves)
    s_cmp_eq_u32 s{S_HF}, 1
    s_mov_b32 s52, 0
    s_cselect_b32 s53, -1, 0            ; q/k even head: packed regs 2,3
    s_cselect_b32 s54, 0, -1            ; q/k odd head: packed regs 0,1
    s_mov_b32 s55, 0
    s_cselect_b32 s56, 0xf000, 0xf0000000 {';'} v even head: zero lanes
    """.replace("s_cselect_b32 s56, 0xf000, 0xf0000000 ;", "s_mov_b32 s56, 0xf0000000\n    s_cselect_b32 s56, 0xf000, s56 ;") + f"""
    s_mov_b32 s57, s56
    s_cselect_b32 s48, 0xf0000, 15      ; v odd head: zero lanes
    s_mov_b32 s49, s48
    s_lshr_b32 s50, s56, 3
    s_and_b32 s50, s50, s56             ; lowest lane of each group: the ones column
    s_mov_b32 s51, s50
    s_lshr_b32 s46, s48, 3
    s_and_b32 s46, s46, s48
    s_mov_b32 s47, s46
    """.replace("s46", "s78").replace("s47", "s79"))
    stamp(p, 1)

    def stat(cb):
        for d in range(8):
            r = X + 8 * cb + d
            p(f"v_dot2c_f32_bf16 v{SUM}, v{r}, v{ONES}")
            p(f"v_dot2c_f32_bf16 v{SQ}, v{r}, v{r}")
    for cb in range(7):
        p(f"s_waitcnt vmcnt({12 - 2*cb})")
        p(f"ds_read_b128 {vr(X+8*cb,4)}, v{VXA} offset:{cb*1024}")
        p(f"ds_read_b128 {vr(X+8*cb+4,4)}, v{VXB} offset:{cb*1024}")
        if cb:
            p("s_waitcnt lgkmcnt(2)")
            stat(cb - 1)
    p("s_waitcnt lgkmcnt(0)")
    stat(6)
    p(f"""
    v_mov_b32 v{U}, v{SUM}
    v_mov_b32 v{U+1}, v{SQ}
    v_permlane32_swap_b32 v{SUM}, v{U}
    v_permlane32_swap_b32 v{SQ}, v{U+1}
    v_add_f32 v{SUM}, v{SUM}, v{U}
    v_add_f32 v{SQ}, v{SQ}, v{U+1}
    ds_write_b64 v{U+3}, {vr(SUM,2)}
    s_waitcnt lgkmcnt(0)
    s_barrier
    ds_read_b64 {vr(U,2)}, v{U+2}
    s_waitcnt lgkmcnt(0)
    s_barrier
    v_add_f32 v{SUM}, v{SUM}, v{U}
    v_add_f32 v{SQ}, v{SQ}, v{U+1}
    v_mul_f32 v{SUM}, {f32(1.0/448)}, v{SUM}        ; mean
    v_mul_f32 v{SQ}, {f32(1.0/448)}, v{SQ}
    v_fma_f32 v{SQ}, -v{SUM}, v{SUM}, v{SQ}         ; var
    v_max_f32 v{SQ}, 0, v{SQ}
    v_add_f32 v{SQ}, {f32(1e-5)}, v{SQ}
    v_rsq_f32 v{RS}, v{SQ}                          ; rstd
    v_mul_f32 v{SUM}, v{SUM}, v{RS}
    v_sub_f32 v{NM}, 0, v{SUM}                      ; -mean*rstd
    """)
    stamp(p, 2)

    def normalise(kl, tb):
        e = []
        for d in range(4):
            e += [f"v_lshlrev_b32 v{tb+2*d}, 16, v{X+4*kl+d}", f"v_and_b32 v{tb+2*d+1}, s66, v{X+4*kl+d}"]
        e += [f"v_fma_f32 v{tb+i}, v{tb+i}, v{RS}, v{NM}" for i in range(8)]
        e += [f"v_cvt_pk_bf16_f32 v{X+4*kl+d}, v{tb+2*d}, v{tb+2*d+1}" for d in range(4)]
        return e
    NPRE = int(ENV("NPRE", 2))
    for kl in range(NPRE):
        for i in normalise(kl, U + 8 * kl):
            p(i)
    p("s_barrier")
    NB = 4

    def st(r, sreg, off=0):
        return f"buffer_store_dwordx4 {vr(r,4)}, v{VST}, s[40:43], s{sreg} offen{' offset:%d' % off if off else ''} sc1"

    fl_n = [0]

    def flag0(sreg):
        fl_n[0] += 1
        return (f"s_cmp_lg_u32 s{S_W}, 0\ns_cbranch_scc1 L_fl{fl_n[0]}\ns_mov_b64 exec, 1\n"
                f"buffer_store_dwordx2 v[0:1], off, s[40:43], s{sreg} sc1\ns_mov_b64 exec, -1\nL_fl{fl_n[0]}:")

    def pack8(a):
        return [f"v_cvt_pk_bf16_f32 v{a+i}, v{a+2*i}, v{a+2*i+1}" for i in range(4)]

    def epi_qk(h0, h1):
        e = []
        for t, a in enumerate((h0, h1)):
            e += [f"v_mul_f32 v{a+i}, s69, v{a+i}" for i in range(8)] + pack8(a)
            z = a + 2 if t == 0 else a
            e += [f"s_mov_b64 exec, s[{52+2*t}:{53+2*t}]\nv_mov_b32 v{z}, 0\nv_mov_b32 v{z+1}, 0\ns_mov_b64 exec, -1"]
            e.append(st(a, 67 + t))
        return e

    def epi_v(h0, h1):
        e = []
        for t, a in enumerate((h0, h1)):
            zm, om = ((56, 50), (48, 78))[t]
            e += pack8(a)
            e += [f"s_mov_b64 exec, s[{zm}:{zm+1}]\n" + "".join(f"v_mov_b32 v{a+i}, 0\n" for i in range(4))
                  + f"s_mov_b64 exec, s[{om}:{om+1}]\n"
                  + "".join(f"v_mov_b32 v{a+i}, 0x3f803f80\n" for i in range(4)) + "s_mov_b64 exec, -1"]
            e.append(st(a, (72, 75)[t]))
        return e

    def gelu(g, qs):
        e = []
        for q in qs:
            r = g[4 * q:4 * q + 4]
            t = [T + i for i in range(4)]
            u = [T + 4 + i for i in range(4)]
            e += [f"v_mul_f32 v{t[i]}, s64, v{r[i]}" for i in range(4)]
            e += [f"v_fma_f32 v{u[i]}, v{t[i]}, v{t[i]}, s65" for i in range(4)]
            e += [f"v_mul_f32 v{t[i]}, v{t[i]}, v{u[i]}" for i in range(4)]
            e += [f"v_exp_f32 v{t[i]}, v{t[i]}" for i in range(4)]
            e += [f"v_add_f32 v{t[i]}, 1.0, v{t[i]}" for i in range(4)]
            e += [f"v_rcp_f32 v{t[i]}, v{t[i]}" for i in range(4)]
            e += [f"v_mul_f32 v{r[i]}, v{r[i]}, v{t[i]}" for i in range(4)]
        return e
    GG = [G + i for i in range(16)]

    def prod2(acc):
        e = []
        for t in range(2):
            a = acc + 16 * t
            e += [f"v_mul_f32 v{a+i}, v{a+i}, v{G+8*t+i}" for i in range(8)] + pack8(a)
            e.append(st(a, 70, 2048 * t))
        return e + ["s_add_u32 s70, s70, 4096"]

    def epi_s(acc):
        g = [acc + i for i in range(8)]
        e = gelu(g, [0, 1])
        e += [f"v_mul_f32 v{g[i]}, v{g[i]}, v{acc+16+i}" for i in range(8)] + pack8(acc)
        return e + [st(acc, 70)]

    tag_ld = [f"s_cmp_lg_u32 s{S_W}, 7\ns_cbranch_scc1 L_tl_@\n"
              f"buffer_load_dwordx2 {vr(TG,2)}, off, s[44:47], 0 sc1\nL_tl_@:"]
    tag_pub = [f"s_cmp_lg_u32 s{S_W}, 7\ns_cbranch_scc1 L_tp_@\ns_mov_b32 s12, {SPIN_MAX}\nL_tq_@:\ns_waitcnt vmcnt(0)\n"
               f"v_cmp_ne_u32 vcc, 0, v{TG}\ns_sub_u32 s12, s12, 1\ns_cbranch_scc1 L_tr_@\ns_cmp_lg_u64 vcc, 0\ns_cbranch_scc1 L_tr_@\n"
               f"buffer_load_dwordx2 {vr(TG,2)}, off, s[44:47], 0 sc1\ns_branch L_tq_@\nL_tr_@:\n"
               f"v_mov_b32 v{TG+2}, {TAGL}\nds_write_b64 v{TG+2}, {vr(TG,2)}\n"
               "s_waitcnt lgkmcnt(0)\nL_tp_@:"]
    XW, XR = [2, 3, 4, 5], [7, 8, 9, 10]
    xreg = lambda acc, i: acc + 16 * (i >> 1) + 8 + 4 * (i & 1)

    def stream(kind, late):
        N = 140
        types = "VKGUS" if kind == "A" else "QGUGU"
        G_ = []
        for kl in range(14):
            for ps in range(2):
                for t in range(2):
                    G_.append((kl >> 1, ps * 8192 + (kl & 1) * 4096 + t * 512, kl, (SA, SB)[ps] + 16 * t, kl == 0, types[ps] == "V"))
        acc = {2: SB, 3: SA, 4: SB}
        for ps in range(2, 5):
            for j in range(28):
                G_.append((7 + 4 * (ps - 2) + (j >> 3), ((j >> 1) & 3) * 4096 + (j & 1) * (1024 if types[ps] == "S" else 512),
                           j >> 1, acc[ps] + 16 * (j & 1), j < 2, False))
        win = []

        def W(a, b, ins):
            win.append((a, b, ins))
        for kl in range(NPRE, 14):
            W(4 * (kl - NPRE), 4 * (kl - NPRE) + 4, normalise(kl, T))
        W(16, 17, [x.replace("@", kind) for x in tag_ld])
        W(46, 47, [x.replace("@", kind) for x in tag_pub])
        E0 = 14
        pub = {}
        KB = int(ENV("KB", 91))
        if ENV("NOEPI"):
            pass
        elif kind == "A":
            W(56 + E0, 56 + E0 + 5, epi_v(SA, SA + 16))
            W(56 + 19, 56 + 25, epi_qk(G, G + 8))
            pub[KB] = 73
            W(84 + E0, 112 + E0 - 2, gelu(GG, [0, 1, 2, 3]))
            W(112 + E0, 112 + E0 + 8, prod2(SA) + ["s_lshl_b32 s12, s58, 11\ns_add_u32 s70, s70, s12"])
        else:
            W(56 + E0, 56 + E0 + 5, epi_qk(SA, SA + 16))
            W(56 + 19, 84 + E0 - 2, gelu(GG, [0, 1, 2, 3]))
            pub[91] = 73
            W(84 + E0, 84 + E0 + 8, prod2(SB))
            pub[127] = 71
            W(112 + E0, 140, gelu(GG, [0, 1]) + gelu(GG, [2])[:12])
        W(112 + 24 if kind == "A" else 112 + 6, 112 + 27 if kind == "A" else 112 + 12, late)
        per = [[] for _ in range(N)]
        for (a, b, ins) in win:
            tot = sum(cost(i) for i in ins)
            c = 0
            for i in ins:
                g = a + min(b - a - 1, int((c + cost(i) / 2) * (b - a) / tot))
                per[g].append(i)
                c += cost(i)
        ds = DS(0)
        frag = {}
        out = []

        def rd(n):
            c, imm = G_[n][0], G_[n][1]
            b = WF + 4 * (n % NB)
            a = VA if c % 2 == 0 else VB
            out.extend([f"ds_read_b64_tr_b16 {vr(b,2)}, v{a} offset:{imm}", f"ds_read_b64_tr_b16 {vr(b+2,2)}, v{a} offset:{imm+256}"])
            ds.op()
            frag[n] = ds.op()
            if n + 1 < N and G_[n + 1][0] != c and c + 2 < NST:
                if c + 2 == 15 and types[4] == "S":
                    out.append(f"v_bfe_u32 v{a}, v{VTRL}, 11, 1\nv_mul_u32_u24 v{a}, 1536, v{a}\nv_sub_u32 v{VTRL}, v{VTRL}, v{a}\n"
                               f"s_lshl_b32 s12, s{S_HF}, 10\nv_add_u32 v{VTRL}, s12, v{VTRL}")
                out.append(f"v_add_u32 v{a}, {phys(c+2)*SLOT}, v{VTRL}")
        for n in range(NB):
            rd(n)
        wr = None
        rdx, rdy = {}, {}
        for g in range(N):
            c, imm, xf, ac, first, swap = G_[g]
            ps, j = (0, g) if g < 56 else divmod(g, 28)
            if g % 2 == 0:
                out += ds.need(frag[g + 1])
            w, x = vr(WF + 4 * (g % NB), 4), vr(X + 4 * xf, 4)
            a, b = (x, w) if swap else (w, x)
            out.append(f"{MFMA} {vr(ac,16)}, {a}, {b}, {'0' if first else vr(ac,16)}")
            prev = None if ps < 2 else SA if ps == 2 else acc[ps - 1]
            if g + 1 < N and G_[g + 1][0] != c:
                if prev is not None and j == 7:
                    out += ds.need(wr)
                if g in pub:
                    out.append("s_waitcnt vmcnt(0)")
                out.append("s_barrier")
                if g in pub:
                    out.append(flag0(pub[g]))
                if ENV("CB"):
                    bi = c + 1 - int(ENV("CB"))
                    if 0 <= bi < 7:
                        out.append(f"s_memtime s[{80+2*bi}:{81+2*bi}]")
                if g == 47:
                    out.append(f"v_mov_b32 v0, {TAGL}\nds_read_b64 v[0:1], v0")
                    ds.op()
            if g + NB < N:
                rd(g + NB)
            xo = -2 * SLOT if ps == 2 else 0
            if prev is not None and j in XW:
                i = XW.index(j)
                if ps == 2 and i == 0:
                    out.append(f"v_add_u32 v{VEX}, {xo & 0xffffffff}, v{VEX}")
                out.append(f"ds_write_b128 v{VEX}, {vr(xreg(prev, i),4)} offset:{1024*i}")
                wr = ds.op()
                if ps == 2 and i == 3:
                    out.append(f"v_add_u32 v{VEX}, {-xo}, v{VEX}\nv_add_u32 v{VEXP}, {xo & 0xffffffff}, v{VEXP}")
            if prev is not None and j in XR:
                i = XR.index(j)
                out.append(f"ds_read_b128 {vr(xreg(prev, i),4)}, v{VEXP} offset:{1024*i}")
                rdx[i] = ds.op()
                if ps == 2 and i == 3:
                    out.append(f"v_add_u32 v{VEXP}, {-xo}, v{VEXP}")
            if prev is not None and j - 3 in XR:
                i = XR.index(j - 3)
                out += ds.need(rdx[i])
                r = xreg(prev, i)
                d = G + 4 * i if (ps > 2 and types[ps - 1] == "G") else r - 8
                out += [f"v_add_f32 v{d+k}, v{r-8+k}, v{r+k}" for k in range(4)]
            if ps == 2 and 11 <= j < 19:
                i, ph = (j - 11) // 4 * 2 + ((j - 11) & 1), ((j - 11) >> 1) & 1
                if ph == 0:
                    out.append(f"ds_read_b128 {vr(T+4*(i&1),4)}, v{VEXP} offset:{1024*i}")
                    rdy[i] = ds.op()
                else:
                    out += ds.need(rdy[i])
                    out += [f"v_add_f32 v{G+4*i+k}, v{G+4*i+k}, v{T+4*(i&1)+k}" for k in range(4)]
            out += per[g]
            if g == 55:
                out += stamp_txt(3)
                for i in (0, 1, 2, 3):
                    out.append(f"ds_write_b128 v{VEX}, {vr(xreg(SB, i),4)} offset:{1024*i}")
                    ds.op()
                    out += [f"v_mov_b32 v{G+4*i+k}, v{xreg(SB, i)-8+k}" for k in range(4)]
        for i in out:
            p(i)

    Q, KF, VF, S0, S1, PP, O = 8, 16, 24, 32, 48, 64, 72
    VCUR, VNXT, VCO, VKV, VCN, VONE, CK, CKO, VLN, VQA, E3 = 146, 147, 148, 149, 150, 88, 90, 92, 93, 94, 156
    BAL = ENV('BAL', '1') == '1'
    SPR = ENV('SPR', '0') == '1'
    XL = SB
    setup_s = f"""s_lshr_b32 s7, s6, 4
    s_lshl_b32 s8, s5, 1
    s_add_u32 s7, s7, s8                ; head
    s_and_b32 s8, s6, 15                ; q block
    s_lshl_b32 s11, s8, 2
    s_add_u32 s11, s11, s{S_RG}         ; q tile (0..63)
    s_lshl_b32 s9, s7, 18
    s_add_u32 s9, s9, {KV_OFF}
    s_lshl_b32 s46, s{S_HF}, 14         ; kh*16384
    s_add_u32 s47, s46, {2*SLOT}        ; slot of stage i+2
    s_lshl_b32 s13, s{S_RG}, 12         ; rg*4096
    s_add_u32 s14, s46, {2*KVS}         ; source offset of the next fill
    s_lshl_b32 s15, s{S_HF}, 7
    s_add_u32 s15, s15, {CNT}
    s_mov_b32 s48, 1                    ; iteration
    s_mov_b32 s49, 0
    s_mov_b32 s50, 4
    s_mov_b32 s51, 4
    s_lshl_b32 s10, s{S_RG}, 11
    s_add_u32 s10, s10, {QL}
    s_add_u32 s36, s{P_WS}, s9
    s_addc_u32 s37, s{P_WS+1}, 0
    s_mov_b32 s38, 262144""".split("\n")
    setup_s = [setup_s[i] if not setup_s[i].strip().startswith("s_add_u32 s36") else setup_s[i] + "\n" + setup_s[i+1]
               for i in range(len(setup_s)) if not setup_s[i].strip().startswith("s_addc")]

    def start(tag):
        stamp(p, 4)
        p(f"""
        v_and_b32 v{VLN}, 1023, v{VEX}      ; lane*16
        v_mov_b32 v{CKO}, {CNT_GO}
        v_add_u32 v{VQA}, s10, v{VLN}
        v_add_u32 v{VONE}, s46, v{VLN}
        v_add_u32 v{VONE+1}, {4*SLOT}, v{VONE}
        """)
        lds_spin(p, "L_w0" + tag, f"v{CKO}", CK, "4", 52)
        stamp(p, 5)
        p(f"""
        ds_read_b128 {vr(Q,4)}, v{VQA}
        ds_read_b128 {vr(Q+4,4)}, v{VQA} offset:1024
        ds_read_b128 {vr(KF,4)}, v{VONE+1}
        ds_read_b128 {vr(KF+4,4)}, v{VONE+1} offset:1024
        v_mov_b32 v{VNXT}, v{VONE}
        v_mov_b32 v{VCUR}, v{VONE+1}
        v_add_u32 v{VKV}, s13, v{VLN}
        v_mov_b32 v{VCN}, s15
        v_xor_b32 v{VCO}, 128, v{VCN}
        v_mov_b32 v{VONE}, 1
        v_mov_b32 v{VONE+1}, 0
        """)
        for i in range(4):
            p(f"ds_write_b128 v{VEX}, {vr(xreg(XL, i),4)} offset:{1024*i}")
        p(f"""
        s_waitcnt lgkmcnt(4)
        {MFMA} {vr(S0,16)}, {vr(KF,4)}, {vr(Q,4)}, 0
        {MFMA} {vr(S0,16)}, {vr(KF+4,4)}, {vr(Q+4,4)}, {vr(S0,16)}
        ds_read_b128 {vr(KF,4)}, v{VCUR} offset:4096
        ds_read_b128 {vr(KF+4,4)}, v{VCUR} offset:5120
        ds_read_b128 {vr(VF+4,4)}, v{VCUR} offset:3072
        ds_read_b128 {vr(VF,4)}, v{VCUR} offset:2048
        """)
    adds = []
    for i in range(4):
        r = xreg(XL, i)
        adds += [f"v_add_f32 v{r-8+k}, v{r-8+k}, v{r+k}" for k in range(4)]
    xrd = "s_waitcnt lgkmcnt(4)\ns_barrier\n" + "".join(f"ds_read_b128 {vr(xreg(XL, i),4)}, v{VEXP} offset:{1024*i}\n" for i in range(4))

    def fillers(pre, post, pub20=False):
        f = {}
        slots = [(0, 0), (0, 1), (0, 2)]
        for k, sl in enumerate(slots):
            f[sl] = "\n".join(pre[len(pre) * k // 3:len(pre) * (k + 1) // 3])
        f[(0, 0)] = xrd + f[(0, 0)]
        f[(0, 2)] = f[(0, 2)] + f"\ns_waitcnt {'vmcnt(0) ' if pub20 else ''}lgkmcnt(2)\ns_barrier\n"
        if pub20:
            f[(0, 2)] += flag0(71) + "\n"
        post = adds + post
        slots = [(0, 3), (1, 0), (1, 1), (1, 2)]
        for k, sl in enumerate(slots):
            f[sl] = "\n".join(post[len(post) * k // 4:len(post) * (k + 1) // 4])
        return f
    VL16 = VLN
    TT = T
    T_TAG = 0

    def phase(k, mf, rd, sc, sp, extra=""):
        if k % 2 == 0:
            p("s_waitcnt lgkmcnt(2)")
        if mf:
            p(mf)
        p(rd)
        src, pk = (E3, 3) if k == 0 else (sc + 4 * (k - 1), k - 1)
        dst = E3 if k == 3 else sc + 4 * k
        e = [f"v_exp_f32 v{dst+i}, v{sc+4*k+i}" for i in range(4)]
        c = [f"v_cvt_pk_bf16_f32 v{PP+2*pk+i}, v{src+2*i}, v{src+2*i+1}" for i in range(2)]
        for x in (e[0], c[0], e[1], c[1]) if sp is not None else (e[0], e[1]):
            p(x)
        if extra.strip():
            p(extra)
        p(e[2]); p(e[3])

    def ta(u, off):
        return f"v{VCUR} offset:{u*4096+off}" if u < 4 else f"v{VNXT} offset:{(u-4)*4096+off}"

    def body(first, tag, fil=None):
        fil = fil or {}
        T = T_TAG
        sig = f"""
        s_mov_b64 exec, 1
        {'' if (first or ENV('NOSIGW')) else 's_waitcnt vmcnt(0)'}
        ds_add_u64 v{VCN}, {vr(VONE,2)}
        s_mov_b64 exec, -1
        """
        for u in range(4):
            sc, sn = (S0, S1) if u % 2 == 0 else (S1, S0)
            if u == 2:
                p(f"""
                s_waitcnt lgkmcnt(1)
                v_cmp_ne_u64 vcc, s[50:51], {vr(CK,2)}
                s_add_u32 m0, s47, s13
                s_cmp_lg_u64 vcc, 0
                s_cbranch_scc1 L_a_spin{tag}
                L_a_go{tag}:
                """)
                if BAL:
                    p(f"""
                    v_cmp_eq_u32 vcc, 4, v{CKO}
                    s_setprio 0
                    s_cmp_eq_u64 vcc, 0
                    s_cbranch_scc1 L_a_pr{tag}
                    s_setprio 1
                    L_a_pr{tag}:
                    """)
                if SPR and not first:
                    p("s_cmp_le_u32 s48, 5\ns_cselect_b64 vcc, -1, 0")
                if not SPR:
                    if not first:
                        p(f"s_cmp_gt_u32 s48, 5\ns_cbranch_scc1 L_a_nofill")
                    for q in range(4):
                        p(f"buffer_load_dwordx4 v{VKV}, s[36:39], s14 offen offset:{q*1024} sc1 lds")
                    p(f"s_add_u32 s14, s14, {KVS}")
                    if not first:
                        p.label("L_a_nofill")

            def dma(q):
                if not SPR:
                    return ""
                t = f"buffer_load_dwordx4 v{VKV}, s[36:39], s14 offen offset:{q*1024} sc1 lds\n"
                if not first:
                    t = f"s_cbranch_vccz L_a_nf{q}\n" + t + f"L_a_nf{q}:\n"
                return t
            phase(0, f"{MFMA} {vr(sn,16)}, {vr(KF,4)}, {vr(Q,4)}, 0", f"ds_read_b128 {vr(KF,4)}, {ta(u+2, 0)}", sc, None if (first and u == 0) else sn,
                  dma(2 * (u - 2)) if u >= 2 else fil.get((u, 0), ""))
            phase(1, f"{MFMA} {vr(sn,16)}, {vr(KF+4,4)}, {vr(Q+4,4)}, {vr(sn,16)}",
                  f"ds_read_b128 {vr(KF+4,4)}, {ta(u+2, 1024)}", sc, sn, fil.get((u, 1), ""))
            phase(2, None if (first and u == 0) else f"{MFMA} {vr(O,16)}, {vr(VF+4,4)}, {vr(PP+4,4)}, {vr(O,16)}",
                  f"ds_read_b128 {vr(VF+4,4)}, {ta(u, 3072)}", sc, sn,
                  fil.get((u, 2), "") + "\n" + ((f"ds_read_b64 {vr(CK,2)}, v{VCN}" + (f"\nds_read_b32 v{CKO}, v{VCO}" if BAL else "")) if u == 1 else dma(2 * (u - 2) + 1) if u >= 2 else ""))
            ex = (sig if u == 0 else "") + fil.get((u, 3), "")
            if u == 3:
                ex = f"""
                v_mov_b32 v{VCUR}, v{VNXT}
                v_add_u32 v{VNXT}, s47, v{VL16}
                v_add_u32 v{VCN}, 8, v{VCN}
                v_xor_b32 v{VCO}, 128, v{VCN}
                s_add_u32 s47, s47, {2*SLOT}
                s_cmp_ge_u32 s47, {6*SLOT}
                s_cselect_b32 s3, {6*SLOT}, 0
                s_sub_u32 s47, s47, s3
                """
                if SPR:
                    ex += f"s_add_u32 s14, s14, {KVS}\n"
                if not first:
                    ex += "s_add_u32 s48, s48, 1\ns_cmp_lt_u32 s48, 8"
                else:
                    ex += f"""
                    s_mov_b64 exec, 1
                    v_mov_b32 v{CKO}, {CNT_H}
                    s_waitcnt vmcnt(4)
                    ds_add_rtn_u32 v{CK}, v{CKO}, v{VONE}
                    s_waitcnt lgkmcnt(0)
                    v_cmp_eq_u32 vcc, 7, v{CK}
                    s_and_b64 exec, exec, vcc
                    s_cbranch_execz L_nh{tag}
                    buffer_store_dwordx2 {vr(T,2)}, off, s[40:43], s71 offset:256 sc1
                    L_nh{tag}:
                    s_mov_b64 exec, -1
                    v_mov_b32 v{VONE+1}, 1
                    """
            phase(3, f"{MFMA} {vr(O,16)}, {vr(VF,4)}, {vr(PP,4)}, {'0' if (first and u == 0) else vr(O,16)}",
                  f"ds_read_b128 {vr(VF,4)}, {ta(u+1, 2048)}", sc, sn, ex)
    p("s_cmp_eq_u32 s8, 1\ns_cbranch_scc1 L_btype")
    stream("A", setup_s)
    start("a")
    body(True, "fa", fillers([], epi_s(XL), True))
    p("s_branch L_aloop")
    p.label("L_btype")
    stream("B", setup_s)
    start("b")
    body(True, "fb", fillers(gelu(GG, [2])[12:] + gelu(GG, [3]), prod2(XL)))
    T = T_TAG
    p(".p2align 6")
    p.label("L_aloop")
    body(False, "")
    p("s_cbranch_scc1 L_aloop\ns_branch L_a_done")
    for tag in ("fa", "fb", ""):
        p.label("L_a_spin" + tag)
        lds_spin(p, "L_a_sp" + tag, f"v{VCN}", CK, "s[50:51]", 52, wide=True)
        p("s_branch L_a_go" + tag)
    p.label("L_a_done")
    stamp(p, 6)
    p(f"""
    v_cvt_pk_bf16_f32 v{PP+6}, v{E3}, v{E3+1}
    v_cvt_pk_bf16_f32 v{PP+7}, v{E3+2}, v{E3+3}
    s_waitcnt lgkmcnt(0)
    {MFMA} {vr(O,16)}, {vr(VF+4,4)}, {vr(PP+4,4)}, {vr(O,16)}
    s_lshl_b32 s46, s{S_RG}, 12
    s_lshl_b32 s3, s{S_HF}, 14
    s_add_u32 s46, s46, s3
    s_add_u32 s46, s46, {4*SLOT}
    v_add_u32 v3, s46, v{VL16}
    s_lshl_b32 s3, s{S_RG}, 3
    s_add_u32 s3, s3, {CNT_COMB}
    v_mov_b32 v{VCN}, s3
    s_mov_b64 exec, 1
    ds_add_rtn_u32 v{CK}, v{VCN}, v{VONE}
    s_mov_b64 exec, -1
    s_waitcnt lgkmcnt(0)
    v_readfirstlane_b32 s3, v{CK}
    s_cmp_lg_u32 s3, 0
    s_cbranch_scc1 L_acomb
    """)
    for i in range(4):
        p(f"ds_write_b128 v3, {vr(O+4*i,4)} offset:{1024*i}")
    p(f"""
    s_mov_b64 exec, 1
    s_waitcnt lgkmcnt(0)
    ds_add_u32 v{VCN}, v{VONE} offset:4
    s_waitcnt lgkmcnt(0)
    """)
    endpgm(p)
    p.label("L_acomb")
    p(f"v_xor_b32 v3, {SLOT}, v3")
    lds_spin(p, "L_cw", f"v{VCN} offset:4", CK, "1", 52)
    for i in range(4):
        p(f"ds_read_b128 {vr(S0+4*i,4)}, v3 offset:{1024*i}")
    for q in range(4):
        p(f"s_waitcnt lgkmcnt({3-q})")
        for i in range(4 * q, 4 * q + 4):
            p(f"v_add_f32 v{O+i}, v{O+i}, v{S0+i}")
    p.label("L_afin")
    T2 = S1
    p(f"""
    s_mov_b32 s50, {f32(2.0**-60)}
    s_mov_b32 s51, {f32(2.0**100)}
    s_bitcmp1_b32 s7, 0
    s_cbranch_scc1 L_f_odd
    v_mov_b32 v{T2}, v{O+12}
    v_mov_b32 v{T2+1}, v{O+12}
    v_permlane32_swap_b32 v{T2}, v{T2+1}
    s_mov_b32 exec_lo, 0
    v_mov_b32 v{O+12}, 0
    v_mov_b32 v{O+13}, 0
    v_mov_b32 v{O+14}, 0
    v_mov_b32 v{O+15}, 0
    s_branch L_f_join
    L_f_odd:
    v_mov_b32 v{T2}, v{O}
    v_mov_b32 v{T2+1}, v{O}
    v_permlane32_swap_b32 v{T2+1}, v{T2}
    s_mov_b32 exec_hi, 0
    v_mov_b32 v{O}, 0
    v_mov_b32 v{O+1}, 0
    v_mov_b32 v{O+2}, 0
    v_mov_b32 v{O+3}, 0
    L_f_join:
    s_mov_b64 exec, -1
    v_rcp_f32 v{T2+2}, v{T2+1}
    v_cmp_ge_f32 s[52:53], v{T2+1}, s50
    v_cmp_le_f32 s[54:55], v{T2+1}, s51
    """)
    for i in range(16):
        p(f"v_mul_f32 v{O+i}, v{O+i}, v{T2+2}")
    p(f"v_mul_f32 v{T2+3}, 0, v{O}")
    for i in range(1, 16):
        p(f"v_fmac_f32 v{T2+3}, 0, v{O+i}")
    pack16(p, PP, O)
    p(f"""
    v_cmp_eq_f32 s[56:57], 0, v{T2+3}
    s_and_b64 s[52:53], s[52:53], s[54:55]
    s_lshl_b32 s45, s11, 15             ; rowtile*32K
    s_lshl_b32 s46, s7, 11              ; head*2K
    s_add_u32 s45, s45, s46
    s_add_u32 s45, s45, {O_OFF}
    s_and_b64 s[52:53], s[52:53], s[56:57]
    s_cmp_eq_u64 s[52:53], -1
    s_cbranch_scc1 L_aok
    s_cmp_eq_u32 s49, 0x5afe
    s_cbranch_scc0 L_fallback
    """)
    p.label("L_aok")
    p(f"""
    buffer_store_dwordx4 {vr(PP,4)}, v{VL16}, s[40:43], s45 offen sc1
    buffer_store_dwordx4 {vr(PP+4,4)}, v{VL16}, s[40:43], s45 offen offset:1024 sc1
    s_lshl_b32 s45, s11, 11
    s_lshl_b32 s46, s7, 7
    s_add_u32 s45, s45, s46
    s_add_u32 s45, s45, {OFL}
    s_mov_b64 exec, 1
    s_waitcnt vmcnt(0)
    buffer_store_dwordx2 {vr(T,2)}, off, s[40:43], s45 sc1
    """)
    endpgm(p)
    p.label("L_fallback")
    M, MN, AL, TM, T3 = 100, 101, 102, 103, 104
    p("s_mov_b32 s49, 0x5afe")
    for i in range(16):
        p(f"v_mov_b32 v{O+i}, 0")
    p(f"v_mov_b32 v{M}, 0xff800000\ns_mov_b32 s14, 0")
    p.label("L_fbloop")
    p(f"""
    buffer_load_dwordx4 {vr(KF,4)}, v{VL16}, s[36:39], s14 offen sc1
    buffer_load_dwordx4 {vr(KF+4,4)}, v{VL16}, s[36:39], s14 offen offset:1024 sc1
    buffer_load_dwordx4 {vr(VF,4)}, v{VL16}, s[36:39], s14 offen offset:2048 sc1
    buffer_load_dwordx4 {vr(VF+4,4)}, v{VL16}, s[36:39], s14 offen offset:3072 sc1
    s_waitcnt vmcnt(2)
    {MFMA} {vr(S0,16)}, {vr(KF,4)}, {vr(Q,4)}, 0
    {MFMA} {vr(S0,16)}, {vr(KF+4,4)}, {vr(Q+4,4)}, {vr(S0,16)}
    v_max3_f32 v{TM}, v{S0}, v{S0+1}, v{S0+2}
    """)
    for i in range(3, 15, 2):
        p(f"v_max3_f32 v{TM}, v{S0+i}, v{S0+i+1}, v{TM}")
    p(f"""
    v_max_f32 v{TM}, v{S0+15}, v{TM}
    v_mov_b32 v{T3}, v{TM}
    v_permlane32_swap_b32 v{TM}, v{T3}
    v_max3_f32 v{MN}, v{TM}, v{T3}, v{M}
    v_sub_f32 v{AL}, v{M}, v{MN}
    v_exp_f32 v{AL}, v{AL}
    v_mov_b32 v{M}, v{MN}
    """)
    for i in range(16):
        p(f"v_sub_f32 v{S0+i}, v{S0+i}, v{MN}")
    for i in range(16):
        p(f"v_exp_f32 v{S0+i}, v{S0+i}")
    for i in range(16):
        p(f"v_mul_f32 v{O+i}, v{O+i}, v{AL}")
    pack16(p, PP, S0)
    p(f"""
    s_waitcnt vmcnt(0)
    {MFMA} {vr(O,16)}, {vr(VF,4)}, {vr(PP,4)}, {vr(O,16)}
    {MFMA} {vr(O,16)}, {vr(VF+4,4)}, {vr(PP+4,4)}, {vr(O,16)}
    s_add_u32 s14, s14, 4096
    s_cmp_lt_u32 s14, 262144
    s_cbranch_scc1 L_fbloop
    s_branch L_afin
    """)


def gen_s(p, S_W):
    VL16, VQ, VF_, VS_ = 1, 2, 3, 7
    p(f"""
    s_sub_u32 s4, s{S_W}, 8
    s_and_b32 s9, s4, 1
    s_lshr_b32 s10, s4, 1
    v_bfe_u32 v13, v0, 2, 3
    s_mul_i32 s12, s9, 224
    s_lshl_b32 s13, s10, 3
    s_add_u32 s12, s12, s13
    v_add_u32 v13, s12, v13
    v_lshrrev_b32 v14, 5, v0
    v_and_b32 v15, 3, v0
    v_lshlrev_b32 v15, 4, v15
    v_mul_u32_u24 v{VF_}, 3584, v13
    v_add_u32 v{VF_}, v{VF_}, v15
    v_lshl_add_u32 v{VF_}, v14, 6, v{VF_}
    v_lshrrev_b32 v{VS_}, 2, v0
    s_mul_i32 s12, s9, 224
    v_add_u32 v{VS_}, s12, v{VS_}
    v_mul_u32_u24 v{VS_}, 3584, v{VS_}
    v_add_u32 v{VS_}, v{VS_}, v15
    v_mul_u32_u24 v{VQ}, 2688, v13
    v_mul_u32_u24 v14, 48, v14
    v_add3_u32 v{VQ}, v{VQ}, v14, v15
    v_lshlrev_b32 v{VL16}, 4, v0
    s_lshl_b32 s56, s10, 11
    s_lshl_b32 s12, s9, 10
    s_add_u32 s56, s56, s12
    s_mul_i32 s64, s7, 112
    s_add_u32 s65, s64, 896
    s_cmp_eq_u32 s8, 1
    s_cselect_b32 s12, 0, 1792
    s_cselect_b32 s13, 0, 256
    s_add_u32 s64, s64, s12
    s_mul_i32 s66, s7, 384
    s_add_u32 s66, s66, s13
    s_lshl_b32 s67, s7, 6
    s_add_u32 s67, s67, {48*64}
    """)
    p.label("L_ld_p")
    p("s_waitcnt lgkmcnt(0)")
    if ENV("TLB", "1") != "0":
        TA = 44
        p(f"""
        s_cmp_lg_u32 s4, {ENV("TLBW", 0)}
        s_cbranch_scc1 L_notlb
        v_min_u32 v{TA}, {WS_USED // (2*MB) - 1}, v0
        v_lshlrev_b32 v{TA}, 21, v{TA}
        v_mov_b32 v{TA+1}, s{P_WS+1}
        v_add_co_u32 v{TA}, vcc, s{P_WS}, v{TA}
        v_addc_co_u32 v{TA+1}, vcc, 0, v{TA+1}, vcc
        """)
        bufs = [(P_WG, 448 * 3584), (P_WU, 448 * 3584), (P_WQKV, 448 * 2688), (P_WD, 1792 * 896), (P_WO, 448 * 896),
                (P_OUT, 2048 * 896), (P_DBG, 256), (P_X, 2048 * 896)]
        for i, (b, n) in enumerate(bufs):
            p(f"""
            v_writelane_b32 v{TA}, s{b}, {16+2*i}
            v_writelane_b32 v{TA+1}, s{b+1}, {16+2*i}
            s_add_u32 s12, s{b}, {n-4}
            s_addc_u32 s13, s{b+1}, 0
            v_writelane_b32 v{TA}, s12, {17+2*i}
            v_writelane_b32 v{TA+1}, s13, {17+2*i}
            """)
        p(f"global_load_dword v{TA+2}, {vr(TA,2)}, off sc1")
        p.label("L_notlb")
    srd(p, 36, P_WQKV, 448 * 2688)
    srd(p, 40, P_WG, 448 * 3584)
    srd(p, 72, P_WU, 448 * 3584)
    srd(p, 48, P_WD, 1792 * 896)
    srd(p, 52, P_WO, 448 * 896)
    p(f"""
    s_cmp_eq_u32 s10, 0
    s_cselect_b32 s76, s{P_WG}, s{P_WU}
    s_cselect_b32 s77, s{P_WG+1}, s{P_WU+1}
    s_mov_b32 s78, {448*3584}
    s_mov_b32 s79, 0x20000
    s_lshl_b32 s57, s9, 11
    s_lshl_b32 s12, s10, 10
    s_add_u32 s57, s57, s12
    """)

    PF = 24
    if ENV("TLB") == "2":
        srd(p, 44, P_WS, WS_USED)
        p(f"""
        v_lshlrev_b32 v44, 15, v0
        s_cmp_lg_u32 s4, 1
        s_cbranch_scc1 L_nf1
        buffer_load_dword v45, v44, s[36:39], 0 offen
        buffer_load_dword v45, v44, s[40:43], 0 offen
        buffer_load_dword v45, v44, s[72:75], 0 offen
        L_nf1:
        s_cmp_lg_u32 s4, 2
        s_cbranch_scc1 L_nf2
        buffer_load_dword v45, v44, s[48:51], 0 offen
        buffer_load_dword v45, v44, s[52:55], 0 offen
        L_nf2:
        s_cmp_lg_u32 s4, 3
        s_cbranch_scc1 L_nf3
        v_lshlrev_b32 v44, 18, v0
        v_add_u32 v46, {16*MB}, v44
        buffer_load_dword v45, v44, s[44:47], 0 offen sc1
        buffer_load_dword v45, v46, s[44:47], 0 offen sc1
        L_nf3:
        """)

    VFQ, TGV, FL = 6, 4, 8
    PB = int(ENV("PB", 14))
    EVD = int(ENV("EVD", 2))

    def qkv_poll(emit):
        return emit(f"buffer_load_dwordx2 {vr(FL,2)}, v{VFQ}, s[44:47], s62 offen sc1")
    srd(p, 44, P_WS, WS_USED)
    p(f"""
    s_lshl_b32 s62, s5, 12
    s_add_u32 s62, s62, {QKVF}
    s_and_b32 s63, s6, 15
    s_add_u32 s63, s63, 16
    v_mov_b32 v{VFQ}, s63
    v_cmp_gt_u32 vcc, 16, v0
    v_cndmask_b32 v{VFQ}, v{VFQ}, v0, vcc
    v_lshlrev_b32 v{VFQ}, 7, v{VFQ}
    """)

    def stream(kinds):
        spec = {"V": (36, VQ, 64, 0), "Q": (36, VQ, 64, 0), "K": (36, VQ, 65, 0), "G": (40, VF_, 66, 0), "U": (72, VF_, 66, 0),
                "g": (40, VF_, 66, 128), "u": (72, VF_, 66, 128), "S": (76, VS_, 67, 0)}
        stages = [[(kinds[q >> 1], 32 * c + 16 * (q & 1)) for q in range(4)] for c in range(7)]
        stages += [[(kinds[ps], 64 * sl + 16 * q) for q in range(2 if sl == 3 else 4)] for ps in range(2, 5) for sl in range(4)]
        vm = VM(p)
        last = {}
        issued = 0
        nq = 0

        def issue1():
            nonlocal issued, nq
            kind, row = stages[issued][nq]
            s_, v, col, add = spec[kind]
            stride = 2688 if s_ == 36 else 3584
            p(f"s_add_u32 m0, {'s57' if kind == 'S' else 's56'}, {phys(issued)*SLOT + nq*4096}")
            p(f"s_add_u32 s13, s{col}, {row*stride + add}")
            if ENV("NOFILL"):
                last[issued] = None
            else:
                last[issued] = vm.op(f"buffer_load_dwordx4 v{v}, s[{s_}:{s_+3}], s13 offen lds")
            nq += 1
            if nq == len(stages[issued]):
                nq = 0
                issued += 1

        def issue():
            c = issued
            while issued == c:
                issue1()
        if TL:
            p("v_mov_b32 v60, 0")
        tl(p, 0)
        def wpf():
            p(f"s_lshl_b32 s13, s2, 2\ns_add_u32 s13, s13, s4\ns_lshl_b32 s13, s13, 10\ns_add_u32 s14, s13, {1 << 20}")
            for r in (36, 40, 72) + ((48,) if ENV("WDPF", "1") == "1" else ()):
                vm.op(f"buffer_load_dwordx4 {vr(PF,4)}, v{VL16}, s[{r}:{r+3}], s13 offen")
                vm.op(f"buffer_load_dwordx4 {vr(PF,4)}, v{VL16}, s[{r}:{r+3}], s14 offen")
        B0 = ENV("B0")
        if B0 == "a":
            p("s_barrier")
        if ENV("WPF", "1") == "1":
            wpf()
        issue()
        if B0 == "b":
            p("s_barrier")
        issue()
        if B0 == "c":
            p("s_barrier")
        if ENV("WPF", "1") == "2":
            wpf()
        tl(p, 1)
        dbg = ENV("SDBG")
        p(f"s_barrier\ns_barrier\ns_setprio {ENV('SPRIO', 0)}")
        if dbg: stamp(p, 1)
        tl(p, 2)
        issue(); issue()
        vm.need(last[1])
        tl(p, 3)
        p("s_barrier")
        tl(p, 4)
        if dbg: stamp(p, 2)
        issue(); issue()
        if dbg: stamp(p, 3)
        for i in range(1, PB + EVD):
            assert issued > i + 1
            vm.need(last[i + 1])
            tl(p, 3 + 2 * i)
            p("s_barrier")
            tl(p, 4 + 2 * i)
            budget = 6 if i < 7 else eval(ENV("BUD", "[2, 8, 8, 3]"))[(i - 7) % 4]
            while budget > 0 and issued < min(NST, max(9, i + 6)):
                budget -= 1
                issue1()
            if i == 6:
                p(f"v_mov_b32 v{TGV}, {TAGL}\nds_read_b64 {vr(TGV,2)}, v{TGV}\ns_waitcnt lgkmcnt(0)")
            if i == 10:
                p(f"""
                s_cmp_lg_u32 s4, 0
                s_cbranch_scc1 L_noinit{kinds}
                v_lshlrev_b32 v22, 2, v0
                v_add_u32 v22, {CNT}, v22
                v_mov_b32 v23, 0
                ds_write_b32 v22, v23
                s_waitcnt lgkmcnt(0)
                L_noinit{kinds}:
                """)
            if i == PB:
                pollid = qkv_poll(vm.op)
            if i == int(ENV('PFI', 99)):
                PFMODE = ENV("PFMODE", "chip")
                if PFMODE == "chip":
                    p(f"s_lshl_b32 s13, s2, 2\ns_add_u32 s13, s13, s4\ns_lshl_b32 s14, s13, 11\ns_lshl_b32 s13, s13, 9")
                    vm.op(f"buffer_load_dwordx4 {vr(PF,4)}, v{VL16}, s[48:51], s14 offen")
                    vm.op(f"buffer_load_dwordx4 {vr(PF+4,4)}, v{VL16}, s[48:51], s14 offen offset:1024")
                    vm.op(f"buffer_load_dwordx4 {vr(PF+8,4)}, v{VL16}, s[52:55], s13 offen")
            if ENV("PFMODE", "chip") == "xcd" and 5 <= i < 9:
                k = i - 5
                if k == 0:
                    p(f"s_lshl_b32 s13, s6, 2\ns_add_u32 s13, s13, s4\ns_mul_i32 s57, s13, {13*1024}\ns_lshl_b32 s58, s13, 12")
                    for q in range(4):
                        vm.op(f"buffer_load_dwordx4 {vr(PF+4*q,4)}, v{VL16}, s[52:55], s58 offen offset:{q*1024}")
                    vm.op(f"buffer_load_dwordx4 {vr(PF+16,4)}, v{VL16}, s[48:51], s57 offen")
                    p("s_add_u32 s57, s57, 1024")
                else:
                    for q in range(4):
                        vm.op(f"buffer_load_dwordx4 {vr(PF+4*q,4)}, v{VL16}, s[48:51], s57 offen offset:{q*1024}")
                    p("s_add_u32 s57, s57, 4096")
        assert issued == NST
    p("s_cmp_eq_u32 s8, 1\ns_cbranch_scc1 L_ld_b")
    stream("VKGUS")
    p("s_branch L_ld_done")
    p.label("L_ld_b")
    stream("QGUgu")
    p.label("L_ld_done")
    if not ENV("SDBG"):
        stamp(p, 1)
    tl_dump(p)
    if ENV("STOPB"):
        endpgm(p)
    p(f"""
    s_lshr_b32 s7, s6, 4
    s_lshl_b32 s8, s5, 1
    s_add_u32 s7, s7, s8                ; head
    s_and_b32 s8, s6, 15                ; q block
    """)
    VKV = 2
    p(f"""
    s_lshl_b32 s12, s7, 18
    s_add_u32 s12, s12, {KV_OFF}
    s_lshl_b32 s13, s4, 12              ; s*4096
    v_add_u32 v{VKV}, s13, v{VL16}
    s_lshl_b32 s66, s7, 17
    s_lshl_b32 s3, s8, 13
    s_add_u32 s66, s66, s3
    s_lshl_b32 s3, s4, 11
    s_add_u32 s66, s66, s3
    s_add_u32 s66, s66, {QF_OFF}
    s_add_u32 s67, s3, {QL}
    s_mov_b32 s68, 0                    ; ready
    s_mov_b32 s69, 0
    s_mov_b32 s70, {PB+EVD}
    s_mov_b32 s71, {SPIN_MAX}
    s_add_u32 s64, s13, {4*SLOT}
    """)
    srd(p, 36, P_WS, 262144, "s12")
    srd(p, 40, P_WS, WS_USED)
    p.label("L_pl")
    p(f"""
    s_cmp_lg_u32 s68, 0
    s_cbranch_scc1 L_pl_ready
    s_cmp_ge_u32 s70, 19
    s_cbranch_scc1 L_pl_eval
    s_cmp_lg_u32 s70, {PB+EVD}
    s_cbranch_scc1 L_pl_bar
    L_pl_eval:
    s_waitcnt vmcnt(0)
    v_cmp_eq_u64 s[60:61], {vr(FL,2)}, {vr(TGV,2)}
    """)
    p(f"""
    s_sub_u32 s71, s71, 1
    s_cselect_b32 s68, 1, 0
    s_cmp_eq_u64 s[60:61], -1
    s_cselect_b32 s68, 1, s68
    s_cmp_lg_u32 s68, 0
    s_cbranch_scc1 L_pl_q
    """)
    qkv_poll(lambda t: p(t))
    p(f"""
    s_branch L_pl_bar
    L_pl_q:
    s_mov_b32 m0, s67
    s_nop 0
    buffer_load_dwordx4 v{VL16}, s[40:43], s66 offen sc1 lds
    buffer_load_dwordx4 v{VL16}, s[40:43], s66 offen offset:1024 sc1 lds
    L_pl_ready:
    s_add_u32 s3, s69, 15
    s_cmp_gt_u32 s3, s70
    s_cbranch_scc1 L_pl_bar
    s_cmp_ge_u32 s69, 4
    s_cbranch_scc1 L_pl_bar
    s_lshl_b32 s14, s69, 14
    s_mov_b32 m0, s64
    s_add_u32 s69, s69, 1
    buffer_load_dwordx4 v{VKV}, s[36:39], s14 offen sc1 lds
    buffer_load_dwordx4 v{VKV}, s[36:39], s14 offen offset:1024 sc1 lds
    buffer_load_dwordx4 v{VKV}, s[36:39], s14 offen offset:2048 sc1 lds
    buffer_load_dwordx4 v{VKV}, s[36:39], s14 offen offset:3072 sc1 lds
    s_add_u32 s64, s64, {SLOT}
    s_cmp_eq_u32 s69, 2
    s_cselect_b32 s64, s13, s64
    s_branch L_pl_ready
    L_pl_bar:
    s_cmp_ge_u32 s70, 19
    s_cbranch_scc1 L_pl_nobar
    s_barrier
    s_add_u32 s70, s70, 1
    s_branch L_pl
    L_pl_nobar:
    s_cmp_ge_u32 s69, 4
    s_cbranch_scc1 L_pl_done
    s_sleep 4
    s_branch L_pl
    L_pl_done:
    v_mov_b32 v{FL}, {CNT}
    v_mov_b32 v{FL+1}, 1
    s_mov_b64 exec, 1
    s_waitcnt vmcnt(8)
    ds_add_u32 v{FL}, v{FL+1} offset:96
    s_waitcnt vmcnt(0)
    ds_add_u32 v{FL}, v{FL+1} offset:4
    ds_add_u32 v{FL}, v{FL+1} offset:132
    s_mov_b64 exec, -1
    s_mul_i32 s14, s8, {12*1024}
    s_mul_i32 s3, s4, {3*1024}
    s_add_u32 s14, s14, s3
    s_add_u32 s14, s14, {2*KVS}
    buffer_load_dwordx4 {vr(FL+4,4)}, v{VL16}, s[36:39], s14 offen sc1
    buffer_load_dwordx4 {vr(FL+4,4)}, v{VL16}, s[36:39], s14 offen offset:1024 sc1
    buffer_load_dwordx4 {vr(FL+4,4)}, v{VL16}, s[36:39], s14 offen offset:2048 sc1
    s_lshl_b32 s3, s2, 2
    s_add_u32 s3, s3, s4
    s_lshl_b32 s3, s3, 9
    buffer_load_dwordx4 {vr(FL+4,4)}, v{VL16}, s[52:55], s3 offen
    s_cmp_ge_u32 s6, {0 if ENV("NODOWN") else 28}
    s_cbranch_scc1 L_s_end
    s_barrier                           ; barrier(19)
    s_barrier
    s_setprio {ENV("DPRIO0", 0)}
    """)
    stamp(p, 2)
    ACC, WF, HB = 8, 72, 88
    VD, VT0, VT1, VX = 2, 3, 6, 7
    GR, XF = 144, 160
    NRING = 7
    p(f"""
    s_and_b32 s9, s6, 3
    s_lshl_b32 s10, s5, 2
    s_add_u32 s9, s9, s10
    s_lshr_b32 s10, s6, 2
    s_lshr_b32 s11, s4, 1
    s_lshl_b32 s57, s9, 1
    s_add_u32 s57, s57, s11
    s_xor_b32 s58, s57, 1
    s_mul_i32 s3, s4, {12*2048}
    s_add_u32 s3, s3, {H_OFF}
    s_mul_i32 s60, s57, 114688
    s_add_u32 s60, s60, s3
    s_mul_i32 s61, s58, 114688
    s_add_u32 s61, s61, s3
    v_bfe_u32 v{VX}, v0, 2, 3
    v_mul_u32_u24 v{VX}, 896, v{VX}
    v_lshrrev_b32 v{VT0}, 5, v0
    v_lshl_add_u32 v{VX}, v{VT0}, 6, v{VX}
    v_and_b32 v{VT0}, 3, v0
    v_lshl_add_u32 v{VX}, v{VT0}, 4, v{VX}
    s_lshl_b32 s14, s10, 7
    v_add_u32 v{VD}, s14, v{VX}
    v_lshrrev_b32 v{VX}, 5, v0
    v_lshlrev_b32 v{VX}, 8, v{VX}
    v_bfe_u32 v{VT0}, v0, 2, 2
    v_lshl_add_u32 v{VX}, v{VT0}, 6, v{VX}
    v_bfe_u32 v{VT0}, v0, 4, 1
    v_lshl_add_u32 v{VX}, v{VT0}, 5, v{VX}
    v_and_b32 v{VT0}, 3, v0
    v_lshl_add_u32 v{VX}, v{VT0}, 3, v{VX}
    s_lshl_b32 s15, s4, 14
    s_add_u32 s15, s15, {PRIV}
    s_and_b32 s3, s4, 1
    s_lshl_b32 s3, s3, 9
    s_add_u32 s3, s3, s15
    v_add_u32 v{VT0}, s3, v{VX}
    v_xor_b32 v{VT1}, 512, v{VT0}
    s_mul_i32 s62, s4, {12*32*896}
    s_mul_i32 s63, s4, -10
    s_add_u32 s63, s63, 48
    s_lshl_b32 s64, s63, 11
    s_add_u32 s65, s64, s61
    s_add_u32 s64, s64, s60
    s_mul_i32 s63, s63, {32*896}
    s_add_u32 s63, s63, s62
    """)
    vm = VM(p)

    order = [0, 1, 6, 7, 4, 5, 10, 11, 2, 3, 8, 9, 12, 13]
    seg_end = [8, 16, 28]
    seg_mask = [0x11, 0x22, 0xCC]

    def wload(ks):
        sl = ks % NRING
        if ks >= 28:
            for o in range(2):
                p(f"s_add_u32 m0, s15, {sl*2048 + o*1024}")
                p(f"s_add_u32 s14, s67, {(16*sl + 8*o)*896}")
                vm.op(f"buffer_load_dwordx4 v{VD}, s[52:55], s14 offen lds")
            return
        t = order[ks >> 1]
        base, t = ("s62", t) if t < 12 else ("s63", t - 12)
        for o in range(2):
            p(f"s_add_u32 m0, s15, {sl*2048 + o*1024}")
            p(f"s_add_u32 s14, {base}, {(32*t + 16*(ks&1) + 8*o)*896}")
            wid[ks] = vm.op(f"buffer_load_dwordx4 v{VD}, s[48:51], s14 offen lds")

    def hload(ks):
        sl = ks % NRING
        t = order[ks >> 1]
        (b0, b1), t = (("s60", "s61"), t) if t < 12 else (("s64", "s65"), t - 12)
        off = t * 2048 + (ks & 1) * 1024
        for r, b_ in enumerate((b0, b1)):
            if off >= 4096:
                p(f"s_add_u32 s14, {b_}, {off & ~4095}")
            hid[ks] = vm.op(f"buffer_load_dwordx4 {vr(HB+8*sl+4*r,4)}, v{VL16}, s[40:43], {'s14' if off >= 4096 else b_} offen offset:{off & 4095} sc1")
    wid, hid = {}, {}
    VFA, FT = GR, GR + 2
    p(f"""
    v_and_b32 v{VFA}, 7, v0
    v_lshlrev_b32 v{VFA}, 7, v{VFA}
    s_lshr_b32 s66, s9, 1
    s_lshl_b32 s66, s66, 12
    s_lshl_b32 s3, s4, 10
    s_add_u32 s66, s66, s3
    s_add_u32 s66, s66, {HFL}
    s_mov_b32 s71, {SPIN_MAX}
    s_mul_i32 s67, s4, {112*896}
    v_and_b32 v{VX}, 31, v0
    s_lshl_b32 s14, s57, 5
    v_add_u32 v{VX}, s14, v{VX}
    v_mul_u32_u24 v{VX}, 896, v{VX}
    v_lshrrev_b32 v0, 5, v0
    v_lshl_add_u32 v{VX}, v0, 3, v{VX}
    s_and_b32 s14, s4, 1
    s_lshl_b32 s14, s14, 6
    s_lshl_b32 s3, s10, 7
    s_add_u32 s14, s14, s3
    v_add_u32 v0, s14, v{VX}
    """)
    VXO = 0
    srd(p, 44, P_X, 2048 * 896)
    for g4 in range(4):
        vm.op(f"buffer_load_dwordx2 {vr(XF+2*g4,2)}, v{VXO}, s[44:47], 0 offen offset:{16*g4}")

    def hpoll(k):
        label = f"L_hp{k}"
        p(f"s_mov_b32 s68, {seg_mask[k]}\ns_mov_b32 s69, 0")
        p.label(label)
        p(f"""
        buffer_load_dwordx2 {vr(FT,2)}, v{VFA}, s[40:43], s66 offen sc1
        s_sub_u32 s71, s71, 1
        s_waitcnt vmcnt(0)
        v_cmp_eq_u64 vcc, {vr(FT,2)}, {vr(TGV,2)}
        s_cmp_eq_u32 s71, 0
        s_cbranch_scc1 {label}_x
        s_and_b64 vcc, vcc, s[68:69]
        s_cmp_eq_u64 vcc, s[68:69]
        s_cbranch_scc1 {label}_x
        s_sleep 8
        s_branch {label}
        {label}_x:
        """)
        vm.done = vm.n

    def trd(wb, base, a0=VT0, a1=VT1):
        for c, a in enumerate((a0, a1)):
            for b in range(2):
                p(f"ds_read_b64_tr_b16 {vr(wb+4*c+2*b,2)}, v{a} offset:{base + b*1024}")
    LOOK = int(ENV("LOOK", 3))
    seg, hn = 0, 0

    def hfill(done):
        nonlocal hn
        while hn < min(seg_end[seg], done + NRING):
            hload(hn)
            hn += 1
    for ks in range(2):
        wload(ks)
    hpoll(0)
    stamp(p, 3)
    for ks in range(NRING):
        hload(ks)
        if ks + 2 < NRING:
            wload(ks + 2)
    hn = NRING
    p(f"s_setprio {ENV('DPRIO', 0)}")
    trd(WF, 0)
    for ks in range(28):
        sl = ks % NRING
        wb = WF + 8 * (ks & 1)
        if ks + 1 < 28:
            vm.need(wid[ks + 1])
            trd(WF + 8 * ((ks + 1) & 1), ((ks + 1) % NRING) * 2048)
        vm.need(hid[ks])
        p(f"s_waitcnt lgkmcnt({4 if ks + 1 < 28 else 0})")
        for a in range(4):
            ac = vr(ACC + 16 * a, 16)
            p(f"{MFMA} {ac}, {vr(wb+4*(a&1),4)}, {vr(HB+8*sl+4*(a>>1),4)}, {'0' if ks == 0 else ac}")
            if ENV("DINT") and a == 0 and ks >= 1:
                hfill(ks)
            if ENV("DINT") and a == 1 and ks + NRING < 28:
                wload(ks + NRING)
        if seg < 2 and ks + 1 + LOOK == seg_end[seg]:
            seg += 1
            hpoll(seg)
            hfill(ks + 1)
        if not ENV("DINT"):
            hfill(ks + 1)
            wload(ks + NRING)
    stamp(p, 4)

    def send():
        p(f"v_add_u32 v{VX}, s15, v{VL16}")
        for a in range(1, 4):
            for r in range(4):
                p(f"ds_write_b128 v{VX}, {vr(ACC+16*a+4*r,4)} offset:{(a-1)*4096 + r*1024}")

    def ssync(k):
        p(f"v_mov_b32 v{WF+1}, {CNT_S0 + 4*k}\nv_mov_b32 v{WF+2}, 1")
        p(f"s_mov_b64 exec, 1\ns_waitcnt lgkmcnt(0)\nds_add_u32 v{WF+1}, v{WF+2}\ns_mov_b64 exec, -1")
        lds_spin(p, f"L_ss{k}", f"v{WF+1}", WF, "4", 71)

    def recv():
        for a in range(1, 4):
            p(f"s_xor_b32 s3, s4, {a}\ns_lshl_b32 s3, s3, 14\ns_add_u32 s3, s3, {PRIV + (a-1)*4096}\nv_add_u32 v{VX}, s3, v{VL16}")
            for r in range(4):
                p(f"ds_read_b128 {vr(ACC+16*a+4*r,4)}, v{VX} offset:{r*1024}")

    def addup():
        for a in range(1, 4):
            p(f"s_waitcnt lgkmcnt({4*(3-a)})")
            for r in range(16):
                p(f"v_add_f32 v{ACC+r}, v{ACC+r}, v{ACC+16*a+r}")
    d7 = ENV("SD7")
    if d7: stamp(p, 1)
    p(f"""
    v_mov_b32 v{WF+1}, {CNT}
    v_mov_b32 v{WF+2}, 1
    s_lshl_b32 s3, s4, 2
    v_mov_b32 v{WF+3}, s3
    v_add_u32 v{WF+3}, {CNT_S0 + 4}, v{WF+3}
    v_xor_b32 v{WF+4}, 8, v{WF+3}
    v_xor_b32 v{WF+5}, 4, v{WF+3}
    s_and_b32 s3, s4, 1
    s_lshl_b32 s3, s3, 13
    s_cmp_lt_u32 s4, 2
    s_cselect_b32 s14, 0, {SLOT}
    s_add_u32 s3, s3, s14
    s_add_u32 s3, s3, {2*SLOT}
    v_add_u32 v{VX}, s3, v{VL16}                    ; area(kq)
    v_xor_b32 v{VD}, {SLOT}, v{VX}                  ; area(kq^2)
    """)
    lds_spin(p, "L_g0", f"v{WF+1} offset:48", WF, "4", 71)
    lds_spin(p, "L_g1", f"v{WF+1} offset:176", WF, "4", 71)
    for i in range(8):
        p(f"ds_write_b128 v{VX}, {vr(ACC+32+4*i,4)} offset:{i*1024}")
    p(f"s_waitcnt lgkmcnt(0)\nds_write_b32 v{WF+3}, v{WF+2}")
    lds_spin(p, "L_h1", f"v{WF+4}", WF, "1", 71)
    if d7: stamp(p, 2)
    for i in (4, 5, 6, 7, 0, 1, 2, 3):
        p(f"ds_read_b128 {vr(ACC+32+4*i,4)}, v{VD} offset:{i*1024}")
    p("s_waitcnt lgkmcnt(4)")
    for r in range(16):
        p(f"v_add_f32 v{ACC+16+r}, v{ACC+16+r}, v{ACC+48+r}")
    p("s_waitcnt lgkmcnt(0)")
    for i in range(4):
        p(f"ds_write_b128 v{VD}, {vr(ACC+16+4*i,4)} offset:{i*1024}")
    for r in range(16):
        p(f"v_add_f32 v{ACC+r}, v{ACC+r}, v{ACC+32+r}")
    p(f"v_xor_b32 v{VX}, 8192, v{VX}\ns_waitcnt lgkmcnt(0)\nds_write_b32 v{WF+3}, v{WF+2} offset:16")
    if d7: stamp(p, 3)
    lds_spin(p, "L_h2", f"v{WF+5} offset:16", WF, "1", 71)
    p(f"v_xor_b32 v{VX}, {SLOT}, v{VX}")
    for i in range(4):
        p(f"ds_read_b128 {vr(ACC+16+4*i,4)}, v{VX} offset:{i*1024}")
    for i in range(4):
        p(f"s_waitcnt lgkmcnt({3-i})")
        for r in range(4 * i, 4 * i + 4):
            p(f"v_add_f32 v{ACC+r}, v{ACC+r}, v{ACC+16+r}")
    if d7: stamp(p, 4)
    T = ACC + 16
    p(f"s_mov_b32 s3, {f32(-LOG2E)}")
    for i in range(16):
        p(f"v_mul_f32 v{T+i}, s3, v{ACC+i}")
    for i in range(16):
        p(f"v_exp_f32 v{T+i}, v{T+i}")
    for i in range(16):
        p(f"v_add_f32 v{T+i}, 1.0, v{T+i}")
    for i in range(16):
        p(f"v_rcp_f32 v{T+i}, v{T+i}")
    GREG = [GR + i for i in range(16)]
    for i in range(16):
        p(f"v_mul_f32 v{GREG[i]}, v{ACC+i}, v{T+i}")
    if ENV("DUMP_G"):
        for i in range(8):
            p(f"v_cvt_pk_bf16_f32 v{T+i}, v{GREG[2*i]}, v{GREG[2*i+1]}")
        p(f"""
        s_mul_i32 s14, s57, {14*2048}
        s_lshl_b32 s3, s10, 1
        s_and_b32 s63, s4, 1
        s_add_u32 s3, s3, s63
        s_lshl_b32 s3, s3, 11
        s_add_u32 s14, s14, s3
        s_add_u32 s14, s14, {G_OFF}
        buffer_store_dwordx4 {vr(T,4)}, v{VL16}, s[40:43], s14 offen
        buffer_store_dwordx4 {vr(T+4,4)}, v{VL16}, s[40:43], s14 offen offset:1024
        """)
    p(f"""
    v_bfe_u32 v{WF+4}, v{VL16}, 4, 2
    v_lshlrev_b32 v{VX}, 7, v{WF+4}
    v_bfe_u32 v{WF}, v{VL16}, 6, 1
    v_lshl_add_u32 v{VX}, v{WF}, 11, v{VX}
    s_lshl_b32 s14, s9, 12
    s_lshl_b32 s3, s4, 9
    s_add_u32 s14, s14, s3
    s_add_u32 s14, s14, {OFL}
    s_mov_b32 s71, {SPIN_MAX}
    s_lshl_b32 s3, s4, 13
    s_add_u32 s3, s3, {O_OFF}
    s_lshl_b32 s60, s57, 15
    s_add_u32 s60, s60, s3
    s_lshl_b32 s61, s58, 15
    s_add_u32 s61, s61, s3
    s_add_u32 s62, s60, 4096
    s_add_u32 s63, s61, 4096
    v_lshlrev_b32 v{WF+4}, 3, v{WF+4}
    v_add_u32 v{WF+4}, {CNT_COMB}, v{WF+4}
    """)
    stamp(p, 5)
    p(f"s_setprio {ENV('DPRIO3', 0)}")
    p.label("L_op")
    p(f"""
    buffer_load_dwordx2 {vr(WF,2)}, v{VX}, s[40:43], s14 offen sc1
    s_sub_u32 s71, s71, 1
    s_waitcnt vmcnt(0)
    v_cmp_eq_u64 vcc, {vr(WF,2)}, {vr(TGV,2)}
    s_cmp_eq_u32 s71, 0
    s_cbranch_scc1 L_op_x
    s_cmp_eq_u64 vcc, -1
    s_cbranch_scc1 L_op_x
    ds_read_b32 v{WF+2}, v{WF+4}
    s_waitcnt lgkmcnt(0)
    v_cmp_eq_u32 vcc, 2, v{WF+2}
    s_cmp_eq_u64 vcc, -1
    s_cbranch_scc1 L_op
    s_sleep {ENV("OSLEEP", 2)}
    s_branch L_op
    L_op_x:
    """)
    stamp(p, 6)
    vm = VM(p)
    OB = HB
    oid = {}

    def oload(kk, r):
        sreg = (("s60", "s61"), ("s62", "s63"))[kk >> 2][r]
        slot = (2 * kk + r) % 14
        oid[(kk, r)] = vm.op(f"buffer_load_dwordx4 {vr(OB+4*slot,4)}, v{VL16}, s[40:43], {sreg} offen offset:{(kk&3)*1024} sc1")
    for kk in range(7):
        oload(kk, 0); oload(kk, 1)

    def wrd(kk):
        hh, s_ = kk >> 1, kk & 1
        row = 28 * hh - 4 * (hh & 1) + 16 * s_
        trd(WF + 8 * (kk & 1), (row >> 3) * 1024)
    wrd(0)
    for kk in range(8):
        if kk + 1 < 8:
            wrd(kk + 1)
        wb = WF + 8 * (kk & 1)
        p(f"s_waitcnt lgkmcnt({4 if kk + 1 < 8 else 0})")
        for a in range(4):
            vm.need(oid[(kk, a >> 1)])
            ac = vr(ACC + 16 * a, 16)
            p(f"{MFMA} {ac}, {vr(wb+4*(a&1),4)}, {vr(OB+4*((2*kk+(a>>1))%14),4)}, {'0' if kk == 0 else ac}")
        if kk == 0:
            oload(7, 0); oload(7, 1)
    if ENV("SD8"): stamp(p, 1)
    send()
    srd(p, 44, P_OUT, 2048 * 896)
    XE = HB
    for i in range(8):
        p(f"v_lshlrev_b32 v{XE+2*i}, 16, v{XF+i}")
        p(f"v_and_b32 v{XE+2*i+1}, 0xffff0000, v{XF+i}")
    ssync(0)
    if ENV("SD8"): stamp(p, 2)
    recv()
    addup()
    if ENV("SD8"): stamp(p, 3)
    for i in range(16):
        p(f"v_fma_f32 v{ACC+i}, v{ACC+i}, v{GREG[i]}, v{XE+i}")
    pack16(p, WF, ACC)
    for g4 in range(4):
        p(f"buffer_store_dwordx2 {vr(WF+2*g4,2)}, v{VXO}, s[44:47], 0 offen offset:{16*g4}")
    p.label("L_s_end")
    endpgm(p)


def main():
    ref = open("cdna_kernels/" + NAME + ".s.ref").read().split("\n")
    head = [l for l in ref if l.startswith(";") and "@launch" not in l and "Override launch" not in l and "grid=ceil" not in l]
    p = Prog()
    gen(p)
    body = p.finalize()
    out = head[:]
    out.append("; @launch grid=(256,1,1) block=(768,1,1) lds=163840")
    out.append('.amdgcn_target "amdgcn-amd-amdhsa--gfx950"\n.text')
    out.append(body)
    out.append(f""".section .rodata,"a"
.p2align 6
.amdhsa_kernel {KN}
  .amdhsa_next_free_vgpr 168
  .amdhsa_next_free_sgpr 100
  .amdhsa_accum_offset 168
  .amdhsa_group_segment_fixed_size 0
  .amdhsa_kernarg_size 80
  .amdhsa_user_sgpr_count 2
  .amdhsa_user_sgpr_kernarg_segment_ptr 1
  .amdhsa_system_sgpr_workgroup_id_x 1
.end_amdhsa_kernel""")
    if ENV("PLAINLD"):
        import re
        out = [re.sub(r"(buffer_load_dwordx4 .*) sc1( lds)?$", r"\1\2", l, flags=re.M) if "s[44:47], s6" not in l else l for l in "\n".join(out).split("\n")]
    path = sys.argv[1] if len(sys.argv) > 1 else "cdna_kernels/" + NAME + ".s"
    open(path, "w").write("\n".join(out) + "\n")
    print("wrote", path, "nops inserted:", p.total_nops)


main()
```

```python
import math, struct, sys, os
from asmlib import Prog

NAME = "recurrent_scan__mha_block__geglu_ffn__prompt"
KN = NAME + "_kernel"
MB = 1 << 20
QF_OFF, KV_OFF, H_OFF, O_OFF, G_OFF = 0, 2 * MB, 6 * MB, 13 * MB, 15 * MB
FLAG_OFF = 17 * MB
QKVF, HFL, OFL = FLAG_OFF, FLAG_OFF + 65536, FLAG_OFF + 131072
WS_USED = 18 * MB
LOG2E = math.log2(math.e)
QSCALE = LOG2E / math.sqrt(28.0)
SPIN_MAX = 1 << 12
ENV = os.environ.get
STAMPS = bool(ENV("STAMPS"))
STAMP_OFF = 24 * MB
MFMA = "v_mfma_f32_32x32x16_bf16"
P_X, P_WQKV, P_WO, P_WG, P_WU, P_WD, P_OUT, P_DBG, P_WS = 16, 18, 20, 24, 26, 28, 30, 32, 34
SLOT = 16384
EXB = 8 * SLOT
TAGL = 6 * SLOT
QL = 3 * SLOT + 8192
NST = 19


def phys(c):
    return (8, 9, 7)[c] if c < 3 else (c - 3) % 6
PRIV = 6 * SLOT
CNT = PRIV + 15360
CNT_COMB, CNT_S0 = CNT + 64, CNT + 220
KVS = 32768
CNT_GO = CNT + 96
CNT_H = CNT + 100


def f32(x):
    return "0x%08x" % struct.unpack("<I", struct.pack("<f", x))[0]


def vr(b, n=1):
    return f"v{b}" if n == 1 else f"v[{b}:{b+n-1}]"


def srd(p, d, base, nrec, add=None):
    if add is None:
        p(f"s_mov_b32 s{d}, s{base}\ns_mov_b32 s{d+1}, s{base+1}")
    else:
        p(f"s_add_u32 s{d}, s{base}, {add}\ns_addc_u32 s{d+1}, s{base+1}, 0")
    p(f"s_mov_b32 s{d+2}, {nrec}\ns_mov_b32 s{d+3}, 0x20000")


def pack16(p, dst, src):
    for i in range(8):
        p(f"v_cvt_pk_bf16_f32 v{dst+i}, v{src+2*i}, v{src+2*i+1}")


def stamp_txt(i):
    if STAMPS and not (ENV("CB") and i < 7):
        assert i < 8
        return [f"{ENV('STAMP_INS', 's_memrealtime')} s[{80+2*i}:{81+2*i}]"]
    return []


def stamp(p, i):
    for x in stamp_txt(i):
        p(x)


TL = bool(ENV("TL"))


def tl(p, idx):
    if TL:
        p(f"{ENV('STAMP_INS', 's_memrealtime')} s[94:95]\ns_waitcnt lgkmcnt(0)\nv_writelane_b32 v60, s94, {idx}")


def tl_dump(p):
    if TL:
        p(f"""
        s_lshl_b32 s94, s2, 4
        s_add_u32 s94, s94, s59
        s_lshl_b32 s94, s94, 8
        s_add_u32 s94, s94, {STAMP_OFF + MB}
        s_mov_b32 s96, s{P_WS}
        s_mov_b32 s97, s{P_WS+1}
        s_mov_b32 s98, {32*MB}
        s_mov_b32 s99, 0x20000
        v_lshlrev_b32 v61, 2, v0
        buffer_store_dword v60, v61, s[96:99], s94 offen
        """)


def endpgm(p):
    if STAMPS and ENV("DBGMAX"):
        stamp(p, 7)
        p(f"""
        s_mov_b64 exec, -1
        s_mov_b32 s96, s{P_DBG}
        s_mov_b32 s97, s{P_DBG+1}
        s_mov_b32 s98, 256
        s_mov_b32 s99, 0x20000
        buffer_load_dword v10, off, s[96:99], 0 sc1
        s_waitcnt vmcnt(0) lgkmcnt(0)
        """)
        for i in range(8):
            p(f"v_writelane_b32 v8, s{80+2*((i+1) % 8)}, {i}")
        p(f"""
        v_cmp_ne_u32 vcc, 0, v8
        v_sub_u32 v8, v8, v10
        v_add_u32 v8, 1000, v8
        v_cndmask_b32 v8, 0, v8, vcc
        s_cmp_ge_u32 s59, 8
        s_cselect_b32 s4, 36, 8
        v_mbcnt_lo_u32_b32 v9, -1, 0
        v_lshlrev_b32 v9, 2, v9
        s_mov_b64 exec, 0x7f
        buffer_atomic_umax v8, v9, s[96:99], s4 offen
        s_waitcnt vmcnt(0)
        """)
    elif STAMPS:
        stamp(p, 7)
        p("s_waitcnt vmcnt(0) lgkmcnt(0)\ns_mov_b64 exec, -1")
        for i in range(8):
            p(f"v_writelane_b32 v8, s{80+2*i}, {i}")
        p(f"""
        s_lshl_b32 s4, s2, 4
        s_add_u32 s4, s4, s59
        s_lshl_b32 s4, s4, 5
        s_add_u32 s4, s4, {STAMP_OFF}
        s_mov_b32 s96, s{P_WS}
        s_mov_b32 s97, s{P_WS+1}
        s_mov_b32 s98, {32*MB}
        s_mov_b32 s99, 0x20000
        v_mbcnt_lo_u32_b32 v9, -1, 0
        v_lshlrev_b32 v9, 2, v9
        s_mov_b64 exec, 0xff
        buffer_store_dword v8, v9, s[96:99], s4 offen
        """)
    p("s_endpgm")


class DS:
    def __init__(self, pending):
        self.n, self.done = pending, 0

    def op(self):
        self.n += 1
        return self.n - 1

    def need(self, i):
        if i < self.done:
            return []
        self.done = i + 1
        return [f"s_waitcnt lgkmcnt({min(15, self.n - 1 - i)})"]


class VM:
    def __init__(self, p):
        self.p, self.n, self.done = p, 0, 0

    def op(self, txt):
        self.p(txt)
        self.n += 1
        return self.n - 1

    def need(self, i):
        if i is None or i < self.done:
            return
        self.done = i + 1
        k = self.n - 1 - i
        assert k <= 63
        self.p(f"s_waitcnt vmcnt({k})")


def cost(ins):
    c = 0
    for l in ins.strip().split("\n"):
        m = l.strip().split()[0]
        c += 8 if m.startswith(("v_exp", "v_rcp", "v_rsq", "ds_")) else 16 if m.startswith("buffer_") else 4
    return c


def lds_spin(p, label, addr_v, tmp, want, sreg, wide=False):
    p(f"s_mov_b32 s{sreg}, {SPIN_MAX*8}")
    p.label(label)
    if wide:
        p(f"ds_read_b64 {vr(tmp,2)}, {addr_v}\ns_sub_u32 s{sreg}, s{sreg}, 1\ns_waitcnt lgkmcnt(0)\nv_cmp_ne_u64 vcc, {want}, {vr(tmp,2)}")
    else:
        p(f"ds_read_b32 v{tmp}, {addr_v}\ns_sub_u32 s{sreg}, s{sreg}, 1\ns_waitcnt lgkmcnt(0)\nv_cmp_ne_u32 vcc, {want}, v{tmp}")
    p(f"""
    s_cmp_eq_u32 s{sreg}, 0
    s_cbranch_scc1 {label}_x
    s_cmp_eq_u64 vcc, 0
    s_cbranch_scc1 {label}_x
    s_sleep 1
    s_branch {label}
    {label}_x:
    """)


def gen(p):
    p(f".globl {KN}\n.p2align 8\n.type {KN},@function")
    p.label(KN)
    S_W, S_RG, S_HF, S_RB, S_RT = 59, 60, 61, 62, 63
    RX = int(ENV('RX', 2))
    p(f"""
    s_cmp_ge_u32 s2, 256
    s_cbranch_scc1 L_exit
    s_load_dwordx16 s[16:31], s[0:1], 0
    s_load_dwordx4 s[32:35], s[0:1], 64
    """)
    if STAMPS:
        for i in range(16):
            p(f"s_mov_b32 s{80+i}, 0")
        stamp(p, 0)
    p(f"""
    v_lshrrev_b32 v2, 6, v0
    v_and_b32 v0, 63, v0
    v_readfirstlane_b32 s{S_W}, v2
    s_and_b32 s5, s2, 7                 ; xcd
    s_lshr_b32 s6, s2, 3                ; j
    s_and_b32 s7, s5, {(1 << RX) - 1}
    s_lshl_b32 s7, s7, {4 - RX}
    s_and_b32 s8, s6, {(16 >> RX) - 1}
    s_add_u32 s{S_RB}, s7, s8
    s_lshr_b32 s7, s5, {RX}
    s_lshl_b32 s7, s7, {RX + 1}
    s_lshr_b32 s8, s6, {4 - RX}
    s_add_u32 s7, s7, s8
    s_and_b32 s8, s7, 1
    s_lshr_b32 s7, s7, 1
    s_cmp_ge_u32 s{S_W}, 8
    s_cbranch_scc1 L_service
    """)
    gen_c(p, S_W, S_RG, S_HF, S_RB, S_RT)
    p.label("L_service")
    gen_s(p, S_W)
    p.label("L_exit")
    p("s_endpgm")


def gen_c(p, S_W, S_RG, S_HF, S_RB, S_RT):
    VL16, VA, VB, VTRL, VEX, VEXP, VST = 1, 2, 3, 4, 5, 6, 7
    X, SA, SB, G, WF, T = 8, 64, 96, 128, 144, 160
    p(f"""
    s_and_b32 s{S_RG}, s{S_W}, 3
    s_lshr_b32 s{S_HF}, s{S_W}, 2
    s_xor_b32 s{S_HF}, s{S_HF}, s8
    v_lshrrev_b32 v12, 2, v0            ; r16
    v_lshrrev_b32 v13, 4, v0            ; r16>>2
    v_xor_b32 v13, v13, v0
    v_and_b32 v13, 3, v13
    v_mul_u32_u24 v12, 896, v12
    v_lshl_add_u32 v12, v13, 4, v12
    s_lshl_b32 s9, s{S_RB}, 2
    s_add_u32 s{S_RT}, s9, s{S_RG}
    s_mul_i32 s9, s{S_RT}, {32*896}
    s_mul_i32 s10, s{S_HF}, 448
    s_add_u32 s9, s9, s10
    v_add_u32 v12, s9, v12
    s_mul_i32 s10, s{S_W}, 14336
    s_mov_b32 s11, {16*896}
    s_waitcnt lgkmcnt(0)
    """)
    srd(p, 44, P_DBG, 256)
    p(f"""
    s_add_u32 s12, s2, s{S_W}
    s_cmp_lg_u32 s12, 0
    s_cbranch_scc1 L_notagw
    s_memrealtime s[12:13]
    s_waitcnt lgkmcnt(0)
    s_or_b32 s12, s12, 1
    v_mov_b32 v16, s12
    v_mov_b32 v17, s13
    s_mov_b64 exec, 1
    buffer_store_dwordx2 v[16:17], off, s[44:47], 0 sc1
    s_mov_b64 exec, -1
    L_notagw:
    """)
    CPF = ENV("CPF", "1")
    if CPF != "0":
        p(f"s_lshl_b32 s12, s2, 3\ns_add_u32 s12, s12, s{S_W}\ns_lshl_b32 s12, s12, 10\nv_lshlrev_b32 v13, 4, v0")
        for k, (ptr, n) in enumerate(((P_WQKV, 448 * 2688), (P_WG, 448 * 3584), (P_WU, 448 * 3584))[:int(CPF) + 2 if CPF == "1" else 2]):
            srd(p, 64 + 4 * k, ptr, n)
            p(f"buffer_load_dwordx4 {vr(SA,4)}, v13, s[{64+4*k}:{67+4*k}], s12 offen")
    srd(p, 36, P_X, 2048 * 896)
    for cb in range(7):
        for rh in range(2):
            p(f"s_add_u32 m0, s10, {(rh*7+cb)*1024 - 64*cb}")
            p(f"buffer_load_dwordx4 v12, s[36:39], {'s11' if rh else '0'} offen offset:{64*cb} lds")
    if ENV("B0"):
        p("s_barrier")
    srd(p, 40, P_WS, WS_USED)
    VXA, VXB, SUM, SQ, ONES, RS, NM, TG = T, T + 1, T + 2, T + 3, T + 4, G, G + 1, G + 2
    U = SB
    STAT = 7 * SLOT
    c0 = -2.0 * math.sqrt(2.0 / math.pi) * LOG2E
    c1 = c0 * 0.044715
    al = -((-c1) ** (1.0 / 3.0))
    p(f"""
    v_lshlrev_b32 v{VL16}, 4, v0
    s_lshl_b32 s3, s{S_HF}, 4
    v_xor_b32 v15, s3, v0
    v_lshlrev_b32 v{VST}, 4, v15
    s_lshl_b32 s12, s{S_HF}, 10
    v_add_u32 v{VST}, s12, v{VST}
    v_lshrrev_b32 v13, 5, v0
    v_lshlrev_b32 v13, 11, v13
    v_bfe_u32 v14, v0, 2, 2
    v_lshl_add_u32 v13, v14, 6, v13
    v_bfe_u32 v14, v15, 4, 1
    v_lshl_add_u32 v13, v14, 5, v13
    v_and_b32 v14, 3, v0
    v_lshl_add_u32 v13, v14, 3, v13
    s_lshl_b32 s12, s{S_HF}, 10
    v_add_u32 v{VTRL}, s12, v13
    v_add_u32 v{VA}, {8*SLOT}, v{VTRL}
    v_add_u32 v{VB}, {9*SLOT}, v{VTRL}
    s_lshl_b32 s12, s{S_W}, 12
    s_add_u32 s12, s12, {EXB}
    v_add_u32 v{VEX}, s12, v{VL16}
    v_xor_b32 v{VEXP}, 0x4100, v{VEX}
    v_bfe_u32 v13, v15, 4, 1
    v_mul_u32_u24 v13, 7168, v13
    v_and_b32 v14, 15, v0
    v_lshl_add_u32 v13, v14, 6, v13
    v_lshrrev_b32 v14, 5, v0            ; h
    v_bfe_u32 v15, v0, 2, 2             ; swz
    v_xor_b32 v14, v14, v15
    v_lshl_add_u32 v{VXA}, v14, 4, v13
    v_xor_b32 v14, 2, v14
    v_lshl_add_u32 v{VXB}, v14, 4, v13
    v_add_u32 v{VXA}, s10, v{VXA}
    v_add_u32 v{VXB}, s10, v{VXB}
    v_mov_b32 v{SUM}, 0
    v_mov_b32 v{SQ}, 0
    v_mov_b32 v{ONES}, 0x3f803f80
    s_mov_b32 s66, 0xffff0000
    s_mov_b32 s64, {f32(al)}
    s_mov_b32 s65, {f32(c0 / c1 * al * al)}
    v_and_b32 v{U+2}, 31, v0
    v_lshlrev_b32 v{U+2}, 3, v{U+2}
    s_lshl_b32 s12, s{S_W}, 8
    s_add_u32 s12, s12, {STAT}
    v_add_u32 v{U+3}, s12, v{U+2}
    v_xor_b32 v{U+2}, {1024+128}, v{U+3}
    """)
    p(f"""
    s_cmp_eq_u32 s8, 1
    s_cselect_b32 s69, {f32(QSCALE)}, 1.0
    s_cselect_b32 s4, 18, 19
    s_cselect_b32 s15, {QF_OFF}, {KV_OFF}
    s_cselect_b32 s73, 2048, 0
    s_cselect_b32 s14, 0, 4
    s_lshl_b32 s67, s7, s4
    s_sub_u32 s4, s4, 1
    s_lshl_b32 s68, 1, s4
    s_sub_u32 s4, s4, 6
    s_lshl_b32 s4, s{S_RT}, s4
    s_add_u32 s67, s67, s4
    s_add_u32 s67, s67, s15
    s_add_u32 s68, s68, s67
    s_add_u32 s72, s67, 2048
    s_add_u32 s75, s68, 2048
    s_lshl_b32 s12, s7, 12
    s_lshl_b32 s13, s{S_RB}, 7
    s_add_u32 s12, s12, s13
    s_add_u32 s12, s12, {QKVF}
    s_add_u32 s73, s73, s12             ; flag of this workgroup's q or k,v result
    s_mul_i32 s12, s7, 6
    s_add_u32 s14, s14, s12             ; first f tile
    s_add_u32 s58, s7, 48
    s_sub_u32 s58, s58, s14
    s_sub_u32 s58, s58, 2               ; from the tile after the first quad to the single tile (type A)
    s_lshl_b32 s70, s14, 11
    s_mul_i32 s4, s{S_RT}, 114688
    s_add_u32 s70, s70, s4
    s_add_u32 s70, s70, {H_OFF}
    s_lshl_b32 s71, s{S_RB}, 12
    s_lshl_b32 s4, s7, 9
    s_add_u32 s71, s71, s4
    s_xor_b32 s4, s8, 1
    s_lshl_b32 s4, s4, 7
    s_add_u32 s71, s71, s4
    s_add_u32 s71, s71, {HFL}           ; units: 0 first quad of B, 1 quad of A, 2 second quad of B, 3 single tile of A
    ; pad masks: even head pads n=28..31 (hf=1 waves), odd head pads n=0..3 (hf=0 waves)
    s_cmp_eq_u32 s{S_HF}, 1
    s_mov_b32 s52, 0
    s_cselect_b32 s53, -1, 0            ; q/k even head: packed regs 2,3
    s_cselect_b32 s54, 0, -1            ; q/k odd head: packed regs 0,1
    s_mov_b32 s55, 0
    s_cselect_b32 s56, 0xf000, 0xf0000000 {';'} v even head: zero lanes
    """.replace("s_cselect_b32 s56, 0xf000, 0xf0000000 ;", "s_mov_b32 s56, 0xf0000000\n    s_cselect_b32 s56, 0xf000, s56 ;") + f"""
    s_mov_b32 s57, s56
    s_cselect_b32 s48, 0xf0000, 15      ; v odd head: zero lanes
    s_mov_b32 s49, s48
    s_lshr_b32 s50, s56, 3
    s_and_b32 s50, s50, s56             ; lowest lane of each group: the ones column
    s_mov_b32 s51, s50
    s_lshr_b32 s46, s48, 3
    s_and_b32 s46, s46, s48
    s_mov_b32 s47, s46
    """.replace("s46", "s78").replace("s47", "s79"))
    stamp(p, 1)

    def stat(cb):
        for d in range(8):
            r = X + 8 * cb + d
            p(f"v_dot2c_f32_bf16 v{SUM}, v{r}, v{ONES}")
            p(f"v_dot2c_f32_bf16 v{SQ}, v{r}, v{r}")
    for cb in range(7):
        p(f"s_waitcnt vmcnt({12 - 2*cb})")
        p(f"ds_read_b128 {vr(X+8*cb,4)}, v{VXA} offset:{cb*1024}")
        p(f"ds_read_b128 {vr(X+8*cb+4,4)}, v{VXB} offset:{cb*1024}")
        if cb:
            p("s_waitcnt lgkmcnt(2)")
            stat(cb - 1)
    p("s_waitcnt lgkmcnt(0)")
    stat(6)
    p(f"""
    v_mov_b32 v{U}, v{SUM}
    v_mov_b32 v{U+1}, v{SQ}
    v_permlane32_swap_b32 v{SUM}, v{U}
    v_permlane32_swap_b32 v{SQ}, v{U+1}
    v_add_f32 v{SUM}, v{SUM}, v{U}
    v_add_f32 v{SQ}, v{SQ}, v{U+1}
    ds_write_b64 v{U+3}, {vr(SUM,2)}
    s_waitcnt lgkmcnt(0)
    s_barrier
    ds_read_b64 {vr(U,2)}, v{U+2}
    s_waitcnt lgkmcnt(0)
    s_barrier
    v_add_f32 v{SUM}, v{SUM}, v{U}
    v_add_f32 v{SQ}, v{SQ}, v{U+1}
    v_mul_f32 v{SUM}, {f32(1.0/448)}, v{SUM}        ; mean
    v_mul_f32 v{SQ}, {f32(1.0/448)}, v{SQ}
    v_fma_f32 v{SQ}, -v{SUM}, v{SUM}, v{SQ}         ; var
    v_max_f32 v{SQ}, 0, v{SQ}
    v_add_f32 v{SQ}, {f32(1e-5)}, v{SQ}
    v_rsq_f32 v{RS}, v{SQ}                          ; rstd
    v_mul_f32 v{SUM}, v{SUM}, v{RS}
    v_sub_f32 v{NM}, 0, v{SUM}                      ; -mean*rstd
    """)
    stamp(p, 2)

    def normalise(kl, tb):
        e = []
        for d in range(4):
            e += [f"v_lshlrev_b32 v{tb+2*d}, 16, v{X+4*kl+d}", f"v_and_b32 v{tb+2*d+1}, s66, v{X+4*kl+d}"]
        e += [f"v_fma_f32 v{tb+i}, v{tb+i}, v{RS}, v{NM}" for i in range(8)]
        e += [f"v_cvt_pk_bf16_f32 v{X+4*kl+d}, v{tb+2*d}, v{tb+2*d+1}" for d in range(4)]
        return e
    NPRE = int(ENV("NPRE", 2))
    for kl in range(NPRE):
        for i in normalise(kl, U + 8 * kl):
            p(i)
    p("s_barrier")
    NB = 4

    def st(r, sreg, off=0):
        return f"buffer_store_dwordx4 {vr(r,4)}, v{VST}, s[40:43], s{sreg} offen{' offset:%d' % off if off else ''} sc1"

    fl_n = [0]

    def flag0(sreg):
        fl_n[0] += 1
        return (f"s_cmp_lg_u32 s{S_W}, 0\ns_cbranch_scc1 L_fl{fl_n[0]}\ns_mov_b64 exec, 1\n"
                f"buffer_store_dwordx2 v[0:1], off, s[40:43], s{sreg} sc1\ns_mov_b64 exec, -1\nL_fl{fl_n[0]}:")

    def pack8(a):
        return [f"v_cvt_pk_bf16_f32 v{a+i}, v{a+2*i}, v{a+2*i+1}" for i in range(4)]

    def epi_qk(h0, h1):
        e = []
        for t, a in enumerate((h0, h1)):
            e += [f"v_mul_f32 v{a+i}, s69, v{a+i}" for i in range(8)] + pack8(a)
            z = a + 2 if t == 0 else a
            e += [f"s_mov_b64 exec, s[{52+2*t}:{53+2*t}]\nv_mov_b32 v{z}, 0\nv_mov_b32 v{z+1}, 0\ns_mov_b64 exec, -1"]
            e.append(st(a, 67 + t))
        return e

    def epi_v(h0, h1):
        e = []
        for t, a in enumerate((h0, h1)):
            zm, om = ((56, 50), (48, 78))[t]
            e += pack8(a)
            e += [f"s_mov_b64 exec, s[{zm}:{zm+1}]\n" + "".join(f"v_mov_b32 v{a+i}, 0\n" for i in range(4))
                  + f"s_mov_b64 exec, s[{om}:{om+1}]\n"
                  + "".join(f"v_mov_b32 v{a+i}, 0x3f803f80\n" for i in range(4)) + "s_mov_b64 exec, -1"]
            e.append(st(a, (72, 75)[t]))
        return e

    def gelu(g, qs):
        e = []
        for q in qs:
            r = g[4 * q:4 * q + 4]
            t = [T + i for i in range(4)]
            u = [T + 4 + i for i in range(4)]
            e += [f"v_mul_f32 v{t[i]}, s64, v{r[i]}" for i in range(4)]
            e += [f"v_fma_f32 v{u[i]}, v{t[i]}, v{t[i]}, s65" for i in range(4)]
            e += [f"v_mul_f32 v{t[i]}, v{t[i]}, v{u[i]}" for i in range(4)]
            e += [f"v_exp_f32 v{t[i]}, v{t[i]}" for i in range(4)]
            e += [f"v_add_f32 v{t[i]}, 1.0, v{t[i]}" for i in range(4)]
            e += [f"v_rcp_f32 v{t[i]}, v{t[i]}" for i in range(4)]
            e += [f"v_mul_f32 v{r[i]}, v{r[i]}, v{t[i]}" for i in range(4)]
        return e
    GG = [G + i for i in range(16)]

    def prod2(acc):
        e = []
        for t in range(2):
            a = acc + 16 * t
            e += [f"v_mul_f32 v{a+i}, v{a+i}, v{G+8*t+i}" for i in range(8)] + pack8(a)
            e.append(st(a, 70, 2048 * t))
        return e + ["s_add_u32 s70, s70, 4096"]

    def epi_s(acc):
        g = [acc + i for i in range(8)]
        e = gelu(g, [0, 1])
        e += [f"v_mul_f32 v{g[i]}, v{g[i]}, v{acc+16+i}" for i in range(8)] + pack8(acc)
        return e + [st(acc, 70)]

    tag_ld = [f"s_cmp_lg_u32 s{S_W}, 7\ns_cbranch_scc1 L_tl_@\n"
              f"buffer_load_dwordx2 {vr(TG,2)}, off, s[44:47], 0 sc1\nL_tl_@:"]
    tag_pub = [f"s_cmp_lg_u32 s{S_W}, 7\ns_cbranch_scc1 L_tp_@\ns_mov_b32 s12, {SPIN_MAX}\nL_tq_@:\ns_waitcnt vmcnt(0)\n"
               f"v_cmp_ne_u32 vcc, 0, v{TG}\ns_sub_u32 s12, s12, 1\ns_cbranch_scc1 L_tr_@\ns_cmp_lg_u64 vcc, 0\ns_cbranch_scc1 L_tr_@\n"
               f"buffer_load_dwordx2 {vr(TG,2)}, off, s[44:47], 0 sc1\ns_branch L_tq_@\nL_tr_@:\n"
               f"v_mov_b32 v{TG+2}, {TAGL}\nds_write_b64 v{TG+2}, {vr(TG,2)}\n"
               "s_waitcnt lgkmcnt(0)\nL_tp_@:"]
    XW, XR = [2, 3, 4, 5], [7, 8, 9, 10]
    xreg = lambda acc, i: acc + 16 * (i >> 1) + 8 + 4 * (i & 1)

    def stream(kind, late):
        N = 140
        types = "VKGUS" if kind == "A" else "QGUGU"
        G_ = []
        for kl in range(14):
            for ps in range(2):
                for t in range(2):
                    G_.append((kl >> 1, ps * 8192 + (kl & 1) * 4096 + t * 512, kl, (SA, SB)[ps] + 16 * t, kl == 0, types[ps] == "V"))
        acc = {2: SB, 3: SA, 4: SB}
        for ps in range(2, 5):
            for j in range(28):
                G_.append((7 + 4 * (ps - 2) + (j >> 3), ((j >> 1) & 3) * 4096 + (j & 1) * (1024 if types[ps] == "S" else 512),
                           j >> 1, acc[ps] + 16 * (j & 1), j < 2, False))
        win = []

        def W(a, b, ins):
            win.append((a, b, ins))
        for kl in range(NPRE, 14):
            W(4 * (kl - NPRE), 4 * (kl - NPRE) + 4, normalise(kl, T))
        W(16, 17, [x.replace("@", kind) for x in tag_ld])
        W(46, 47, [x.replace("@", kind) for x in tag_pub])
        E0 = 14
        pub = {}
        KB = int(ENV("KB", 91))
        if ENV("NOEPI"):
            pass
        elif kind == "A":
            W(56 + E0, 56 + E0 + 5, epi_v(SA, SA + 16))
            W(56 + 19, 56 + 25, epi_qk(G, G + 8))
            pub[KB] = 73
            W(84 + E0, 112 + E0 - 2, gelu(GG, [0, 1, 2, 3]))
            W(112 + E0, 112 + E0 + 8, prod2(SA) + ["s_lshl_b32 s12, s58, 11\ns_add_u32 s70, s70, s12"])
        else:
            W(56 + E0, 56 + E0 + 5, epi_qk(SA, SA + 16))
            W(56 + 19, 84 + E0 - 2, gelu(GG, [0, 1, 2, 3]))
            pub[91] = 73
            W(84 + E0, 84 + E0 + 8, prod2(SB))
            pub[127] = 71
            W(112 + E0, 140, gelu(GG, [0, 1]) + gelu(GG, [2])[:12])
        W(112 + 24 if kind == "A" else 112 + 6, 112 + 27 if kind == "A" else 112 + 12, late)
        per = [[] for _ in range(N)]
        for (a, b, ins) in win:
            tot = sum(cost(i) for i in ins)
            c = 0
            for i in ins:
                g = a + min(b - a - 1, int((c + cost(i) / 2) * (b - a) / tot))
                per[g].append(i)
                c += cost(i)
        ds = DS(0)
        frag = {}
        out = []

        def rd(n):
            c, imm = G_[n][0], G_[n][1]
            b = WF + 4 * (n % NB)
            a = VA if c % 2 == 0 else VB
            out.extend([f"ds_read_b64_tr_b16 {vr(b,2)}, v{a} offset:{imm}", f"ds_read_b64_tr_b16 {vr(b+2,2)}, v{a} offset:{imm+256}"])
            ds.op()
            frag[n] = ds.op()
            if n + 1 < N and G_[n + 1][0] != c and c + 2 < NST:
                if c + 2 == 15 and types[4] == "S":
                    out.append(f"v_bfe_u32 v{a}, v{VTRL}, 11, 1\nv_mul_u32_u24 v{a}, 1536, v{a}\nv_sub_u32 v{VTRL}, v{VTRL}, v{a}\n"
                               f"s_lshl_b32 s12, s{S_HF}, 10\nv_add_u32 v{VTRL}, s12, v{VTRL}")
                out.append(f"v_add_u32 v{a}, {phys(c+2)*SLOT}, v{VTRL}")
        for n in range(NB):
            rd(n)
        wr = None
        rdx, rdy = {}, {}
        for g in range(N):
            c, imm, xf, ac, first, swap = G_[g]
            ps, j = (0, g) if g < 56 else divmod(g, 28)
            if g % 2 == 0:
                out += ds.need(frag[g + 1])
            w, x = vr(WF + 4 * (g % NB), 4), vr(X + 4 * xf, 4)
            a, b = (x, w) if swap else (w, x)
            out.append(f"{MFMA} {vr(ac,16)}, {a}, {b}, {'0' if first else vr(ac,16)}")
            prev = None if ps < 2 else SA if ps == 2 else acc[ps - 1]
            if g + 1 < N and G_[g + 1][0] != c:
                if prev is not None and j == 7:
                    out += ds.need(wr)
                if g in pub:
                    out.append("s_waitcnt vmcnt(0)")
                out.append("s_barrier")
                if g in pub:
                    out.append(flag0(pub[g]))
                if ENV("CB"):
                    bi = c + 1 - int(ENV("CB"))
                    if 0 <= bi < 7:
                        out.append(f"s_memtime s[{80+2*bi}:{81+2*bi}]")
                if g == 47:
                    out.append(f"v_mov_b32 v0, {TAGL}\nds_read_b64 v[0:1], v0")
                    ds.op()
            if g + NB < N:
                rd(g + NB)
            xo = -2 * SLOT if ps == 2 else 0
            if prev is not None and j in XW:
                i = XW.index(j)
                if ps == 2 and i == 0:
                    out.append(f"v_add_u32 v{VEX}, {xo & 0xffffffff}, v{VEX}")
                out.append(f"ds_write_b128 v{VEX}, {vr(xreg(prev, i),4)} offset:{1024*i}")
                wr = ds.op()
                if ps == 2 and i == 3:
                    out.append(f"v_add_u32 v{VEX}, {-xo}, v{VEX}\nv_add_u32 v{VEXP}, {xo & 0xffffffff}, v{VEXP}")
            if prev is not None and j in XR:
                i = XR.index(j)
                out.append(f"ds_read_b128 {vr(xreg(prev, i),4)}, v{VEXP} offset:{1024*i}")
                rdx[i] = ds.op()
                if ps == 2 and i == 3:
                    out.append(f"v_add_u32 v{VEXP}, {-xo}, v{VEXP}")
            if prev is not None and j - 3 in XR:
                i = XR.index(j - 3)
                out += ds.need(rdx[i])
                r = xreg(prev, i)
                d = G + 4 * i if (ps > 2 and types[ps - 1] == "G") else r - 8
                out += [f"v_add_f32 v{d+k}, v{r-8+k}, v{r+k}" for k in range(4)]
            if ps == 2 and 11 <= j < 19:
                i, ph = (j - 11) // 4 * 2 + ((j - 11) & 1), ((j - 11) >> 1) & 1
                if ph == 0:
                    out.append(f"ds_read_b128 {vr(T+4*(i&1),4)}, v{VEXP} offset:{1024*i}")
                    rdy[i] = ds.op()
                else:
                    out += ds.need(rdy[i])
                    out += [f"v_add_f32 v{G+4*i+k}, v{G+4*i+k}, v{T+4*(i&1)+k}" for k in range(4)]
            out += per[g]
            if g == 55:
                out += stamp_txt(3)
                for i in (0, 1, 2, 3):
                    out.append(f"ds_write_b128 v{VEX}, {vr(xreg(SB, i),4)} offset:{1024*i}")
                    ds.op()
                    out += [f"v_mov_b32 v{G+4*i+k}, v{xreg(SB, i)-8+k}" for k in range(4)]
        for i in out:
            p(i)

    Q, KF, VF, S0, S1, PP, O = 8, 16, 24, 32, 48, 64, 72
    VCUR, VNXT, VCO, VKV, VCN, VONE, CK, CKO, VLN, VQA, E3 = 146, 147, 148, 149, 150, 88, 90, 92, 93, 94, 156
    BAL = ENV('BAL', '1') == '1'
    SPR = ENV('SPR', '0') == '1'
    XL = SB
    setup_s = f"""s_lshr_b32 s7, s6, 4
    s_lshl_b32 s8, s5, 1
    s_add_u32 s7, s7, s8                ; head
    s_and_b32 s8, s6, 15                ; q block
    s_lshl_b32 s11, s8, 2
    s_add_u32 s11, s11, s{S_RG}         ; q tile (0..63)
    s_lshl_b32 s9, s7, 18
    s_add_u32 s9, s9, {KV_OFF}
    s_lshl_b32 s46, s{S_HF}, 14         ; kh*16384
    s_add_u32 s47, s46, {2*SLOT}        ; slot of stage i+2
    s_lshl_b32 s13, s{S_RG}, 12         ; rg*4096
    s_add_u32 s14, s46, {2*KVS}         ; source offset of the next fill
    s_lshl_b32 s15, s{S_HF}, 7
    s_add_u32 s15, s15, {CNT}
    s_mov_b32 s48, 1                    ; iteration
    s_mov_b32 s49, 0
    s_mov_b32 s50, 4
    s_mov_b32 s51, 4
    s_lshl_b32 s10, s{S_RG}, 11
    s_add_u32 s10, s10, {QL}
    s_add_u32 s36, s{P_WS}, s9
    s_addc_u32 s37, s{P_WS+1}, 0
    s_mov_b32 s38, 262144""".split("\n")
    setup_s = [setup_s[i] if not setup_s[i].strip().startswith("s_add_u32 s36") else setup_s[i] + "\n" + setup_s[i+1]
               for i in range(len(setup_s)) if not setup_s[i].strip().startswith("s_addc")]

    def start(tag):
        stamp(p, 4)
        p(f"""
        v_and_b32 v{VLN}, 1023, v{VEX}      ; lane*16
        v_mov_b32 v{CKO}, {CNT_GO}
        v_add_u32 v{VQA}, s10, v{VLN}
        v_add_u32 v{VONE}, s46, v{VLN}
        v_add_u32 v{VONE+1}, {4*SLOT}, v{VONE}
        """)
        lds_spin(p, "L_w0" + tag, f"v{CKO}", CK, "4", 52)
        stamp(p, 5)
        p(f"""
        ds_read_b128 {vr(Q,4)}, v{VQA}
        ds_read_b128 {vr(Q+4,4)}, v{VQA} offset:1024
        ds_read_b128 {vr(KF,4)}, v{VONE+1}
        ds_read_b128 {vr(KF+4,4)}, v{VONE+1} offset:1024
        v_mov_b32 v{VNXT}, v{VONE}
        v_mov_b32 v{VCUR}, v{VONE+1}
        v_add_u32 v{VKV}, s13, v{VLN}
        v_mov_b32 v{VCN}, s15
        v_xor_b32 v{VCO}, 128, v{VCN}
        v_mov_b32 v{VONE}, 1
        v_mov_b32 v{VONE+1}, 0
        """)
        for i in range(4):
            p(f"ds_write_b128 v{VEX}, {vr(xreg(XL, i),4)} offset:{1024*i}")
        p(f"""
        s_waitcnt lgkmcnt(4)
        {MFMA} {vr(S0,16)}, {vr(KF,4)}, {vr(Q,4)}, 0
        {MFMA} {vr(S0,16)}, {vr(KF+4,4)}, {vr(Q+4,4)}, {vr(S0,16)}
        ds_read_b128 {vr(KF,4)}, v{VCUR} offset:4096
        ds_read_b128 {vr(KF+4,4)}, v{VCUR} offset:5120
        ds_read_b128 {vr(VF+4,4)}, v{VCUR} offset:3072
        ds_read_b128 {vr(VF,4)}, v{VCUR} offset:2048
        """)
    adds = []
    for i in range(4):
        r = xreg(XL, i)
        adds += [f"v_add_f32 v{r-8+k}, v{r-8+k}, v{r+k}" for k in range(4)]
    xrd = "s_waitcnt lgkmcnt(4)\ns_barrier\n" + "".join(f"ds_read_b128 {vr(xreg(XL, i),4)}, v{VEXP} offset:{1024*i}\n" for i in range(4))

    def fillers(pre, post, pub20=False):
        f = {}
        slots = [(0, 0), (0, 1), (0, 2)]
        for k, sl in enumerate(slots):
            f[sl] = "\n".join(pre[len(pre) * k // 3:len(pre) * (k + 1) // 3])
        f[(0, 0)] = xrd + f[(0, 0)]
        f[(0, 2)] = f[(0, 2)] + f"\ns_waitcnt {'vmcnt(0) ' if pub20 else ''}lgkmcnt(2)\ns_barrier\n"
        if pub20:
            f[(0, 2)] += flag0(71) + "\n"
        post = adds + post
        slots = [(0, 3), (1, 0), (1, 1), (1, 2)]
        for k, sl in enumerate(slots):
            f[sl] = "\n".join(post[len(post) * k // 4:len(post) * (k + 1) // 4])
        return f
    VL16 = VLN
    TT = T
    T_TAG = 0

    def phase(k, mf, rd, sc, sp, extra=""):
        if k % 2 == 0:
            p("s_waitcnt lgkmcnt(2)")
        if mf:
            p(mf)
        p(rd)
        src, pk = (E3, 3) if k == 0 else (sc + 4 * (k - 1), k - 1)
        dst = E3 if k == 3 else sc + 4 * k
        e = [f"v_exp_f32 v{dst+i}, v{sc+4*k+i}" for i in range(4)]
        c = [f"v_cvt_pk_bf16_f32 v{PP+2*pk+i}, v{src+2*i}, v{src+2*i+1}" for i in range(2)]
        for x in (e[0], c[0], e[1], c[1]) if sp is not None else (e[0], e[1]):
            p(x)
        if extra.strip():
            p(extra)
        p(e[2]); p(e[3])

    def ta(u, off):
        return f"v{VCUR} offset:{u*4096+off}" if u < 4 else f"v{VNXT} offset:{(u-4)*4096+off}"

    def body(first, tag, fil=None):
        fil = fil or {}
        T = T_TAG
        sig = f"""
        s_mov_b64 exec, 1
        {'' if (first or ENV('NOSIGW')) else 's_waitcnt vmcnt(0)'}
        ds_add_u64 v{VCN}, {vr(VONE,2)}
        s_mov_b64 exec, -1
        """
        for u in range(4):
            sc, sn = (S0, S1) if u % 2 == 0 else (S1, S0)
            if u == 2:
                p(f"""
                s_waitcnt lgkmcnt(1)
                v_cmp_ne_u64 vcc, s[50:51], {vr(CK,2)}
                s_add_u32 m0, s47, s13
                s_cmp_lg_u64 vcc, 0
                s_cbranch_scc1 L_a_spin{tag}
                L_a_go{tag}:
                """)
                if BAL:
                    p(f"""
                    v_cmp_eq_u32 vcc, 4, v{CKO}
                    s_setprio 0
                    s_cmp_eq_u64 vcc, 0
                    s_cbranch_scc1 L_a_pr{tag}
                    s_setprio 1
                    L_a_pr{tag}:
                    """)
                if SPR and not first:
                    p("s_cmp_le_u32 s48, 5\ns_cselect_b64 vcc, -1, 0")
                if not SPR:
                    if not first:
                        p(f"s_cmp_gt_u32 s48, 5\ns_cbranch_scc1 L_a_nofill")
                    for q in range(4):
                        p(f"buffer_load_dwordx4 v{VKV}, s[36:39], s14 offen offset:{q*1024} sc1 lds")
                    p(f"s_add_u32 s14, s14, {KVS}")
                    if not first:
                        p.label("L_a_nofill")

            def dma(q):
                if not SPR:
                    return ""
                t = f"buffer_load_dwordx4 v{VKV}, s[36:39], s14 offen offset:{q*1024} sc1 lds\n"
                if not first:
                    t = f"s_cbranch_vccz L_a_nf{q}\n" + t + f"L_a_nf{q}:\n"
                return t
            phase(0, f"{MFMA} {vr(sn,16)}, {vr(KF,4)}, {vr(Q,4)}, 0", f"ds_read_b128 {vr(KF,4)}, {ta(u+2, 0)}", sc, None if (first and u == 0) else sn,
                  dma(2 * (u - 2)) if u >= 2 else fil.get((u, 0), ""))
            phase(1, f"{MFMA} {vr(sn,16)}, {vr(KF+4,4)}, {vr(Q+4,4)}, {vr(sn,16)}",
                  f"ds_read_b128 {vr(KF+4,4)}, {ta(u+2, 1024)}", sc, sn, fil.get((u, 1), ""))
            phase(2, None if (first and u == 0) else f"{MFMA} {vr(O,16)}, {vr(VF+4,4)}, {vr(PP+4,4)}, {vr(O,16)}",
                  f"ds_read_b128 {vr(VF+4,4)}, {ta(u, 3072)}", sc, sn,
                  fil.get((u, 2), "") + "\n" + ((f"ds_read_b64 {vr(CK,2)}, v{VCN}" + (f"\nds_read_b32 v{CKO}, v{VCO}" if BAL else "")) if u == 1 else dma(2 * (u - 2) + 1) if u >= 2 else ""))
            ex = (sig if u == 0 else "") + fil.get((u, 3), "")
            if u == 3:
                ex = f"""
                v_mov_b32 v{VCUR}, v{VNXT}
                v_add_u32 v{VNXT}, s47, v{VL16}
                v_add_u32 v{VCN}, 8, v{VCN}
                v_xor_b32 v{VCO}, 128, v{VCN}
                s_add_u32 s47, s47, {2*SLOT}
                s_cmp_ge_u32 s47, {6*SLOT}
                s_cselect_b32 s3, {6*SLOT}, 0
                s_sub_u32 s47, s47, s3
                """
                if SPR:
                    ex += f"s_add_u32 s14, s14, {KVS}\n"
                if not first:
                    ex += "s_add_u32 s48, s48, 1\ns_cmp_lt_u32 s48, 8"
                else:
                    ex += f"""
                    s_mov_b64 exec, 1
                    v_mov_b32 v{CKO}, {CNT_H}
                    s_waitcnt vmcnt(4)
                    ds_add_rtn_u32 v{CK}, v{CKO}, v{VONE}
                    s_waitcnt lgkmcnt(0)
                    v_cmp_eq_u32 vcc, 7, v{CK}
                    s_and_b64 exec, exec, vcc
                    s_cbranch_execz L_nh{tag}
                    buffer_store_dwordx2 {vr(T,2)}, off, s[40:43], s71 offset:256 sc1
                    L_nh{tag}:
                    s_mov_b64 exec, -1
                    v_mov_b32 v{VONE+1}, 1
                    """
            phase(3, f"{MFMA} {vr(O,16)}, {vr(VF,4)}, {vr(PP,4)}, {'0' if (first and u == 0) else vr(O,16)}",
                  f"ds_read_b128 {vr(VF,4)}, {ta(u+1, 2048)}", sc, sn, ex)
    p("s_cmp_eq_u32 s8, 1\ns_cbranch_scc1 L_btype")
    stream("A", setup_s)
    start("a")
    body(True, "fa", fillers([], epi_s(XL), True))
    p("s_branch L_aloop")
    p.label("L_btype")
    stream("B", setup_s)
    start("b")
    body(True, "fb", fillers(gelu(GG, [2])[12:] + gelu(GG, [3]), prod2(XL)))
    T = T_TAG
    p(".p2align 6")
    p.label("L_aloop")
    body(False, "")
    p("s_cbranch_scc1 L_aloop\ns_branch L_a_done")
    for tag in ("fa", "fb", ""):
        p.label("L_a_spin" + tag)
        lds_spin(p, "L_a_sp" + tag, f"v{VCN}", CK, "s[50:51]", 52, wide=True)
        p("s_branch L_a_go" + tag)
    p.label("L_a_done")
    stamp(p, 6)
    p(f"""
    v_cvt_pk_bf16_f32 v{PP+6}, v{E3}, v{E3+1}
    v_cvt_pk_bf16_f32 v{PP+7}, v{E3+2}, v{E3+3}
    s_waitcnt lgkmcnt(0)
    {MFMA} {vr(O,16)}, {vr(VF+4,4)}, {vr(PP+4,4)}, {vr(O,16)}
    s_lshl_b32 s46, s{S_RG}, 12
    s_lshl_b32 s3, s{S_HF}, 14
    s_add_u32 s46, s46, s3
    s_add_u32 s46, s46, {4*SLOT}
    v_add_u32 v3, s46, v{VL16}
    s_lshl_b32 s3, s{S_RG}, 3
    s_add_u32 s3, s3, {CNT_COMB}
    v_mov_b32 v{VCN}, s3
    s_mov_b64 exec, 1
    ds_add_rtn_u32 v{CK}, v{VCN}, v{VONE}
    s_mov_b64 exec, -1
    s_waitcnt lgkmcnt(0)
    v_readfirstlane_b32 s3, v{CK}
    s_cmp_lg_u32 s3, 0
    s_cbranch_scc1 L_acomb
    """)
    for i in range(4):
        p(f"ds_write_b128 v3, {vr(O+4*i,4)} offset:{1024*i}")
    p(f"""
    s_mov_b64 exec, 1
    s_waitcnt lgkmcnt(0)
    ds_add_u32 v{VCN}, v{VONE} offset:4
    s_waitcnt lgkmcnt(0)
    """)
    endpgm(p)
    p.label("L_acomb")
    p(f"v_xor_b32 v3, {SLOT}, v3")
    lds_spin(p, "L_cw", f"v{VCN} offset:4", CK, "1", 52)
    for i in range(4):
        p(f"ds_read_b128 {vr(S0+4*i,4)}, v3 offset:{1024*i}")
    for q in range(4):
        p(f"s_waitcnt lgkmcnt({3-q})")
        for i in range(4 * q, 4 * q + 4):
            p(f"v_add_f32 v{O+i}, v{O+i}, v{S0+i}")
    p.label("L_afin")
    T2 = S1
    p(f"""
    s_mov_b32 s50, {f32(2.0**-60)}
    s_mov_b32 s51, {f32(2.0**100)}
    s_bitcmp1_b32 s7, 0
    s_cbranch_scc1 L_f_odd
    v_mov_b32 v{T2}, v{O+12}
    v_mov_b32 v{T2+1}, v{O+12}
    v_permlane32_swap_b32 v{T2}, v{T2+1}
    s_mov_b32 exec_lo, 0
    v_mov_b32 v{O+12}, 0
    v_mov_b32 v{O+13}, 0
    v_mov_b32 v{O+14}, 0
    v_mov_b32 v{O+15}, 0
    s_branch L_f_join
    L_f_odd:
    v_mov_b32 v{T2}, v{O}
    v_mov_b32 v{T2+1}, v{O}
    v_permlane32_swap_b32 v{T2+1}, v{T2}
    s_mov_b32 exec_hi, 0
    v_mov_b32 v{O}, 0
    v_mov_b32 v{O+1}, 0
    v_mov_b32 v{O+2}, 0
    v_mov_b32 v{O+3}, 0
    L_f_join:
    s_mov_b64 exec, -1
    v_rcp_f32 v{T2+2}, v{T2+1}
    v_cmp_ge_f32 s[52:53], v{T2+1}, s50
    v_cmp_le_f32 s[54:55], v{T2+1}, s51
    """)
    for i in range(16):
        p(f"v_mul_f32 v{O+i}, v{O+i}, v{T2+2}")
    p(f"v_mul_f32 v{T2+3}, 0, v{O}")
    for i in range(1, 16):
        p(f"v_fmac_f32 v{T2+3}, 0, v{O+i}")
    pack16(p, PP, O)
    p(f"""
    v_cmp_eq_f32 s[56:57], 0, v{T2+3}
    s_and_b64 s[52:53], s[52:53], s[54:55]
    s_lshl_b32 s45, s11, 15             ; rowtile*32K
    s_lshl_b32 s46, s7, 11              ; head*2K
    s_add_u32 s45, s45, s46
    s_add_u32 s45, s45, {O_OFF}
    s_and_b64 s[52:53], s[52:53], s[56:57]
    s_cmp_eq_u64 s[52:53], -1
    s_cbranch_scc1 L_aok
    s_cmp_eq_u32 s49, 0x5afe
    s_cbranch_scc0 L_fallback
    """)
    p.label("L_aok")
    p(f"""
    buffer_store_dwordx4 {vr(PP,4)}, v{VL16}, s[40:43], s45 offen sc1
    buffer_store_dwordx4 {vr(PP+4,4)}, v{VL16}, s[40:43], s45 offen offset:1024 sc1
    s_lshl_b32 s45, s11, 11
    s_lshl_b32 s46, s7, 7
    s_add_u32 s45, s45, s46
    s_add_u32 s45, s45, {OFL}
    s_mov_b64 exec, 1
    s_waitcnt vmcnt(0)
    buffer_store_dwordx2 {vr(T,2)}, off, s[40:43], s45 sc1
    """)
    endpgm(p)
    p.label("L_fallback")
    M, MN, AL, TM, T3 = 100, 101, 102, 103, 104
    p("s_mov_b32 s49, 0x5afe")
    for i in range(16):
        p(f"v_mov_b32 v{O+i}, 0")
    p(f"v_mov_b32 v{M}, 0xff800000\ns_mov_b32 s14, 0")
    p.label("L_fbloop")
    p(f"""
    buffer_load_dwordx4 {vr(KF,4)}, v{VL16}, s[36:39], s14 offen sc1
    buffer_load_dwordx4 {vr(KF+4,4)}, v{VL16}, s[36:39], s14 offen offset:1024 sc1
    buffer_load_dwordx4 {vr(VF,4)}, v{VL16}, s[36:39], s14 offen offset:2048 sc1
    buffer_load_dwordx4 {vr(VF+4,4)}, v{VL16}, s[36:39], s14 offen offset:3072 sc1
    s_waitcnt vmcnt(2)
    {MFMA} {vr(S0,16)}, {vr(KF,4)}, {vr(Q,4)}, 0
    {MFMA} {vr(S0,16)}, {vr(KF+4,4)}, {vr(Q+4,4)}, {vr(S0,16)}
    v_max3_f32 v{TM}, v{S0}, v{S0+1}, v{S0+2}
    """)
    for i in range(3, 15, 2):
        p(f"v_max3_f32 v{TM}, v{S0+i}, v{S0+i+1}, v{TM}")
    p(f"""
    v_max_f32 v{TM}, v{S0+15}, v{TM}
    v_mov_b32 v{T3}, v{TM}
    v_permlane32_swap_b32 v{TM}, v{T3}
    v_max3_f32 v{MN}, v{TM}, v{T3}, v{M}
    v_sub_f32 v{AL}, v{M}, v{MN}
    v_exp_f32 v{AL}, v{AL}
    v_mov_b32 v{M}, v{MN}
    """)
    for i in range(16):
        p(f"v_sub_f32 v{S0+i}, v{S0+i}, v{MN}")
    for i in range(16):
        p(f"v_exp_f32 v{S0+i}, v{S0+i}")
    for i in range(16):
        p(f"v_mul_f32 v{O+i}, v{O+i}, v{AL}")
    pack16(p, PP, S0)
    p(f"""
    s_waitcnt vmcnt(0)
    {MFMA} {vr(O,16)}, {vr(VF,4)}, {vr(PP,4)}, {vr(O,16)}
    {MFMA} {vr(O,16)}, {vr(VF+4,4)}, {vr(PP+4,4)}, {vr(O,16)}
    s_add_u32 s14, s14, 4096
    s_cmp_lt_u32 s14, 262144
    s_cbranch_scc1 L_fbloop
    s_branch L_afin
    """)


def gen_s(p, S_W):
    VL16, VQ, VF_, VS_ = 1, 2, 3, 7
    p(f"""
    s_sub_u32 s4, s{S_W}, 8
    s_and_b32 s9, s4, 1
    s_lshr_b32 s10, s4, 1
    v_bfe_u32 v13, v0, 2, 3
    s_mul_i32 s12, s9, 224
    s_lshl_b32 s13, s10, 3
    s_add_u32 s12, s12, s13
    v_add_u32 v13, s12, v13
    v_lshrrev_b32 v14, 5, v0
    v_and_b32 v15, 3, v0
    v_lshlrev_b32 v15, 4, v15
    v_mul_u32_u24 v{VF_}, 3584, v13
    v_add_u32 v{VF_}, v{VF_}, v15
    v_lshl_add_u32 v{VF_}, v14, 6, v{VF_}
    v_lshrrev_b32 v{VS_}, 2, v0
    s_mul_i32 s12, s9, 224
    v_add_u32 v{VS_}, s12, v{VS_}
    v_mul_u32_u24 v{VS_}, 3584, v{VS_}
    v_add_u32 v{VS_}, v{VS_}, v15
    v_mul_u32_u24 v{VQ}, 2688, v13
    v_mul_u32_u24 v14, 48, v14
    v_add3_u32 v{VQ}, v{VQ}, v14, v15
    v_lshlrev_b32 v{VL16}, 4, v0
    s_lshl_b32 s56, s10, 11
    s_lshl_b32 s12, s9, 10
    s_add_u32 s56, s56, s12
    s_mul_i32 s64, s7, 112
    s_add_u32 s65, s64, 896
    s_cmp_eq_u32 s8, 1
    s_cselect_b32 s12, 0, 1792
    s_cselect_b32 s13, 0, 256
    s_add_u32 s64, s64, s12
    s_mul_i32 s66, s7, 384
    s_add_u32 s66, s66, s13
    s_lshl_b32 s67, s7, 6
    s_add_u32 s67, s67, {48*64}
    """)
    p.label("L_ld_p")
    p("s_waitcnt lgkmcnt(0)")
    srd(p, 36, P_WQKV, 448 * 2688)
    srd(p, 40, P_WG, 448 * 3584)
    PF = 24
    VFQ, TGV, FL = 6, 4, 8
    PB = int(ENV("PB", 14))
    EVD = int(ENV("EVD", 2))

    def qkv_poll(emit):
        return emit(f"buffer_load_dwordx2 {vr(FL,2)}, v{VFQ}, s[44:47], s62 offen sc1")

    def late_setup(sfx):
        if ENV("TLB", "1") != "0":
            TA = 44
            p(f"""
            s_cmp_lg_u32 s4, 0
            s_cbranch_scc1 L_notlb{sfx}
            v_min_u32 v{TA}, {WS_USED // (2*MB) - 1}, v0
            v_lshlrev_b32 v{TA}, 21, v{TA}
            v_mov_b32 v{TA+1}, s{P_WS+1}
            v_add_co_u32 v{TA}, vcc, s{P_WS}, v{TA}
            v_addc_co_u32 v{TA+1}, vcc, 0, v{TA+1}, vcc
            """)
            bufs = [(P_WG, 448 * 3584), (P_WU, 448 * 3584), (P_WD, 1792 * 896), (P_WO, 448 * 896), (P_OUT, 2048 * 896), (P_DBG, 256)]
            for i, (b, n) in enumerate(bufs):
                p(f"""
                v_writelane_b32 v{TA}, s{b}, {16+2*i}
                v_writelane_b32 v{TA+1}, s{b+1}, {16+2*i}
                s_add_u32 s12, s{b}, {n-4}
                s_addc_u32 s13, s{b+1}, 0
                v_writelane_b32 v{TA}, s12, {17+2*i}
                v_writelane_b32 v{TA+1}, s13, {17+2*i}
                """)
            p(f"global_load_dword v{TA+2}, {vr(TA,2)}, off sc1")
            p.label("L_notlb" + sfx)
        srd(p, 72, P_WU, 448 * 3584)
        srd(p, 48, P_WD, 1792 * 896)
        srd(p, 52, P_WO, 448 * 896)
        srd(p, 44, P_WS, WS_USED)
        p(f"""
        s_cmp_eq_u32 s10, 0
        s_cselect_b32 s76, s{P_WG}, s{P_WU}
        s_cselect_b32 s77, s{P_WG+1}, s{P_WU+1}
        s_mov_b32 s78, {448*3584}
        s_mov_b32 s79, 0x20000
        s_lshl_b32 s57, s9, 11
        s_lshl_b32 s12, s10, 10
        s_add_u32 s57, s57, s12
        s_lshl_b32 s62, s5, 12
        s_add_u32 s62, s62, {QKVF}
        s_and_b32 s63, s6, 15
        s_add_u32 s63, s63, 16
        v_mov_b32 v{VFQ}, s63
        v_cmp_gt_u32 vcc, 16, v0
        v_cndmask_b32 v{VFQ}, v{VFQ}, v0, vcc
        v_lshlrev_b32 v{VFQ}, 7, v{VFQ}
        """)

    def stream(kinds):
        spec = {"V": (36, VQ, 64, 0), "Q": (36, VQ, 64, 0), "K": (36, VQ, 65, 0), "G": (40, VF_, 66, 0), "U": (72, VF_, 66, 0),
                "g": (40, VF_, 66, 128), "u": (72, VF_, 66, 128), "S": (76, VS_, 67, 0)}
        stages = [[(kinds[q >> 1], 32 * c + 16 * (q & 1)) for q in range(4)] for c in range(7)]
        stages += [[(kinds[ps], 64 * sl + 16 * q) for q in range(2 if sl == 3 else 4)] for ps in range(2, 5) for sl in range(4)]
        vm = VM(p)
        last = {}
        issued = 0
        nq = 0

        def issue1():
            nonlocal issued, nq
            kind, row = stages[issued][nq]
            s_, v, col, add = spec[kind]
            stride = 2688 if s_ == 36 else 3584
            p(f"s_add_u32 m0, {'s57' if kind == 'S' else 's56'}, {phys(issued)*SLOT + nq*4096}")
            p(f"s_add_u32 s13, s{col}, {row*stride + add}")
            if ENV("NOFILL"):
                last[issued] = None
            else:
                last[issued] = vm.op(f"buffer_load_dwordx4 v{v}, s[{s_}:{s_+3}], s13 offen lds")
            nq += 1
            if nq == len(stages[issued]):
                nq = 0
                issued += 1

        def issue():
            c = issued
            while issued == c:
                issue1()
        if TL:
            p("v_mov_b32 v60, 0")
        tl(p, 0)
        def wpf():
            p(f"s_lshl_b32 s13, s2, 2\ns_add_u32 s13, s13, s4\ns_lshl_b32 s13, s13, 10\ns_add_u32 s14, s13, {1 << 20}")
            mats = (36, 40, 72) if ENV("CPF", "1") == "0" else (72,) if ENV("CPF") == "2" else ()
            for r in mats + ((48,) if ENV("WDPF", "1") == "1" else ()):
                vm.op(f"buffer_load_dwordx4 {vr(PF,4)}, v{VL16}, s[{r}:{r+3}], s13 offen")
                vm.op(f"buffer_load_dwordx4 {vr(PF,4)}, v{VL16}, s[{r}:{r+3}], s14 offen")
        issue(); issue()
        late_setup(kinds)
        if ENV("WPF", "1") != "0":
            wpf()
        tl(p, 1)
        dbg = ENV("SDBG")
        p(f"s_barrier\ns_barrier\ns_setprio {ENV('SPRIO', 0)}")
        if dbg: stamp(p, 1)
        tl(p, 2)
        issue(); issue()
        vm.need(last[1])
        tl(p, 3)
        p("s_barrier")
        tl(p, 4)
        if dbg: stamp(p, 2)
        issue(); issue()
        if dbg: stamp(p, 3)
        for i in range(1, PB + EVD):
            assert issued > i + 1
            vm.need(last[i + 1])
            tl(p, 3 + 2 * i)
            p("s_barrier")
            tl(p, 4 + 2 * i)
            budget = 6 if i < 7 else eval(ENV("BUD", "[2, 8, 8, 3]"))[(i - 7) % 4]
            while budget > 0 and issued < min(NST, max(9, i + 6)):
                budget -= 1
                issue1()
            if i == 6:
                p(f"v_mov_b32 v{TGV}, {TAGL}\nds_read_b64 {vr(TGV,2)}, v{TGV}\ns_waitcnt lgkmcnt(0)")
            if i == 10:
                p(f"""
                s_cmp_lg_u32 s4, 0
                s_cbranch_scc1 L_noinit{kinds}
                v_lshlrev_b32 v22, 2, v0
                v_add_u32 v22, {CNT}, v22
                v_mov_b32 v23, 0
                ds_write_b32 v22, v23
                s_waitcnt lgkmcnt(0)
                L_noinit{kinds}:
                """)
            if i == PB:
                pollid = qkv_poll(vm.op)
            if i == int(ENV('PFI', 99)):
                PFMODE = ENV("PFMODE", "chip")
                if PFMODE == "chip":
                    p(f"s_lshl_b32 s13, s2, 2\ns_add_u32 s13, s13, s4\ns_lshl_b32 s14, s13, 11\ns_lshl_b32 s13, s13, 9")
                    vm.op(f"buffer_load_dwordx4 {vr(PF,4)}, v{VL16}, s[48:51], s14 offen")
                    vm.op(f"buffer_load_dwordx4 {vr(PF+4,4)}, v{VL16}, s[48:51], s14 offen offset:1024")
                    vm.op(f"buffer_load_dwordx4 {vr(PF+8,4)}, v{VL16}, s[52:55], s13 offen")
            if ENV("PFMODE", "chip") == "xcd" and 5 <= i < 9:
                k = i - 5
                if k == 0:
                    p(f"s_lshl_b32 s13, s6, 2\ns_add_u32 s13, s13, s4\ns_mul_i32 s57, s13, {13*1024}\ns_lshl_b32 s58, s13, 12")
                    for q in range(4):
                        vm.op(f"buffer_load_dwordx4 {vr(PF+4*q,4)}, v{VL16}, s[52:55], s58 offen offset:{q*1024}")
                    vm.op(f"buffer_load_dwordx4 {vr(PF+16,4)}, v{VL16}, s[48:51], s57 offen")
                    p("s_add_u32 s57, s57, 1024")
                else:
                    for q in range(4):
                        vm.op(f"buffer_load_dwordx4 {vr(PF+4*q,4)}, v{VL16}, s[48:51], s57 offen offset:{q*1024}")
                    p("s_add_u32 s57, s57, 4096")
        assert issued == NST
    p("s_cmp_eq_u32 s8, 1\ns_cbranch_scc1 L_ld_b")
    stream("VKGUS")
    p("s_branch L_ld_done")
    p.label("L_ld_b")
    stream("QGUgu")
    p.label("L_ld_done")
    if not ENV("SDBG"):
        stamp(p, 1)
    tl_dump(p)
    if ENV("STOPB"):
        endpgm(p)
    p(f"""
    s_lshr_b32 s7, s6, 4
    s_lshl_b32 s8, s5, 1
    s_add_u32 s7, s7, s8                ; head
    s_and_b32 s8, s6, 15                ; q block
    """)
    VKV = 2
    p(f"""
    s_lshl_b32 s12, s7, 18
    s_add_u32 s12, s12, {KV_OFF}
    s_lshl_b32 s13, s4, 12              ; s*4096
    v_add_u32 v{VKV}, s13, v{VL16}
    s_lshl_b32 s66, s7, 17
    s_lshl_b32 s3, s8, 13
    s_add_u32 s66, s66, s3
    s_lshl_b32 s3, s4, 11
    s_add_u32 s66, s66, s3
    s_add_u32 s66, s66, {QF_OFF}
    s_add_u32 s67, s3, {QL}
    s_mov_b32 s68, 0                    ; ready
    s_mov_b32 s69, 0
    s_mov_b32 s70, {PB+EVD}
    s_mov_b32 s71, {SPIN_MAX}
    s_add_u32 s64, s13, {4*SLOT}
    """)
    srd(p, 36, P_WS, 262144, "s12")
    srd(p, 40, P_WS, WS_USED)
    p.label("L_pl")
    p(f"""
    s_cmp_lg_u32 s68, 0
    s_cbranch_scc1 L_pl_ready
    s_cmp_ge_u32 s70, 19
    s_cbranch_scc1 L_pl_eval
    s_cmp_lg_u32 s70, {PB+EVD}
    s_cbranch_scc1 L_pl_bar
    L_pl_eval:
    s_waitcnt vmcnt(0)
    v_cmp_eq_u64 s[60:61], {vr(FL,2)}, {vr(TGV,2)}
    """)
    p(f"""
    s_sub_u32 s71, s71, 1
    s_cselect_b32 s68, 1, 0
    s_cmp_eq_u64 s[60:61], -1
    s_cselect_b32 s68, 1, s68
    s_cmp_lg_u32 s68, 0
    s_cbranch_scc1 L_pl_q
    """)
    qkv_poll(lambda t: p(t))
    p(f"""
    s_branch L_pl_bar
    L_pl_q:
    s_mov_b32 m0, s67
    s_nop 0
    buffer_load_dwordx4 v{VL16}, s[40:43], s66 offen sc1 lds
    buffer_load_dwordx4 v{VL16}, s[40:43], s66 offen offset:1024 sc1 lds
    L_pl_ready:
    s_add_u32 s3, s69, 15
    s_cmp_gt_u32 s3, s70
    s_cbranch_scc1 L_pl_bar
    s_cmp_ge_u32 s69, 4
    s_cbranch_scc1 L_pl_bar
    s_lshl_b32 s14, s69, 14
    s_mov_b32 m0, s64
    s_add_u32 s69, s69, 1
    buffer_load_dwordx4 v{VKV}, s[36:39], s14 offen sc1 lds
    buffer_load_dwordx4 v{VKV}, s[36:39], s14 offen offset:1024 sc1 lds
    buffer_load_dwordx4 v{VKV}, s[36:39], s14 offen offset:2048 sc1 lds
    buffer_load_dwordx4 v{VKV}, s[36:39], s14 offen offset:3072 sc1 lds
    s_add_u32 s64, s64, {SLOT}
    s_cmp_eq_u32 s69, 2
    s_cselect_b32 s64, s13, s64
    s_branch L_pl_ready
    L_pl_bar:
    s_cmp_ge_u32 s70, 19
    s_cbranch_scc1 L_pl_nobar
    s_barrier
    s_add_u32 s70, s70, 1
    s_branch L_pl
    L_pl_nobar:
    s_cmp_ge_u32 s69, 4
    s_cbranch_scc1 L_pl_done
    s_sleep 4
    s_branch L_pl
    L_pl_done:
    v_mov_b32 v{FL}, {CNT}
    v_mov_b32 v{FL+1}, 1
    s_mov_b64 exec, 1
    s_waitcnt vmcnt(8)
    ds_add_u32 v{FL}, v{FL+1} offset:96
    s_waitcnt vmcnt(0)
    ds_add_u32 v{FL}, v{FL+1} offset:4
    ds_add_u32 v{FL}, v{FL+1} offset:132
    s_mov_b64 exec, -1
    s_mul_i32 s14, s8, {12*1024}
    s_mul_i32 s3, s4, {3*1024}
    s_add_u32 s14, s14, s3
    s_add_u32 s14, s14, {2*KVS}
    buffer_load_dwordx4 {vr(FL+4,4)}, v{VL16}, s[36:39], s14 offen sc1
    buffer_load_dwordx4 {vr(FL+4,4)}, v{VL16}, s[36:39], s14 offen offset:1024 sc1
    buffer_load_dwordx4 {vr(FL+4,4)}, v{VL16}, s[36:39], s14 offen offset:2048 sc1
    s_lshl_b32 s3, s2, 2
    s_add_u32 s3, s3, s4
    s_lshl_b32 s3, s3, 9
    buffer_load_dwordx4 {vr(FL+4,4)}, v{VL16}, s[52:55], s3 offen
    s_cmp_ge_u32 s6, {0 if ENV("NODOWN") else 28}
    s_cbranch_scc1 L_s_end
    s_barrier                           ; barrier(19)
    s_barrier
    s_setprio {ENV("DPRIO0", 0)}
    """)
    stamp(p, 2)
    ACC, WF, HB = 8, 72, 88
    VD, VT0, VT1, VX = 2, 3, 6, 7
    GR, XF = 144, 160
    NRING = 7
    p(f"""
    s_and_b32 s9, s6, 3
    s_lshl_b32 s10, s5, 2
    s_add_u32 s9, s9, s10
    s_lshr_b32 s10, s6, 2
    s_lshr_b32 s11, s4, 1
    s_lshl_b32 s57, s9, 1
    s_add_u32 s57, s57, s11
    s_xor_b32 s58, s57, 1
    s_mul_i32 s3, s4, {12*2048}
    s_add_u32 s3, s3, {H_OFF}
    s_mul_i32 s60, s57, 114688
    s_add_u32 s60, s60, s3
    s_mul_i32 s61, s58, 114688
    s_add_u32 s61, s61, s3
    v_bfe_u32 v{VX}, v0, 2, 3
    v_mul_u32_u24 v{VX}, 896, v{VX}
    v_lshrrev_b32 v{VT0}, 5, v0
    v_lshl_add_u32 v{VX}, v{VT0}, 6, v{VX}
    v_and_b32 v{VT0}, 3, v0
    v_lshl_add_u32 v{VX}, v{VT0}, 4, v{VX}
    s_lshl_b32 s14, s10, 7
    v_add_u32 v{VD}, s14, v{VX}
    v_lshrrev_b32 v{VX}, 5, v0
    v_lshlrev_b32 v{VX}, 8, v{VX}
    v_bfe_u32 v{VT0}, v0, 2, 2
    v_lshl_add_u32 v{VX}, v{VT0}, 6, v{VX}
    v_bfe_u32 v{VT0}, v0, 4, 1
    v_lshl_add_u32 v{VX}, v{VT0}, 5, v{VX}
    v_and_b32 v{VT0}, 3, v0
    v_lshl_add_u32 v{VX}, v{VT0}, 3, v{VX}
    s_lshl_b32 s15, s4, 14
    s_add_u32 s15, s15, {PRIV}
    s_and_b32 s3, s4, 1
    s_lshl_b32 s3, s3, 9
    s_add_u32 s3, s3, s15
    v_add_u32 v{VT0}, s3, v{VX}
    v_xor_b32 v{VT1}, 512, v{VT0}
    s_mul_i32 s62, s4, {12*32*896}
    s_mul_i32 s63, s4, -10
    s_add_u32 s63, s63, 48
    s_lshl_b32 s64, s63, 11
    s_add_u32 s65, s64, s61
    s_add_u32 s64, s64, s60
    s_mul_i32 s63, s63, {32*896}
    s_add_u32 s63, s63, s62
    """)
    vm = VM(p)

    order = [0, 1, 6, 7, 4, 5, 10, 11, 2, 3, 8, 9, 12, 13]
    seg_end = [8, 16, 28]
    seg_mask = [0x11, 0x22, 0xCC]

    def wload(ks):
        sl = ks % NRING
        if ks >= 28:
            for o in range(2):
                p(f"s_add_u32 m0, s15, {sl*2048 + o*1024}")
                p(f"s_add_u32 s14, s67, {(16*sl + 8*o)*896}")
                vm.op(f"buffer_load_dwordx4 v{VD}, s[52:55], s14 offen lds")
            return
        t = order[ks >> 1]
        base, t = ("s62", t) if t < 12 else ("s63", t - 12)
        for o in range(2):
            p(f"s_add_u32 m0, s15, {sl*2048 + o*1024}")
            p(f"s_add_u32 s14, {base}, {(32*t + 16*(ks&1) + 8*o)*896}")
            wid[ks] = vm.op(f"buffer_load_dwordx4 v{VD}, s[48:51], s14 offen lds")

    def hload(ks):
        sl = ks % NRING
        t = order[ks >> 1]
        (b0, b1), t = (("s60", "s61"), t) if t < 12 else (("s64", "s65"), t - 12)
        off = t * 2048 + (ks & 1) * 1024
        for r, b_ in enumerate((b0, b1)):
            if off >= 4096:
                p(f"s_add_u32 s14, {b_}, {off & ~4095}")
            hid[ks] = vm.op(f"buffer_load_dwordx4 {vr(HB+8*sl+4*r,4)}, v{VL16}, s[40:43], {'s14' if off >= 4096 else b_} offen offset:{off & 4095} sc1")
    wid, hid = {}, {}
    VFA, FT = GR, GR + 2
    p(f"""
    v_and_b32 v{VFA}, 7, v0
    v_lshlrev_b32 v{VFA}, 7, v{VFA}
    s_lshr_b32 s66, s9, 1
    s_lshl_b32 s66, s66, 12
    s_lshl_b32 s3, s4, 10
    s_add_u32 s66, s66, s3
    s_add_u32 s66, s66, {HFL}
    s_mov_b32 s71, {SPIN_MAX}
    s_mul_i32 s67, s4, {112*896}
    v_and_b32 v{VX}, 31, v0
    s_lshl_b32 s14, s57, 5
    v_add_u32 v{VX}, s14, v{VX}
    v_mul_u32_u24 v{VX}, 896, v{VX}
    v_lshrrev_b32 v0, 5, v0
    v_lshl_add_u32 v{VX}, v0, 3, v{VX}
    s_and_b32 s14, s4, 1
    s_lshl_b32 s14, s14, 6
    s_lshl_b32 s3, s10, 7
    s_add_u32 s14, s14, s3
    v_add_u32 v0, s14, v{VX}
    """)
    VXO = 0
    srd(p, 44, P_X, 2048 * 896)
    for g4 in range(4):
        vm.op(f"buffer_load_dwordx2 {vr(XF+2*g4,2)}, v{VXO}, s[44:47], 0 offen offset:{16*g4}")

    def hpoll(k):
        label = f"L_hp{k}"
        p(f"s_mov_b32 s68, {seg_mask[k]}\ns_mov_b32 s69, 0\ns_mov_b32 s71, {SPIN_MAX}")
        p.label(label)
        p(f"""
        buffer_load_dwordx2 {vr(FT,2)}, v{VFA}, s[40:43], s66 offen sc1
        s_sub_u32 s71, s71, 1
        s_waitcnt vmcnt(0)
        v_cmp_eq_u64 vcc, {vr(FT,2)}, {vr(TGV,2)}
        s_cmp_eq_u32 s71, 0
        s_cbranch_scc1 {label}_x
        s_and_b64 vcc, vcc, s[68:69]
        s_cmp_eq_u64 vcc, s[68:69]
        s_cbranch_scc1 {label}_x
        s_sleep 8
        s_branch {label}
        {label}_x:
        """)
        vm.done = vm.n

    def trd(wb, base, a0=VT0, a1=VT1):
        for c, a in enumerate((a0, a1)):
            for b in range(2):
                p(f"ds_read_b64_tr_b16 {vr(wb+4*c+2*b,2)}, v{a} offset:{base + b*1024}")
    LOOK = int(ENV("LOOK", 3))
    seg, hn = 0, 0

    def hfill(done):
        nonlocal hn
        while hn < min(seg_end[seg], done + NRING):
            hload(hn)
            hn += 1
    for ks in range(2):
        wload(ks)
    hpoll(0)
    stamp(p, 3)
    for ks in range(NRING):
        hload(ks)
        if ks + 2 < NRING:
            wload(ks + 2)
    hn = NRING
    p(f"s_setprio {ENV('DPRIO', 0)}")
    trd(WF, 0)
    for ks in range(28):
        sl = ks % NRING
        wb = WF + 8 * (ks & 1)
        if ks + 1 < 28:
            vm.need(wid[ks + 1])
            trd(WF + 8 * ((ks + 1) & 1), ((ks + 1) % NRING) * 2048)
        vm.need(hid[ks])
        p(f"s_waitcnt lgkmcnt({4 if ks + 1 < 28 else 0})")
        for a in range(4):
            ac = vr(ACC + 16 * a, 16)
            p(f"{MFMA} {ac}, {vr(wb+4*(a&1),4)}, {vr(HB+8*sl+4*(a>>1),4)}, {'0' if ks == 0 else ac}")
            if ENV("DINT") and a == 0 and ks >= 1:
                hfill(ks)
            if ENV("DINT") and a == 1 and ks + NRING < 28:
                wload(ks + NRING)
        if seg < 2 and ks + 1 + LOOK == seg_end[seg]:
            seg += 1
            hpoll(seg)
            hfill(ks + 1)
        if not ENV("DINT"):
            hfill(ks + 1)
            wload(ks + NRING)
    stamp(p, 4)

    def send():
        p(f"v_add_u32 v{VX}, s15, v{VL16}")
        for a in range(1, 4):
            for r in range(4):
                p(f"ds_write_b128 v{VX}, {vr(ACC+16*a+4*r,4)} offset:{(a-1)*4096 + r*1024}")

    def ssync(k):
        p(f"v_mov_b32 v{WF+1}, {CNT_S0 + 4*k}\nv_mov_b32 v{WF+2}, 1")
        p(f"s_mov_b64 exec, 1\ns_waitcnt lgkmcnt(0)\nds_add_u32 v{WF+1}, v{WF+2}\ns_mov_b64 exec, -1")
        lds_spin(p, f"L_ss{k}", f"v{WF+1}", WF, "4", 71)

    def recv():
        for a in range(1, 4):
            p(f"s_xor_b32 s3, s4, {a}\ns_lshl_b32 s3, s3, 14\ns_add_u32 s3, s3, {PRIV + (a-1)*4096}\nv_add_u32 v{VX}, s3, v{VL16}")
            for r in range(4):
                p(f"ds_read_b128 {vr(ACC+16*a+4*r,4)}, v{VX} offset:{r*1024}")

    def addup():
        for a in range(1, 4):
            p(f"s_waitcnt lgkmcnt({4*(3-a)})")
            for r in range(16):
                p(f"v_add_f32 v{ACC+r}, v{ACC+r}, v{ACC+16*a+r}")
    d7 = ENV("SD7")
    if d7: stamp(p, 1)
    p(f"""
    v_mov_b32 v{WF+1}, {CNT}
    v_mov_b32 v{WF+2}, 1
    s_lshl_b32 s3, s4, 2
    v_mov_b32 v{WF+3}, s3
    v_add_u32 v{WF+3}, {CNT_S0 + 4}, v{WF+3}
    v_xor_b32 v{WF+4}, 8, v{WF+3}
    v_xor_b32 v{WF+5}, 4, v{WF+3}
    s_and_b32 s3, s4, 1
    s_lshl_b32 s3, s3, 13
    s_cmp_lt_u32 s4, 2
    s_cselect_b32 s14, 0, {SLOT}
    s_add_u32 s3, s3, s14
    s_add_u32 s3, s3, {2*SLOT}
    v_add_u32 v{VX}, s3, v{VL16}                    ; area(kq)
    v_xor_b32 v{VD}, {SLOT}, v{VX}                  ; area(kq^2)
    """)
    lds_spin(p, "L_g0", f"v{WF+1} offset:48", WF, "4", 71)
    lds_spin(p, "L_g1", f"v{WF+1} offset:176", WF, "4", 71)
    for i in range(8):
        p(f"ds_write_b128 v{VX}, {vr(ACC+32+4*i,4)} offset:{i*1024}")
    p(f"s_waitcnt lgkmcnt(0)\nds_write_b32 v{WF+3}, v{WF+2}")
    lds_spin(p, "L_h1", f"v{WF+4}", WF, "1", 71)
    if d7: stamp(p, 2)
    for i in (4, 5, 6, 7, 0, 1, 2, 3):
        p(f"ds_read_b128 {vr(ACC+32+4*i,4)}, v{VD} offset:{i*1024}")
    p("s_waitcnt lgkmcnt(4)")
    for r in range(16):
        p(f"v_add_f32 v{ACC+16+r}, v{ACC+16+r}, v{ACC+48+r}")
    p("s_waitcnt lgkmcnt(0)")
    for i in range(4):
        p(f"ds_write_b128 v{VD}, {vr(ACC+16+4*i,4)} offset:{i*1024}")
    for r in range(16):
        p(f"v_add_f32 v{ACC+r}, v{ACC+r}, v{ACC+32+r}")
    p(f"v_xor_b32 v{VX}, 8192, v{VX}\ns_waitcnt lgkmcnt(0)\nds_write_b32 v{WF+3}, v{WF+2} offset:16")
    if d7: stamp(p, 3)
    lds_spin(p, "L_h2", f"v{WF+5} offset:16", WF, "1", 71)
    p(f"v_xor_b32 v{VX}, {SLOT}, v{VX}")
    for i in range(4):
        p(f"ds_read_b128 {vr(ACC+16+4*i,4)}, v{VX} offset:{i*1024}")
    for i in range(4):
        p(f"s_waitcnt lgkmcnt({3-i})")
        for r in range(4 * i, 4 * i + 4):
            p(f"v_add_f32 v{ACC+r}, v{ACC+r}, v{ACC+16+r}")
    if d7: stamp(p, 4)
    T = ACC + 16
    p(f"s_mov_b32 s3, {f32(-LOG2E)}")
    for i in range(16):
        p(f"v_mul_f32 v{T+i}, s3, v{ACC+i}")
    for i in range(16):
        p(f"v_exp_f32 v{T+i}, v{T+i}")
    for i in range(16):
        p(f"v_add_f32 v{T+i}, 1.0, v{T+i}")
    for i in range(16):
        p(f"v_rcp_f32 v{T+i}, v{T+i}")
    GREG = [GR + i for i in range(16)]
    for i in range(16):
        p(f"v_mul_f32 v{GREG[i]}, v{ACC+i}, v{T+i}")
    if ENV("DUMP_G"):
        for i in range(8):
            p(f"v_cvt_pk_bf16_f32 v{T+i}, v{GREG[2*i]}, v{GREG[2*i+1]}")
        p(f"""
        s_mul_i32 s14, s57, {14*2048}
        s_lshl_b32 s3, s10, 1
        s_and_b32 s63, s4, 1
        s_add_u32 s3, s3, s63
        s_lshl_b32 s3, s3, 11
        s_add_u32 s14, s14, s3
        s_add_u32 s14, s14, {G_OFF}
        buffer_store_dwordx4 {vr(T,4)}, v{VL16}, s[40:43], s14 offen
        buffer_store_dwordx4 {vr(T+4,4)}, v{VL16}, s[40:43], s14 offen offset:1024
        """)
    p(f"""
    v_bfe_u32 v{WF+4}, v{VL16}, 4, 2
    v_lshlrev_b32 v{VX}, 7, v{WF+4}
    v_bfe_u32 v{WF}, v{VL16}, 6, 1
    v_lshl_add_u32 v{VX}, v{WF}, 11, v{VX}
    s_lshl_b32 s14, s9, 12
    s_lshl_b32 s3, s4, 9
    s_add_u32 s14, s14, s3
    s_add_u32 s14, s14, {OFL}
    s_mov_b32 s71, {SPIN_MAX}
    s_lshl_b32 s3, s4, 13
    s_add_u32 s3, s3, {O_OFF}
    s_lshl_b32 s60, s57, 15
    s_add_u32 s60, s60, s3
    s_lshl_b32 s61, s58, 15
    s_add_u32 s61, s61, s3
    s_add_u32 s62, s60, 4096
    s_add_u32 s63, s61, 4096
    v_lshlrev_b32 v{WF+4}, 3, v{WF+4}
    v_add_u32 v{WF+4}, {CNT_COMB}, v{WF+4}
    """)
    stamp(p, 5)
    p(f"s_setprio {ENV('DPRIO3', 0)}")
    p.label("L_op")
    p(f"""
    buffer_load_dwordx2 {vr(WF,2)}, v{VX}, s[40:43], s14 offen sc1
    s_sub_u32 s71, s71, 1
    s_waitcnt vmcnt(0)
    v_cmp_eq_u64 vcc, {vr(WF,2)}, {vr(TGV,2)}
    s_cmp_eq_u32 s71, 0
    s_cbranch_scc1 L_op_x
    s_cmp_eq_u64 vcc, -1
    s_cbranch_scc1 L_op_x
    ds_read_b32 v{WF+2}, v{WF+4}
    s_waitcnt lgkmcnt(0)
    v_cmp_eq_u32 vcc, 2, v{WF+2}
    s_cmp_eq_u64 vcc, -1
    s_cbranch_scc1 L_op
    s_sleep {ENV("OSLEEP", 2)}
    s_branch L_op
    L_op_x:
    """)
    stamp(p, 6)
    vm = VM(p)
    OB = HB
    oid = {}

    def oload(kk, r):
        sreg = (("s60", "s61"), ("s62", "s63"))[kk >> 2][r]
        slot = (2 * kk + r) % 14
        oid[(kk, r)] = vm.op(f"buffer_load_dwordx4 {vr(OB+4*slot,4)}, v{VL16}, s[40:43], {sreg} offen offset:{(kk&3)*1024} sc1")
    for kk in range(7):
        oload(kk, 0); oload(kk, 1)

    def wrd(kk):
        hh, s_ = kk >> 1, kk & 1
        row = 28 * hh - 4 * (hh & 1) + 16 * s_
        trd(WF + 8 * (kk & 1), (row >> 3) * 1024)
    wrd(0)
    for kk in range(8):
        if kk + 1 < 8:
            wrd(kk + 1)
        wb = WF + 8 * (kk & 1)
        p(f"s_waitcnt lgkmcnt({4 if kk + 1 < 8 else 0})")
        for a in range(4):
            vm.need(oid[(kk, a >> 1)])
            ac = vr(ACC + 16 * a, 16)
            p(f"{MFMA} {ac}, {vr(wb+4*(a&1),4)}, {vr(OB+4*((2*kk+(a>>1))%14),4)}, {'0' if kk == 0 else ac}")
        if kk == 0:
            oload(7, 0); oload(7, 1)
    if ENV("SD8"): stamp(p, 1)
    send()
    srd(p, 44, P_OUT, 2048 * 896)
    XE = HB
    for i in range(8):
        p(f"v_lshlrev_b32 v{XE+2*i}, 16, v{XF+i}")
        p(f"v_and_b32 v{XE+2*i+1}, 0xffff0000, v{XF+i}")
    ssync(0)
    if ENV("SD8"): stamp(p, 2)
    recv()
    addup()
    if ENV("SD8"): stamp(p, 3)
    for i in range(16):
        p(f"v_fma_f32 v{ACC+i}, v{ACC+i}, v{GREG[i]}, v{XE+i}")
    pack16(p, WF, ACC)
    for g4 in range(4):
        p(f"buffer_store_dwordx2 {vr(WF+2*g4,2)}, v{VXO}, s[44:47], 0 offen offset:{16*g4}")
    p.label("L_s_end")
    endpgm(p)


def main():
    ref = open("cdna_kernels/" + NAME + ".s.ref").read().split("\n")
    head = [l for l in ref if l.startswith(";") and "@launch" not in l and "Override launch" not in l and "grid=ceil" not in l]
    p = Prog()
    gen(p)
    body = p.finalize()
    out = head[:]
    out.append("; @launch grid=(256,1,1) block=(768,1,1) lds=163840")
    out.append('.amdgcn_target "amdgcn-amd-amdhsa--gfx950"\n.text')
    out.append(body)
    out.append(f""".section .rodata,"a"
.p2align 6
.amdhsa_kernel {KN}
  .amdhsa_next_free_vgpr 168
  .amdhsa_next_free_sgpr 100
  .amdhsa_accum_offset 168
  .amdhsa_group_segment_fixed_size 0
  .amdhsa_kernarg_size 80
  .amdhsa_user_sgpr_count 2
  .amdhsa_user_sgpr_kernarg_segment_ptr 1
  .amdhsa_system_sgpr_workgroup_id_x 1
.end_amdhsa_kernel""")
    if ENV("PLAINLD"):
        import re
        out = [re.sub(r"(buffer_load_dwordx4 .*) sc1( lds)?$", r"\1\2", l, flags=re.M) if "s[44:47], s6" not in l else l for l in "\n".join(out).split("\n")]
    path = sys.argv[1] if len(sys.argv) > 1 else "cdna_kernels/" + NAME + ".s"
    open(path, "w").write("\n".join(out) + "\n")
    print("wrote", path, "nops inserted:", p.total_nops)


main()
```

```python
import math, struct, sys, os
from asmlib import Prog

NAME = "recurrent_scan__mha_block__geglu_ffn__prompt"
KN = NAME + "_kernel"
MB = 1 << 20
QF_OFF, KV_OFF, H_OFF, O_OFF, G_OFF = 0, 2 * MB, 6 * MB, 13 * MB, 15 * MB
FLAG_OFF = 17 * MB
QKVF, HFL, OFL = FLAG_OFF, FLAG_OFF + 65536, FLAG_OFF + 131072
WS_USED = 18 * MB
LOG2E = math.log2(math.e)
QSCALE = LOG2E / math.sqrt(28.0)
SPIN_MAX = 1 << 12
ENV = os.environ.get
STAMPS = bool(ENV("STAMPS"))
STAMP_OFF = 24 * MB
MFMA = "v_mfma_f32_32x32x16_bf16"
P_X, P_WQKV, P_WO, P_WG, P_WU, P_WD, P_OUT, P_DBG, P_WS = 16, 18, 20, 24, 26, 28, 30, 32, 34
SLOT = 16384
EXB = 8 * SLOT
TAGL = 6 * SLOT
QL = 3 * SLOT + 8192
NST = 19


def phys(c):
    return (8, 9, 7)[c] if c < 3 else (c - 3) % 6
PRIV = 6 * SLOT
CNT = PRIV + 15360
CNT_COMB, CNT_S0 = CNT + 64, CNT + 220
KVS = 32768
CNT_GO = CNT + 96
CNT_H = CNT + 100


def f32(x):
    return "0x%08x" % struct.unpack("<I", struct.pack("<f", x))[0]


def vr(b, n=1):
    return f"v{b}" if n == 1 else f"v[{b}:{b+n-1}]"


def srd(p, d, base, nrec, add=None):
    if add is None:
        p(f"s_mov_b32 s{d}, s{base}\ns_mov_b32 s{d+1}, s{base+1}")
    else:
        p(f"s_add_u32 s{d}, s{base}, {add}\ns_addc_u32 s{d+1}, s{base+1}, 0")
    p(f"s_mov_b32 s{d+2}, {nrec}\ns_mov_b32 s{d+3}, 0x20000")


def pack16(p, dst, src):
    for i in range(8):
        p(f"v_cvt_pk_bf16_f32 v{dst+i}, v{src+2*i}, v{src+2*i+1}")


def stamp_txt(i):
    if STAMPS and not (ENV("CB") and i < 7):
        assert i < 8
        return [f"{ENV('STAMP_INS', 's_memrealtime')} s[{80+2*i}:{81+2*i}]"]
    return []


def stamp(p, i):
    for x in stamp_txt(i):
        p(x)


TL = bool(ENV("TL"))


def tl(p, idx):
    if TL:
        p(f"{ENV('STAMP_INS', 's_memrealtime')} s[94:95]\ns_waitcnt lgkmcnt(0)\nv_writelane_b32 v60, s94, {idx}")


def tl_dump(p):
    if TL:
        p(f"""
        s_lshl_b32 s94, s2, 4
        s_add_u32 s94, s94, s59
        s_lshl_b32 s94, s94, 8
        s_add_u32 s94, s94, {STAMP_OFF + MB}
        s_mov_b32 s96, s{P_WS}
        s_mov_b32 s97, s{P_WS+1}
        s_mov_b32 s98, {32*MB}
        s_mov_b32 s99, 0x20000
        v_lshlrev_b32 v61, 2, v0
        buffer_store_dword v60, v61, s[96:99], s94 offen
        """)


def endpgm(p):
    if STAMPS and ENV("DBGMAX"):
        stamp(p, 7)
        p(f"""
        s_mov_b64 exec, -1
        s_mov_b32 s96, s{P_DBG}
        s_mov_b32 s97, s{P_DBG+1}
        s_mov_b32 s98, 256
        s_mov_b32 s99, 0x20000
        buffer_load_dword v10, off, s[96:99], 0 sc1
        s_waitcnt vmcnt(0) lgkmcnt(0)
        """)
        for i in range(8):
            p(f"v_writelane_b32 v8, s{80+2*((i+1) % 8)}, {i}")
        p(f"""
        v_cmp_ne_u32 vcc, 0, v8
        v_sub_u32 v8, v8, v10
        v_add_u32 v8, 1000, v8
        v_cndmask_b32 v8, 0, v8, vcc
        s_cmp_ge_u32 s59, 8
        s_cselect_b32 s4, 36, 8
        v_mbcnt_lo_u32_b32 v9, -1, 0
        v_lshlrev_b32 v9, 2, v9
        s_mov_b64 exec, 0x7f
        buffer_atomic_umax v8, v9, s[96:99], s4 offen
        s_waitcnt vmcnt(0)
        """)
    elif STAMPS:
        stamp(p, 7)
        p("s_waitcnt vmcnt(0) lgkmcnt(0)\ns_mov_b64 exec, -1")
        for i in range(8):
            p(f"v_writelane_b32 v8, s{80+2*i}, {i}")
        p(f"""
        s_lshl_b32 s4, s2, 4
        s_add_u32 s4, s4, s59
        s_lshl_b32 s4, s4, 5
        s_add_u32 s4, s4, {STAMP_OFF}
        s_mov_b32 s96, s{P_WS}
        s_mov_b32 s97, s{P_WS+1}
        s_mov_b32 s98, {32*MB}
        s_mov_b32 s99, 0x20000
        v_mbcnt_lo_u32_b32 v9, -1, 0
        v_lshlrev_b32 v9, 2, v9
        s_mov_b64 exec, 0xff
        buffer_store_dword v8, v9, s[96:99], s4 offen
        """)
    p("s_endpgm")


class DS:
    def __init__(self, pending):
        self.n, self.done = pending, 0

    def op(self):
        self.n += 1
        return self.n - 1

    def need(self, i):
        if i < self.done:
            return []
        self.done = i + 1
        return [f"s_waitcnt lgkmcnt({min(15, self.n - 1 - i)})"]


class VM:
    def __init__(self, p):
        self.p, self.n, self.done = p, 0, 0

    def op(self, txt):
        self.p(txt)
        self.n += 1
        return self.n - 1

    def need(self, i):
        if i is None or i < self.done:
            return
        self.done = i + 1
        k = self.n - 1 - i
        assert k <= 63
        self.p(f"s_waitcnt vmcnt({k})")


def cost(ins):
    c = 0
    for l in ins.strip().split("\n"):
        m = l.strip().split()[0]
        c += 8 if m.startswith(("v_exp", "v_rcp", "v_rsq", "ds_")) else 16 if m.startswith("buffer_") else 4
    return c


def lds_spin(p, label, addr_v, tmp, want, sreg, wide=False):
    p(f"s_mov_b32 s{sreg}, {SPIN_MAX*8}")
    p.label(label)
    if wide:
        p(f"ds_read_b64 {vr(tmp,2)}, {addr_v}\ns_sub_u32 s{sreg}, s{sreg}, 1\ns_waitcnt lgkmcnt(0)\nv_cmp_ne_u64 vcc, {want}, {vr(tmp,2)}")
    else:
        p(f"ds_read_b32 v{tmp}, {addr_v}\ns_sub_u32 s{sreg}, s{sreg}, 1\ns_waitcnt lgkmcnt(0)\nv_cmp_ne_u32 vcc, {want}, v{tmp}")
    p(f"""
    s_cmp_eq_u32 s{sreg}, 0
    s_cbranch_scc1 {label}_x
    s_cmp_eq_u64 vcc, 0
    s_cbranch_scc1 {label}_x
    s_sleep 1
    s_branch {label}
    {label}_x:
    """)


def gen(p):
    p(f".globl {KN}\n.p2align 8\n.type {KN},@function")
    p.label(KN)
    S_W, S_RG, S_HF, S_RB, S_RT = 59, 60, 61, 62, 63
    RX = int(ENV('RX', 2))
    p(f"""
    s_cmp_ge_u32 s2, 256
    s_cbranch_scc1 L_exit
    s_load_dwordx16 s[16:31], s[0:1], 0
    s_load_dwordx4 s[32:35], s[0:1], 64
    """)
    if STAMPS:
        for i in range(16):
            p(f"s_mov_b32 s{80+i}, 0")
        stamp(p, 0)
    p(f"""
    v_lshrrev_b32 v2, 6, v0
    v_and_b32 v0, 63, v0
    v_readfirstlane_b32 s{S_W}, v2
    s_and_b32 s5, s2, 7                 ; xcd
    s_lshr_b32 s6, s2, 3                ; j
    s_and_b32 s7, s5, {(1 << RX) - 1}
    s_lshl_b32 s7, s7, {4 - RX}
    s_and_b32 s8, s6, {(16 >> RX) - 1}
    s_add_u32 s{S_RB}, s7, s8
    s_lshr_b32 s7, s5, {RX}
    s_lshl_b32 s7, s7, {RX + 1}
    s_lshr_b32 s8, s6, {4 - RX}
    s_add_u32 s7, s7, s8
    s_and_b32 s8, s7, 1
    s_lshr_b32 s7, s7, 1
    s_cmp_ge_u32 s{S_W}, 8
    s_cbranch_scc1 L_service
    """)
    gen_c(p, S_W, S_RG, S_HF, S_RB, S_RT)
    p.label("L_service")
    gen_s(p, S_W)
    p.label("L_exit")
    p("s_endpgm")


def gen_c(p, S_W, S_RG, S_HF, S_RB, S_RT):
    VL16, VA, VB, VTRL, VEX, VEXP, VST = 1, 2, 3, 4, 5, 6, 7
    X, SA, SB, G, WF, T = 8, 64, 96, 128, 144, 160
    p(f"""
    s_and_b32 s{S_RG}, s{S_W}, 3
    s_lshr_b32 s{S_HF}, s{S_W}, 2
    s_xor_b32 s{S_HF}, s{S_HF}, s8
    v_lshrrev_b32 v12, 2, v0            ; r16
    v_lshrrev_b32 v13, 4, v0            ; r16>>2
    v_xor_b32 v13, v13, v0
    v_and_b32 v13, 3, v13
    v_mul_u32_u24 v12, 896, v12
    v_lshl_add_u32 v12, v13, 4, v12
    s_lshl_b32 s9, s{S_RB}, 2
    s_add_u32 s{S_RT}, s9, s{S_RG}
    s_mul_i32 s9, s{S_RT}, {32*896}
    s_mul_i32 s10, s{S_HF}, 448
    s_add_u32 s9, s9, s10
    v_add_u32 v12, s9, v12
    s_mul_i32 s10, s{S_W}, 14336
    s_mov_b32 s11, {16*896}
    s_waitcnt lgkmcnt(0)
    """)
    srd(p, 44, P_DBG, 256)
    p(f"""
    s_add_u32 s12, s2, s{S_W}
    s_cmp_lg_u32 s12, 0
    s_cbranch_scc1 L_notagw
    s_memrealtime s[12:13]
    s_waitcnt lgkmcnt(0)
    s_or_b32 s12, s12, 1
    v_mov_b32 v16, s12
    v_mov_b32 v17, s13
    s_mov_b64 exec, 1
    buffer_store_dwordx2 v[16:17], off, s[44:47], 0 sc1
    s_mov_b64 exec, -1
    L_notagw:
    """)
    CPF = ENV("CPF", "1")
    if CPF != "0":
        p(f"s_lshl_b32 s12, s2, 3\ns_add_u32 s12, s12, s{S_W}\ns_lshl_b32 s12, s12, 10\nv_lshlrev_b32 v13, 4, v0")
        for k, (ptr, n) in enumerate(((P_WQKV, 448 * 2688), (P_WG, 448 * 3584), (P_WU, 448 * 3584))[:int(CPF) + 2 if CPF == "1" else 2]):
            srd(p, 64 + 4 * k, ptr, n)
            p(f"buffer_load_dwordx4 {vr(SA,4)}, v13, s[{64+4*k}:{67+4*k}], s12 offen")
    srd(p, 36, P_X, 2048 * 896)
    for cb in range(7):
        for rh in range(2):
            p(f"s_add_u32 m0, s10, {(rh*7+cb)*1024 - 64*cb}")
            p(f"buffer_load_dwordx4 v12, s[36:39], {'s11' if rh else '0'} offen offset:{64*cb} lds")
    if ENV("B0"):
        p("s_barrier")
    srd(p, 40, P_WS, WS_USED)
    VXA, VXB, SUM, SQ, ONES, RS, NM, TG = T, T + 1, T + 2, T + 3, T + 4, G, G + 1, G + 2
    U = SB
    STAT = 7 * SLOT
    c0 = -2.0 * math.sqrt(2.0 / math.pi) * LOG2E
    c1 = c0 * 0.044715
    al = -((-c1) ** (1.0 / 3.0))
    p(f"""
    v_lshlrev_b32 v{VL16}, 4, v0
    s_lshl_b32 s3, s{S_HF}, 4
    v_xor_b32 v15, s3, v0
    v_lshlrev_b32 v{VST}, 4, v15
    s_lshl_b32 s12, s{S_HF}, 10
    v_add_u32 v{VST}, s12, v{VST}
    v_lshrrev_b32 v13, 5, v0
    v_lshlrev_b32 v13, 11, v13
    v_bfe_u32 v14, v0, 2, 2
    v_lshl_add_u32 v13, v14, 6, v13
    v_bfe_u32 v14, v15, 4, 1
    v_lshl_add_u32 v13, v14, 5, v13
    v_and_b32 v14, 3, v0
    v_lshl_add_u32 v13, v14, 3, v13
    s_lshl_b32 s12, s{S_HF}, 10
    v_add_u32 v{VTRL}, s12, v13
    v_add_u32 v{VA}, {8*SLOT}, v{VTRL}
    v_add_u32 v{VB}, {9*SLOT}, v{VTRL}
    s_lshl_b32 s12, s{S_W}, 12
    s_add_u32 s12, s12, {EXB}
    v_add_u32 v{VEX}, s12, v{VL16}
    v_xor_b32 v{VEXP}, 0x4100, v{VEX}
    v_bfe_u32 v13, v15, 4, 1
    v_mul_u32_u24 v13, 7168, v13
    v_and_b32 v14, 15, v0
    v_lshl_add_u32 v13, v14, 6, v13
    v_lshrrev_b32 v14, 5, v0            ; h
    v_bfe_u32 v15, v0, 2, 2             ; swz
    v_xor_b32 v14, v14, v15
    v_lshl_add_u32 v{VXA}, v14, 4, v13
    v_xor_b32 v14, 2, v14
    v_lshl_add_u32 v{VXB}, v14, 4, v13
    v_add_u32 v{VXA}, s10, v{VXA}
    v_add_u32 v{VXB}, s10, v{VXB}
    v_mov_b32 v{SUM}, 0
    v_mov_b32 v{SQ}, 0
    v_mov_b32 v{ONES}, 0x3f803f80
    s_mov_b32 s66, 0xffff0000
    s_mov_b32 s64, {f32(al)}
    s_mov_b32 s65, {f32(c0 / c1 * al * al)}
    v_and_b32 v{U+2}, 31, v0
    v_lshlrev_b32 v{U+2}, 3, v{U+2}
    v_add_u32 v{U+3}, s10, v{U+2}
    s_xor_b32 s12, s{S_W}, 4
    s_mul_i32 s12, s12, 14336
    v_xor_b32 v{U+2}, 128, v{U+2}
    v_add_u32 v{U+2}, s12, v{U+2}
    """)
    p(f"""
    s_cmp_eq_u32 s8, 1
    s_cselect_b32 s69, {f32(QSCALE)}, 1.0
    s_cselect_b32 s4, 18, 19
    s_cselect_b32 s15, {QF_OFF}, {KV_OFF}
    s_cselect_b32 s73, 2048, 0
    s_cselect_b32 s14, 0, 4
    s_lshl_b32 s67, s7, s4
    s_sub_u32 s4, s4, 1
    s_lshl_b32 s68, 1, s4
    s_sub_u32 s4, s4, 6
    s_lshl_b32 s4, s{S_RT}, s4
    s_add_u32 s67, s67, s4
    s_add_u32 s67, s67, s15
    s_add_u32 s68, s68, s67
    s_add_u32 s72, s67, 2048
    s_add_u32 s75, s68, 2048
    s_lshl_b32 s12, s7, 12
    s_lshl_b32 s13, s{S_RB}, 7
    s_add_u32 s12, s12, s13
    s_add_u32 s12, s12, {QKVF}
    s_add_u32 s73, s73, s12             ; flag of this workgroup's q or k,v result
    s_mul_i32 s12, s7, 6
    s_add_u32 s14, s14, s12             ; first f tile
    s_add_u32 s58, s7, 48
    s_sub_u32 s58, s58, s14
    s_sub_u32 s58, s58, 2               ; from the tile after the first quad to the single tile (type A)
    s_lshl_b32 s70, s14, 11
    s_mul_i32 s4, s{S_RT}, 114688
    s_add_u32 s70, s70, s4
    s_add_u32 s70, s70, {H_OFF}
    s_lshl_b32 s71, s{S_RB}, 12
    s_lshl_b32 s4, s7, 9
    s_add_u32 s71, s71, s4
    s_xor_b32 s4, s8, 1
    s_lshl_b32 s4, s4, 7
    s_add_u32 s71, s71, s4
    s_add_u32 s71, s71, {HFL}           ; units: 0 first quad of B, 1 quad of A, 2 second quad of B, 3 single tile of A
    ; pad masks: even head pads n=28..31 (hf=1 waves), odd head pads n=0..3 (hf=0 waves)
    s_cmp_eq_u32 s{S_HF}, 1
    s_mov_b32 s52, 0
    s_cselect_b32 s53, -1, 0            ; q/k even head: packed regs 2,3
    s_cselect_b32 s54, 0, -1            ; q/k odd head: packed regs 0,1
    s_mov_b32 s55, 0
    s_cselect_b32 s56, 0xf000, 0xf0000000 {';'} v even head: zero lanes
    """.replace("s_cselect_b32 s56, 0xf000, 0xf0000000 ;", "s_mov_b32 s56, 0xf0000000\n    s_cselect_b32 s56, 0xf000, s56 ;") + f"""
    s_mov_b32 s57, s56
    s_cselect_b32 s48, 0xf0000, 15      ; v odd head: zero lanes
    s_mov_b32 s49, s48
    s_lshr_b32 s50, s56, 3
    s_and_b32 s50, s50, s56             ; lowest lane of each group: the ones column
    s_mov_b32 s51, s50
    s_lshr_b32 s46, s48, 3
    s_and_b32 s46, s46, s48
    s_mov_b32 s47, s46
    """.replace("s46", "s78").replace("s47", "s79"))
    stamp(p, 1)

    def stat(cb):
        for d in range(8):
            r = X + 8 * cb + d
            p(f"v_dot2c_f32_bf16 v{SUM}, v{r}, v{ONES}")
            p(f"v_dot2c_f32_bf16 v{SQ}, v{r}, v{r}")
    for cb in range(7):
        p(f"s_waitcnt vmcnt({12 - 2*cb})")
        p(f"ds_read_b128 {vr(X+8*cb,4)}, v{VXA} offset:{cb*1024}")
        p(f"ds_read_b128 {vr(X+8*cb+4,4)}, v{VXB} offset:{cb*1024}")
        if cb:
            p("s_waitcnt lgkmcnt(2)")
            stat(cb - 1)
    p("s_waitcnt lgkmcnt(0)")
    stat(6)
    p(f"""
    v_mov_b32 v{U}, v{SUM}
    v_mov_b32 v{U+1}, v{SQ}
    v_permlane32_swap_b32 v{SUM}, v{U}
    v_permlane32_swap_b32 v{SQ}, v{U+1}
    v_add_f32 v{SUM}, v{SUM}, v{U}
    v_add_f32 v{SQ}, v{SQ}, v{U+1}
    ds_write_b64 v{U+3}, {vr(SUM,2)}
    s_waitcnt lgkmcnt(0)
    s_barrier
    ds_read_b64 {vr(U,2)}, v{U+2}
    s_waitcnt lgkmcnt(0)
    s_barrier
    v_add_f32 v{SUM}, v{SUM}, v{U}
    v_add_f32 v{SQ}, v{SQ}, v{U+1}
    v_mul_f32 v{SUM}, {f32(1.0/448)}, v{SUM}        ; mean
    v_mul_f32 v{SQ}, {f32(1.0/448)}, v{SQ}
    v_fma_f32 v{SQ}, -v{SUM}, v{SUM}, v{SQ}         ; var
    v_max_f32 v{SQ}, 0, v{SQ}
    v_add_f32 v{SQ}, {f32(1e-5)}, v{SQ}
    v_rsq_f32 v{RS}, v{SQ}                          ; rstd
    v_mul_f32 v{SUM}, v{SUM}, v{RS}
    v_sub_f32 v{NM}, 0, v{SUM}                      ; -mean*rstd
    """)
    stamp(p, 2)

    def normalise(kl, tb):
        e = []
        for d in range(4):
            e += [f"v_lshlrev_b32 v{tb+2*d}, 16, v{X+4*kl+d}", f"v_and_b32 v{tb+2*d+1}, s66, v{X+4*kl+d}"]
        e += [f"v_fma_f32 v{tb+i}, v{tb+i}, v{RS}, v{NM}" for i in range(8)]
        e += [f"v_cvt_pk_bf16_f32 v{X+4*kl+d}, v{tb+2*d}, v{tb+2*d+1}" for d in range(4)]
        return e
    NPRE = int(ENV("NPRE", 2))
    for kl in range(NPRE):
        for i in normalise(kl, U + 8 * kl):
            p(i)
    p("s_barrier")
    NB = 4

    def st(r, sreg, off=0):
        return f"buffer_store_dwordx4 {vr(r,4)}, v{VST}, s[40:43], s{sreg} offen{' offset:%d' % off if off else ''} sc1"

    fl_n = [0]

    def flag0(sreg):
        fl_n[0] += 1
        return (f"s_cmp_lg_u32 s{S_W}, 0\ns_cbranch_scc1 L_fl{fl_n[0]}\ns_mov_b64 exec, 1\n"
                f"buffer_store_dwordx2 v[0:1], off, s[40:43], s{sreg} sc1\ns_mov_b64 exec, -1\nL_fl{fl_n[0]}:")

    def pack8(a):
        return [f"v_cvt_pk_bf16_f32 v{a+i}, v{a+2*i}, v{a+2*i+1}" for i in range(4)]

    def epi_qk(h0, h1):
        e = []
        for t, a in enumerate((h0, h1)):
            e += [f"v_mul_f32 v{a+i}, s69, v{a+i}" for i in range(8)] + pack8(a)
            z = a + 2 if t == 0 else a
            e += [f"s_mov_b64 exec, s[{52+2*t}:{53+2*t}]\nv_mov_b32 v{z}, 0\nv_mov_b32 v{z+1}, 0\ns_mov_b64 exec, -1"]
            e.append(st(a, 67 + t))
        return e

    def epi_v(h0, h1):
        e = []
        for t, a in enumerate((h0, h1)):
            zm, om = ((56, 50), (48, 78))[t]
            e += pack8(a)
            e += [f"s_mov_b64 exec, s[{zm}:{zm+1}]\n" + "".join(f"v_mov_b32 v{a+i}, 0\n" for i in range(4))
                  + f"s_mov_b64 exec, s[{om}:{om+1}]\n"
                  + "".join(f"v_mov_b32 v{a+i}, 0x3f803f80\n" for i in range(4)) + "s_mov_b64 exec, -1"]
            e.append(st(a, (72, 75)[t]))
        return e

    def gelu(g, qs):
        e = []
        for q in qs:
            r = g[4 * q:4 * q + 4]
            t = [T + i for i in range(4)]
            u = [T + 4 + i for i in range(4)]
            e += [f"v_mul_f32 v{t[i]}, s64, v{r[i]}" for i in range(4)]
            e += [f"v_fma_f32 v{u[i]}, v{t[i]}, v{t[i]}, s65" for i in range(4)]
            e += [f"v_mul_f32 v{t[i]}, v{t[i]}, v{u[i]}" for i in range(4)]
            e += [f"v_exp_f32 v{t[i]}, v{t[i]}" for i in range(4)]
            e += [f"v_add_f32 v{t[i]}, 1.0, v{t[i]}" for i in range(4)]
            e += [f"v_rcp_f32 v{t[i]}, v{t[i]}" for i in range(4)]
            e += [f"v_mul_f32 v{r[i]}, v{r[i]}, v{t[i]}" for i in range(4)]
        return e
    GG = [G + i for i in range(16)]

    def prod2(acc):
        e = []
        for t in range(2):
            a = acc + 16 * t
            e += [f"v_mul_f32 v{a+i}, v{a+i}, v{G+8*t+i}" for i in range(8)] + pack8(a)
            e.append(st(a, 70, 2048 * t))
        return e + ["s_add_u32 s70, s70, 4096"]

    def epi_s(acc):
        g = [acc + i for i in range(8)]
        e = gelu(g, [0, 1])
        e += [f"v_mul_f32 v{g[i]}, v{g[i]}, v{acc+16+i}" for i in range(8)] + pack8(acc)
        return e + [st(acc, 70)]

    tag_ld = [f"s_cmp_lg_u32 s{S_W}, 7\ns_cbranch_scc1 L_tl_@\n"
              f"buffer_load_dwordx2 {vr(TG,2)}, off, s[44:47], 0 sc1\nL_tl_@:"]
    tag_pub = [f"s_cmp_lg_u32 s{S_W}, 7\ns_cbranch_scc1 L_tp_@\ns_mov_b32 s12, {SPIN_MAX}\nL_tq_@:\ns_waitcnt vmcnt(0)\n"
               f"v_cmp_ne_u32 vcc, 0, v{TG}\ns_sub_u32 s12, s12, 1\ns_cbranch_scc1 L_tr_@\ns_cmp_lg_u64 vcc, 0\ns_cbranch_scc1 L_tr_@\n"
               f"buffer_load_dwordx2 {vr(TG,2)}, off, s[44:47], 0 sc1\ns_branch L_tq_@\nL_tr_@:\n"
               f"v_mov_b32 v{TG+2}, {TAGL}\nds_write_b64 v{TG+2}, {vr(TG,2)}\n"
               "s_waitcnt lgkmcnt(0)\nL_tp_@:"]
    XW, XR = [2, 3, 4, 5], [7, 8, 9, 10]
    xreg = lambda acc, i: acc + 16 * (i >> 1) + 8 + 4 * (i & 1)

    def stream(kind, late):
        N = 140
        types = "VKGUS" if kind == "A" else "QGUGU"
        G_ = []
        for kl in range(14):
            for ps in range(2):
                for t in range(2):
                    G_.append((kl >> 1, ps * 8192 + (kl & 1) * 4096 + t * 512, kl, (SA, SB)[ps] + 16 * t, kl == 0, types[ps] == "V"))
        acc = {2: SB, 3: SA, 4: SB}
        for ps in range(2, 5):
            for j in range(28):
                G_.append((7 + 4 * (ps - 2) + (j >> 3), ((j >> 1) & 3) * 4096 + (j & 1) * (1024 if types[ps] == "S" else 512),
                           j >> 1, acc[ps] + 16 * (j & 1), j < 2, False))
        win = []

        def W(a, b, ins):
            win.append((a, b, ins))
        for kl in range(NPRE, 14):
            W(4 * (kl - NPRE), 4 * (kl - NPRE) + 4, normalise(kl, T))
        W(16, 17, [x.replace("@", kind) for x in tag_ld])
        W(46, 47, [x.replace("@", kind) for x in tag_pub])
        E0 = 14
        pub = {}
        KB = int(ENV("KB", 91))
        if ENV("NOEPI"):
            pass
        elif kind == "A":
            W(56 + E0, 56 + E0 + 5, epi_v(SA, SA + 16))
            W(56 + 19, 56 + 25, epi_qk(G, G + 8))
            pub[KB] = 73
            W(84 + E0, 112 + E0 - 2, gelu(GG, [0, 1, 2, 3]))
            W(112 + E0, 112 + E0 + 8, prod2(SA) + ["s_lshl_b32 s12, s58, 11\ns_add_u32 s70, s70, s12"])
        else:
            W(56 + E0, 56 + E0 + 5, epi_qk(SA, SA + 16))
            W(56 + 19, 84 + E0 - 2, gelu(GG, [0, 1, 2, 3]))
            pub[91] = 73
            W(84 + E0, 84 + E0 + 8, prod2(SB))
            pub[127] = 71
            W(112 + E0, 140, gelu(GG, [0, 1]) + gelu(GG, [2])[:12])
        W(112 + 24 if kind == "A" else 112 + 6, 112 + 27 if kind == "A" else 112 + 12, late)
        per = [[] for _ in range(N)]
        for (a, b, ins) in win:
            tot = sum(cost(i) for i in ins)
            c = 0
            for i in ins:
                g = a + min(b - a - 1, int((c + cost(i) / 2) * (b - a) / tot))
                per[g].append(i)
                c += cost(i)
        ds = DS(0)
        frag = {}
        out = []

        def rd(n):
            c, imm = G_[n][0], G_[n][1]
            b = WF + 4 * (n % NB)
            a = VA if c % 2 == 0 else VB
            out.extend([f"ds_read_b64_tr_b16 {vr(b,2)}, v{a} offset:{imm}", f"ds_read_b64_tr_b16 {vr(b+2,2)}, v{a} offset:{imm+256}"])
            ds.op()
            frag[n] = ds.op()
            if n + 1 < N and G_[n + 1][0] != c and c + 2 < NST:
                if c + 2 == 15 and types[4] == "S":
                    out.append(f"v_bfe_u32 v{a}, v{VTRL}, 11, 1\nv_mul_u32_u24 v{a}, 1536, v{a}\nv_sub_u32 v{VTRL}, v{VTRL}, v{a}\n"
                               f"s_lshl_b32 s12, s{S_HF}, 10\nv_add_u32 v{VTRL}, s12, v{VTRL}")
                out.append(f"v_add_u32 v{a}, {phys(c+2)*SLOT}, v{VTRL}")
        for n in range(NB):
            rd(n)
        wr = None
        rdx, rdy = {}, {}
        for g in range(N):
            c, imm, xf, ac, first, swap = G_[g]
            ps, j = (0, g) if g < 56 else divmod(g, 28)
            if g % 2 == 0:
                out += ds.need(frag[g + 1])
            w, x = vr(WF + 4 * (g % NB), 4), vr(X + 4 * xf, 4)
            a, b = (x, w) if swap else (w, x)
            out.append(f"{MFMA} {vr(ac,16)}, {a}, {b}, {'0' if first else vr(ac,16)}")
            prev = None if ps < 2 else SA if ps == 2 else acc[ps - 1]
            if g + 1 < N and G_[g + 1][0] != c:
                if prev is not None and j == 7:
                    out += ds.need(wr)
                if g in pub:
                    out.append("s_waitcnt vmcnt(0)")
                out.append("s_barrier")
                if g in pub:
                    out.append(flag0(pub[g]))
                if ENV("CB"):
                    bi = c + 1 - int(ENV("CB"))
                    if 0 <= bi < 7:
                        out.append(f"s_memtime s[{80+2*bi}:{81+2*bi}]")
                if g == 47:
                    out.append(f"v_mov_b32 v0, {TAGL}\nds_read_b64 v[0:1], v0")
                    ds.op()
            if g + NB < N:
                rd(g + NB)
            xo = -2 * SLOT if ps == 2 else 0
            if prev is not None and j in XW:
                i = XW.index(j)
                if ps == 2 and i == 0:
                    out.append(f"v_add_u32 v{VEX}, {xo & 0xffffffff}, v{VEX}")
                out.append(f"ds_write_b128 v{VEX}, {vr(xreg(prev, i),4)} offset:{1024*i}")
                wr = ds.op()
                if ps == 2 and i == 3:
                    out.append(f"v_add_u32 v{VEX}, {-xo}, v{VEX}\nv_add_u32 v{VEXP}, {xo & 0xffffffff}, v{VEXP}")
            if prev is not None and j in XR:
                i = XR.index(j)
                out.append(f"ds_read_b128 {vr(xreg(prev, i),4)}, v{VEXP} offset:{1024*i}")
                rdx[i] = ds.op()
                if ps == 2 and i == 3:
                    out.append(f"v_add_u32 v{VEXP}, {-xo}, v{VEXP}")
            if prev is not None and j - 3 in XR:
                i = XR.index(j - 3)
                out += ds.need(rdx[i])
                r = xreg(prev, i)
                d = G + 4 * i if (ps > 2 and types[ps - 1] == "G") else r - 8
                out += [f"v_add_f32 v{d+k}, v{r-8+k}, v{r+k}" for k in range(4)]
            if ps == 2 and 11 <= j < 19:
                i, ph = (j - 11) // 4 * 2 + ((j - 11) & 1), ((j - 11) >> 1) & 1
                if ph == 0:
                    out.append(f"ds_read_b128 {vr(T+4*(i&1),4)}, v{VEXP} offset:{1024*i}")
                    rdy[i] = ds.op()
                else:
                    out += ds.need(rdy[i])
                    out += [f"v_add_f32 v{G+4*i+k}, v{G+4*i+k}, v{T+4*(i&1)+k}" for k in range(4)]
            out += per[g]
            if g == 55:
                out += stamp_txt(3)
                for i in (0, 1, 2, 3):
                    out.append(f"ds_write_b128 v{VEX}, {vr(xreg(SB, i),4)} offset:{1024*i}")
                    ds.op()
                    out += [f"v_mov_b32 v{G+4*i+k}, v{xreg(SB, i)-8+k}" for k in range(4)]
        for i in out:
            p(i)

    Q, KF, VF, S0, S1, PP, O = 8, 16, 24, 32, 48, 64, 72
    VCUR, VNXT, VCO, VKV, VCN, VONE, CK, CKO, VLN, VQA, E3 = 146, 147, 148, 149, 150, 88, 90, 92, 93, 94, 156
    BAL = ENV('BAL', '1') == '1'
    SPR = ENV('SPR', '0') == '1'
    XL = SB
    setup_s = f"""s_lshr_b32 s7, s6, 4
    s_lshl_b32 s8, s5, 1
    s_add_u32 s7, s7, s8                ; head
    s_and_b32 s8, s6, 15                ; q block
    s_lshl_b32 s11, s8, 2
    s_add_u32 s11, s11, s{S_RG}         ; q tile (0..63)
    s_lshl_b32 s9, s7, 18
    s_add_u32 s9, s9, {KV_OFF}
    s_lshl_b32 s46, s{S_HF}, 14         ; kh*16384
    s_add_u32 s47, s46, {2*SLOT}        ; slot of stage i+2
    s_lshl_b32 s13, s{S_RG}, 12         ; rg*4096
    s_add_u32 s14, s46, {2*KVS}         ; source offset of the next fill
    s_lshl_b32 s15, s{S_HF}, 7
    s_add_u32 s15, s15, {CNT}
    s_mov_b32 s48, 1                    ; iteration
    s_mov_b32 s49, 0
    s_mov_b32 s50, 4
    s_mov_b32 s51, 4
    s_lshl_b32 s10, s{S_RG}, 11
    s_add_u32 s10, s10, {QL}
    s_add_u32 s36, s{P_WS}, s9
    s_addc_u32 s37, s{P_WS+1}, 0
    s_mov_b32 s38, 262144""".split("\n")
    setup_s = [setup_s[i] if not setup_s[i].strip().startswith("s_add_u32 s36") else setup_s[i] + "\n" + setup_s[i+1]
               for i in range(len(setup_s)) if not setup_s[i].strip().startswith("s_addc")]

    def start(tag):
        stamp(p, 4)
        p(f"""
        v_and_b32 v{VLN}, 1023, v{VEX}      ; lane*16
        v_mov_b32 v{CKO}, {CNT_GO}
        v_add_u32 v{VQA}, s10, v{VLN}
        v_add_u32 v{VONE}, s46, v{VLN}
        v_add_u32 v{VONE+1}, {4*SLOT}, v{VONE}
        """)
        lds_spin(p, "L_w0" + tag, f"v{CKO}", CK, "4", 52)
        stamp(p, 5)
        p(f"""
        ds_read_b128 {vr(Q,4)}, v{VQA}
        ds_read_b128 {vr(Q+4,4)}, v{VQA} offset:1024
        ds_read_b128 {vr(KF,4)}, v{VONE+1}
        ds_read_b128 {vr(KF+4,4)}, v{VONE+1} offset:1024
        v_mov_b32 v{VNXT}, v{VONE}
        v_mov_b32 v{VCUR}, v{VONE+1}
        v_add_u32 v{VKV}, s13, v{VLN}
        v_mov_b32 v{VCN}, s15
        v_xor_b32 v{VCO}, 128, v{VCN}
        v_mov_b32 v{VONE}, 1
        v_mov_b32 v{VONE+1}, 0
        """)
        for i in range(4):
            p(f"ds_write_b128 v{VEX}, {vr(xreg(XL, i),4)} offset:{1024*i}")
        p(f"""
        s_waitcnt lgkmcnt(4)
        {MFMA} {vr(S0,16)}, {vr(KF,4)}, {vr(Q,4)}, 0
        {MFMA} {vr(S0,16)}, {vr(KF+4,4)}, {vr(Q+4,4)}, {vr(S0,16)}
        ds_read_b128 {vr(KF,4)}, v{VCUR} offset:4096
        ds_read_b128 {vr(KF+4,4)}, v{VCUR} offset:5120
        ds_read_b128 {vr(VF+4,4)}, v{VCUR} offset:3072
        ds_read_b128 {vr(VF,4)}, v{VCUR} offset:2048
        """)
    adds = []
    for i in range(4):
        r = xreg(XL, i)
        adds += [f"v_add_f32 v{r-8+k}, v{r-8+k}, v{r+k}" for k in range(4)]
    xrd = "s_waitcnt lgkmcnt(4)\ns_barrier\n" + "".join(f"ds_read_b128 {vr(xreg(XL, i),4)}, v{VEXP} offset:{1024*i}\n" for i in range(4))

    def fillers(pre, post, pub20=False):
        f = {}
        slots = [(0, 0), (0, 1), (0, 2)]
        for k, sl in enumerate(slots):
            f[sl] = "\n".join(pre[len(pre) * k // 3:len(pre) * (k + 1) // 3])
        f[(0, 0)] = xrd + f[(0, 0)]
        f[(0, 2)] = f[(0, 2)] + f"\ns_waitcnt {'vmcnt(0) ' if pub20 else ''}lgkmcnt(2)\ns_barrier\n"
        if pub20:
            f[(0, 2)] += flag0(71) + "\n"
        post = adds + post
        slots = [(0, 3), (1, 0), (1, 1), (1, 2)]
        for k, sl in enumerate(slots):
            f[sl] = "\n".join(post[len(post) * k // 4:len(post) * (k + 1) // 4])
        return f
    VL16 = VLN
    TT = T
    T_TAG = 0

    def phase(k, mf, rd, sc, sp, extra=""):
        if k % 2 == 0:
            p("s_waitcnt lgkmcnt(2)")
        if mf:
            p(mf)
        p(rd)
        src, pk = (E3, 3) if k == 0 else (sc + 4 * (k - 1), k - 1)
        dst = E3 if k == 3 else sc + 4 * k
        e = [f"v_exp_f32 v{dst+i}, v{sc+4*k+i}" for i in range(4)]
        c = [f"v_cvt_pk_bf16_f32 v{PP+2*pk+i}, v{src+2*i}, v{src+2*i+1}" for i in range(2)]
        for x in (e[0], c[0], e[1], c[1]) if sp is not None else (e[0], e[1]):
            p(x)
        if extra.strip():
            p(extra)
        p(e[2]); p(e[3])

    def ta(u, off):
        return f"v{VCUR} offset:{u*4096+off}" if u < 4 else f"v{VNXT} offset:{(u-4)*4096+off}"

    def body(first, tag, fil=None):
        fil = fil or {}
        T = T_TAG
        sig = f"""
        s_mov_b64 exec, 1
        {'' if (first or ENV('NOSIGW')) else 's_waitcnt vmcnt(0)'}
        ds_add_u64 v{VCN}, {vr(VONE,2)}
        s_mov_b64 exec, -1
        """
        for u in range(4):
            sc, sn = (S0, S1) if u % 2 == 0 else (S1, S0)
            if u == 2:
                p(f"""
                s_waitcnt lgkmcnt(1)
                v_cmp_ne_u64 vcc, s[50:51], {vr(CK,2)}
                s_add_u32 m0, s47, s13
                s_cmp_lg_u64 vcc, 0
                s_cbranch_scc1 L_a_spin{tag}
                L_a_go{tag}:
                """)
                if BAL:
                    p(f"""
                    v_cmp_eq_u32 vcc, 4, v{CKO}
                    s_setprio 0
                    s_cmp_eq_u64 vcc, 0
                    s_cbranch_scc1 L_a_pr{tag}
                    s_setprio 1
                    L_a_pr{tag}:
                    """)
                if SPR and not first:
                    p("s_cmp_le_u32 s48, 5\ns_cselect_b64 vcc, -1, 0")
                if not SPR:
                    if not first:
                        p(f"s_cmp_gt_u32 s48, 5\ns_cbranch_scc1 L_a_nofill")
                    for q in range(4):
                        p(f"buffer_load_dwordx4 v{VKV}, s[36:39], s14 offen offset:{q*1024} sc1 lds")
                    p(f"s_add_u32 s14, s14, {KVS}")
                    if not first:
                        p.label("L_a_nofill")

            def dma(q):
                if not SPR:
                    return ""
                t = f"buffer_load_dwordx4 v{VKV}, s[36:39], s14 offen offset:{q*1024} sc1 lds\n"
                if not first:
                    t = f"s_cbranch_vccz L_a_nf{q}\n" + t + f"L_a_nf{q}:\n"
                return t
            phase(0, f"{MFMA} {vr(sn,16)}, {vr(KF,4)}, {vr(Q,4)}, 0", f"ds_read_b128 {vr(KF,4)}, {ta(u+2, 0)}", sc, None if (first and u == 0) else sn,
                  dma(2 * (u - 2)) if u >= 2 else fil.get((u, 0), ""))
            phase(1, f"{MFMA} {vr(sn,16)}, {vr(KF+4,4)}, {vr(Q+4,4)}, {vr(sn,16)}",
                  f"ds_read_b128 {vr(KF+4,4)}, {ta(u+2, 1024)}", sc, sn, fil.get((u, 1), ""))
            phase(2, None if (first and u == 0) else f"{MFMA} {vr(O,16)}, {vr(VF+4,4)}, {vr(PP+4,4)}, {vr(O,16)}",
                  f"ds_read_b128 {vr(VF+4,4)}, {ta(u, 3072)}", sc, sn,
                  fil.get((u, 2), "") + "\n" + ((f"ds_read_b64 {vr(CK,2)}, v{VCN}" + (f"\nds_read_b32 v{CKO}, v{VCO}" if BAL else "")) if u == 1 else dma(2 * (u - 2) + 1) if u >= 2 else ""))
            ex = (sig if u == 0 else "") + fil.get((u, 3), "")
            if u == 3:
                ex = f"""
                v_mov_b32 v{VCUR}, v{VNXT}
                v_add_u32 v{VNXT}, s47, v{VL16}
                v_add_u32 v{VCN}, 8, v{VCN}
                v_xor_b32 v{VCO}, 128, v{VCN}
                s_add_u32 s47, s47, {2*SLOT}
                s_cmp_ge_u32 s47, {6*SLOT}
                s_cselect_b32 s3, {6*SLOT}, 0
                s_sub_u32 s47, s47, s3
                """
                if SPR:
                    ex += f"s_add_u32 s14, s14, {KVS}\n"
                if not first:
                    ex += "s_add_u32 s48, s48, 1\ns_cmp_lt_u32 s48, 8"
                else:
                    ex += f"""
                    s_mov_b64 exec, 1
                    v_mov_b32 v{CKO}, {CNT_H}
                    s_waitcnt vmcnt(4)
                    ds_add_rtn_u32 v{CK}, v{CKO}, v{VONE}
                    s_waitcnt lgkmcnt(0)
                    v_cmp_eq_u32 vcc, 7, v{CK}
                    s_and_b64 exec, exec, vcc
                    s_cbranch_execz L_nh{tag}
                    buffer_store_dwordx2 {vr(T,2)}, off, s[40:43], s71 offset:256 sc1
                    L_nh{tag}:
                    s_mov_b64 exec, -1
                    v_mov_b32 v{VONE+1}, 1
                    """
            phase(3, f"{MFMA} {vr(O,16)}, {vr(VF,4)}, {vr(PP,4)}, {'0' if (first and u == 0) else vr(O,16)}",
                  f"ds_read_b128 {vr(VF,4)}, {ta(u+1, 2048)}", sc, sn, ex)
    p("s_cmp_eq_u32 s8, 1\ns_cbranch_scc1 L_btype")
    stream("A", setup_s)
    start("a")
    body(True, "fa", fillers([], epi_s(XL), True))
    p("s_branch L_aloop")
    p.label("L_btype")
    stream("B", setup_s)
    start("b")
    body(True, "fb", fillers(gelu(GG, [2])[12:] + gelu(GG, [3]), prod2(XL)))
    T = T_TAG
    p(".p2align 6")
    p.label("L_aloop")
    body(False, "")
    p("s_cbranch_scc1 L_aloop\ns_branch L_a_done")
    for tag in ("fa", "fb", ""):
        p.label("L_a_spin" + tag)
        lds_spin(p, "L_a_sp" + tag, f"v{VCN}", CK, "s[50:51]", 52, wide=True)
        p("s_branch L_a_go" + tag)
    p.label("L_a_done")
    stamp(p, 6)
    p(f"""
    v_cvt_pk_bf16_f32 v{PP+6}, v{E3}, v{E3+1}
    v_cvt_pk_bf16_f32 v{PP+7}, v{E3+2}, v{E3+3}
    s_waitcnt lgkmcnt(0)
    {MFMA} {vr(O,16)}, {vr(VF+4,4)}, {vr(PP+4,4)}, {vr(O,16)}
    s_lshl_b32 s46, s{S_RG}, 12
    s_lshl_b32 s3, s{S_HF}, 14
    s_add_u32 s46, s46, s3
    s_add_u32 s46, s46, {4*SLOT}
    v_add_u32 v3, s46, v{VL16}
    s_lshl_b32 s3, s{S_RG}, 3
    s_add_u32 s3, s3, {CNT_COMB}
    v_mov_b32 v{VCN}, s3
    s_mov_b64 exec, 1
    ds_add_rtn_u32 v{CK}, v{VCN}, v{VONE}
    s_mov_b64 exec, -1
    s_waitcnt lgkmcnt(0)
    v_readfirstlane_b32 s3, v{CK}
    s_cmp_lg_u32 s3, 0
    s_cbranch_scc1 L_acomb
    """)
    for i in range(4):
        p(f"ds_write_b128 v3, {vr(O+4*i,4)} offset:{1024*i}")
    p(f"""
    s_mov_b64 exec, 1
    s_waitcnt lgkmcnt(0)
    ds_add_u32 v{VCN}, v{VONE} offset:4
    s_waitcnt lgkmcnt(0)
    """)
    endpgm(p)
    p.label("L_acomb")
    p(f"v_xor_b32 v3, {SLOT}, v3")
    lds_spin(p, "L_cw", f"v{VCN} offset:4", CK, "1", 52)
    for i in range(4):
        p(f"ds_read_b128 {vr(S0+4*i,4)}, v3 offset:{1024*i}")
    for q in range(4):
        p(f"s_waitcnt lgkmcnt({3-q})")
        for i in range(4 * q, 4 * q + 4):
            p(f"v_add_f32 v{O+i}, v{O+i}, v{S0+i}")
    p.label("L_afin")
    T2 = S1
    p(f"""
    s_mov_b32 s50, {f32(2.0**-40)}
    s_mov_b32 s51, {f32(2.0**100)}
    s_bitcmp1_b32 s7, 0
    s_cbranch_scc1 L_f_odd
    v_mov_b32 v{T2}, v{O+12}
    v_mov_b32 v{T2+1}, v{O+12}
    v_permlane32_swap_b32 v{T2}, v{T2+1}
    s_mov_b32 exec_lo, 0
    v_mov_b32 v{O+12}, 0
    v_mov_b32 v{O+13}, 0
    v_mov_b32 v{O+14}, 0
    v_mov_b32 v{O+15}, 0
    s_branch L_f_join
    L_f_odd:
    v_mov_b32 v{T2}, v{O}
    v_mov_b32 v{T2+1}, v{O}
    v_permlane32_swap_b32 v{T2+1}, v{T2}
    s_mov_b32 exec_hi, 0
    v_mov_b32 v{O}, 0
    v_mov_b32 v{O+1}, 0
    v_mov_b32 v{O+2}, 0
    v_mov_b32 v{O+3}, 0
    L_f_join:
    s_mov_b64 exec, -1
    v_rcp_f32 v{T2+2}, v{T2+1}
    v_cmp_ge_f32 s[52:53], v{T2+1}, s50
    v_cmp_le_f32 s[54:55], v{T2+1}, s51
    """)
    for i in range(16):
        p(f"v_mul_f32 v{O+i}, v{O+i}, v{T2+2}")
    p(f"v_mul_f32 v{T2+3}, 0, v{O}")
    for i in range(1, 16):
        p(f"v_fmac_f32 v{T2+3}, 0, v{O+i}")
    pack16(p, PP, O)
    p(f"""
    v_cmp_eq_f32 s[56:57], 0, v{T2+3}
    s_and_b64 s[52:53], s[52:53], s[54:55]
    s_lshl_b32 s45, s11, 15             ; rowtile*32K
    s_lshl_b32 s46, s7, 11              ; head*2K
    s_add_u32 s45, s45, s46
    s_add_u32 s45, s45, {O_OFF}
    s_and_b64 s[52:53], s[52:53], s[56:57]
    s_cmp_eq_u64 s[52:53], -1
    s_cbranch_scc1 L_aok
    s_cmp_eq_u32 s49, 0x5afe
    s_cbranch_scc0 L_fallback
    """)
    p.label("L_aok")
    p(f"""
    buffer_store_dwordx4 {vr(PP,4)}, v{VL16}, s[40:43], s45 offen sc1
    buffer_store_dwordx4 {vr(PP+4,4)}, v{VL16}, s[40:43], s45 offen offset:1024 sc1
    s_lshl_b32 s45, s11, 11
    s_lshl_b32 s46, s7, 7
    s_add_u32 s45, s45, s46
    s_add_u32 s45, s45, {OFL}
    s_mov_b64 exec, 1
    s_waitcnt vmcnt(0)
    buffer_store_dwordx2 {vr(T,2)}, off, s[40:43], s45 sc1
    """)
    endpgm(p)
    p.label("L_fallback")
    M, MN, AL, TM, T3 = 100, 101, 102, 103, 104
    p("s_mov_b32 s49, 0x5afe")
    for i in range(16):
        p(f"v_mov_b32 v{O+i}, 0")
    p(f"v_mov_b32 v{M}, 0xff800000\ns_mov_b32 s14, 0")
    p.label("L_fbloop")
    p(f"""
    buffer_load_dwordx4 {vr(KF,4)}, v{VL16}, s[36:39], s14 offen sc1
    buffer_load_dwordx4 {vr(KF+4,4)}, v{VL16}, s[36:39], s14 offen offset:1024 sc1
    buffer_load_dwordx4 {vr(VF,4)}, v{VL16}, s[36:39], s14 offen offset:2048 sc1
    buffer_load_dwordx4 {vr(VF+4,4)}, v{VL16}, s[36:39], s14 offen offset:3072 sc1
    s_waitcnt vmcnt(2)
    {MFMA} {vr(S0,16)}, {vr(KF,4)}, {vr(Q,4)}, 0
    {MFMA} {vr(S0,16)}, {vr(KF+4,4)}, {vr(Q+4,4)}, {vr(S0,16)}
    v_max3_f32 v{TM}, v{S0}, v{S0+1}, v{S0+2}
    """)
    for i in range(3, 15, 2):
        p(f"v_max3_f32 v{TM}, v{S0+i}, v{S0+i+1}, v{TM}")
    p(f"""
    v_max_f32 v{TM}, v{S0+15}, v{TM}
    v_mov_b32 v{T3}, v{TM}
    v_permlane32_swap_b32 v{TM}, v{T3}
    v_max3_f32 v{MN}, v{TM}, v{T3}, v{M}
    v_sub_f32 v{AL}, v{M}, v{MN}
    v_exp_f32 v{AL}, v{AL}
    v_mov_b32 v{M}, v{MN}
    """)
    for i in range(16):
        p(f"v_sub_f32 v{S0+i}, v{S0+i}, v{MN}")
    for i in range(16):
        p(f"v_exp_f32 v{S0+i}, v{S0+i}")
    for i in range(16):
        p(f"v_mul_f32 v{O+i}, v{O+i}, v{AL}")
    pack16(p, PP, S0)
    p(f"""
    s_waitcnt vmcnt(0)
    {MFMA} {vr(O,16)}, {vr(VF,4)}, {vr(PP,4)}, {vr(O,16)}
    {MFMA} {vr(O,16)}, {vr(VF+4,4)}, {vr(PP+4,4)}, {vr(O,16)}
    s_add_u32 s14, s14, 4096
    s_cmp_lt_u32 s14, 262144
    s_cbranch_scc1 L_fbloop
    s_branch L_afin
    """)


def gen_s(p, S_W):
    VL16, VQ, VF_, VS_ = 1, 2, 3, 7
    p(f"""
    s_sub_u32 s4, s{S_W}, 8
    s_and_b32 s9, s4, 1
    s_lshr_b32 s10, s4, 1
    v_bfe_u32 v13, v0, 2, 3
    s_mul_i32 s12, s9, 224
    s_lshl_b32 s13, s10, 3
    s_add_u32 s12, s12, s13
    v_add_u32 v13, s12, v13
    v_lshrrev_b32 v14, 5, v0
    v_and_b32 v15, 3, v0
    v_lshlrev_b32 v15, 4, v15
    v_mul_u32_u24 v{VF_}, 3584, v13
    v_add_u32 v{VF_}, v{VF_}, v15
    v_lshl_add_u32 v{VF_}, v14, 6, v{VF_}
    v_lshrrev_b32 v{VS_}, 2, v0
    s_mul_i32 s12, s9, 224
    v_add_u32 v{VS_}, s12, v{VS_}
    v_mul_u32_u24 v{VS_}, 3584, v{VS_}
    v_add_u32 v{VS_}, v{VS_}, v15
    v_mul_u32_u24 v{VQ}, 2688, v13
    v_mul_u32_u24 v14, 48, v14
    v_add3_u32 v{VQ}, v{VQ}, v14, v15
    v_lshlrev_b32 v{VL16}, 4, v0
    s_lshl_b32 s56, s10, 11
    s_lshl_b32 s12, s9, 10
    s_add_u32 s56, s56, s12
    s_mul_i32 s64, s7, 112
    s_add_u32 s65, s64, 896
    s_cmp_eq_u32 s8, 1
    s_cselect_b32 s12, 0, 1792
    s_cselect_b32 s13, 0, 256
    s_add_u32 s64, s64, s12
    s_mul_i32 s66, s7, 384
    s_add_u32 s66, s66, s13
    s_lshl_b32 s67, s7, 6
    s_add_u32 s67, s67, {48*64}
    """)
    p.label("L_ld_p")
    p("s_waitcnt lgkmcnt(0)")
    srd(p, 36, P_WQKV, 448 * 2688)
    srd(p, 40, P_WG, 448 * 3584)
    PF = 24
    VFQ, TGV, FL = 6, 4, 8
    PB = int(ENV("PB", 14))
    EVD = int(ENV("EVD", 2))

    def qkv_poll(emit):
        return emit(f"buffer_load_dwordx2 {vr(FL,2)}, v{VFQ}, s[44:47], s62 offen sc1")

    def late_setup(sfx):
        if ENV("TLB", "1") != "0":
            TA = 44
            p(f"""
            s_cmp_lg_u32 s4, 0
            s_cbranch_scc1 L_notlb{sfx}
            v_min_u32 v{TA}, {WS_USED // (2*MB) - 1}, v0
            v_lshlrev_b32 v{TA}, 21, v{TA}
            v_mov_b32 v{TA+1}, s{P_WS+1}
            v_add_co_u32 v{TA}, vcc, s{P_WS}, v{TA}
            v_addc_co_u32 v{TA+1}, vcc, 0, v{TA+1}, vcc
            """)
            bufs = [(P_WG, 448 * 3584), (P_WU, 448 * 3584), (P_WD, 1792 * 896), (P_WO, 448 * 896), (P_OUT, 2048 * 896), (P_DBG, 256)]
            for i, (b, n) in enumerate(bufs):
                p(f"""
                v_writelane_b32 v{TA}, s{b}, {16+2*i}
                v_writelane_b32 v{TA+1}, s{b+1}, {16+2*i}
                s_add_u32 s12, s{b}, {n-4}
                s_addc_u32 s13, s{b+1}, 0
                v_writelane_b32 v{TA}, s12, {17+2*i}
                v_writelane_b32 v{TA+1}, s13, {17+2*i}
                """)
            p(f"global_load_dword v{TA+2}, {vr(TA,2)}, off sc1")
            p.label("L_notlb" + sfx)
        srd(p, 72, P_WU, 448 * 3584)
        srd(p, 48, P_WD, 1792 * 896)
        srd(p, 52, P_WO, 448 * 896)
        srd(p, 44, P_WS, WS_USED)
        p(f"""
        s_cmp_eq_u32 s10, 0
        s_cselect_b32 s76, s{P_WG}, s{P_WU}
        s_cselect_b32 s77, s{P_WG+1}, s{P_WU+1}
        s_mov_b32 s78, {448*3584}
        s_mov_b32 s79, 0x20000
        s_lshl_b32 s57, s9, 11
        s_lshl_b32 s12, s10, 10
        s_add_u32 s57, s57, s12
        s_lshl_b32 s62, s5, 12
        s_add_u32 s62, s62, {QKVF}
        s_and_b32 s63, s6, 15
        s_add_u32 s63, s63, 16
        v_mov_b32 v{VFQ}, s63
        v_cmp_gt_u32 vcc, 16, v0
        v_cndmask_b32 v{VFQ}, v{VFQ}, v0, vcc
        v_lshlrev_b32 v{VFQ}, 7, v{VFQ}
        """)

    def stream(kinds):
        spec = {"V": (36, VQ, 64, 0), "Q": (36, VQ, 64, 0), "K": (36, VQ, 65, 0), "G": (40, VF_, 66, 0), "U": (72, VF_, 66, 0),
                "g": (40, VF_, 66, 128), "u": (72, VF_, 66, 128), "S": (76, VS_, 67, 0)}
        stages = [[(kinds[q >> 1], 32 * c + 16 * (q & 1)) for q in range(4)] for c in range(7)]
        stages += [[(kinds[ps], 64 * sl + 16 * q) for q in range(2 if sl == 3 else 4)] for ps in range(2, 5) for sl in range(4)]
        vm = VM(p)
        last = {}
        issued = 0
        nq = 0

        def issue1():
            nonlocal issued, nq
            kind, row = stages[issued][nq]
            s_, v, col, add = spec[kind]
            stride = 2688 if s_ == 36 else 3584
            p(f"s_add_u32 m0, {'s57' if kind == 'S' else 's56'}, {phys(issued)*SLOT + nq*4096}")
            p(f"s_add_u32 s13, s{col}, {row*stride + add}")
            if ENV("NOFILL"):
                last[issued] = None
            else:
                last[issued] = vm.op(f"buffer_load_dwordx4 v{v}, s[{s_}:{s_+3}], s13 offen lds")
            nq += 1
            if nq == len(stages[issued]):
                nq = 0
                issued += 1

        def issue():
            c = issued
            while issued == c:
                issue1()
        if TL:
            p("v_mov_b32 v60, 0")
        tl(p, 0)
        def wpf():
            p(f"s_lshl_b32 s13, s2, 2\ns_add_u32 s13, s13, s4\ns_lshl_b32 s13, s13, 10\ns_add_u32 s14, s13, {1 << 20}")
            mats = (36, 40, 72) if ENV("CPF", "1") == "0" else (72,) if ENV("CPF") == "2" else ()
            for r in mats + ((48,) if ENV("WDPF", "1") == "1" else ()):
                vm.op(f"buffer_load_dwordx4 {vr(PF,4)}, v{VL16}, s[{r}:{r+3}], s13 offen")
                vm.op(f"buffer_load_dwordx4 {vr(PF,4)}, v{VL16}, s[{r}:{r+3}], s14 offen")
        issue(); issue()
        if ENV("ST2", "1") == "1":
            issue()
        late_setup(kinds)
        if ENV("WPF", "1") != "0":
            wpf()
        tl(p, 1)
        dbg = ENV("SDBG")
        p(f"s_barrier\ns_barrier\ns_setprio {ENV('SPRIO', 0)}")
        if dbg: stamp(p, 1)
        tl(p, 2)
        issue()
        if ENV("ST2", "1") != "1":
            issue()
        vm.need(last[1])
        tl(p, 3)
        p("s_barrier")
        tl(p, 4)
        if dbg: stamp(p, 2)
        issue(); issue()
        if dbg: stamp(p, 3)
        for i in range(1, PB + EVD):
            assert issued > i + 1
            vm.need(last[i + 1])
            tl(p, 3 + 2 * i)
            p("s_barrier")
            tl(p, 4 + 2 * i)
            budget = 6 if i < 7 else eval(ENV("BUD", "[2, 8, 8, 3]"))[(i - 7) % 4]
            while budget > 0 and issued < min(NST, max(9, i + 6)):
                budget -= 1
                issue1()
            if i == 6:
                p(f"v_mov_b32 v{TGV}, {TAGL}\nds_read_b64 {vr(TGV,2)}, v{TGV}\ns_waitcnt lgkmcnt(0)")
            if i == 10:
                p(f"""
                s_cmp_lg_u32 s4, 0
                s_cbranch_scc1 L_noinit{kinds}
                v_lshlrev_b32 v22, 2, v0
                v_add_u32 v22, {CNT}, v22
                v_mov_b32 v23, 0
                ds_write_b32 v22, v23
                s_waitcnt lgkmcnt(0)
                L_noinit{kinds}:
                """)
            if i == PB:
                pollid = qkv_poll(vm.op)
            if i == int(ENV('PFI', 99)):
                PFMODE = ENV("PFMODE", "chip")
                if PFMODE == "chip":
                    p(f"s_lshl_b32 s13, s2, 2\ns_add_u32 s13, s13, s4\ns_lshl_b32 s14, s13, 11\ns_lshl_b32 s13, s13, 9")
                    vm.op(f"buffer_load_dwordx4 {vr(PF,4)}, v{VL16}, s[48:51], s14 offen")
                    vm.op(f"buffer_load_dwordx4 {vr(PF+4,4)}, v{VL16}, s[48:51], s14 offen offset:1024")
                    vm.op(f"buffer_load_dwordx4 {vr(PF+8,4)}, v{VL16}, s[52:55], s13 offen")
            if ENV("PFMODE", "chip") == "xcd" and 5 <= i < 9:
                k = i - 5
                if k == 0:
                    p(f"s_lshl_b32 s13, s6, 2\ns_add_u32 s13, s13, s4\ns_mul_i32 s57, s13, {13*1024}\ns_lshl_b32 s58, s13, 12")
                    for q in range(4):
                        vm.op(f"buffer_load_dwordx4 {vr(PF+4*q,4)}, v{VL16}, s[52:55], s58 offen offset:{q*1024}")
                    vm.op(f"buffer_load_dwordx4 {vr(PF+16,4)}, v{VL16}, s[48:51], s57 offen")
                    p("s_add_u32 s57, s57, 1024")
                else:
                    for q in range(4):
                        vm.op(f"buffer_load_dwordx4 {vr(PF+4*q,4)}, v{VL16}, s[48:51], s57 offen offset:{q*1024}")
                    p("s_add_u32 s57, s57, 4096")
        assert issued == NST
    p("s_cmp_eq_u32 s8, 1\ns_cbranch_scc1 L_ld_b")
    stream("VKGUS")
    p("s_branch L_ld_done")
    p.label("L_ld_b")
    stream("QGUgu")
    p.label("L_ld_done")
    if not ENV("SDBG"):
        stamp(p, 1)
    tl_dump(p)
    if ENV("STOPB"):
        endpgm(p)
    p(f"""
    s_lshr_b32 s7, s6, 4
    s_lshl_b32 s8, s5, 1
    s_add_u32 s7, s7, s8                ; head
    s_and_b32 s8, s6, 15                ; q block
    """)
    VKV = 2
    p(f"""
    s_lshl_b32 s12, s7, 18
    s_add_u32 s12, s12, {KV_OFF}
    s_lshl_b32 s13, s4, 12              ; s*4096
    v_add_u32 v{VKV}, s13, v{VL16}
    s_lshl_b32 s66, s7, 17
    s_lshl_b32 s3, s8, 13
    s_add_u32 s66, s66, s3
    s_lshl_b32 s3, s4, 11
    s_add_u32 s66, s66, s3
    s_add_u32 s66, s66, {QF_OFF}
    s_add_u32 s67, s3, {QL}
    s_mov_b32 s68, 0                    ; ready
    s_mov_b32 s69, 0
    s_mov_b32 s70, {PB+EVD}
    s_mov_b32 s71, {SPIN_MAX}
    s_add_u32 s64, s13, {4*SLOT}
    """)
    srd(p, 36, P_WS, 262144, "s12")
    srd(p, 40, P_WS, WS_USED)
    p.label("L_pl")
    p(f"""
    s_cmp_lg_u32 s68, 0
    s_cbranch_scc1 L_pl_ready
    s_cmp_ge_u32 s70, 19
    s_cbranch_scc1 L_pl_eval
    s_cmp_lg_u32 s70, {PB+EVD}
    s_cbranch_scc1 L_pl_bar
    L_pl_eval:
    s_waitcnt vmcnt(0)
    v_cmp_eq_u64 s[60:61], {vr(FL,2)}, {vr(TGV,2)}
    """)
    p(f"""
    s_sub_u32 s71, s71, 1
    s_cselect_b32 s68, 1, 0
    s_cmp_eq_u64 s[60:61], -1
    s_cselect_b32 s68, 1, s68
    s_cmp_lg_u32 s68, 0
    s_cbranch_scc1 L_pl_q
    """)
    qkv_poll(lambda t: p(t))
    p(f"""
    s_branch L_pl_bar
    L_pl_q:
    s_mov_b32 m0, s67
    s_nop 0
    buffer_load_dwordx4 v{VL16}, s[40:43], s66 offen sc1 lds
    buffer_load_dwordx4 v{VL16}, s[40:43], s66 offen offset:1024 sc1 lds
    L_pl_ready:
    s_add_u32 s3, s69, 15
    s_cmp_gt_u32 s3, s70
    s_cbranch_scc1 L_pl_bar
    s_cmp_ge_u32 s69, 4
    s_cbranch_scc1 L_pl_bar
    s_lshl_b32 s14, s69, 14
    s_mov_b32 m0, s64
    s_add_u32 s69, s69, 1
    buffer_load_dwordx4 v{VKV}, s[36:39], s14 offen sc1 lds
    buffer_load_dwordx4 v{VKV}, s[36:39], s14 offen offset:1024 sc1 lds
    buffer_load_dwordx4 v{VKV}, s[36:39], s14 offen offset:2048 sc1 lds
    buffer_load_dwordx4 v{VKV}, s[36:39], s14 offen offset:3072 sc1 lds
    s_add_u32 s64, s64, {SLOT}
    s_cmp_eq_u32 s69, 2
    s_cselect_b32 s64, s13, s64
    s_branch L_pl_ready
    L_pl_bar:
    s_cmp_ge_u32 s70, 19
    s_cbranch_scc1 L_pl_nobar
    s_barrier
    s_add_u32 s70, s70, 1
    s_branch L_pl
    L_pl_nobar:
    s_cmp_ge_u32 s69, 4
    s_cbranch_scc1 L_pl_done
    s_sleep 4
    s_branch L_pl
    L_pl_done:
    v_mov_b32 v{FL}, {CNT}
    v_mov_b32 v{FL+1}, 1
    s_mov_b64 exec, 1
    s_waitcnt vmcnt(8)
    ds_add_u32 v{FL}, v{FL+1} offset:96
    s_waitcnt vmcnt(0)
    ds_add_u32 v{FL}, v{FL+1} offset:4
    ds_add_u32 v{FL}, v{FL+1} offset:132
    s_mov_b64 exec, -1
    s_mul_i32 s14, s8, {12*1024}
    s_mul_i32 s3, s4, {3*1024}
    s_add_u32 s14, s14, s3
    s_add_u32 s14, s14, {2*KVS}
    buffer_load_dwordx4 {vr(FL+4,4)}, v{VL16}, s[36:39], s14 offen sc1
    buffer_load_dwordx4 {vr(FL+4,4)}, v{VL16}, s[36:39], s14 offen offset:1024 sc1
    buffer_load_dwordx4 {vr(FL+4,4)}, v{VL16}, s[36:39], s14 offen offset:2048 sc1
    s_lshl_b32 s3, s2, 2
    s_add_u32 s3, s3, s4
    s_lshl_b32 s3, s3, 9
    buffer_load_dwordx4 {vr(FL+4,4)}, v{VL16}, s[52:55], s3 offen
    s_cmp_ge_u32 s6, {0 if ENV("NODOWN") else 28}
    s_cbranch_scc1 L_s_end
    s_barrier                           ; barrier(19)
    s_barrier
    s_setprio {ENV("DPRIO0", 0)}
    """)
    stamp(p, 2)
    ACC, WF, HB = 8, 72, 88
    VD, VT0, VT1, VX = 2, 3, 6, 7
    GR, XF = 144, 160
    NRING = 7
    p(f"""
    s_and_b32 s9, s6, 3
    s_lshl_b32 s10, s5, 2
    s_add_u32 s9, s9, s10
    s_lshr_b32 s10, s6, 2
    s_lshr_b32 s11, s4, 1
    s_lshl_b32 s57, s9, 1
    s_add_u32 s57, s57, s11
    s_xor_b32 s58, s57, 1
    s_mul_i32 s3, s4, {12*2048}
    s_add_u32 s3, s3, {H_OFF}
    s_mul_i32 s60, s57, 114688
    s_add_u32 s60, s60, s3
    s_mul_i32 s61, s58, 114688
    s_add_u32 s61, s61, s3
    v_bfe_u32 v{VX}, v0, 2, 3
    v_mul_u32_u24 v{VX}, 896, v{VX}
    v_lshrrev_b32 v{VT0}, 5, v0
    v_lshl_add_u32 v{VX}, v{VT0}, 6, v{VX}
    v_and_b32 v{VT0}, 3, v0
    v_lshl_add_u32 v{VX}, v{VT0}, 4, v{VX}
    s_lshl_b32 s14, s10, 7
    v_add_u32 v{VD}, s14, v{VX}
    v_lshrrev_b32 v{VX}, 5, v0
    v_lshlrev_b32 v{VX}, 8, v{VX}
    v_bfe_u32 v{VT0}, v0, 2, 2
    v_lshl_add_u32 v{VX}, v{VT0}, 6, v{VX}
    v_bfe_u32 v{VT0}, v0, 4, 1
    v_lshl_add_u32 v{VX}, v{VT0}, 5, v{VX}
    v_and_b32 v{VT0}, 3, v0
    v_lshl_add_u32 v{VX}, v{VT0}, 3, v{VX}
    s_lshl_b32 s15, s4, 14
    s_add_u32 s15, s15, {PRIV}
    s_and_b32 s3, s4, 1
    s_lshl_b32 s3, s3, 9
    s_add_u32 s3, s3, s15
    v_add_u32 v{VT0}, s3, v{VX}
    v_xor_b32 v{VT1}, 512, v{VT0}
    s_mul_i32 s62, s4, {12*32*896}
    s_mul_i32 s63, s4, -10
    s_add_u32 s63, s63, 48
    s_lshl_b32 s64, s63, 11
    s_add_u32 s65, s64, s61
    s_add_u32 s64, s64, s60
    s_mul_i32 s63, s63, {32*896}
    s_add_u32 s63, s63, s62
    """)
    vm = VM(p)

    order = [0, 1, 6, 7, 4, 5, 10, 11, 2, 3, 8, 9, 12, 13]
    seg_end = [8, 16, 28]
    seg_mask = [0x11, 0x22, 0xCC]

    def wload(ks):
        sl = ks % NRING
        if ks >= 28:
            for o in range(2):
                p(f"s_add_u32 m0, s15, {sl*2048 + o*1024}")
                p(f"s_add_u32 s14, s67, {(16*sl + 8*o)*896}")
                vm.op(f"buffer_load_dwordx4 v{VD}, s[52:55], s14 offen lds")
            return
        t = order[ks >> 1]
        base, t = ("s62", t) if t < 12 else ("s63", t - 12)
        for o in range(2):
            p(f"s_add_u32 m0, s15, {sl*2048 + o*1024}")
            p(f"s_add_u32 s14, {base}, {(32*t + 16*(ks&1) + 8*o)*896}")
            wid[ks] = vm.op(f"buffer_load_dwordx4 v{VD}, s[48:51], s14 offen lds")

    def hload(ks):
        sl = ks % NRING
        t = order[ks >> 1]
        (b0, b1), t = (("s60", "s61"), t) if t < 12 else (("s64", "s65"), t - 12)
        off = t * 2048 + (ks & 1) * 1024
        for r, b_ in enumerate((b0, b1)):
            if off >= 4096:
                p(f"s_add_u32 s14, {b_}, {off & ~4095}")
            hid[ks] = vm.op(f"buffer_load_dwordx4 {vr(HB+8*sl+4*r,4)}, v{VL16}, s[40:43], {'s14' if off >= 4096 else b_} offen offset:{off & 4095} sc1")
    wid, hid = {}, {}
    VFA, FT = GR, GR + 2
    p(f"""
    v_and_b32 v{VFA}, 7, v0
    v_lshlrev_b32 v{VFA}, 7, v{VFA}
    s_lshr_b32 s66, s9, 1
    s_lshl_b32 s66, s66, 12
    s_lshl_b32 s3, s4, 10
    s_add_u32 s66, s66, s3
    s_add_u32 s66, s66, {HFL}
    s_mov_b32 s71, {SPIN_MAX}
    s_mul_i32 s67, s4, {112*896}
    v_and_b32 v{VX}, 31, v0
    s_lshl_b32 s14, s57, 5
    v_add_u32 v{VX}, s14, v{VX}
    v_mul_u32_u24 v{VX}, 896, v{VX}
    v_lshrrev_b32 v0, 5, v0
    v_lshl_add_u32 v{VX}, v0, 3, v{VX}
    s_and_b32 s14, s4, 1
    s_lshl_b32 s14, s14, 6
    s_lshl_b32 s3, s10, 7
    s_add_u32 s14, s14, s3
    v_add_u32 v0, s14, v{VX}
    """)
    VXO = 0
    srd(p, 44, P_X, 2048 * 896)
    for g4 in range(4):
        vm.op(f"buffer_load_dwordx2 {vr(XF+2*g4,2)}, v{VXO}, s[44:47], 0 offen offset:{16*g4}")

    def hpoll(k):
        label = f"L_hp{k}"
        p(f"s_mov_b32 s68, {seg_mask[k]}\ns_mov_b32 s69, 0\ns_mov_b32 s71, {SPIN_MAX}")
        p.label(label)
        p(f"""
        buffer_load_dwordx2 {vr(FT,2)}, v{VFA}, s[40:43], s66 offen sc1
        s_sub_u32 s71, s71, 1
        s_waitcnt vmcnt(0)
        v_cmp_eq_u64 vcc, {vr(FT,2)}, {vr(TGV,2)}
        s_cmp_eq_u32 s71, 0
        s_cbranch_scc1 {label}_x
        s_and_b64 vcc, vcc, s[68:69]
        s_cmp_eq_u64 vcc, s[68:69]
        s_cbranch_scc1 {label}_x
        s_sleep 8
        s_branch {label}
        {label}_x:
        """)
        vm.done = vm.n

    def trd(wb, base, a0=VT0, a1=VT1):
        for c, a in enumerate((a0, a1)):
            for b in range(2):
                p(f"ds_read_b64_tr_b16 {vr(wb+4*c+2*b,2)}, v{a} offset:{base + b*1024}")
    LOOK = int(ENV("LOOK", 3))
    seg, hn = 0, 0

    def hfill(done):
        nonlocal hn
        while hn < min(seg_end[seg], done + NRING):
            hload(hn)
            hn += 1
    for ks in range(2):
        wload(ks)
    hpoll(0)
    stamp(p, 3)
    for ks in range(NRING):
        hload(ks)
        if ks + 2 < NRING:
            wload(ks + 2)
    hn = NRING
    p(f"s_setprio {ENV('DPRIO', 0)}")
    trd(WF, 0)
    for ks in range(28):
        sl = ks % NRING
        wb = WF + 8 * (ks & 1)
        if ENV("DSW") and ks == int(ENV("DSW")):
            p(f"s_setprio {ENV('DSWP', 1)}")
        if ks + 1 < 28:
            vm.need(wid[ks + 1])
            trd(WF + 8 * ((ks + 1) & 1), ((ks + 1) % NRING) * 2048)
        vm.need(hid[ks])
        p(f"s_waitcnt lgkmcnt({4 if ks + 1 < 28 else 0})")
        for a in range(4):
            ac = vr(ACC + 16 * a, 16)
            p(f"{MFMA} {ac}, {vr(wb+4*(a&1),4)}, {vr(HB+8*sl+4*(a>>1),4)}, {'0' if ks == 0 else ac}")
            if ENV("DINT") and a == 0 and ks >= 1:
                hfill(ks)
            if ENV("DINT") and a == 1 and ks + NRING < 28:
                wload(ks + NRING)
        if seg < 2 and ks + 1 + LOOK == seg_end[seg]:
            seg += 1
            hpoll(seg)
            hfill(ks + 1)
        if not ENV("DINT"):
            hfill(ks + 1)
            wload(ks + NRING)
    stamp(p, 4)

    def send():
        p(f"v_add_u32 v{VX}, s15, v{VL16}")
        for a in range(1, 4):
            for r in range(4):
                p(f"ds_write_b128 v{VX}, {vr(ACC+16*a+4*r,4)} offset:{(a-1)*4096 + r*1024}")

    def ssync(k):
        p(f"v_mov_b32 v{WF+1}, {CNT_S0 + 4*k}\nv_mov_b32 v{WF+2}, 1")
        p(f"s_mov_b64 exec, 1\ns_waitcnt lgkmcnt(0)\nds_add_u32 v{WF+1}, v{WF+2}\ns_mov_b64 exec, -1")
        lds_spin(p, f"L_ss{k}", f"v{WF+1}", WF, "4", 71)

    def recv():
        for a in range(1, 4):
            p(f"s_xor_b32 s3, s4, {a}\ns_lshl_b32 s3, s3, 14\ns_add_u32 s3, s3, {PRIV + (a-1)*4096}\nv_add_u32 v{VX}, s3, v{VL16}")
            for r in range(4):
                p(f"ds_read_b128 {vr(ACC+16*a+4*r,4)}, v{VX} offset:{r*1024}")

    def addup():
        for a in range(1, 4):
            p(f"s_waitcnt lgkmcnt({4*(3-a)})")
            for r in range(16):
                p(f"v_add_f32 v{ACC+r}, v{ACC+r}, v{ACC+16*a+r}")
    d7 = ENV("SD7")
    if d7: stamp(p, 1)
    if ENV("DSW"):
        p(f"s_setprio {ENV('DSWE', 0)}")
    p(f"""
    v_mov_b32 v{WF+1}, {CNT}
    v_mov_b32 v{WF+2}, 1
    s_lshl_b32 s3, s4, 2
    v_mov_b32 v{WF+3}, s3
    v_add_u32 v{WF+3}, {CNT_S0 + 4}, v{WF+3}
    v_xor_b32 v{WF+4}, 8, v{WF+3}
    v_xor_b32 v{WF+5}, 4, v{WF+3}
    s_and_b32 s3, s4, 1
    s_lshl_b32 s3, s3, 13
    s_cmp_lt_u32 s4, 2
    s_cselect_b32 s14, 0, {SLOT}
    s_add_u32 s3, s3, s14
    s_add_u32 s3, s3, {2*SLOT}
    v_add_u32 v{VX}, s3, v{VL16}                    ; area(kq)
    v_xor_b32 v{VD}, {SLOT}, v{VX}                  ; area(kq^2)
    """)
    lds_spin(p, "L_g0", f"v{WF+1} offset:48", WF, "4", 71)
    lds_spin(p, "L_g1", f"v{WF+1} offset:176", WF, "4", 71)
    for i in range(8):
        p(f"ds_write_b128 v{VX}, {vr(ACC+32+4*i,4)} offset:{i*1024}")
    p(f"s_waitcnt lgkmcnt(0)\nds_write_b32 v{WF+3}, v{WF+2}")
    lds_spin(p, "L_h1", f"v{WF+4}", WF, "1", 71)
    if d7: stamp(p, 2)
    for i in (4, 5, 6, 7, 0, 1, 2, 3):
        p(f"ds_read_b128 {vr(ACC+32+4*i,4)}, v{VD} offset:{i*1024}")
    p("s_waitcnt lgkmcnt(4)")
    for r in range(16):
        p(f"v_add_f32 v{ACC+16+r}, v{ACC+16+r}, v{ACC+48+r}")
    p("s_waitcnt lgkmcnt(0)")
    for i in range(4):
        p(f"ds_write_b128 v{VD}, {vr(ACC+16+4*i,4)} offset:{i*1024}")
    for r in range(16):
        p(f"v_add_f32 v{ACC+r}, v{ACC+r}, v{ACC+32+r}")
    p(f"v_xor_b32 v{VX}, 8192, v{VX}\ns_waitcnt lgkmcnt(0)\nds_write_b32 v{WF+3}, v{WF+2} offset:16")
    if d7: stamp(p, 3)
    lds_spin(p, "L_h2", f"v{WF+5} offset:16", WF, "1", 71)
    p(f"v_xor_b32 v{VX}, {SLOT}, v{VX}")
    for i in range(4):
        p(f"ds_read_b128 {vr(ACC+16+4*i,4)}, v{VX} offset:{i*1024}")
    for i in range(4):
        p(f"s_waitcnt lgkmcnt({3-i})")
        for r in range(4 * i, 4 * i + 4):
            p(f"v_add_f32 v{ACC+r}, v{ACC+r}, v{ACC+16+r}")
    if d7: stamp(p, 4)
    T = ACC + 16
    p(f"s_mov_b32 s3, {f32(-LOG2E)}")
    for i in range(16):
        p(f"v_mul_f32 v{T+i}, s3, v{ACC+i}")
    for i in range(16):
        p(f"v_exp_f32 v{T+i}, v{T+i}")
    for i in range(16):
        p(f"v_add_f32 v{T+i}, 1.0, v{T+i}")
    for i in range(16):
        p(f"v_rcp_f32 v{T+i}, v{T+i}")
    GREG = [GR + i for i in range(16)]
    for i in range(16):
        p(f"v_mul_f32 v{GREG[i]}, v{ACC+i}, v{T+i}")
    if ENV("DUMP_G"):
        for i in range(8):
            p(f"v_cvt_pk_bf16_f32 v{T+i}, v{GREG[2*i]}, v{GREG[2*i+1]}")
        p(f"""
        s_mul_i32 s14, s57, {14*2048}
        s_lshl_b32 s3, s10, 1
        s_and_b32 s63, s4, 1
        s_add_u32 s3, s3, s63
        s_lshl_b32 s3, s3, 11
        s_add_u32 s14, s14, s3
        s_add_u32 s14, s14, {G_OFF}
        buffer_store_dwordx4 {vr(T,4)}, v{VL16}, s[40:43], s14 offen
        buffer_store_dwordx4 {vr(T+4,4)}, v{VL16}, s[40:43], s14 offen offset:1024
        """)
    p(f"""
    v_bfe_u32 v{WF+4}, v{VL16}, 4, 2
    v_lshlrev_b32 v{VX}, 7, v{WF+4}
    v_bfe_u32 v{WF}, v{VL16}, 6, 1
    v_lshl_add_u32 v{VX}, v{WF}, 11, v{VX}
    s_lshl_b32 s14, s9, 12
    s_lshl_b32 s3, s4, 9
    s_add_u32 s14, s14, s3
    s_add_u32 s14, s14, {OFL}
    s_mov_b32 s71, {SPIN_MAX}
    s_lshl_b32 s3, s4, 13
    s_add_u32 s3, s3, {O_OFF}
    s_lshl_b32 s60, s57, 15
    s_add_u32 s60, s60, s3
    s_lshl_b32 s61, s58, 15
    s_add_u32 s61, s61, s3
    s_add_u32 s62, s60, 4096
    s_add_u32 s63, s61, 4096
    v_lshlrev_b32 v{WF+4}, 3, v{WF+4}
    v_add_u32 v{WF+4}, {CNT_COMB}, v{WF+4}
    """)
    stamp(p, 5)
    p(f"s_setprio {ENV('DPRIO3', 0)}")
    p.label("L_op")
    p(f"""
    buffer_load_dwordx2 {vr(WF,2)}, v{VX}, s[40:43], s14 offen sc1
    s_sub_u32 s71, s71, 1
    s_waitcnt vmcnt(0)
    v_cmp_eq_u64 vcc, {vr(WF,2)}, {vr(TGV,2)}
    s_cmp_eq_u32 s71, 0
    s_cbranch_scc1 L_op_x
    s_cmp_eq_u64 vcc, -1
    s_cbranch_scc1 L_op_x
    ds_read_b32 v{WF+2}, v{WF+4}
    s_waitcnt lgkmcnt(0)
    v_cmp_eq_u32 vcc, 2, v{WF+2}
    s_cmp_eq_u64 vcc, -1
    s_cbranch_scc1 L_op
    s_sleep {ENV("OSLEEP", 2)}
    s_branch L_op
    L_op_x:
    """)
    stamp(p, 6)
    vm = VM(p)
    OB = HB
    oid = {}

    def oload(kk, r):
        sreg = (("s60", "s61"), ("s62", "s63"))[kk >> 2][r]
        slot = (2 * kk + r) % 14
        oid[(kk, r)] = vm.op(f"buffer_load_dwordx4 {vr(OB+4*slot,4)}, v{VL16}, s[40:43], {sreg} offen offset:{(kk&3)*1024} sc1")
    for kk in range(7):
        oload(kk, 0); oload(kk, 1)

    def wrd(kk):
        hh, s_ = kk >> 1, kk & 1
        row = 28 * hh - 4 * (hh & 1) + 16 * s_
        trd(WF + 8 * (kk & 1), (row >> 3) * 1024)
    wrd(0)
    for kk in range(8):
        if kk + 1 < 8:
            wrd(kk + 1)
        wb = WF + 8 * (kk & 1)
        p(f"s_waitcnt lgkmcnt({4 if kk + 1 < 8 else 0})")
        for a in range(4):
            vm.need(oid[(kk, a >> 1)])
            ac = vr(ACC + 16 * a, 16)
            p(f"{MFMA} {ac}, {vr(wb+4*(a&1),4)}, {vr(OB+4*((2*kk+(a>>1))%14),4)}, {'0' if kk == 0 else ac}")
        if kk == 0:
            oload(7, 0); oload(7, 1)
    if ENV("SD8"): stamp(p, 1)
    send()
    srd(p, 44, P_OUT, 2048 * 896)
    XE = HB
    for i in range(8):
        p(f"v_lshlrev_b32 v{XE+2*i}, 16, v{XF+i}")
        p(f"v_and_b32 v{XE+2*i+1}, 0xffff0000, v{XF+i}")
    ssync(0)
    if ENV("SD8"): stamp(p, 2)
    recv()
    addup()
    if ENV("SD8"): stamp(p, 3)
    for i in range(16):
        p(f"v_fma_f32 v{ACC+i}, v{ACC+i}, v{GREG[i]}, v{XE+i}")
    pack16(p, WF, ACC)
    for g4 in range(4):
        p(f"buffer_store_dwordx2 {vr(WF+2*g4,2)}, v{VXO}, s[44:47], 0 offen offset:{16*g4}")
    p.label("L_s_end")
    endpgm(p)


def main():
    ref = open("cdna_kernels/" + NAME + ".s.ref").read().split("\n")
    head = [l for l in ref if l.startswith(";") and "@launch" not in l and "Override launch" not in l and "grid=ceil" not in l]
    p = Prog()
    gen(p)
    body = p.finalize()
    out = head[:]
    out += """;
; One fused kernel, one 12-wave workgroup per CU (generated by my own script, gen/gen3.py).
;  waves 0-7 : layernorm of 128 rows, Q/K/V/gate/up projections (MFMA, W streamed through LDS, K split over wave pairs),
;              then attention for one (head, 128 queries): S^T = K Q^T, P = exp2(S) without a shift, row sums from a
;              ones column of V.  The result is checked (row sum in [2^-40, 2^100], everything finite); a tile that
;              fails is recomputed by the online-softmax loop with the true running max (L_fallback).
;  waves 8-11: stream the weights, then the down projection + silu, the output projection and out = x + s*g.
;  Hand-offs between workgroups: write-through (sc1) stores, drained, then an 8-byte flag holding this launch's tag
;  (start time of workgroup 0, passed through d_debug); consumers poll with sc1 loads.  Every spin is bounded.""".split("\n")
    out.append("; @launch grid=(256,1,1) block=(768,1,1) lds=163840")
    out.append('.amdgcn_target "amdgcn-amd-amdhsa--gfx950"\n.text')
    out.append(body)
    out.append(f""".section .rodata,"a"
.p2align 6
.amdhsa_kernel {KN}
  .amdhsa_next_free_vgpr 168
  .amdhsa_next_free_sgpr 100
  .amdhsa_accum_offset 168
  .amdhsa_group_segment_fixed_size 0
  .amdhsa_kernarg_size 80
  .amdhsa_user_sgpr_count 2
  .amdhsa_user_sgpr_kernarg_segment_ptr 1
  .amdhsa_system_sgpr_workgroup_id_x 1
.end_amdhsa_kernel""")
    if ENV("PLAINLD"):
        import re
        out = [re.sub(r"(buffer_load_dwordx4 .*) sc1( lds)?$", r"\1\2", l, flags=re.M) if "s[44:47], s6" not in l else l for l in "\n".join(out).split("\n")]
    path = sys.argv[1] if len(sys.argv) > 1 else "cdna_kernels/" + NAME + ".s"
    open(path, "w").write("\n".join(out) + "\n")
    print("wrote", path, "nops inserted:", p.total_nops)


main()
```

```python
import math, struct, sys, os
from asmlib import Prog

NAME = "recurrent_scan__mha_block__geglu_ffn__prompt"
KN = NAME + "_kernel"
MB = 1 << 20
QF_OFF, KV_OFF, H_OFF, O_OFF, G_OFF = 0, 2 * MB, 6 * MB, 13 * MB, 15 * MB
FLAG_OFF = 17 * MB
QKVF, HFL, OFL = FLAG_OFF, FLAG_OFF + 65536, FLAG_OFF + 131072
WS_USED = 18 * MB
LOG2E = math.log2(math.e)
QSCALE = LOG2E / math.sqrt(28.0)
SPIN_MAX = 1 << 12
ENV = os.environ.get
STAMPS = bool(ENV("STAMPS"))
STAMP_OFF = 24 * MB
MFMA = "v_mfma_f32_32x32x16_bf16"
P_X, P_WQKV, P_WO, P_WG, P_WU, P_WD, P_OUT, P_DBG, P_WS = 16, 18, 20, 24, 26, 28, 30, 32, 34
SLOT = 16384
EXB = 8 * SLOT
TAGL = 6 * SLOT
QL = 3 * SLOT + 8192
NST = 19


def phys(c):
    return (8, 9, 7)[c] if c < 3 else (c - 3) % 6
PRIV = 6 * SLOT
CNT = PRIV + 15360
CNT_COMB, CNT_S0 = CNT + 64, CNT + 220
KVS = 32768
CNT_GO = CNT + 96
CNT_H = CNT + 100


def f32(x):
    return "0x%08x" % struct.unpack("<I", struct.pack("<f", x))[0]


def vr(b, n=1):
    return f"v{b}" if n == 1 else f"v[{b}:{b+n-1}]"


def srd(p, d, base, nrec, add=None):
    if add is None:
        p(f"s_mov_b32 s{d}, s{base}\ns_mov_b32 s{d+1}, s{base+1}")
    else:
        p(f"s_add_u32 s{d}, s{base}, {add}\ns_addc_u32 s{d+1}, s{base+1}, 0")
    p(f"s_mov_b32 s{d+2}, {nrec}\ns_mov_b32 s{d+3}, 0x20000")


def pack16(p, dst, src):
    for i in range(8):
        p(f"v_cvt_pk_bf16_f32 v{dst+i}, v{src+2*i}, v{src+2*i+1}")


def stamp_txt(i):
    if STAMPS and not (ENV("CB") and i < 7):
        assert i < 8
        return [f"{ENV('STAMP_INS', 's_memrealtime')} s[{80+2*i}:{81+2*i}]"]
    return []


def stamp(p, i):
    for x in stamp_txt(i):
        p(x)


TL = bool(ENV("TL"))


def tl(p, idx):
    if TL:
        p(f"{ENV('STAMP_INS', 's_memrealtime')} s[94:95]\ns_waitcnt lgkmcnt(0)\nv_writelane_b32 v60, s94, {idx}")


def tl_dump(p):
    if TL:
        p(f"""
        s_lshl_b32 s94, s2, 4
        s_add_u32 s94, s94, s59
        s_lshl_b32 s94, s94, 8
        s_add_u32 s94, s94, {STAMP_OFF + MB}
        s_mov_b32 s96, s{P_WS}
        s_mov_b32 s97, s{P_WS+1}
        s_mov_b32 s98, {32*MB}
        s_mov_b32 s99, 0x20000
        v_lshlrev_b32 v61, 2, v0
        buffer_store_dword v60, v61, s[96:99], s94 offen
        """)


def endpgm(p):
    if STAMPS and ENV("DBGMAX"):
        stamp(p, 7)
        p(f"""
        s_mov_b64 exec, -1
        s_mov_b32 s96, s{P_DBG}
        s_mov_b32 s97, s{P_DBG+1}
        s_mov_b32 s98, 256
        s_mov_b32 s99, 0x20000
        buffer_load_dword v10, off, s[96:99], 0 sc1
        s_waitcnt vmcnt(0) lgkmcnt(0)
        """)
        for i in range(8):
            p(f"v_writelane_b32 v8, s{80+2*((i+1) % 8)}, {i}")
        p(f"""
        v_cmp_ne_u32 vcc, 0, v8
        v_sub_u32 v8, v8, v10
        v_add_u32 v8, 1000, v8
        v_cndmask_b32 v8, 0, v8, vcc
        s_cmp_ge_u32 s59, 8
        s_cselect_b32 s4, 36, 8
        v_mbcnt_lo_u32_b32 v9, -1, 0
        v_lshlrev_b32 v9, 2, v9
        s_mov_b64 exec, 0x7f
        buffer_atomic_umax v8, v9, s[96:99], s4 offen
        s_waitcnt vmcnt(0)
        """)
    elif STAMPS:
        stamp(p, 7)
        p("s_waitcnt vmcnt(0) lgkmcnt(0)\ns_mov_b64 exec, -1")
        for i in range(8):
            p(f"v_writelane_b32 v8, s{80+2*i}, {i}")
        p(f"""
        s_lshl_b32 s4, s2, 4
        s_add_u32 s4, s4, s59
        s_lshl_b32 s4, s4, 5
        s_add_u32 s4, s4, {STAMP_OFF}
        s_mov_b32 s96, s{P_WS}
        s_mov_b32 s97, s{P_WS+1}
        s_mov_b32 s98, {32*MB}
        s_mov_b32 s99, 0x20000
        v_mbcnt_lo_u32_b32 v9, -1, 0
        v_lshlrev_b32 v9, 2, v9
        s_mov_b64 exec, 0xff
        buffer_store_dword v8, v9, s[96:99], s4 offen
        """)
    p("s_endpgm")


class DS:
    def __init__(self, pending):
        self.n, self.done = pending, 0

    def op(self):
        self.n += 1
        return self.n - 1

    def need(self, i):
        if i < self.done:
            return []
        self.done = i + 1
        return [f"s_waitcnt lgkmcnt({min(15, self.n - 1 - i)})"]


class VM:
    def __init__(self, p):
        self.p, self.n, self.done = p, 0, 0

    def op(self, txt):
        self.p(txt)
        self.n += 1
        return self.n - 1

    def need(self, i):
        if i is None or i < self.done:
            return
        self.done = i + 1
        k = self.n - 1 - i
        assert k <= 63
        self.p(f"s_waitcnt vmcnt({k})")


def cost(ins):
    c = 0
    for l in ins.strip().split("\n"):
        m = l.strip().split()[0]
        c += 8 if m.startswith(("v_exp", "v_rcp", "v_rsq", "ds_")) else 16 if m.startswith("buffer_") else 4
    return c


def lds_spin(p, label, addr_v, tmp, want, sreg, wide=False):
    p(f"s_mov_b32 s{sreg}, {SPIN_MAX*8}")
    p.label(label)
    if wide:
        p(f"ds_read_b64 {vr(tmp,2)}, {addr_v}\ns_sub_u32 s{sreg}, s{sreg}, 1\ns_waitcnt lgkmcnt(0)\nv_cmp_ne_u64 vcc, {want}, {vr(tmp,2)}")
    else:
        p(f"ds_read_b32 v{tmp}, {addr_v}\ns_sub_u32 s{sreg}, s{sreg}, 1\ns_waitcnt lgkmcnt(0)\nv_cmp_ne_u32 vcc, {want}, v{tmp}")
    p(f"""
    s_cmp_eq_u32 s{sreg}, 0
    s_cbranch_scc1 {label}_x
    s_cmp_eq_u64 vcc, 0
    s_cbranch_scc1 {label}_x
    s_sleep 1
    s_branch {label}
    {label}_x:
    """)


def gen(p):
    p(f".globl {KN}\n.p2align 8\n.type {KN},@function")
    p.label(KN)
    S_W, S_RG, S_HF, S_RB, S_RT = 59, 60, 61, 62, 63
    RX = int(ENV('RX', 2))
    p(f"""
    s_cmp_ge_u32 s2, 256
    s_cbranch_scc1 L_exit
    s_load_dwordx16 s[16:31], s[0:1], 0
    s_load_dwordx4 s[32:35], s[0:1], 64
    """)
    if STAMPS:
        for i in range(16):
            p(f"s_mov_b32 s{80+i}, 0")
        stamp(p, 0)
    p(f"""
    v_lshrrev_b32 v2, 6, v0
    v_and_b32 v0, 63, v0
    v_readfirstlane_b32 s{S_W}, v2
    s_and_b32 s5, s2, 7                 ; xcd
    s_lshr_b32 s6, s2, 3                ; j
    s_and_b32 s7, s5, {(1 << RX) - 1}
    s_lshl_b32 s7, s7, {4 - RX}
    s_and_b32 s8, s6, {(16 >> RX) - 1}
    s_add_u32 s{S_RB}, s7, s8
    s_lshr_b32 s7, s5, {RX}
    s_lshl_b32 s7, s7, {RX + 1}
    s_lshr_b32 s8, s6, {4 - RX}
    s_add_u32 s7, s7, s8
    s_and_b32 s8, s7, 1
    s_lshr_b32 s7, s7, 1
    s_cmp_ge_u32 s{S_W}, 8
    s_cbranch_scc1 L_service
    """)
    gen_c(p, S_W, S_RG, S_HF, S_RB, S_RT)
    p.label("L_service")
    gen_s(p, S_W)
    p.label("L_exit")
    p("s_endpgm")


def gen_c(p, S_W, S_RG, S_HF, S_RB, S_RT):
    VL16, VA, VB, VTRL, VEX, VEXP, VST = 1, 2, 3, 4, 5, 6, 7
    X, SA, SB, G, WF, T = 8, 64, 96, 128, 144, 160
    p(f"""
    s_and_b32 s{S_RG}, s{S_W}, 3
    s_lshr_b32 s{S_HF}, s{S_W}, 2
    s_xor_b32 s{S_HF}, s{S_HF}, s8
    v_lshrrev_b32 v12, 2, v0            ; r16
    v_lshrrev_b32 v13, 4, v0            ; r16>>2
    v_xor_b32 v13, v13, v0
    v_and_b32 v13, 3, v13
    v_mul_u32_u24 v12, 896, v12
    v_lshl_add_u32 v12, v13, 4, v12
    s_lshl_b32 s9, s{S_RB}, 2
    s_add_u32 s{S_RT}, s9, s{S_RG}
    s_mul_i32 s9, s{S_RT}, {32*896}
    s_mul_i32 s10, s{S_HF}, 448
    s_add_u32 s9, s9, s10
    v_add_u32 v12, s9, v12
    s_mul_i32 s10, s{S_W}, 14336
    s_mov_b32 s11, {16*896}
    s_waitcnt lgkmcnt(0)
    """)
    srd(p, 44, P_DBG, 256)
    p(f"""
    s_add_u32 s12, s2, s{S_W}
    s_cmp_lg_u32 s12, 0
    s_cbranch_scc1 L_notagw
    s_memrealtime s[12:13]
    s_waitcnt lgkmcnt(0)
    s_or_b32 s12, s12, 1
    v_mov_b32 v16, s12
    v_mov_b32 v17, s13
    s_mov_b64 exec, 1
    buffer_store_dwordx2 v[16:17], off, s[44:47], 0 sc1
    s_mov_b64 exec, -1
    L_notagw:
    """)
    CPF = ENV("CPF", "1")
    if CPF != "0":
        p(f"s_lshl_b32 s12, s2, 3\ns_add_u32 s12, s12, s{S_W}\ns_lshl_b32 s12, s12, 10\nv_lshlrev_b32 v13, 4, v0")
        for k, (ptr, n) in enumerate(((P_WQKV, 448 * 2688), (P_WG, 448 * 3584), (P_WU, 448 * 3584))[:int(CPF) + 2 if CPF == "1" else 2]):
            srd(p, 64 + 4 * k, ptr, n)
            p(f"buffer_load_dwordx4 {vr(SA,4)}, v13, s[{64+4*k}:{67+4*k}], s12 offen")
    srd(p, 36, P_X, 2048 * 896)
    for cb in range(7):
        for rh in range(2):
            p(f"s_add_u32 m0, s10, {(rh*7+cb)*1024 - 64*cb}")
            p(f"buffer_load_dwordx4 v12, s[36:39], {'s11' if rh else '0'} offen offset:{64*cb} lds")
    if ENV("B0"):
        p("s_barrier")
    srd(p, 40, P_WS, WS_USED)
    VXA, VXB, SUM, SQ, ONES, RS, NM, TG = T, T + 1, T + 2, T + 3, T + 4, G, G + 1, G + 2
    U = SB
    STAT = 7 * SLOT
    c0 = -2.0 * math.sqrt(2.0 / math.pi) * LOG2E
    c1 = c0 * 0.044715
    al = -((-c1) ** (1.0 / 3.0))
    p(f"""
    v_lshlrev_b32 v{VL16}, 4, v0
    s_lshl_b32 s3, s{S_HF}, 4
    v_xor_b32 v15, s3, v0
    v_lshlrev_b32 v{VST}, 4, v15
    s_lshl_b32 s12, s{S_HF}, 10
    v_add_u32 v{VST}, s12, v{VST}
    v_lshrrev_b32 v13, 5, v0
    v_lshlrev_b32 v13, 11, v13
    v_bfe_u32 v14, v0, 2, 2
    v_lshl_add_u32 v13, v14, 6, v13
    v_bfe_u32 v14, v15, 4, 1
    v_lshl_add_u32 v13, v14, 5, v13
    v_and_b32 v14, 3, v0
    v_lshl_add_u32 v13, v14, 3, v13
    s_lshl_b32 s12, s{S_HF}, 10
    v_add_u32 v{VTRL}, s12, v13
    v_add_u32 v{VA}, {8*SLOT}, v{VTRL}
    v_add_u32 v{VB}, {9*SLOT}, v{VTRL}
    s_lshl_b32 s12, s{S_W}, 12
    s_add_u32 s12, s12, {EXB}
    v_add_u32 v{VEX}, s12, v{VL16}
    v_xor_b32 v{VEXP}, 0x4100, v{VEX}
    v_bfe_u32 v13, v15, 4, 1
    v_mul_u32_u24 v13, 7168, v13
    v_and_b32 v14, 15, v0
    v_lshl_add_u32 v13, v14, 6, v13
    v_lshrrev_b32 v14, 5, v0            ; h
    v_bfe_u32 v15, v0, 2, 2             ; swz
    v_xor_b32 v14, v14, v15
    v_lshl_add_u32 v{VXA}, v14, 4, v13
    v_xor_b32 v14, 2, v14
    v_lshl_add_u32 v{VXB}, v14, 4, v13
    v_add_u32 v{VXA}, s10, v{VXA}
    v_add_u32 v{VXB}, s10, v{VXB}
    v_mov_b32 v{SUM}, 0
    v_mov_b32 v{SQ}, 0
    v_mov_b32 v{ONES}, 0x3f803f80
    s_mov_b32 s66, 0xffff0000
    s_mov_b32 s64, {f32(al)}
    s_mov_b32 s65, {f32(c0 / c1 * al * al)}
    v_and_b32 v{U+2}, 31, v0
    v_lshlrev_b32 v{U+2}, 3, v{U+2}
    s_lshl_b32 s12, s{S_W}, 8
    s_add_u32 s12, s12, {STAT}
    v_add_u32 v{U+3}, s12, v{U+2}
    v_xor_b32 v{U+2}, {1024+128}, v{U+3}
    """)
    p(f"""
    s_cmp_eq_u32 s8, 1
    s_cselect_b32 s69, {f32(QSCALE)}, 1.0
    s_cselect_b32 s4, 18, 19
    s_cselect_b32 s15, {QF_OFF}, {KV_OFF}
    s_cselect_b32 s73, 2048, 0
    s_cselect_b32 s14, 0, 4
    s_lshl_b32 s67, s7, s4
    s_sub_u32 s4, s4, 1
    s_lshl_b32 s68, 1, s4
    s_sub_u32 s4, s4, 6
    s_lshl_b32 s4, s{S_RT}, s4
    s_add_u32 s67, s67, s4
    s_add_u32 s67, s67, s15
    s_add_u32 s68, s68, s67
    s_add_u32 s72, s67, 2048
    s_add_u32 s75, s68, 2048
    s_lshl_b32 s12, s7, 12
    s_lshl_b32 s13, s{S_RB}, 7
    s_add_u32 s12, s12, s13
    s_add_u32 s12, s12, {QKVF}
    s_add_u32 s73, s73, s12             ; flag of this workgroup's q or k,v result
    s_mul_i32 s12, s7, 6
    s_add_u32 s14, s14, s12             ; first f tile
    s_add_u32 s58, s7, 48
    s_sub_u32 s58, s58, s14
    s_sub_u32 s58, s58, 2               ; from the tile after the first quad to the single tile (type A)
    s_lshl_b32 s70, s14, 11
    s_mul_i32 s4, s{S_RT}, 114688
    s_add_u32 s70, s70, s4
    s_add_u32 s70, s70, {H_OFF}
    s_lshl_b32 s71, s{S_RB}, 12
    s_lshl_b32 s4, s7, 9
    s_add_u32 s71, s71, s4
    s_xor_b32 s4, s8, 1
    s_lshl_b32 s4, s4, 7
    s_add_u32 s71, s71, s4
    s_add_u32 s71, s71, {HFL}           ; units: 0 first quad of B, 1 quad of A, 2 second quad of B, 3 single tile of A
    ; pad masks: even head pads n=28..31 (hf=1 waves), odd head pads n=0..3 (hf=0 waves)
    s_cmp_eq_u32 s{S_HF}, 1
    s_mov_b32 s52, 0
    s_cselect_b32 s53, -1, 0            ; q/k even head: packed regs 2,3
    s_cselect_b32 s54, 0, -1            ; q/k odd head: packed regs 0,1
    s_mov_b32 s55, 0
    s_cselect_b32 s56, 0xf000, 0xf0000000 {';'} v even head: zero lanes
    """.replace("s_cselect_b32 s56, 0xf000, 0xf0000000 ;", "s_mov_b32 s56, 0xf0000000\n    s_cselect_b32 s56, 0xf000, s56 ;") + f"""
    s_mov_b32 s57, s56
    s_cselect_b32 s48, 0xf0000, 15      ; v odd head: zero lanes
    s_mov_b32 s49, s48
    s_lshr_b32 s50, s56, 3
    s_and_b32 s50, s50, s56             ; lowest lane of each group: the ones column
    s_mov_b32 s51, s50
    s_lshr_b32 s46, s48, 3
    s_and_b32 s46, s46, s48
    s_mov_b32 s47, s46
    """.replace("s46", "s78").replace("s47", "s79"))
    stamp(p, 1)

    def stat(cb):
        for d in range(8):
            r = X + 8 * cb + d
            p(f"v_dot2c_f32_bf16 v{SUM}, v{r}, v{ONES}")
            p(f"v_dot2c_f32_bf16 v{SQ}, v{r}, v{r}")
    for cb in range(7):
        p(f"s_waitcnt vmcnt({12 - 2*cb})")
        p(f"ds_read_b128 {vr(X+8*cb,4)}, v{VXA} offset:{cb*1024}")
        p(f"ds_read_b128 {vr(X+8*cb+4,4)}, v{VXB} offset:{cb*1024}")
        if cb:
            p("s_waitcnt lgkmcnt(2)")
            stat(cb - 1)
    p("s_waitcnt lgkmcnt(0)")
    stat(6)
    p(f"""
    v_mov_b32 v{U}, v{SUM}
    v_mov_b32 v{U+1}, v{SQ}
    v_permlane32_swap_b32 v{SUM}, v{U}
    v_permlane32_swap_b32 v{SQ}, v{U+1}
    v_add_f32 v{SUM}, v{SUM}, v{U}
    v_add_f32 v{SQ}, v{SQ}, v{U+1}
    ds_write_b64 v{U+3}, {vr(SUM,2)}
    s_waitcnt lgkmcnt(0)
    s_barrier
    ds_read_b64 {vr(U,2)}, v{U+2}
    s_waitcnt lgkmcnt(0)
    s_barrier
    v_add_f32 v{SUM}, v{SUM}, v{U}
    v_add_f32 v{SQ}, v{SQ}, v{U+1}
    v_mul_f32 v{SUM}, {f32(1.0/448)}, v{SUM}        ; mean
    v_mul_f32 v{SQ}, {f32(1.0/448)}, v{SQ}
    v_fma_f32 v{SQ}, -v{SUM}, v{SUM}, v{SQ}         ; var
    v_max_f32 v{SQ}, 0, v{SQ}
    v_add_f32 v{SQ}, {f32(1e-5)}, v{SQ}
    v_rsq_f32 v{RS}, v{SQ}                          ; rstd
    v_mul_f32 v{SUM}, v{SUM}, v{RS}
    v_sub_f32 v{NM}, 0, v{SUM}                      ; -mean*rstd
    """)
    stamp(p, 2)

    def normalise(kl, tb):
        e = []
        for d in range(4):
            e += [f"v_lshlrev_b32 v{tb+2*d}, 16, v{X+4*kl+d}", f"v_and_b32 v{tb+2*d+1}, s66, v{X+4*kl+d}"]
        e += [f"v_fma_f32 v{tb+i}, v{tb+i}, v{RS}, v{NM}" for i in range(8)]
        e += [f"v_cvt_pk_bf16_f32 v{X+4*kl+d}, v{tb+2*d}, v{tb+2*d+1}" for d in range(4)]
        return e
    NPRE = int(ENV("NPRE", 2))
    for kl in range(NPRE):
        for i in normalise(kl, U + 8 * kl):
            p(i)
    p("s_barrier")
    NB = 4

    def st(r, sreg, off=0):
        return f"buffer_store_dwordx4 {vr(r,4)}, v{VST}, s[40:43], s{sreg} offen{' offset:%d' % off if off else ''} sc1"

    fl_n = [0]

    def flag0(sreg):
        fl_n[0] += 1
        return (f"s_cmp_lg_u32 s{S_W}, 0\ns_cbranch_scc1 L_fl{fl_n[0]}\ns_mov_b64 exec, 1\n"
                f"buffer_store_dwordx2 v[0:1], off, s[40:43], s{sreg} sc1\ns_mov_b64 exec, -1\nL_fl{fl_n[0]}:")

    def pack8(a):
        return [f"v_cvt_pk_bf16_f32 v{a+i}, v{a+2*i}, v{a+2*i+1}" for i in range(4)]

    def epi_qk(h0, h1):
        e = []
        for t, a in enumerate((h0, h1)):
            e += [f"v_mul_f32 v{a+i}, s69, v{a+i}" for i in range(8)] + pack8(a)
            z = a + 2 if t == 0 else a
            e += [f"s_mov_b64 exec, s[{52+2*t}:{53+2*t}]\nv_mov_b32 v{z}, 0\nv_mov_b32 v{z+1}, 0\ns_mov_b64 exec, -1"]
            e.append(st(a, 67 + t))
        return e

    def epi_v(h0, h1):
        e = []
        for t, a in enumerate((h0, h1)):
            zm, om = ((56, 50), (48, 78))[t]
            e += pack8(a)
            e += [f"s_mov_b64 exec, s[{zm}:{zm+1}]\n" + "".join(f"v_mov_b32 v{a+i}, 0\n" for i in range(4))
                  + f"s_mov_b64 exec, s[{om}:{om+1}]\n"
                  + "".join(f"v_mov_b32 v{a+i}, 0x3f803f80\n" for i in range(4)) + "s_mov_b64 exec, -1"]
            e.append(st(a, (72, 75)[t]))
        return e

    def gelu(g, qs):
        e = []
        for q in qs:
            r = g[4 * q:4 * q + 4]
            t = [T + i for i in range(4)]
            u = [T + 4 + i for i in range(4)]
            e += [f"v_mul_f32 v{t[i]}, s64, v{r[i]}" for i in range(4)]
            e += [f"v_fma_f32 v{u[i]}, v{t[i]}, v{t[i]}, s65" for i in range(4)]
            e += [f"v_mul_f32 v{t[i]}, v{t[i]}, v{u[i]}" for i in range(4)]
            e += [f"v_exp_f32 v{t[i]}, v{t[i]}" for i in range(4)]
            e += [f"v_add_f32 v{t[i]}, 1.0, v{t[i]}" for i in range(4)]
            e += [f"v_rcp_f32 v{t[i]}, v{t[i]}" for i in range(4)]
            e += [f"v_mul_f32 v{r[i]}, v{r[i]}, v{t[i]}" for i in range(4)]
        return e
    GG = [G + i for i in range(16)]

    def prod2(acc):
        e = []
        for t in range(2):
            a = acc + 16 * t
            e += [f"v_mul_f32 v{a+i}, v{a+i}, v{G+8*t+i}" for i in range(8)] + pack8(a)
            e.append(st(a, 70, 2048 * t))
        return e + ["s_add_u32 s70, s70, 4096"]

    def epi_s(acc):
        g = [acc + i for i in range(8)]
        e = gelu(g, [0, 1])
        e += [f"v_mul_f32 v{g[i]}, v{g[i]}, v{acc+16+i}" for i in range(8)] + pack8(acc)
        return e + [st(acc, 70)]

    tag_ld = [f"s_cmp_lg_u32 s{S_W}, 7\ns_cbranch_scc1 L_tl_@\n"
              f"buffer_load_dwordx2 {vr(TG,2)}, off, s[44:47], 0 sc1\nL_tl_@:"]
    tag_pub = [f"s_cmp_lg_u32 s{S_W}, 7\ns_cbranch_scc1 L_tp_@\ns_mov_b32 s12, {SPIN_MAX}\nL_tq_@:\ns_waitcnt vmcnt(0)\n"
               f"v_cmp_ne_u32 vcc, 0, v{TG}\ns_sub_u32 s12, s12, 1\ns_cbranch_scc1 L_tr_@\ns_cmp_lg_u64 vcc, 0\ns_cbranch_scc1 L_tr_@\n"
               f"buffer_load_dwordx2 {vr(TG,2)}, off, s[44:47], 0 sc1\ns_branch L_tq_@\nL_tr_@:\n"
               f"v_mov_b32 v{TG+2}, {TAGL}\nds_write_b64 v{TG+2}, {vr(TG,2)}\n"
               "s_waitcnt lgkmcnt(0)\nL_tp_@:"]
    XW, XR = [2, 3, 4, 5], [7, 8, 9, 10]
    xreg = lambda acc, i: acc + 16 * (i >> 1) + 8 + 4 * (i & 1)

    def stream(kind, late):
        N = 140
        types = "VKGUS" if kind == "A" else "QGUGU"
        G_ = []
        for kl in range(14):
            for ps in range(2):
                for t in range(2):
                    G_.append((kl >> 1, ps * 8192 + (kl & 1) * 4096 + t * 512, kl, (SA, SB)[ps] + 16 * t, kl == 0, types[ps] == "V"))
        acc = {2: SB, 3: SA, 4: SB}
        for ps in range(2, 5):
            for j in range(28):
                G_.append((7 + 4 * (ps - 2) + (j >> 3), ((j >> 1) & 3) * 4096 + (j & 1) * (1024 if types[ps] == "S" else 512),
                           j >> 1, acc[ps] + 16 * (j & 1), j < 2, False))
        win = []

        def W(a, b, ins):
            win.append((a, b, ins))
        for kl in range(NPRE, 14):
            W(4 * (kl - NPRE), 4 * (kl - NPRE) + 4, normalise(kl, T))
        W(16, 17, [x.replace("@", kind) for x in tag_ld])
        W(46, 47, [x.replace("@", kind) for x in tag_pub])
        E0 = 14
        pub = {}
        KB = int(ENV("KB", 91))
        if ENV("NOEPI"):
            pass
        elif kind == "A":
            W(56 + E0, 56 + E0 + 5, epi_v(SA, SA + 16))
            W(56 + 19, 56 + 25, epi_qk(G, G + 8))
            pub[KB] = 73
            W(84 + E0, 112 + E0 - 2, gelu(GG, [0, 1, 2, 3]))
            W(112 + E0, 112 + E0 + 8, prod2(SA) + ["s_lshl_b32 s12, s58, 11\ns_add_u32 s70, s70, s12"])
        else:
            W(56 + E0, 56 + E0 + 5, epi_qk(SA, SA + 16))
            W(56 + 19, 84 + E0 - 2, gelu(GG, [0, 1, 2, 3]))
            pub[91] = 73
            W(84 + E0, 84 + E0 + 8, prod2(SB))
            pub[127] = 71
            W(112 + E0, 140, gelu(GG, [0, 1]) + gelu(GG, [2])[:12])
        W(112 + 24 if kind == "A" else 112 + 6, 112 + 27 if kind == "A" else 112 + 12, late)
        per = [[] for _ in range(N)]
        for (a, b, ins) in win:
            tot = sum(cost(i) for i in ins)
            c = 0
            for i in ins:
                g = a + min(b - a - 1, int((c + cost(i) / 2) * (b - a) / tot))
                per[g].append(i)
                c += cost(i)
        ds = DS(0)
        frag = {}
        out = []

        def rd(n):
            c, imm = G_[n][0], G_[n][1]
            b = WF + 4 * (n % NB)
            a = VA if c % 2 == 0 else VB
            out.extend([f"ds_read_b64_tr_b16 {vr(b,2)}, v{a} offset:{imm}", f"ds_read_b64_tr_b16 {vr(b+2,2)}, v{a} offset:{imm+256}"])
            ds.op()
            frag[n] = ds.op()
            if n + 1 < N and G_[n + 1][0] != c and c + 2 < NST:
                if c + 2 == 15 and types[4] == "S":
                    out.append(f"v_bfe_u32 v{a}, v{VTRL}, 11, 1\nv_mul_u32_u24 v{a}, 1536, v{a}\nv_sub_u32 v{VTRL}, v{VTRL}, v{a}\n"
                               f"s_lshl_b32 s12, s{S_HF}, 10\nv_add_u32 v{VTRL}, s12, v{VTRL}")
                out.append(f"v_add_u32 v{a}, {phys(c+2)*SLOT}, v{VTRL}")
        for n in range(NB):
            rd(n)
        wr = None
        rdx, rdy = {}, {}
        for g in range(N):
            c, imm, xf, ac, first, swap = G_[g]
            ps, j = (0, g) if g < 56 else divmod(g, 28)
            if g % 2 == 0:
                out += ds.need(frag[g + 1])
            w, x = vr(WF + 4 * (g % NB), 4), vr(X + 4 * xf, 4)
            a, b = (x, w) if swap else (w, x)
            out.append(f"{MFMA} {vr(ac,16)}, {a}, {b}, {'0' if first else vr(ac,16)}")
            prev = None if ps < 2 else SA if ps == 2 else acc[ps - 1]
            if g + 1 < N and G_[g + 1][0] != c:
                if prev is not None and j == 7:
                    out += ds.need(wr)
                if g in pub:
                    out.append("s_waitcnt vmcnt(0)")
                out.append("s_barrier")
                if g in pub:
                    out.append(flag0(pub[g]))
                if ENV("CB"):
                    bi = c + 1 - int(ENV("CB"))
                    if 0 <= bi < 7:
                        out.append(f"s_memtime s[{80+2*bi}:{81+2*bi}]")
                if g == 47:
                    out.append(f"v_mov_b32 v0, {TAGL}\nds_read_b64 v[0:1], v0")
                    ds.op()
            if g + NB < N:
                rd(g + NB)
            xo = -2 * SLOT if ps == 2 else 0
            if prev is not None and j in XW:
                i = XW.index(j)
                if ps == 2 and i == 0:
                    out.append(f"v_add_u32 v{VEX}, {xo & 0xffffffff}, v{VEX}")
                out.append(f"ds_write_b128 v{VEX}, {vr(xreg(prev, i),4)} offset:{1024*i}")
                wr = ds.op()
                if ps == 2 and i == 3:
                    out.append(f"v_add_u32 v{VEX}, {-xo}, v{VEX}\nv_add_u32 v{VEXP}, {xo & 0xffffffff}, v{VEXP}")
            if prev is not None and j in XR:
                i = XR.index(j)
                out.append(f"ds_read_b128 {vr(xreg(prev, i),4)}, v{VEXP} offset:{1024*i}")
                rdx[i] = ds.op()
                if ps == 2 and i == 3:
                    out.append(f"v_add_u32 v{VEXP}, {-xo}, v{VEXP}")
            if prev is not None and j - 3 in XR:
                i = XR.index(j - 3)
                out += ds.need(rdx[i])
                r = xreg(prev, i)
                d = G + 4 * i if (ps > 2 and types[ps - 1] == "G") else r - 8
                out += [f"v_add_f32 v{d+k}, v{r-8+k}, v{r+k}" for k in range(4)]
            if ps == 2 and 11 <= j < 19:
                i, ph = (j - 11) // 4 * 2 + ((j - 11) & 1), ((j - 11) >> 1) & 1
                if ph == 0:
                    out.append(f"ds_read_b128 {vr(T+4*(i&1),4)}, v{VEXP} offset:{1024*i}")
                    rdy[i] = ds.op()
                else:
                    out += ds.need(rdy[i])
                    out += [f"v_add_f32 v{G+4*i+k}, v{G+4*i+k}, v{T+4*(i&1)+k}" for k in range(4)]
            out += per[g]
            if g == 55:
                out += stamp_txt(3)
                for i in (0, 1, 2, 3):
                    out.append(f"ds_write_b128 v{VEX}, {vr(xreg(SB, i),4)} offset:{1024*i}")
                    ds.op()
                    out += [f"v_mov_b32 v{G+4*i+k}, v{xreg(SB, i)-8+k}" for k in range(4)]
        for i in out:
            p(i)

    Q, KF, VF, S0, S1, PP, O = 8, 16, 24, 32, 48, 64, 72
    VCUR, VNXT, VCO, VKV, VCN, VONE, CK, CKO, VLN, VQA, E3 = 146, 147, 148, 149, 150, 88, 90, 92, 93, 94, 156
    BAL = ENV('BAL', '1') == '1'
    SPR = ENV('SPR', '0') == '1'
    XL = SB
    setup_s = f"""s_lshr_b32 s7, s6, 4
    s_lshl_b32 s8, s5, 1
    s_add_u32 s7, s7, s8                ; head
    s_and_b32 s8, s6, 15                ; q block
    s_lshl_b32 s11, s8, 2
    s_add_u32 s11, s11, s{S_RG}         ; q tile (0..63)
    s_lshl_b32 s9, s7, 18
    s_add_u32 s9, s9, {KV_OFF}
    s_lshl_b32 s46, s{S_HF}, 14         ; kh*16384
    s_add_u32 s47, s46, {2*SLOT}        ; slot of stage i+2
    s_lshl_b32 s13, s{S_RG}, 12         ; rg*4096
    s_add_u32 s14, s46, {2*KVS}         ; source offset of the next fill
    s_lshl_b32 s15, s{S_HF}, 7
    s_add_u32 s15, s15, {CNT}
    s_mov_b32 s48, 1                    ; iteration
    s_mov_b32 s49, 0
    s_mov_b32 s50, 4
    s_mov_b32 s51, 4
    s_lshl_b32 s10, s{S_RG}, 11
    s_add_u32 s10, s10, {QL}
    s_add_u32 s36, s{P_WS}, s9
    s_addc_u32 s37, s{P_WS+1}, 0
    s_mov_b32 s38, 262144""".split("\n")
    setup_s = [setup_s[i] if not setup_s[i].strip().startswith("s_add_u32 s36") else setup_s[i] + "\n" + setup_s[i+1]
               for i in range(len(setup_s)) if not setup_s[i].strip().startswith("s_addc")]

    def start(tag):
        stamp(p, 4)
        p(f"""
        v_and_b32 v{VLN}, 1023, v{VEX}      ; lane*16
        v_mov_b32 v{CKO}, {CNT_GO}
        v_add_u32 v{VQA}, s10, v{VLN}
        v_add_u32 v{VONE}, s46, v{VLN}
        v_add_u32 v{VONE+1}, {4*SLOT}, v{VONE}
        """)
        lds_spin(p, "L_w0" + tag, f"v{CKO}", CK, "4", 52)
        stamp(p, 5)
        p(f"""
        ds_read_b128 {vr(Q,4)}, v{VQA}
        ds_read_b128 {vr(Q+4,4)}, v{VQA} offset:1024
        ds_read_b128 {vr(KF,4)}, v{VONE+1}
        ds_read_b128 {vr(KF+4,4)}, v{VONE+1} offset:1024
        v_mov_b32 v{VNXT}, v{VONE}
        v_mov_b32 v{VCUR}, v{VONE+1}
        v_add_u32 v{VKV}, s13, v{VLN}
        v_mov_b32 v{VCN}, s15
        v_xor_b32 v{VCO}, 128, v{VCN}
        v_mov_b32 v{VONE}, 1
        v_mov_b32 v{VONE+1}, 0
        """)
        for i in range(4):
            p(f"ds_write_b128 v{VEX}, {vr(xreg(XL, i),4)} offset:{1024*i}")
        p(f"""
        s_waitcnt lgkmcnt(4)
        {MFMA} {vr(S0,16)}, {vr(KF,4)}, {vr(Q,4)}, 0
        {MFMA} {vr(S0,16)}, {vr(KF+4,4)}, {vr(Q+4,4)}, {vr(S0,16)}
        ds_read_b128 {vr(KF,4)}, v{VCUR} offset:4096
        ds_read_b128 {vr(KF+4,4)}, v{VCUR} offset:5120
        ds_read_b128 {vr(VF+4,4)}, v{VCUR} offset:3072
        ds_read_b128 {vr(VF,4)}, v{VCUR} offset:2048
        """)
    adds = []
    for i in range(4):
        r = xreg(XL, i)
        adds += [f"v_add_f32 v{r-8+k}, v{r-8+k}, v{r+k}" for k in range(4)]
    xrd = "s_waitcnt lgkmcnt(4)\ns_barrier\n" + "".join(f"ds_read_b128 {vr(xreg(XL, i),4)}, v{VEXP} offset:{1024*i}\n" for i in range(4))

    def fillers(pre, post, pub20=False):
        f = {}
        slots = [(0, 0), (0, 1), (0, 2)]
        for k, sl in enumerate(slots):
            f[sl] = "\n".join(pre[len(pre) * k // 3:len(pre) * (k + 1) // 3])
        f[(0, 0)] = xrd + f[(0, 0)]
        f[(0, 2)] = f[(0, 2)] + f"\ns_waitcnt {'vmcnt(0) ' if pub20 else ''}lgkmcnt(2)\ns_barrier\n"
        if pub20:
            f[(0, 2)] += flag0(71) + "\n"
        post = adds + post
        slots = [(0, 3), (1, 0), (1, 1), (1, 2)]
        for k, sl in enumerate(slots):
            f[sl] = "\n".join(post[len(post) * k // 4:len(post) * (k + 1) // 4])
        return f
    VL16 = VLN
    TT = T
    T_TAG = 0

    def phase(k, mf, rd, sc, sp, extra=""):
        if k % 2 == 0:
            p("s_waitcnt lgkmcnt(2)")
        if mf:
            p(mf)
        p(rd)
        src, pk = (E3, 3) if k == 0 else (sc + 4 * (k - 1), k - 1)
        dst = E3 if k == 3 else sc + 4 * k
        e = [f"v_exp_f32 v{dst+i}, v{sc+4*k+i}" for i in range(4)]
        c = [f"v_cvt_pk_bf16_f32 v{PP+2*pk+i}, v{src+2*i}, v{src+2*i+1}" for i in range(2)]
        for x in (e[0], c[0], e[1], c[1]) if sp is not None else (e[0], e[1]):
            p(x)
        if extra.strip():
            p(extra)
        p(e[2]); p(e[3])

    def ta(u, off):
        return f"v{VCUR} offset:{u*4096+off}" if u < 4 else f"v{VNXT} offset:{(u-4)*4096+off}"

    def body(first, tag, fil=None):
        fil = fil or {}
        T = T_TAG
        sig = f"""
        s_mov_b64 exec, 1
        {'' if (first or ENV('NOSIGW')) else 's_waitcnt vmcnt(0)'}
        ds_add_u64 v{VCN}, {vr(VONE,2)}
        s_mov_b64 exec, -1
        """
        for u in range(4):
            sc, sn = (S0, S1) if u % 2 == 0 else (S1, S0)
            if u == 2:
                p(f"""
                s_waitcnt lgkmcnt(1)
                v_cmp_ne_u64 vcc, s[50:51], {vr(CK,2)}
                s_add_u32 m0, s47, s13
                s_cmp_lg_u64 vcc, 0
                s_cbranch_scc1 L_a_spin{tag}
                L_a_go{tag}:
                """)
                if BAL:
                    p(f"""
                    v_cmp_eq_u32 vcc, 4, v{CKO}
                    s_setprio 0
                    s_cmp_eq_u64 vcc, 0
                    s_cbranch_scc1 L_a_pr{tag}
                    s_setprio 1
                    L_a_pr{tag}:
                    """)
                if SPR and not first:
                    p("s_cmp_le_u32 s48, 5\ns_cselect_b64 vcc, -1, 0")
                if not SPR:
                    if not first:
                        p(f"s_cmp_gt_u32 s48, 5\ns_cbranch_scc1 L_a_nofill")
                    for q in range(4):
                        p(f"buffer_load_dwordx4 v{VKV}, s[36:39], s14 offen offset:{q*1024} sc1 lds")
                    p(f"s_add_u32 s14, s14, {KVS}")
                    if not first:
                        p.label("L_a_nofill")

            def dma(q):
                if not SPR:
                    return ""
                t = f"buffer_load_dwordx4 v{VKV}, s[36:39], s14 offen offset:{q*1024} sc1 lds\n"
                if not first:
                    t = f"s_cbranch_vccz L_a_nf{q}\n" + t + f"L_a_nf{q}:\n"
                return t
            phase(0, f"{MFMA} {vr(sn,16)}, {vr(KF,4)}, {vr(Q,4)}, 0", f"ds_read_b128 {vr(KF,4)}, {ta(u+2, 0)}", sc, None if (first and u == 0) else sn,
                  dma(2 * (u - 2)) if u >= 2 else fil.get((u, 0), ""))
            phase(1, f"{MFMA} {vr(sn,16)}, {vr(KF+4,4)}, {vr(Q+4,4)}, {vr(sn,16)}",
                  f"ds_read_b128 {vr(KF+4,4)}, {ta(u+2, 1024)}", sc, sn, fil.get((u, 1), ""))
            phase(2, None if (first and u == 0) else f"{MFMA} {vr(O,16)}, {vr(VF+4,4)}, {vr(PP+4,4)}, {vr(O,16)}",
                  f"ds_read_b128 {vr(VF+4,4)}, {ta(u, 3072)}", sc, sn,
                  fil.get((u, 2), "") + "\n" + ((f"ds_read_b64 {vr(CK,2)}, v{VCN}" + (f"\nds_read_b32 v{CKO}, v{VCO}" if BAL else "")) if u == 1 else dma(2 * (u - 2) + 1) if u >= 2 else ""))
            ex = (sig if u == 0 else "") + fil.get((u, 3), "")
            if u == 3:
                ex = f"""
                v_mov_b32 v{VCUR}, v{VNXT}
                v_add_u32 v{VNXT}, s47, v{VL16}
                v_add_u32 v{VCN}, 8, v{VCN}
                v_xor_b32 v{VCO}, 128, v{VCN}
                s_add_u32 s47, s47, {2*SLOT}
                s_cmp_ge_u32 s47, {6*SLOT}
                s_cselect_b32 s3, {6*SLOT}, 0
                s_sub_u32 s47, s47, s3
                """
                if SPR:
                    ex += f"s_add_u32 s14, s14, {KVS}\n"
                if not first:
                    ex += "s_add_u32 s48, s48, 1\ns_cmp_lt_u32 s48, 8"
                else:
                    ex += f"""
                    s_mov_b64 exec, 1
                    v_mov_b32 v{CKO}, {CNT_H}
                    s_waitcnt vmcnt(4)
                    ds_add_rtn_u32 v{CK}, v{CKO}, v{VONE}
                    s_waitcnt lgkmcnt(0)
                    v_cmp_eq_u32 vcc, 7, v{CK}
                    s_and_b64 exec, exec, vcc
                    s_cbranch_execz L_nh{tag}
                    buffer_store_dwordx2 {vr(T,2)}, off, s[40:43], s71 offset:256 sc1
                    L_nh{tag}:
                    s_mov_b64 exec, -1
                    v_mov_b32 v{VONE+1}, 1
                    """
            phase(3, f"{MFMA} {vr(O,16)}, {vr(VF,4)}, {vr(PP,4)}, {'0' if (first and u == 0) else vr(O,16)}",
                  f"ds_read_b128 {vr(VF,4)}, {ta(u+1, 2048)}", sc, sn, ex)
    p("s_cmp_eq_u32 s8, 1\ns_cbranch_scc1 L_btype")
    stream("A", setup_s)
    start("a")
    body(True, "fa", fillers([], epi_s(XL), True))
    p("s_branch L_aloop")
    p.label("L_btype")
    stream("B", setup_s)
    start("b")
    body(True, "fb", fillers(gelu(GG, [2])[12:] + gelu(GG, [3]), prod2(XL)))
    T = T_TAG
    p(".p2align 6")
    p.label("L_aloop")
    body(False, "")
    p("s_cbranch_scc1 L_aloop\ns_branch L_a_done")
    for tag in ("fa", "fb", ""):
        p.label("L_a_spin" + tag)
        lds_spin(p, "L_a_sp" + tag, f"v{VCN}", CK, "s[50:51]", 52, wide=True)
        p("s_branch L_a_go" + tag)
    p.label("L_a_done")
    stamp(p, 6)
    p(f"""
    v_cvt_pk_bf16_f32 v{PP+6}, v{E3}, v{E3+1}
    v_cvt_pk_bf16_f32 v{PP+7}, v{E3+2}, v{E3+3}
    s_waitcnt lgkmcnt(0)
    {MFMA} {vr(O,16)}, {vr(VF+4,4)}, {vr(PP+4,4)}, {vr(O,16)}
    s_lshl_b32 s46, s{S_RG}, 12
    s_lshl_b32 s3, s{S_HF}, 14
    s_add_u32 s46, s46, s3
    s_add_u32 s46, s46, {4*SLOT}
    v_add_u32 v3, s46, v{VL16}
    s_lshl_b32 s3, s{S_RG}, 3
    s_add_u32 s3, s3, {CNT_COMB}
    v_mov_b32 v{VCN}, s3
    s_mov_b64 exec, 1
    ds_add_rtn_u32 v{CK}, v{VCN}, v{VONE}
    s_mov_b64 exec, -1
    s_waitcnt lgkmcnt(0)
    v_readfirstlane_b32 s3, v{CK}
    s_cmp_lg_u32 s3, 0
    s_cbranch_scc1 L_acomb
    """)
    for i in range(4):
        p(f"ds_write_b128 v3, {vr(O+4*i,4)} offset:{1024*i}")
    p(f"""
    s_mov_b64 exec, 1
    s_waitcnt lgkmcnt(0)
    ds_add_u32 v{VCN}, v{VONE} offset:4
    s_waitcnt lgkmcnt(0)
    """)
    endpgm(p)
    p.label("L_acomb")
    p(f"v_xor_b32 v3, {SLOT}, v3")
    lds_spin(p, "L_cw", f"v{VCN} offset:4", CK, "1", 52)
    for i in range(4):
        p(f"ds_read_b128 {vr(S0+4*i,4)}, v3 offset:{1024*i}")
    for q in range(4):
        p(f"s_waitcnt lgkmcnt({3-q})")
        for i in range(4 * q, 4 * q + 4):
            p(f"v_add_f32 v{O+i}, v{O+i}, v{S0+i}")
    p.label("L_afin")
    T2 = S1
    p(f"""
    s_mov_b32 s50, {f32(2.0**-40)}
    s_mov_b32 s51, {f32(2.0**100)}
    s_bitcmp1_b32 s7, 0
    s_cbranch_scc1 L_f_odd
    v_mov_b32 v{T2}, v{O+12}
    v_mov_b32 v{T2+1}, v{O+12}
    v_permlane32_swap_b32 v{T2}, v{T2+1}
    s_mov_b32 exec_lo, 0
    v_mov_b32 v{O+12}, 0
    v_mov_b32 v{O+13}, 0
    v_mov_b32 v{O+14}, 0
    v_mov_b32 v{O+15}, 0
    s_branch L_f_join
    L_f_odd:
    v_mov_b32 v{T2}, v{O}
    v_mov_b32 v{T2+1}, v{O}
    v_permlane32_swap_b32 v{T2+1}, v{T2}
    s_mov_b32 exec_hi, 0
    v_mov_b32 v{O}, 0
    v_mov_b32 v{O+1}, 0
    v_mov_b32 v{O+2}, 0
    v_mov_b32 v{O+3}, 0
    L_f_join:
    s_mov_b64 exec, -1
    v_rcp_f32 v{T2+2}, v{T2+1}
    v_cmp_ge_f32 s[52:53], v{T2+1}, s50
    v_cmp_le_f32 s[54:55], v{T2+1}, s51
    """)
    for i in range(16):
        p(f"v_mul_f32 v{O+i}, v{O+i}, v{T2+2}")
    p(f"v_mul_f32 v{T2+3}, 0, v{O}")
    for i in range(1, 16):
        p(f"v_fmac_f32 v{T2+3}, 0, v{O+i}")
    pack16(p, PP, O)
    p(f"""
    v_cmp_eq_f32 s[56:57], 0, v{T2+3}
    s_and_b64 s[52:53], s[52:53], s[54:55]
    s_lshl_b32 s45, s11, 15             ; rowtile*32K
    s_lshl_b32 s46, s7, 11              ; head*2K
    s_add_u32 s45, s45, s46
    s_add_u32 s45, s45, {O_OFF}
    s_and_b64 s[52:53], s[52:53], s[56:57]
    s_cmp_eq_u64 s[52:53], -1
    s_cbranch_scc1 L_aok
    s_cmp_eq_u32 s49, 0x5afe
    s_cbranch_scc0 L_fallback
    """)
    p.label("L_aok")
    p(f"""
    buffer_store_dwordx4 {vr(PP,4)}, v{VL16}, s[40:43], s45 offen sc1
    buffer_store_dwordx4 {vr(PP+4,4)}, v{VL16}, s[40:43], s45 offen offset:1024 sc1
    s_lshl_b32 s45, s11, 11
    s_lshl_b32 s46, s7, 7
    s_add_u32 s45, s45, s46
    s_add_u32 s45, s45, {OFL}
    s_mov_b64 exec, 1
    s_waitcnt vmcnt(0)
    buffer_store_dwordx2 {vr(T,2)}, off, s[40:43], s45 sc1
    """)
    endpgm(p)
    p.label("L_fallback")
    M, MN, AL, TM, T3 = 100, 101, 102, 103, 104
    p("s_mov_b32 s49, 0x5afe")
    for i in range(16):
        p(f"v_mov_b32 v{O+i}, 0")
    p(f"v_mov_b32 v{M}, 0xff800000\ns_mov_b32 s14, 0")
    p.label("L_fbloop")
    p(f"""
    buffer_load_dwordx4 {vr(KF,4)}, v{VL16}, s[36:39], s14 offen sc1
    buffer_load_dwordx4 {vr(KF+4,4)}, v{VL16}, s[36:39], s14 offen offset:1024 sc1
    buffer_load_dwordx4 {vr(VF,4)}, v{VL16}, s[36:39], s14 offen offset:2048 sc1
    buffer_load_dwordx4 {vr(VF+4,4)}, v{VL16}, s[36:39], s14 offen offset:3072 sc1
    s_waitcnt vmcnt(2)
    {MFMA} {vr(S0,16)}, {vr(KF,4)}, {vr(Q,4)}, 0
    {MFMA} {vr(S0,16)}, {vr(KF+4,4)}, {vr(Q+4,4)}, {vr(S0,16)}
    v_max3_f32 v{TM}, v{S0}, v{S0+1}, v{S0+2}
    """)
    for i in range(3, 15, 2):
        p(f"v_max3_f32 v{TM}, v{S0+i}, v{S0+i+1}, v{TM}")
    p(f"""
    v_max_f32 v{TM}, v{S0+15}, v{TM}
    v_mov_b32 v{T3}, v{TM}
    v_permlane32_swap_b32 v{TM}, v{T3}
    v_max3_f32 v{MN}, v{TM}, v{T3}, v{M}
    v_sub_f32 v{AL}, v{M}, v{MN}
    v_exp_f32 v{AL}, v{AL}
    v_mov_b32 v{M}, v{MN}
    """)
    for i in range(16):
        p(f"v_sub_f32 v{S0+i}, v{S0+i}, v{MN}")
    for i in range(16):
        p(f"v_exp_f32 v{S0+i}, v{S0+i}")
    for i in range(16):
        p(f"v_mul_f32 v{O+i}, v{O+i}, v{AL}")
    pack16(p, PP, S0)
    p(f"""
    s_waitcnt vmcnt(0)
    {MFMA} {vr(O,16)}, {vr(VF,4)}, {vr(PP,4)}, {vr(O,16)}
    {MFMA} {vr(O,16)}, {vr(VF+4,4)}, {vr(PP+4,4)}, {vr(O,16)}
    s_add_u32 s14, s14, 4096
    s_cmp_lt_u32 s14, 262144
    s_cbranch_scc1 L_fbloop
    s_branch L_afin
    """)


def gen_s(p, S_W):
    VL16, VQ, VF_, VS_ = 1, 2, 3, 7
    p(f"""
    s_sub_u32 s4, s{S_W}, 8
    s_and_b32 s9, s4, 1
    s_lshr_b32 s10, s4, 1
    v_bfe_u32 v13, v0, 2, 3
    s_mul_i32 s12, s9, 224
    s_lshl_b32 s13, s10, 3
    s_add_u32 s12, s12, s13
    v_add_u32 v13, s12, v13
    v_lshrrev_b32 v14, 5, v0
    v_and_b32 v15, 3, v0
    v_lshlrev_b32 v15, 4, v15
    v_mul_u32_u24 v{VF_}, 3584, v13
    v_add_u32 v{VF_}, v{VF_}, v15
    v_lshl_add_u32 v{VF_}, v14, 6, v{VF_}
    v_lshrrev_b32 v{VS_}, 2, v0
    s_mul_i32 s12, s9, 224
    v_add_u32 v{VS_}, s12, v{VS_}
    v_mul_u32_u24 v{VS_}, 3584, v{VS_}
    v_add_u32 v{VS_}, v{VS_}, v15
    v_mul_u32_u24 v{VQ}, 2688, v13
    v_mul_u32_u24 v14, 48, v14
    v_add3_u32 v{VQ}, v{VQ}, v14, v15
    v_lshlrev_b32 v{VL16}, 4, v0
    s_lshl_b32 s56, s10, 11
    s_lshl_b32 s12, s9, 10
    s_add_u32 s56, s56, s12
    s_mul_i32 s64, s7, 112
    s_add_u32 s65, s64, 896
    s_cmp_eq_u32 s8, 1
    s_cselect_b32 s12, 0, 1792
    s_cselect_b32 s13, 0, 256
    s_add_u32 s64, s64, s12
    s_mul_i32 s66, s7, 384
    s_add_u32 s66, s66, s13
    s_lshl_b32 s67, s7, 6
    s_add_u32 s67, s67, {48*64}
    """)
    p.label("L_ld_p")
    p("s_waitcnt lgkmcnt(0)")
    srd(p, 36, P_WQKV, 448 * 2688)
    srd(p, 40, P_WG, 448 * 3584)
    PF = 24
    VFQ, TGV, FL = 6, 4, 8
    PB = int(ENV("PB", 14))
    EVD = int(ENV("EVD", 2))

    def qkv_poll(emit):
        return emit(f"buffer_load_dwordx2 {vr(FL,2)}, v{VFQ}, s[44:47], s62 offen sc1")

    def late_setup(sfx):
        if ENV("TLB", "1") != "0":
            TA = 44
            p(f"""
            s_cmp_lg_u32 s4, 0
            s_cbranch_scc1 L_notlb{sfx}
            v_min_u32 v{TA}, {WS_USED // (2*MB) - 1}, v0
            v_lshlrev_b32 v{TA}, 21, v{TA}
            v_mov_b32 v{TA+1}, s{P_WS+1}
            v_add_co_u32 v{TA}, vcc, s{P_WS}, v{TA}
            v_addc_co_u32 v{TA+1}, vcc, 0, v{TA+1}, vcc
            """)
            bufs = [(P_WG, 448 * 3584), (P_WU, 448 * 3584), (P_WD, 1792 * 896), (P_WO, 448 * 896), (P_OUT, 2048 * 896), (P_DBG, 256)]
            for i, (b, n) in enumerate(bufs):
                p(f"""
                v_writelane_b32 v{TA}, s{b}, {16+2*i}
                v_writelane_b32 v{TA+1}, s{b+1}, {16+2*i}
                s_add_u32 s12, s{b}, {n-4}
                s_addc_u32 s13, s{b+1}, 0
                v_writelane_b32 v{TA}, s12, {17+2*i}
                v_writelane_b32 v{TA+1}, s13, {17+2*i}
                """)
            p(f"global_load_dword v{TA+2}, {vr(TA,2)}, off sc1")
            p.label("L_notlb" + sfx)
        srd(p, 72, P_WU, 448 * 3584)
        srd(p, 48, P_WD, 1792 * 896)
        srd(p, 52, P_WO, 448 * 896)
        srd(p, 44, P_WS, WS_USED)
        p(f"""
        s_cmp_eq_u32 s10, 0
        s_cselect_b32 s76, s{P_WG}, s{P_WU}
        s_cselect_b32 s77, s{P_WG+1}, s{P_WU+1}
        s_mov_b32 s78, {448*3584}
        s_mov_b32 s79, 0x20000
        s_lshl_b32 s57, s9, 11
        s_lshl_b32 s12, s10, 10
        s_add_u32 s57, s57, s12
        s_lshl_b32 s62, s5, 12
        s_add_u32 s62, s62, {QKVF}
        s_and_b32 s63, s6, 15
        s_add_u32 s63, s63, 16
        v_mov_b32 v{VFQ}, s63
        v_cmp_gt_u32 vcc, 16, v0
        v_cndmask_b32 v{VFQ}, v{VFQ}, v0, vcc
        v_lshlrev_b32 v{VFQ}, 7, v{VFQ}
        """)

    def stream(kinds):
        spec = {"V": (36, VQ, 64, 0), "Q": (36, VQ, 64, 0), "K": (36, VQ, 65, 0), "G": (40, VF_, 66, 0), "U": (72, VF_, 66, 0),
                "g": (40, VF_, 66, 128), "u": (72, VF_, 66, 128), "S": (76, VS_, 67, 0)}
        stages = [[(kinds[q >> 1], 32 * c + 16 * (q & 1)) for q in range(4)] for c in range(7)]
        stages += [[(kinds[ps], 64 * sl + 16 * q) for q in range(2 if sl == 3 else 4)] for ps in range(2, 5) for sl in range(4)]
        vm = VM(p)
        last = {}
        issued = 0
        nq = 0

        def issue1():
            nonlocal issued, nq
            kind, row = stages[issued][nq]
            s_, v, col, add = spec[kind]
            stride = 2688 if s_ == 36 else 3584
            p(f"s_add_u32 m0, {'s57' if kind == 'S' else 's56'}, {phys(issued)*SLOT + nq*4096}")
            p(f"s_add_u32 s13, s{col}, {row*stride + add}")
            if ENV("NOFILL"):
                last[issued] = None
            else:
                last[issued] = vm.op(f"buffer_load_dwordx4 v{v}, s[{s_}:{s_+3}], s13 offen lds")
            nq += 1
            if nq == len(stages[issued]):
                nq = 0
                issued += 1

        def issue():
            c = issued
            while issued == c:
                issue1()
        if TL:
            p("v_mov_b32 v60, 0")
        tl(p, 0)
        def wpf():
            p(f"s_lshl_b32 s13, s2, 2\ns_add_u32 s13, s13, s4\ns_lshl_b32 s13, s13, 10\ns_add_u32 s14, s13, {1 << 20}")
            mats = (36, 40, 72) if ENV("CPF", "1") == "0" else (72,) if ENV("CPF") == "2" else ()
            for r in mats + ((48,) if ENV("WDPF", "1") == "1" else ()):
                vm.op(f"buffer_load_dwordx4 {vr(PF,4)}, v{VL16}, s[{r}:{r+3}], s13 offen")
                vm.op(f"buffer_load_dwordx4 {vr(PF,4)}, v{VL16}, s[{r}:{r+3}], s14 offen")
        issue(); issue()
        late_setup(kinds)
        if ENV("WPF", "1") != "0":
            wpf()
        tl(p, 1)
        dbg = ENV("SDBG")
        p(f"s_barrier\ns_barrier\ns_setprio {ENV('SPRIO', 0)}")
        if dbg: stamp(p, 1)
        tl(p, 2)
        issue(); issue()
        vm.need(last[1])
        tl(p, 3)
        p("s_barrier")
        tl(p, 4)
        if dbg: stamp(p, 2)
        issue(); issue()
        if dbg: stamp(p, 3)
        for i in range(1, PB + EVD):
            assert issued > i + 1
            vm.need(last[i + 1])
            tl(p, 3 + 2 * i)
            p("s_barrier")
            tl(p, 4 + 2 * i)
            budget = 6 if i < 7 else eval(ENV("BUD", "[2, 8, 8, 3]"))[(i - 7) % 4]
            while budget > 0 and issued < min(NST, max(9, i + 6)):
                budget -= 1
                issue1()
            if i == 6:
                p(f"v_mov_b32 v{TGV}, {TAGL}\nds_read_b64 {vr(TGV,2)}, v{TGV}\ns_waitcnt lgkmcnt(0)")
            if i == 10:
                p(f"""
                s_cmp_lg_u32 s4, 0
                s_cbranch_scc1 L_noinit{kinds}
                v_lshlrev_b32 v22, 2, v0
                v_add_u32 v22, {CNT}, v22
                v_mov_b32 v23, 0
                ds_write_b32 v22, v23
                s_waitcnt lgkmcnt(0)
                L_noinit{kinds}:
                """)
            if i == PB:
                pollid = qkv_poll(vm.op)
            if i == int(ENV('PFI', 99)):
                PFMODE = ENV("PFMODE", "chip")
                if PFMODE == "chip":
                    p(f"s_lshl_b32 s13, s2, 2\ns_add_u32 s13, s13, s4\ns_lshl_b32 s14, s13, 11\ns_lshl_b32 s13, s13, 9")
                    vm.op(f"buffer_load_dwordx4 {vr(PF,4)}, v{VL16}, s[48:51], s14 offen")
                    vm.op(f"buffer_load_dwordx4 {vr(PF+4,4)}, v{VL16}, s[48:51], s14 offen offset:1024")
                    vm.op(f"buffer_load_dwordx4 {vr(PF+8,4)}, v{VL16}, s[52:55], s13 offen")
            if ENV("PFMODE", "chip") == "xcd" and 5 <= i < 9:
                k = i - 5
                if k == 0:
                    p(f"s_lshl_b32 s13, s6, 2\ns_add_u32 s13, s13, s4\ns_mul_i32 s57, s13, {13*1024}\ns_lshl_b32 s58, s13, 12")
                    for q in range(4):
                        vm.op(f"buffer_load_dwordx4 {vr(PF+4*q,4)}, v{VL16}, s[52:55], s58 offen offset:{q*1024}")
                    vm.op(f"buffer_load_dwordx4 {vr(PF+16,4)}, v{VL16}, s[48:51], s57 offen")
                    p("s_add_u32 s57, s57, 1024")
                else:
                    for q in range(4):
                        vm.op(f"buffer_load_dwordx4 {vr(PF+4*q,4)}, v{VL16}, s[48:51], s57 offen offset:{q*1024}")
                    p("s_add_u32 s57, s57, 4096")
        assert issued == NST
    p("s_cmp_eq_u32 s8, 1\ns_cbranch_scc1 L_ld_b")
    stream("VKGUS")
    p("s_branch L_ld_done")
    p.label("L_ld_b")
    stream("QGUgu")
    p.label("L_ld_done")
    if not ENV("SDBG"):
        stamp(p, 1)
    tl_dump(p)
    if ENV("STOPB"):
        endpgm(p)
    p(f"""
    s_lshr_b32 s7, s6, 4
    s_lshl_b32 s8, s5, 1
    s_add_u32 s7, s7, s8                ; head
    s_and_b32 s8, s6, 15                ; q block
    """)
    VKV = 2
    p(f"""
    s_lshl_b32 s12, s7, 18
    s_add_u32 s12, s12, {KV_OFF}
    s_lshl_b32 s13, s4, 12              ; s*4096
    v_add_u32 v{VKV}, s13, v{VL16}
    s_lshl_b32 s66, s7, 17
    s_lshl_b32 s3, s8, 13
    s_add_u32 s66, s66, s3
    s_lshl_b32 s3, s4, 11
    s_add_u32 s66, s66, s3
    s_add_u32 s66, s66, {QF_OFF}
    s_add_u32 s67, s3, {QL}
    s_mov_b32 s68, 0                    ; ready
    s_mov_b32 s69, 0
    s_mov_b32 s70, {PB+EVD}
    s_mov_b32 s71, {SPIN_MAX}
    s_add_u32 s64, s13, {4*SLOT}
    """)
    srd(p, 36, P_WS, 262144, "s12")
    srd(p, 40, P_WS, WS_USED)
    p.label("L_pl")
    p(f"""
    s_cmp_lg_u32 s68, 0
    s_cbranch_scc1 L_pl_ready
    s_cmp_ge_u32 s70, 19
    s_cbranch_scc1 L_pl_eval
    s_cmp_lg_u32 s70, {PB+EVD}
    s_cbranch_scc1 L_pl_bar
    L_pl_eval:
    s_waitcnt vmcnt(0)
    v_cmp_eq_u64 s[60:61], {vr(FL,2)}, {vr(TGV,2)}
    """)
    p(f"""
    s_sub_u32 s71, s71, 1
    s_cselect_b32 s68, 1, 0
    s_cmp_eq_u64 s[60:61], -1
    s_cselect_b32 s68, 1, s68
    s_cmp_lg_u32 s68, 0
    s_cbranch_scc1 L_pl_q
    """)
    qkv_poll(lambda t: p(t))
    p(f"""
    s_branch L_pl_bar
    L_pl_q:
    s_mov_b32 m0, s67
    s_nop 0
    buffer_load_dwordx4 v{VL16}, s[40:43], s66 offen sc1 lds
    buffer_load_dwordx4 v{VL16}, s[40:43], s66 offen offset:1024 sc1 lds
    L_pl_ready:
    s_add_u32 s3, s69, 15
    s_cmp_gt_u32 s3, s70
    s_cbranch_scc1 L_pl_bar
    s_cmp_ge_u32 s69, 4
    s_cbranch_scc1 L_pl_bar
    s_lshl_b32 s14, s69, 14
    s_mov_b32 m0, s64
    s_add_u32 s69, s69, 1
    buffer_load_dwordx4 v{VKV}, s[36:39], s14 offen sc1 lds
    buffer_load_dwordx4 v{VKV}, s[36:39], s14 offen offset:1024 sc1 lds
    buffer_load_dwordx4 v{VKV}, s[36:39], s14 offen offset:2048 sc1 lds
    buffer_load_dwordx4 v{VKV}, s[36:39], s14 offen offset:3072 sc1 lds
    s_add_u32 s64, s64, {SLOT}
    s_cmp_eq_u32 s69, 2
    s_cselect_b32 s64, s13, s64
    s_branch L_pl_ready
    L_pl_bar:
    s_cmp_ge_u32 s70, 19
    s_cbranch_scc1 L_pl_nobar
    s_barrier
    s_add_u32 s70, s70, 1
    s_branch L_pl
    L_pl_nobar:
    s_cmp_ge_u32 s69, 4
    s_cbranch_scc1 L_pl_done
    s_sleep 4
    s_branch L_pl
    L_pl_done:
    v_mov_b32 v{FL}, {CNT}
    v_mov_b32 v{FL+1}, 1
    s_mov_b64 exec, 1
    s_waitcnt vmcnt(8)
    ds_add_u32 v{FL}, v{FL+1} offset:96
    s_waitcnt vmcnt(0)
    ds_add_u32 v{FL}, v{FL+1} offset:4
    ds_add_u32 v{FL}, v{FL+1} offset:132
    s_mov_b64 exec, -1
    s_mul_i32 s14, s8, {12*1024}
    s_mul_i32 s3, s4, {3*1024}
    s_add_u32 s14, s14, s3
    s_add_u32 s14, s14, {2*KVS}
    buffer_load_dwordx4 {vr(FL+4,4)}, v{VL16}, s[36:39], s14 offen sc1
    buffer_load_dwordx4 {vr(FL+4,4)}, v{VL16}, s[36:39], s14 offen offset:1024 sc1
    buffer_load_dwordx4 {vr(FL+4,4)}, v{VL16}, s[36:39], s14 offen offset:2048 sc1
    s_lshl_b32 s3, s2, 2
    s_add_u32 s3, s3, s4
    s_lshl_b32 s3, s3, 9
    buffer_load_dwordx4 {vr(FL+4,4)}, v{VL16}, s[52:55], s3 offen
    s_cmp_ge_u32 s6, {0 if ENV("NODOWN") else 28}
    s_cbranch_scc1 L_s_end
    s_barrier                           ; barrier(19)
    s_barrier
    s_setprio {ENV("DPRIO0", 0)}
    """)
    stamp(p, 2)
    ACC, WF, HB = 8, 72, 88
    VD, VT0, VT1, VX = 2, 3, 6, 7
    GR, XF = 144, 160
    NRING = 7
    p(f"""
    s_and_b32 s9, s6, 3
    s_lshl_b32 s10, s5, 2
    s_add_u32 s9, s9, s10
    s_lshr_b32 s10, s6, 2
    s_lshr_b32 s11, s4, 1
    s_lshl_b32 s57, s9, 1
    s_add_u32 s57, s57, s11
    s_xor_b32 s58, s57, 1
    s_mul_i32 s3, s4, {12*2048}
    s_add_u32 s3, s3, {H_OFF}
    s_mul_i32 s60, s57, 114688
    s_add_u32 s60, s60, s3
    s_mul_i32 s61, s58, 114688
    s_add_u32 s61, s61, s3
    v_bfe_u32 v{VX}, v0, 2, 3
    v_mul_u32_u24 v{VX}, 896, v{VX}
    v_lshrrev_b32 v{VT0}, 5, v0
    v_lshl_add_u32 v{VX}, v{VT0}, 6, v{VX}
    v_and_b32 v{VT0}, 3, v0
    v_lshl_add_u32 v{VX}, v{VT0}, 4, v{VX}
    s_lshl_b32 s14, s10, 7
    v_add_u32 v{VD}, s14, v{VX}
    v_lshrrev_b32 v{VX}, 5, v0
    v_lshlrev_b32 v{VX}, 8, v{VX}
    v_bfe_u32 v{VT0}, v0, 2, 2
    v_lshl_add_u32 v{VX}, v{VT0}, 6, v{VX}
    v_bfe_u32 v{VT0}, v0, 4, 1
    v_lshl_add_u32 v{VX}, v{VT0}, 5, v{VX}
    v_and_b32 v{VT0}, 3, v0
    v_lshl_add_u32 v{VX}, v{VT0}, 3, v{VX}
    s_lshl_b32 s15, s4, 14
    s_add_u32 s15, s15, {PRIV}
    s_and_b32 s3, s4, 1
    s_lshl_b32 s3, s3, 9
    s_add_u32 s3, s3, s15
    v_add_u32 v{VT0}, s3, v{VX}
    v_xor_b32 v{VT1}, 512, v{VT0}
    s_mul_i32 s62, s4, {12*32*896}
    s_mul_i32 s63, s4, -10
    s_add_u32 s63, s63, 48
    s_lshl_b32 s64, s63, 11
    s_add_u32 s65, s64, s61
    s_add_u32 s64, s64, s60
    s_mul_i32 s63, s63, {32*896}
    s_add_u32 s63, s63, s62
    """)
    vm = VM(p)

    order = [0, 1, 6, 7, 4, 5, 10, 11, 2, 3, 8, 9, 12, 13]
    seg_end = [8, 16, 28]
    seg_mask = [0x11, 0x22, 0xCC]

    def wload(ks):
        sl = ks % NRING
        if ks >= 28:
            for o in range(2):
                p(f"s_add_u32 m0, s15, {sl*2048 + o*1024}")
                p(f"s_add_u32 s14, s67, {(16*sl + 8*o)*896}")
                vm.op(f"buffer_load_dwordx4 v{VD}, s[52:55], s14 offen lds")
            return
        t = order[ks >> 1]
        base, t = ("s62", t) if t < 12 else ("s63", t - 12)
        for o in range(2):
            p(f"s_add_u32 m0, s15, {sl*2048 + o*1024}")
            p(f"s_add_u32 s14, {base}, {(32*t + 16*(ks&1) + 8*o)*896}")
            wid[ks] = vm.op(f"buffer_load_dwordx4 v{VD}, s[48:51], s14 offen lds")

    def hload(ks):
        sl = ks % NRING
        t = order[ks >> 1]
        (b0, b1), t = (("s60", "s61"), t) if t < 12 else (("s64", "s65"), t - 12)
        off = t * 2048 + (ks & 1) * 1024
        for r, b_ in enumerate((b0, b1)):
            if off >= 4096:
                p(f"s_add_u32 s14, {b_}, {off & ~4095}")
            hid[ks] = vm.op(f"buffer_load_dwordx4 {vr(HB+8*sl+4*r,4)}, v{VL16}, s[40:43], {'s14' if off >= 4096 else b_} offen offset:{off & 4095} sc1")
    wid, hid = {}, {}
    VFA, FT = GR, GR + 2
    p(f"""
    v_and_b32 v{VFA}, 7, v0
    v_lshlrev_b32 v{VFA}, 7, v{VFA}
    s_lshr_b32 s66, s9, 1
    s_lshl_b32 s66, s66, 12
    s_lshl_b32 s3, s4, 10
    s_add_u32 s66, s66, s3
    s_add_u32 s66, s66, {HFL}
    s_mov_b32 s71, {SPIN_MAX}
    s_mul_i32 s67, s4, {112*896}
    v_and_b32 v{VX}, 31, v0
    s_lshl_b32 s14, s57, 5
    v_add_u32 v{VX}, s14, v{VX}
    v_mul_u32_u24 v{VX}, 896, v{VX}
    v_lshrrev_b32 v0, 5, v0
    v_lshl_add_u32 v{VX}, v0, 3, v{VX}
    s_and_b32 s14, s4, 1
    s_lshl_b32 s14, s14, 6
    s_lshl_b32 s3, s10, 7
    s_add_u32 s14, s14, s3
    v_add_u32 v0, s14, v{VX}
    """)
    VXO = 0
    srd(p, 44, P_X, 2048 * 896)
    for g4 in range(4):
        vm.op(f"buffer_load_dwordx2 {vr(XF+2*g4,2)}, v{VXO}, s[44:47], 0 offen offset:{16*g4}")

    def hpoll(k):
        label = f"L_hp{k}"
        p(f"s_mov_b32 s68, {seg_mask[k]}\ns_mov_b32 s69, 0\ns_mov_b32 s71, {SPIN_MAX}")
        p.label(label)
        p(f"""
        buffer_load_dwordx2 {vr(FT,2)}, v{VFA}, s[40:43], s66 offen sc1
        s_sub_u32 s71, s71, 1
        s_waitcnt vmcnt(0)
        v_cmp_eq_u64 vcc, {vr(FT,2)}, {vr(TGV,2)}
        s_cmp_eq_u32 s71, 0
        s_cbranch_scc1 {label}_x
        s_and_b64 vcc, vcc, s[68:69]
        s_cmp_eq_u64 vcc, s[68:69]
        s_cbranch_scc1 {label}_x
        s_sleep 8
        s_branch {label}
        {label}_x:
        """)
        vm.done = vm.n

    def trd(wb, base, a0=VT0, a1=VT1):
        for c, a in enumerate((a0, a1)):
            for b in range(2):
                p(f"ds_read_b64_tr_b16 {vr(wb+4*c+2*b,2)}, v{a} offset:{base + b*1024}")
    LOOK = int(ENV("LOOK", 3))
    seg, hn = 0, 0

    def hfill(done):
        nonlocal hn
        while hn < min(seg_end[seg], done + NRING):
            hload(hn)
            hn += 1
    for ks in range(2):
        wload(ks)
    hpoll(0)
    stamp(p, 3)
    for ks in range(NRING):
        hload(ks)
        if ks + 2 < NRING:
            wload(ks + 2)
    hn = NRING
    p(f"s_setprio {ENV('DPRIO', 0)}")
    trd(WF, 0)
    for ks in range(28):
        sl = ks % NRING
        wb = WF + 8 * (ks & 1)
        if ENV("DSW") and ks == int(ENV("DSW")):
            p(f"s_setprio {ENV('DSWP', 1)}")
        if ks + 1 < 28:
            vm.need(wid[ks + 1])
            trd(WF + 8 * ((ks + 1) & 1), ((ks + 1) % NRING) * 2048)
        vm.need(hid[ks])
        p(f"s_waitcnt lgkmcnt({4 if ks + 1 < 28 else 0})")
        for a in range(4):
            ac = vr(ACC + 16 * a, 16)
            p(f"{MFMA} {ac}, {vr(wb+4*(a&1),4)}, {vr(HB+8*sl+4*(a>>1),4)}, {'0' if ks == 0 else ac}")
            if ENV("DINT") and a == 0 and ks >= 1:
                hfill(ks)
            if ENV("DINT") and a == 1 and ks + NRING < 28:
                wload(ks + NRING)
        if seg < 2 and ks + 1 + LOOK == seg_end[seg]:
            seg += 1
            hpoll(seg)
            hfill(ks + 1)
        if not ENV("DINT"):
            hfill(ks + 1)
            wload(ks + NRING)
    stamp(p, 4)

    def send():
        p(f"v_add_u32 v{VX}, s15, v{VL16}")
        for a in range(1, 4):
            for r in range(4):
                p(f"ds_write_b128 v{VX}, {vr(ACC+16*a+4*r,4)} offset:{(a-1)*4096 + r*1024}")

    def ssync(k):
        p(f"v_mov_b32 v{WF+1}, {CNT_S0 + 4*k}\nv_mov_b32 v{WF+2}, 1")
        p(f"s_mov_b64 exec, 1\ns_waitcnt lgkmcnt(0)\nds_add_u32 v{WF+1}, v{WF+2}\ns_mov_b64 exec, -1")
        lds_spin(p, f"L_ss{k}", f"v{WF+1}", WF, "4", 71)

    def recv():
        for a in range(1, 4):
            p(f"s_xor_b32 s3, s4, {a}\ns_lshl_b32 s3, s3, 14\ns_add_u32 s3, s3, {PRIV + (a-1)*4096}\nv_add_u32 v{VX}, s3, v{VL16}")
            for r in range(4):
                p(f"ds_read_b128 {vr(ACC+16*a+4*r,4)}, v{VX} offset:{r*1024}")

    def addup():
        for a in range(1, 4):
            p(f"s_waitcnt lgkmcnt({4*(3-a)})")
            for r in range(16):
                p(f"v_add_f32 v{ACC+r}, v{ACC+r}, v{ACC+16*a+r}")
    d7 = ENV("SD7")
    if d7: stamp(p, 1)
    if ENV("DSW"):
        p(f"s_setprio {ENV('DSWE', 0)}")
    p(f"""
    v_mov_b32 v{WF+1}, {CNT}
    v_mov_b32 v{WF+2}, 1
    s_lshl_b32 s3, s4, 2
    v_mov_b32 v{WF+3}, s3
    v_add_u32 v{WF+3}, {CNT_S0 + 4}, v{WF+3}
    v_xor_b32 v{WF+4}, 8, v{WF+3}
    v_xor_b32 v{WF+5}, 4, v{WF+3}
    s_and_b32 s3, s4, 1
    s_lshl_b32 s3, s3, 13
    s_cmp_lt_u32 s4, 2
    s_cselect_b32 s14, 0, {SLOT}
    s_add_u32 s3, s3, s14
    s_add_u32 s3, s3, {2*SLOT}
    v_add_u32 v{VX}, s3, v{VL16}                    ; area(kq)
    v_xor_b32 v{VD}, {SLOT}, v{VX}                  ; area(kq^2)
    """)
    lds_spin(p, "L_g0", f"v{WF+1} offset:48", WF, "4", 71)
    lds_spin(p, "L_g1", f"v{WF+1} offset:176", WF, "4", 71)
    for i in range(8):
        p(f"ds_write_b128 v{VX}, {vr(ACC+32+4*i,4)} offset:{i*1024}")
    p(f"s_waitcnt lgkmcnt(0)\nds_write_b32 v{WF+3}, v{WF+2}")
    lds_spin(p, "L_h1", f"v{WF+4}", WF, "1", 71)
    if d7: stamp(p, 2)
    for i in (4, 5, 6, 7, 0, 1, 2, 3):
        p(f"ds_read_b128 {vr(ACC+32+4*i,4)}, v{VD} offset:{i*1024}")
    p("s_waitcnt lgkmcnt(4)")
    for r in range(16):
        p(f"v_add_f32 v{ACC+16+r}, v{ACC+16+r}, v{ACC+48+r}")
    p("s_waitcnt lgkmcnt(0)")
    for i in range(4):
        p(f"ds_write_b128 v{VD}, {vr(ACC+16+4*i,4)} offset:{i*1024}")
    for r in range(16):
        p(f"v_add_f32 v{ACC+r}, v{ACC+r}, v{ACC+32+r}")
    p(f"v_xor_b32 v{VX}, 8192, v{VX}\ns_waitcnt lgkmcnt(0)\nds_write_b32 v{WF+3}, v{WF+2} offset:16")
    if d7: stamp(p, 3)
    lds_spin(p, "L_h2", f"v{WF+5} offset:16", WF, "1", 71)
    p(f"v_xor_b32 v{VX}, {SLOT}, v{VX}")
    for i in range(4):
        p(f"ds_read_b128 {vr(ACC+16+4*i,4)}, v{VX} offset:{i*1024}")
    for i in range(4):
        p(f"s_waitcnt lgkmcnt({3-i})")
        for r in range(4 * i, 4 * i + 4):
            p(f"v_add_f32 v{ACC+r}, v{ACC+r}, v{ACC+16+r}")
    if d7: stamp(p, 4)
    T = ACC + 16
    p(f"s_mov_b32 s3, {f32(-LOG2E)}")
    for i in range(16):
        p(f"v_mul_f32 v{T+i}, s3, v{ACC+i}")
    for i in range(16):
        p(f"v_exp_f32 v{T+i}, v{T+i}")
    for i in range(16):
        p(f"v_add_f32 v{T+i}, 1.0, v{T+i}")
    for i in range(16):
        p(f"v_rcp_f32 v{T+i}, v{T+i}")
    GREG = [GR + i for i in range(16)]
    for i in range(16):
        p(f"v_mul_f32 v{GREG[i]}, v{ACC+i}, v{T+i}")
    if ENV("DUMP_G"):
        for i in range(8):
            p(f"v_cvt_pk_bf16_f32 v{T+i}, v{GREG[2*i]}, v{GREG[2*i+1]}")
        p(f"""
        s_mul_i32 s14, s57, {14*2048}
        s_lshl_b32 s3, s10, 1
        s_and_b32 s63, s4, 1
        s_add_u32 s3, s3, s63
        s_lshl_b32 s3, s3, 11
        s_add_u32 s14, s14, s3
        s_add_u32 s14, s14, {G_OFF}
        buffer_store_dwordx4 {vr(T,4)}, v{VL16}, s[40:43], s14 offen
        buffer_store_dwordx4 {vr(T+4,4)}, v{VL16}, s[40:43], s14 offen offset:1024
        """)
    p(f"""
    v_bfe_u32 v{WF+4}, v{VL16}, 4, 2
    v_lshlrev_b32 v{VX}, 7, v{WF+4}
    v_bfe_u32 v{WF}, v{VL16}, 6, 1
    v_lshl_add_u32 v{VX}, v{WF}, 11, v{VX}
    s_lshl_b32 s14, s9, 12
    s_lshl_b32 s3, s4, 9
    s_add_u32 s14, s14, s3
    s_add_u32 s14, s14, {OFL}
    s_mov_b32 s71, {SPIN_MAX}
    s_lshl_b32 s3, s4, 13
    s_add_u32 s3, s3, {O_OFF}
    s_lshl_b32 s60, s57, 15
    s_add_u32 s60, s60, s3
    s_lshl_b32 s61, s58, 15
    s_add_u32 s61, s61, s3
    s_add_u32 s62, s60, 4096
    s_add_u32 s63, s61, 4096
    v_lshlrev_b32 v{WF+4}, 3, v{WF+4}
    v_add_u32 v{WF+4}, {CNT_COMB}, v{WF+4}
    """)
    stamp(p, 5)
    p(f"s_setprio {ENV('DPRIO3', 0)}")
    p.label("L_op")
    p(f"""
    buffer_load_dwordx2 {vr(WF,2)}, v{VX}, s[40:43], s14 offen sc1
    s_sub_u32 s71, s71, 1
    s_waitcnt vmcnt(0)
    v_cmp_eq_u64 vcc, {vr(WF,2)}, {vr(TGV,2)}
    s_cmp_eq_u32 s71, 0
    s_cbranch_scc1 L_op_x
    s_cmp_eq_u64 vcc, -1
    s_cbranch_scc1 L_op_x
    ds_read_b32 v{WF+2}, v{WF+4}
    s_waitcnt lgkmcnt(0)
    v_cmp_eq_u32 vcc, 2, v{WF+2}
    s_cmp_eq_u64 vcc, -1
    s_cbranch_scc1 L_op
    s_sleep {ENV("OSLEEP", 2)}
    s_branch L_op
    L_op_x:
    """)
    stamp(p, 6)
    vm = VM(p)
    OB = HB
    oid = {}

    def oload(kk, r):
        sreg = (("s60", "s61"), ("s62", "s63"))[kk >> 2][r]
        slot = (2 * kk + r) % 14
        oid[(kk, r)] = vm.op(f"buffer_load_dwordx4 {vr(OB+4*slot,4)}, v{VL16}, s[40:43], {sreg} offen offset:{(kk&3)*1024} sc1")
    for kk in range(7):
        oload(kk, 0); oload(kk, 1)

    def wrd(kk):
        hh, s_ = kk >> 1, kk & 1
        row = 28 * hh - 4 * (hh & 1) + 16 * s_
        trd(WF + 8 * (kk & 1), (row >> 3) * 1024)
    wrd(0)
    for kk in range(8):
        if kk + 1 < 8:
            wrd(kk + 1)
        wb = WF + 8 * (kk & 1)
        p(f"s_waitcnt lgkmcnt({4 if kk + 1 < 8 else 0})")
        for a in range(4):
            vm.need(oid[(kk, a >> 1)])
            ac = vr(ACC + 16 * a, 16)
            p(f"{MFMA} {ac}, {vr(wb+4*(a&1),4)}, {vr(OB+4*((2*kk+(a>>1))%14),4)}, {'0' if kk == 0 else ac}")
        if kk == 0:
            oload(7, 0); oload(7, 1)
    if ENV("SD8"): stamp(p, 1)
    send()
    srd(p, 44, P_OUT, 2048 * 896)
    XE = HB
    for i in range(8):
        p(f"v_lshlrev_b32 v{XE+2*i}, 16, v{XF+i}")
        p(f"v_and_b32 v{XE+2*i+1}, 0xffff0000, v{XF+i}")
    ssync(0)
    if ENV("SD8"): stamp(p, 2)
    recv()
    addup()
    if ENV("SD8"): stamp(p, 3)
    for i in range(16):
        p(f"v_fma_f32 v{ACC+i}, v{ACC+i}, v{GREG[i]}, v{XE+i}")
    pack16(p, WF, ACC)
    for g4 in range(4):
        p(f"buffer_store_dwordx2 {vr(WF+2*g4,2)}, v{VXO}, s[44:47], 0 offen offset:{16*g4}")
    p.label("L_s_end")
    endpgm(p)


def main():
    ref = open("cdna_kernels/" + NAME + ".s.ref").read().split("\n")
    head = [l for l in ref if l.startswith(";") and "@launch" not in l and "Override launch" not in l and "grid=ceil" not in l]
    p = Prog()
    gen(p)
    body = p.finalize()
    out = head[:]
    out += """;
; One fused kernel, one 12-wave workgroup per CU (generated by my own script, gen/gen3.py).
;  waves 0-7 : layernorm of 128 rows, Q/K/V/gate/up projections (MFMA, W streamed through LDS, K split over wave pairs),
;              then attention for one (head, 128 queries): S^T = K Q^T, P = exp2(S) without a shift, row sums from a
;              ones column of V.  The result is checked (row sum in [2^-40, 2^100], everything finite); a tile that
;              fails is recomputed by the online-softmax loop with the true running max (L_fallback).
;  waves 8-11: stream the weights, then the down projection + silu, the output projection and out = x + s*g.
;  Hand-offs between workgroups: write-through (sc1) stores, drained, then an 8-byte flag holding this launch's tag
;  (start time of workgroup 0, passed through d_debug); consumers poll with sc1 loads.  Every spin is bounded.""".split("\n")
    out.append("; @launch grid=(256,1,1) block=(768,1,1) lds=163840")
    out.append('.amdgcn_target "amdgcn-amd-amdhsa--gfx950"\n.text')
    out.append(body)
    out.append(f""".section .rodata,"a"
.p2align 6
.amdhsa_kernel {KN}
  .amdhsa_next_free_vgpr 168
  .amdhsa_next_free_sgpr 100
  .amdhsa_accum_offset 168
  .amdhsa_group_segment_fixed_size 0
  .amdhsa_kernarg_size 80
  .amdhsa_user_sgpr_count 2
  .amdhsa_user_sgpr_kernarg_segment_ptr 1
  .amdhsa_system_sgpr_workgroup_id_x 1
.end_amdhsa_kernel""")
    if ENV("PLAINLD"):
        import re
        out = [re.sub(r"(buffer_load_dwordx4 .*) sc1( lds)?$", r"\1\2", l, flags=re.M) if "s[44:47], s6" not in l else l for l in "\n".join(out).split("\n")]
    path = sys.argv[1] if len(sys.argv) > 1 else "cdna_kernels/" + NAME + ".s"
    open(path, "w").write("\n".join(out) + "\n")
    print("wrote", path, "nops inserted:", p.total_nops)


main()
```

```python
import math, struct, sys, os
from asmlib import Prog

NAME = "recurrent_scan__mha_block__geglu_ffn__prompt"
KN = NAME + "_kernel"
MB = 1 << 20
QF_OFF, KV_OFF, H_OFF, O_OFF, G_OFF = 0, 2 * MB, 6 * MB, 13 * MB, 15 * MB
FLAG_OFF = 17 * MB
QKVF, HFL, OFL = FLAG_OFF, FLAG_OFF + 65536, FLAG_OFF + 131072
WS_USED = 18 * MB
LOG2E = math.log2(math.e)
QSCALE = LOG2E / math.sqrt(28.0)
SPIN_MAX = 1 << 12
ENV = os.environ.get
STAMPS = bool(ENV("STAMPS"))
STAMP_OFF = 24 * MB
MFMA = "v_mfma_f32_32x32x16_bf16"
P_X, P_WQKV, P_WO, P_WG, P_WU, P_WD, P_OUT, P_DBG, P_WS = 16, 18, 20, 24, 26, 28, 30, 32, 34
SLOT = 16384
EXB = 8 * SLOT
TAGL = 6 * SLOT
QL = 3 * SLOT + 8192
NST = 19


def phys(c):
    return (8, 9, 7)[c] if c < 3 else (c - 3) % 6
PRIV = 6 * SLOT
CNT = PRIV + 15360
CNT_COMB, CNT_S0 = CNT + 64, CNT + 220
KVS = 32768
CNT_GO = CNT + 96
CNT_H = CNT + 100


def f32(x):
    return "0x%08x" % struct.unpack("<I", struct.pack("<f", x))[0]


def vr(b, n=1):
    return f"v{b}" if n == 1 else f"v[{b}:{b+n-1}]"


def srd(p, d, base, nrec, add=None):
    if add is None:
        p(f"s_mov_b32 s{d}, s{base}\ns_mov_b32 s{d+1}, s{base+1}")
    else:
        p(f"s_add_u32 s{d}, s{base}, {add}\ns_addc_u32 s{d+1}, s{base+1}, 0")
    p(f"s_mov_b32 s{d+2}, {nrec}\ns_mov_b32 s{d+3}, 0x20000")


def pack16(p, dst, src):
    for i in range(8):
        p(f"v_cvt_pk_bf16_f32 v{dst+i}, v{src+2*i}, v{src+2*i+1}")


def stamp_txt(i):
    if STAMPS and not (ENV("CB") and i < 7):
        assert i < 8
        return [f"{ENV('STAMP_INS', 's_memrealtime')} s[{80+2*i}:{81+2*i}]"]
    return []


def stamp(p, i):
    for x in stamp_txt(i):
        p(x)


TL = bool(ENV("TL"))


def tl(p, idx):
    if TL:
        p(f"{ENV('STAMP_INS', 's_memrealtime')} s[94:95]\ns_waitcnt lgkmcnt(0)\nv_writelane_b32 v60, s94, {idx}")


def tl_dump(p):
    if TL:
        p(f"""
        s_lshl_b32 s94, s2, 4
        s_add_u32 s94, s94, s59
        s_lshl_b32 s94, s94, 8
        s_add_u32 s94, s94, {STAMP_OFF + MB}
        s_mov_b32 s96, s{P_WS}
        s_mov_b32 s97, s{P_WS+1}
        s_mov_b32 s98, {32*MB}
        s_mov_b32 s99, 0x20000
        v_lshlrev_b32 v61, 2, v0
        buffer_store_dword v60, v61, s[96:99], s94 offen
        """)


def endpgm(p):
    if STAMPS and ENV("DBGMAX"):
        stamp(p, 7)
        p(f"""
        s_mov_b64 exec, -1
        s_mov_b32 s96, s{P_DBG}
        s_mov_b32 s97, s{P_DBG+1}
        s_mov_b32 s98, 256
        s_mov_b32 s99, 0x20000
        buffer_load_dword v10, off, s[96:99], 0 sc1
        s_waitcnt vmcnt(0) lgkmcnt(0)
        """)
        for i in range(8):
            p(f"v_writelane_b32 v8, s{80+2*((i+1) % 8)}, {i}")
        p(f"""
        v_cmp_ne_u32 vcc, 0, v8
        v_sub_u32 v8, v8, v10
        v_add_u32 v8, 1000, v8
        v_cndmask_b32 v8, 0, v8, vcc
        s_cmp_ge_u32 s59, 8
        s_cselect_b32 s4, 36, 8
        v_mbcnt_lo_u32_b32 v9, -1, 0
        v_lshlrev_b32 v9, 2, v9
        s_mov_b64 exec, 0x7f
        buffer_atomic_umax v8, v9, s[96:99], s4 offen
        s_waitcnt vmcnt(0)
        """)
    elif STAMPS:
        stamp(p, 7)
        p("s_waitcnt vmcnt(0) lgkmcnt(0)\ns_mov_b64 exec, -1")
        for i in range(8):
            p(f"v_writelane_b32 v8, s{80+2*i}, {i}")
        p(f"""
        s_lshl_b32 s4, s2, 4
        s_add_u32 s4, s4, s59
        s_lshl_b32 s4, s4, 5
        s_add_u32 s4, s4, {STAMP_OFF}
        s_mov_b32 s96, s{P_WS}
        s_mov_b32 s97, s{P_WS+1}
        s_mov_b32 s98, {32*MB}
        s_mov_b32 s99, 0x20000
        v_mbcnt_lo_u32_b32 v9, -1, 0
        v_lshlrev_b32 v9, 2, v9
        s_mov_b64 exec, 0xff
        buffer_store_dword v8, v9, s[96:99], s4 offen
        """)
    p("s_endpgm")


class DS:
    def __init__(self, pending):
        self.n, self.done = pending, 0

    def op(self):
        self.n += 1
        return self.n - 1

    def need(self, i):
        if i < self.done:
            return []
        self.done = i + 1
        return [f"s_waitcnt lgkmcnt({min(15, self.n - 1 - i)})"]


class VM:
    def __init__(self, p):
        self.p, self.n, self.done = p, 0, 0

    def op(self, txt):
        self.p(txt)
        self.n += 1
        return self.n - 1

    def need(self, i):
        if i is None or i < self.done:
            return
        self.done = i + 1
        k = self.n - 1 - i
        assert k <= 63
        self.p(f"s_waitcnt vmcnt({k})")


def cost(ins):
    c = 0
    for l in ins.strip().split("\n"):
        m = l.strip().split()[0]
        c += 8 if m.startswith(("v_exp", "v_rcp", "v_rsq", "ds_")) else 16 if m.startswith("buffer_") else 4
    return c


def lds_spin(p, label, addr_v, tmp, want, sreg, wide=False):
    p(f"s_mov_b32 s{sreg}, {SPIN_MAX*8}")
    p.label(label)
    if wide:
        p(f"ds_read_b64 {vr(tmp,2)}, {addr_v}\ns_sub_u32 s{sreg}, s{sreg}, 1\ns_waitcnt lgkmcnt(0)\nv_cmp_ne_u64 vcc, {want}, {vr(tmp,2)}")
    else:
        p(f"ds_read_b32 v{tmp}, {addr_v}\ns_sub_u32 s{sreg}, s{sreg}, 1\ns_waitcnt lgkmcnt(0)\nv_cmp_ne_u32 vcc, {want}, v{tmp}")
    p(f"""
    s_cmp_eq_u32 s{sreg}, 0
    s_cbranch_scc1 {label}_x
    s_cmp_eq_u64 vcc, 0
    s_cbranch_scc1 {label}_x
    s_sleep 1
    s_branch {label}
    {label}_x:
    """)


def gen(p):
    p(f".globl {KN}\n.p2align 8\n.type {KN},@function")
    p.label(KN)
    S_W, S_RG, S_HF, S_RB, S_RT = 59, 60, 61, 62, 63
    RX = int(ENV('RX', 2))
    p(f"""
    s_cmp_ge_u32 s2, 256
    s_cbranch_scc1 L_exit
    s_load_dwordx16 s[16:31], s[0:1], 0
    s_load_dwordx4 s[32:35], s[0:1], 64
    """)
    if STAMPS:
        for i in range(16):
            p(f"s_mov_b32 s{80+i}, 0")
        stamp(p, 0)
    p(f"""
    v_lshrrev_b32 v2, 6, v0
    v_and_b32 v0, 63, v0
    v_readfirstlane_b32 s{S_W}, v2
    s_and_b32 s5, s2, 7                 ; xcd
    s_lshr_b32 s6, s2, 3                ; j
    s_and_b32 s7, s5, {(1 << RX) - 1}
    s_lshl_b32 s7, s7, {4 - RX}
    s_and_b32 s8, s6, {(16 >> RX) - 1}
    s_add_u32 s{S_RB}, s7, s8
    s_lshr_b32 s7, s5, {RX}
    s_lshl_b32 s7, s7, {RX + 1}
    s_lshr_b32 s8, s6, {4 - RX}
    s_add_u32 s7, s7, s8
    s_and_b32 s8, s7, 1
    s_lshr_b32 s7, s7, 1
    s_cmp_ge_u32 s{S_W}, 8
    s_cbranch_scc1 L_service
    """)
    gen_c(p, S_W, S_RG, S_HF, S_RB, S_RT)
    p.label("L_service")
    gen_s(p, S_W)
    p.label("L_exit")
    p("s_endpgm")
    p.label("L_code_end")


def gen_c(p, S_W, S_RG, S_HF, S_RB, S_RT):
    VL16, VA, VB, VTRL, VEX, VEXP, VST = 1, 2, 3, 4, 5, 6, 7
    X, SA, SB, G, WF, T = 8, 64, 96, 128, 144, 160
    p(f"""
    s_and_b32 s{S_RG}, s{S_W}, 3
    s_lshr_b32 s{S_HF}, s{S_W}, 2
    s_xor_b32 s{S_HF}, s{S_HF}, s8
    v_lshrrev_b32 v12, 2, v0            ; r16
    v_lshrrev_b32 v13, 4, v0            ; r16>>2
    v_xor_b32 v13, v13, v0
    v_and_b32 v13, 3, v13
    v_mul_u32_u24 v12, 896, v12
    v_lshl_add_u32 v12, v13, 4, v12
    s_lshl_b32 s9, s{S_RB}, 2
    s_add_u32 s{S_RT}, s9, s{S_RG}
    s_mul_i32 s9, s{S_RT}, {32*896}
    s_mul_i32 s10, s{S_HF}, 448
    s_add_u32 s9, s9, s10
    v_add_u32 v12, s9, v12
    s_mul_i32 s10, s{S_W}, 14336
    s_mov_b32 s11, {16*896}
    s_waitcnt lgkmcnt(0)
    """)
    srd(p, 44, P_DBG, 256)
    p(f"""
    s_add_u32 s12, s2, s{S_W}
    s_cmp_lg_u32 s12, 0
    s_cbranch_scc1 L_notagw
    s_memrealtime s[12:13]
    s_waitcnt lgkmcnt(0)
    s_or_b32 s12, s12, 1
    v_mov_b32 v16, s12
    v_mov_b32 v17, s13
    s_mov_b64 exec, 1
    buffer_store_dwordx2 v[16:17], off, s[44:47], 0 sc1
    s_mov_b64 exec, -1
    L_notagw:
    """)
    CPF = ENV("CPF", "1")
    if CPF != "0":
        p(f"s_lshl_b32 s12, s2, 3\ns_add_u32 s12, s12, s{S_W}\ns_lshl_b32 s12, s12, 10\nv_lshlrev_b32 v13, 4, v0")
        for k, (ptr, n) in enumerate(((P_WQKV, 448 * 2688), (P_WG, 448 * 3584), (P_WU, 448 * 3584))[:int(CPF) + 2 if CPF == "1" else 2]):
            srd(p, 64 + 4 * k, ptr, n)
            p(f"buffer_load_dwordx4 {vr(SA,4)}, v13, s[{64+4*k}:{67+4*k}], s12 offen")
    srd(p, 36, P_X, 2048 * 896)
    for cb in range(7):
        for rh in range(2):
            p(f"s_add_u32 m0, s10, {(rh*7+cb)*1024 - 64*cb}")
            p(f"buffer_load_dwordx4 v12, s[36:39], {'s11' if rh else '0'} offen offset:{64*cb} lds")
    if ENV("B0"):
        p("s_barrier")
    srd(p, 40, P_WS, WS_USED)
    VXA, VXB, SUM, SQ, ONES, RS, NM, TG = T, T + 1, T + 2, T + 3, T + 4, G, G + 1, G + 2
    U = SB
    STAT = 7 * SLOT
    c0 = -2.0 * math.sqrt(2.0 / math.pi) * LOG2E
    c1 = c0 * 0.044715
    al = -((-c1) ** (1.0 / 3.0))
    p(f"""
    v_lshlrev_b32 v{VL16}, 4, v0
    s_lshl_b32 s3, s{S_HF}, 4
    v_xor_b32 v15, s3, v0
    v_lshlrev_b32 v{VST}, 4, v15
    s_lshl_b32 s12, s{S_HF}, 10
    v_add_u32 v{VST}, s12, v{VST}
    v_lshrrev_b32 v13, 5, v0
    v_lshlrev_b32 v13, 11, v13
    v_bfe_u32 v14, v0, 2, 2
    v_lshl_add_u32 v13, v14, 6, v13
    v_bfe_u32 v14, v15, 4, 1
    v_lshl_add_u32 v13, v14, 5, v13
    v_and_b32 v14, 3, v0
    v_lshl_add_u32 v13, v14, 3, v13
    s_lshl_b32 s12, s{S_HF}, 10
    v_add_u32 v{VTRL}, s12, v13
    v_add_u32 v{VA}, {8*SLOT}, v{VTRL}
    v_add_u32 v{VB}, {9*SLOT}, v{VTRL}
    s_lshl_b32 s12, s{S_W}, 12
    s_add_u32 s12, s12, {EXB}
    v_add_u32 v{VEX}, s12, v{VL16}
    v_xor_b32 v{VEXP}, 0x4100, v{VEX}
    v_bfe_u32 v13, v15, 4, 1
    v_mul_u32_u24 v13, 7168, v13
    v_and_b32 v14, 15, v0
    v_lshl_add_u32 v13, v14, 6, v13
    v_lshrrev_b32 v14, 5, v0            ; h
    v_bfe_u32 v15, v0, 2, 2             ; swz
    v_xor_b32 v14, v14, v15
    v_lshl_add_u32 v{VXA}, v14, 4, v13
    v_xor_b32 v14, 2, v14
    v_lshl_add_u32 v{VXB}, v14, 4, v13
    v_add_u32 v{VXA}, s10, v{VXA}
    v_add_u32 v{VXB}, s10, v{VXB}
    v_mov_b32 v{SUM}, 0
    v_mov_b32 v{SQ}, 0
    v_mov_b32 v{ONES}, 0x3f803f80
    s_mov_b32 s66, 0xffff0000
    s_mov_b32 s64, {f32(al)}
    s_mov_b32 s65, {f32(c0 / c1 * al * al)}
    v_and_b32 v{U+2}, 31, v0
    v_lshlrev_b32 v{U+2}, 3, v{U+2}
    v_add_u32 v{U+3}, s10, v{U+2}
    s_xor_b32 s12, s{S_W}, 4
    s_mul_i32 s12, s12, 14336
    v_xor_b32 v{U+2}, 128, v{U+2}
    v_add_u32 v{U+2}, s12, v{U+2}
    """)
    p(f"""
    s_cmp_eq_u32 s8, 1
    s_cselect_b32 s69, {f32(QSCALE)}, 1.0
    s_cselect_b32 s4, 18, 19
    s_cselect_b32 s15, {QF_OFF}, {KV_OFF}
    s_cselect_b32 s73, 2048, 0
    s_cselect_b32 s14, 0, 4
    s_lshl_b32 s67, s7, s4
    s_sub_u32 s4, s4, 1
    s_lshl_b32 s68, 1, s4
    s_sub_u32 s4, s4, 6
    s_lshl_b32 s4, s{S_RT}, s4
    s_add_u32 s67, s67, s4
    s_add_u32 s67, s67, s15
    s_add_u32 s68, s68, s67
    s_add_u32 s72, s67, 2048
    s_add_u32 s75, s68, 2048
    s_lshl_b32 s12, s7, 12
    s_lshl_b32 s13, s{S_RB}, 7
    s_add_u32 s12, s12, s13
    s_add_u32 s12, s12, {QKVF}
    s_add_u32 s73, s73, s12             ; flag of this workgroup's q or k,v result
    s_mul_i32 s12, s7, 6
    s_add_u32 s14, s14, s12             ; first f tile
    s_add_u32 s58, s7, 48
    s_sub_u32 s58, s58, s14
    s_sub_u32 s58, s58, 2               ; from the tile after the first quad to the single tile (type A)
    s_lshl_b32 s70, s14, 11
    s_mul_i32 s4, s{S_RT}, 114688
    s_add_u32 s70, s70, s4
    s_add_u32 s70, s70, {H_OFF}
    s_lshl_b32 s71, s{S_RB}, 12
    s_lshl_b32 s4, s7, 9
    s_add_u32 s71, s71, s4
    s_xor_b32 s4, s8, 1
    s_lshl_b32 s4, s4, 7
    s_add_u32 s71, s71, s4
    s_add_u32 s71, s71, {HFL}           ; units: 0 first quad of B, 1 quad of A, 2 second quad of B, 3 single tile of A
    ; pad masks: even head pads n=28..31 (hf=1 waves), odd head pads n=0..3 (hf=0 waves)
    s_cmp_eq_u32 s{S_HF}, 1
    s_mov_b32 s52, 0
    s_cselect_b32 s53, -1, 0            ; q/k even head: packed regs 2,3
    s_cselect_b32 s54, 0, -1            ; q/k odd head: packed regs 0,1
    s_mov_b32 s55, 0
    s_cselect_b32 s56, 0xf000, 0xf0000000 {';'} v even head: zero lanes
    """.replace("s_cselect_b32 s56, 0xf000, 0xf0000000 ;", "s_mov_b32 s56, 0xf0000000\n    s_cselect_b32 s56, 0xf000, s56 ;") + f"""
    s_mov_b32 s57, s56
    s_cselect_b32 s48, 0xf0000, 15      ; v odd head: zero lanes
    s_mov_b32 s49, s48
    s_lshr_b32 s50, s56, 3
    s_and_b32 s50, s50, s56             ; lowest lane of each group: the ones column
    s_mov_b32 s51, s50
    s_lshr_b32 s46, s48, 3
    s_and_b32 s46, s46, s48
    s_mov_b32 s47, s46
    """.replace("s46", "s78").replace("s47", "s79"))
    stamp(p, 1)

    def stat(cb):
        for d in range(8):
            r = X + 8 * cb + d
            p(f"v_dot2c_f32_bf16 v{SUM}, v{r}, v{ONES}")
            p(f"v_dot2c_f32_bf16 v{SQ}, v{r}, v{r}")
    for cb in range(7):
        p(f"s_waitcnt vmcnt({12 - 2*cb})")
        p(f"ds_read_b128 {vr(X+8*cb,4)}, v{VXA} offset:{cb*1024}")
        p(f"ds_read_b128 {vr(X+8*cb+4,4)}, v{VXB} offset:{cb*1024}")
        if cb:
            p("s_waitcnt lgkmcnt(2)")
            stat(cb - 1)
    p("s_waitcnt lgkmcnt(0)")
    stat(6)
    p(f"""
    v_mov_b32 v{U}, v{SUM}
    v_mov_b32 v{U+1}, v{SQ}
    v_permlane32_swap_b32 v{SUM}, v{U}
    v_permlane32_swap_b32 v{SQ}, v{U+1}
    v_add_f32 v{SUM}, v{SUM}, v{U}
    v_add_f32 v{SQ}, v{SQ}, v{U+1}
    ds_write_b64 v{U+3}, {vr(SUM,2)}
    s_waitcnt lgkmcnt(0)
    s_barrier
    ds_read_b64 {vr(U,2)}, v{U+2}
    s_waitcnt lgkmcnt(0)
    s_barrier
    v_add_f32 v{SUM}, v{SUM}, v{U}
    v_add_f32 v{SQ}, v{SQ}, v{U+1}
    v_mul_f32 v{SUM}, {f32(1.0/448)}, v{SUM}        ; mean
    v_mul_f32 v{SQ}, {f32(1.0/448)}, v{SQ}
    v_fma_f32 v{SQ}, -v{SUM}, v{SUM}, v{SQ}         ; var
    v_max_f32 v{SQ}, 0, v{SQ}
    v_add_f32 v{SQ}, {f32(1e-5)}, v{SQ}
    v_rsq_f32 v{RS}, v{SQ}                          ; rstd
    v_mul_f32 v{SUM}, v{SUM}, v{RS}
    v_sub_f32 v{NM}, 0, v{SUM}                      ; -mean*rstd
    """)
    stamp(p, 2)

    def normalise(kl, tb):
        e = []
        for d in range(4):
            e += [f"v_lshlrev_b32 v{tb+2*d}, 16, v{X+4*kl+d}", f"v_and_b32 v{tb+2*d+1}, s66, v{X+4*kl+d}"]
        e += [f"v_fma_f32 v{tb+i}, v{tb+i}, v{RS}, v{NM}" for i in range(8)]
        e += [f"v_cvt_pk_bf16_f32 v{X+4*kl+d}, v{tb+2*d}, v{tb+2*d+1}" for d in range(4)]
        return e
    NPRE = int(ENV("NPRE", 2))
    for kl in range(NPRE):
        for i in normalise(kl, U + 8 * kl):
            p(i)
    p("s_barrier")
    NB = 4

    def st(r, sreg, off=0):
        return f"buffer_store_dwordx4 {vr(r,4)}, v{VST}, s[40:43], s{sreg} offen{' offset:%d' % off if off else ''} sc1"

    fl_n = [0]

    def flag0(sreg):
        fl_n[0] += 1
        return (f"s_cmp_lg_u32 s{S_W}, 0\ns_cbranch_scc1 L_fl{fl_n[0]}\ns_mov_b64 exec, 1\n"
                f"buffer_store_dwordx2 v[0:1], off, s[40:43], s{sreg} sc1\ns_mov_b64 exec, -1\nL_fl{fl_n[0]}:")

    def pack8(a):
        return [f"v_cvt_pk_bf16_f32 v{a+i}, v{a+2*i}, v{a+2*i+1}" for i in range(4)]

    def epi_qk(h0, h1):
        e = []
        for t, a in enumerate((h0, h1)):
            e += [f"v_mul_f32 v{a+i}, s69, v{a+i}" for i in range(8)] + pack8(a)
            z = a + 2 if t == 0 else a
            e += [f"s_mov_b64 exec, s[{52+2*t}:{53+2*t}]\nv_mov_b32 v{z}, 0\nv_mov_b32 v{z+1}, 0\ns_mov_b64 exec, -1"]
            e.append(st(a, 67 + t))
        return e

    def epi_v(h0, h1):
        e = []
        for t, a in enumerate((h0, h1)):
            zm, om = ((56, 50), (48, 78))[t]
            e += pack8(a)
            e += [f"s_mov_b64 exec, s[{zm}:{zm+1}]\n" + "".join(f"v_mov_b32 v{a+i}, 0\n" for i in range(4))
                  + f"s_mov_b64 exec, s[{om}:{om+1}]\n"
                  + "".join(f"v_mov_b32 v{a+i}, 0x3f803f80\n" for i in range(4)) + "s_mov_b64 exec, -1"]
            e.append(st(a, (72, 75)[t]))
        return e

    def gelu(g, qs):
        e = []
        for q in qs:
            r = g[4 * q:4 * q + 4]
            t = [T + i for i in range(4)]
            u = [T + 4 + i for i in range(4)]
            e += [f"v_mul_f32 v{t[i]}, s64, v{r[i]}" for i in range(4)]
            e += [f"v_fma_f32 v{u[i]}, v{t[i]}, v{t[i]}, s65" for i in range(4)]
            e += [f"v_mul_f32 v{t[i]}, v{t[i]}, v{u[i]}" for i in range(4)]
            e += [f"v_exp_f32 v{t[i]}, v{t[i]}" for i in range(4)]
            e += [f"v_add_f32 v{t[i]}, 1.0, v{t[i]}" for i in range(4)]
            e += [f"v_rcp_f32 v{t[i]}, v{t[i]}" for i in range(4)]
            e += [f"v_mul_f32 v{r[i]}, v{r[i]}, v{t[i]}" for i in range(4)]
        return e
    GG = [G + i for i in range(16)]

    def prod2(acc):
        e = []
        for t in range(2):
            a = acc + 16 * t
            e += [f"v_mul_f32 v{a+i}, v{a+i}, v{G+8*t+i}" for i in range(8)] + pack8(a)
            e.append(st(a, 70, 2048 * t))
        return e + ["s_add_u32 s70, s70, 4096"]

    def epi_s(acc):
        g = [acc + i for i in range(8)]
        e = gelu(g, [0, 1])
        e += [f"v_mul_f32 v{g[i]}, v{g[i]}, v{acc+16+i}" for i in range(8)] + pack8(acc)
        return e + [st(acc, 70)]

    tag_ld = [f"s_cmp_lg_u32 s{S_W}, 7\ns_cbranch_scc1 L_tl_@\n"
              f"buffer_load_dwordx2 {vr(TG,2)}, off, s[44:47], 0 sc1\nL_tl_@:"]
    tag_pub = [f"s_cmp_lg_u32 s{S_W}, 7\ns_cbranch_scc1 L_tp_@\ns_mov_b32 s12, {SPIN_MAX}\nL_tq_@:\ns_waitcnt vmcnt(0)\n"
               f"v_cmp_ne_u32 vcc, 0, v{TG}\ns_sub_u32 s12, s12, 1\ns_cbranch_scc1 L_tr_@\ns_cmp_lg_u64 vcc, 0\ns_cbranch_scc1 L_tr_@\n"
               f"buffer_load_dwordx2 {vr(TG,2)}, off, s[44:47], 0 sc1\ns_branch L_tq_@\nL_tr_@:\n"
               f"v_mov_b32 v{TG+2}, {TAGL}\nds_write_b64 v{TG+2}, {vr(TG,2)}\n"
               "s_waitcnt lgkmcnt(0)\nL_tp_@:"]
    XW, XR = [2, 3, 4, 5], [7, 8, 9, 10]
    xreg = lambda acc, i: acc + 16 * (i >> 1) + 8 + 4 * (i & 1)

    def stream(kind, late):
        N = 140
        types = "VKGUS" if kind == "A" else "QGUGU"
        G_ = []
        for kl in range(14):
            for ps in range(2):
                for t in range(2):
                    G_.append((kl >> 1, ps * 8192 + (kl & 1) * 4096 + t * 512, kl, (SA, SB)[ps] + 16 * t, kl == 0, types[ps] == "V"))
        acc = {2: SB, 3: SA, 4: SB}
        for ps in range(2, 5):
            for j in range(28):
                G_.append((7 + 4 * (ps - 2) + (j >> 3), ((j >> 1) & 3) * 4096 + (j & 1) * (1024 if types[ps] == "S" else 512),
                           j >> 1, acc[ps] + 16 * (j & 1), j < 2, False))
        win = []

        def W(a, b, ins):
            win.append((a, b, ins))
        for kl in range(NPRE, 14):
            W(4 * (kl - NPRE), 4 * (kl - NPRE) + 4, normalise(kl, T))
        W(16, 17, [x.replace("@", kind) for x in tag_ld])
        W(46, 47, [x.replace("@", kind) for x in tag_pub])
        E0 = 14
        pub = {}
        KB = int(ENV("KB", 91))
        if ENV("NOEPI"):
            pass
        elif kind == "A":
            W(56 + E0, 56 + E0 + 5, epi_v(SA, SA + 16))
            W(56 + 19, 56 + 25, epi_qk(G, G + 8))
            pub[KB] = 73
            W(84 + E0, 112 + E0 - 2, gelu(GG, [0, 1, 2, 3]))
            W(112 + E0, 112 + E0 + 8, prod2(SA) + ["s_lshl_b32 s12, s58, 11\ns_add_u32 s70, s70, s12"])
        else:
            W(56 + E0, 56 + E0 + 5, epi_qk(SA, SA + 16))
            W(56 + 19, 84 + E0 - 2, gelu(GG, [0, 1, 2, 3]))
            pub[91] = 73
            W(84 + E0, 84 + E0 + 8, prod2(SB))
            pub[127] = 71
            W(112 + E0, 140, gelu(GG, [0, 1]) + gelu(GG, [2])[:12])
        W(112 + 24 if kind == "A" else 112 + 6, 112 + 27 if kind == "A" else 112 + 12, late)
        per = [[] for _ in range(N)]
        for (a, b, ins) in win:
            tot = sum(cost(i) for i in ins)
            c = 0
            for i in ins:
                g = a + min(b - a - 1, int((c + cost(i) / 2) * (b - a) / tot))
                per[g].append(i)
                c += cost(i)
        ds = DS(0)
        frag = {}
        out = []

        def rd(n):
            c, imm = G_[n][0], G_[n][1]
            b = WF + 4 * (n % NB)
            a = VA if c % 2 == 0 else VB
            out.extend([f"ds_read_b64_tr_b16 {vr(b,2)}, v{a} offset:{imm}", f"ds_read_b64_tr_b16 {vr(b+2,2)}, v{a} offset:{imm+256}"])
            ds.op()
            frag[n] = ds.op()
            if n + 1 < N and G_[n + 1][0] != c and c + 2 < NST:
                if c + 2 == 15 and types[4] == "S":
                    out.append(f"v_bfe_u32 v{a}, v{VTRL}, 11, 1\nv_mul_u32_u24 v{a}, 1536, v{a}\nv_sub_u32 v{VTRL}, v{VTRL}, v{a}\n"
                               f"s_lshl_b32 s12, s{S_HF}, 10\nv_add_u32 v{VTRL}, s12, v{VTRL}")
                out.append(f"v_add_u32 v{a}, {phys(c+2)*SLOT}, v{VTRL}")
        for n in range(NB):
            rd(n)
        wr = None
        rdx, rdy = {}, {}
        for g in range(N):
            c, imm, xf, ac, first, swap = G_[g]
            ps, j = (0, g) if g < 56 else divmod(g, 28)
            if g % 2 == 0:
                out += ds.need(frag[g + 1])
            w, x = vr(WF + 4 * (g % NB), 4), vr(X + 4 * xf, 4)
            a, b = (x, w) if swap else (w, x)
            out.append(f"{MFMA} {vr(ac,16)}, {a}, {b}, {'0' if first else vr(ac,16)}")
            prev = None if ps < 2 else SA if ps == 2 else acc[ps - 1]
            if g + 1 < N and G_[g + 1][0] != c:
                if prev is not None and j == 7:
                    out += ds.need(wr)
                if g in pub:
                    out.append("s_waitcnt vmcnt(0)")
                out.append("s_barrier")
                if g in pub:
                    out.append(flag0(pub[g]))
                if ENV("CB"):
                    bi = c + 1 - int(ENV("CB"))
                    if 0 <= bi < 7:
                        out.append(f"s_memtime s[{80+2*bi}:{81+2*bi}]")
                if g == 47:
                    out.append(f"v_mov_b32 v0, {TAGL}\nds_read_b64 v[0:1], v0")
                    ds.op()
            if g + NB < N:
                rd(g + NB)
            xo = -2 * SLOT if ps == 2 else 0
            if prev is not None and j in XW:
                i = XW.index(j)
                if ps == 2 and i == 0:
                    out.append(f"v_add_u32 v{VEX}, {xo & 0xffffffff}, v{VEX}")
                out.append(f"ds_write_b128 v{VEX}, {vr(xreg(prev, i),4)} offset:{1024*i}")
                wr = ds.op()
                if ps == 2 and i == 3:
                    out.append(f"v_add_u32 v{VEX}, {-xo}, v{VEX}\nv_add_u32 v{VEXP}, {xo & 0xffffffff}, v{VEXP}")
            if prev is not None and j in XR:
                i = XR.index(j)
                out.append(f"ds_read_b128 {vr(xreg(prev, i),4)}, v{VEXP} offset:{1024*i}")
                rdx[i] = ds.op()
                if ps == 2 and i == 3:
                    out.append(f"v_add_u32 v{VEXP}, {-xo}, v{VEXP}")
            if prev is not None and j - 3 in XR:
                i = XR.index(j - 3)
                out += ds.need(rdx[i])
                r = xreg(prev, i)
                d = G + 4 * i if (ps > 2 and types[ps - 1] == "G") else r - 8
                out += [f"v_add_f32 v{d+k}, v{r-8+k}, v{r+k}" for k in range(4)]
            if ps == 2 and 11 <= j < 19:
                i, ph = (j - 11) // 4 * 2 + ((j - 11) & 1), ((j - 11) >> 1) & 1
                if ph == 0:
                    out.append(f"ds_read_b128 {vr(T+4*(i&1),4)}, v{VEXP} offset:{1024*i}")
                    rdy[i] = ds.op()
                else:
                    out += ds.need(rdy[i])
                    out += [f"v_add_f32 v{G+4*i+k}, v{G+4*i+k}, v{T+4*(i&1)+k}" for k in range(4)]
            out += per[g]
            if g == 55:
                out += stamp_txt(3)
                for i in (0, 1, 2, 3):
                    out.append(f"ds_write_b128 v{VEX}, {vr(xreg(SB, i),4)} offset:{1024*i}")
                    ds.op()
                    out += [f"v_mov_b32 v{G+4*i+k}, v{xreg(SB, i)-8+k}" for k in range(4)]
        for i in out:
            p(i)

    Q, KF, VF, S0, S1, PP, O = 8, 16, 24, 32, 48, 64, 72
    VCUR, VNXT, VCO, VKV, VCN, VONE, CK, CKO, VLN, VQA, E3 = 146, 147, 148, 149, 150, 88, 90, 92, 93, 94, 156
    BAL = ENV('BAL', '1') == '1'
    SPR = ENV('SPR', '0') == '1'
    XL = SB
    setup_s = f"""s_lshr_b32 s7, s6, 4
    s_lshl_b32 s8, s5, 1
    s_add_u32 s7, s7, s8                ; head
    s_and_b32 s8, s6, 15                ; q block
    s_lshl_b32 s11, s8, 2
    s_add_u32 s11, s11, s{S_RG}         ; q tile (0..63)
    s_lshl_b32 s9, s7, 18
    s_add_u32 s9, s9, {KV_OFF}
    s_lshl_b32 s46, s{S_HF}, 14         ; kh*16384
    s_add_u32 s47, s46, {2*SLOT}        ; slot of stage i+2
    s_lshl_b32 s13, s{S_RG}, 12         ; rg*4096
    s_add_u32 s14, s46, {2*KVS}         ; source offset of the next fill
    s_lshl_b32 s15, s{S_HF}, 7
    s_add_u32 s15, s15, {CNT}
    s_mov_b32 s48, 1                    ; iteration
    s_mov_b32 s49, 0
    s_mov_b32 s50, 4
    s_mov_b32 s51, 4
    s_lshl_b32 s10, s{S_RG}, 11
    s_add_u32 s10, s10, {QL}
    s_add_u32 s36, s{P_WS}, s9
    s_addc_u32 s37, s{P_WS+1}, 0
    s_mov_b32 s38, 262144""".split("\n")
    setup_s = [setup_s[i] if not setup_s[i].strip().startswith("s_add_u32 s36") else setup_s[i] + "\n" + setup_s[i+1]
               for i in range(len(setup_s)) if not setup_s[i].strip().startswith("s_addc")]

    def start(tag):
        stamp(p, 4)
        p(f"""
        v_and_b32 v{VLN}, 1023, v{VEX}      ; lane*16
        v_mov_b32 v{CKO}, {CNT_GO}
        v_add_u32 v{VQA}, s10, v{VLN}
        v_add_u32 v{VONE}, s46, v{VLN}
        v_add_u32 v{VONE+1}, {4*SLOT}, v{VONE}
        """)
        lds_spin(p, "L_w0" + tag, f"v{CKO}", CK, "4", 52)
        stamp(p, 5)
        p(f"""
        ds_read_b128 {vr(Q,4)}, v{VQA}
        ds_read_b128 {vr(Q+4,4)}, v{VQA} offset:1024
        ds_read_b128 {vr(KF,4)}, v{VONE+1}
        ds_read_b128 {vr(KF+4,4)}, v{VONE+1} offset:1024
        v_mov_b32 v{VNXT}, v{VONE}
        v_mov_b32 v{VCUR}, v{VONE+1}
        v_add_u32 v{VKV}, s13, v{VLN}
        v_mov_b32 v{VCN}, s15
        v_xor_b32 v{VCO}, 128, v{VCN}
        v_mov_b32 v{VONE}, 1
        v_mov_b32 v{VONE+1}, 0
        """)
        for i in range(4):
            p(f"ds_write_b128 v{VEX}, {vr(xreg(XL, i),4)} offset:{1024*i}")
        p(f"""
        s_waitcnt lgkmcnt(4)
        {MFMA} {vr(S0,16)}, {vr(KF,4)}, {vr(Q,4)}, 0
        {MFMA} {vr(S0,16)}, {vr(KF+4,4)}, {vr(Q+4,4)}, {vr(S0,16)}
        ds_read_b128 {vr(KF,4)}, v{VCUR} offset:4096
        ds_read_b128 {vr(KF+4,4)}, v{VCUR} offset:5120
        ds_read_b128 {vr(VF+4,4)}, v{VCUR} offset:3072
        ds_read_b128 {vr(VF,4)}, v{VCUR} offset:2048
        """)
    adds = []
    for i in range(4):
        r = xreg(XL, i)
        adds += [f"v_add_f32 v{r-8+k}, v{r-8+k}, v{r+k}" for k in range(4)]
    xrd = "s_waitcnt lgkmcnt(4)\ns_barrier\n" + "".join(f"ds_read_b128 {vr(xreg(XL, i),4)}, v{VEXP} offset:{1024*i}\n" for i in range(4))

    def fillers(pre, post, pub20=False):
        f = {}
        slots = [(0, 0), (0, 1), (0, 2)]
        for k, sl in enumerate(slots):
            f[sl] = "\n".join(pre[len(pre) * k // 3:len(pre) * (k + 1) // 3])
        f[(0, 0)] = xrd + f[(0, 0)]
        f[(0, 2)] = f[(0, 2)] + f"\ns_waitcnt {'vmcnt(0) ' if pub20 else ''}lgkmcnt(2)\ns_barrier\n"
        if pub20:
            f[(0, 2)] += flag0(71) + "\n"
        post = adds + post
        slots = [(0, 3), (1, 0), (1, 1), (1, 2)]
        for k, sl in enumerate(slots):
            f[sl] = "\n".join(post[len(post) * k // 4:len(post) * (k + 1) // 4])
        return f
    VL16 = VLN
    TT = T
    T_TAG = 0

    def phase(k, mf, rd, sc, sp, extra=""):
        if k % 2 == 0:
            p("s_waitcnt lgkmcnt(2)")
        if mf:
            p(mf)
        p(rd)
        src, pk = (E3, 3) if k == 0 else (sc + 4 * (k - 1), k - 1)
        dst = E3 if k == 3 else sc + 4 * k
        e = [f"v_exp_f32 v{dst+i}, v{sc+4*k+i}" for i in range(4)]
        c = [f"v_cvt_pk_bf16_f32 v{PP+2*pk+i}, v{src+2*i}, v{src+2*i+1}" for i in range(2)]
        for x in (e[0], c[0], e[1], c[1]) if sp is not None else (e[0], e[1]):
            p(x)
        if extra.strip():
            p(extra)
        p(e[2]); p(e[3])

    def ta(u, off):
        return f"v{VCUR} offset:{u*4096+off}" if u < 4 else f"v{VNXT} offset:{(u-4)*4096+off}"

    def body(first, tag, fil=None):
        fil = fil or {}
        T = T_TAG
        sig = f"""
        s_mov_b64 exec, 1
        {'' if (first or ENV('NOSIGW')) else 's_waitcnt vmcnt(0)'}
        ds_add_u64 v{VCN}, {vr(VONE,2)}
        s_mov_b64 exec, -1
        """
        for u in range(4):
            sc, sn = (S0, S1) if u % 2 == 0 else (S1, S0)
            if u == 2:
                p(f"""
                s_waitcnt lgkmcnt(1)
                v_cmp_ne_u64 vcc, s[50:51], {vr(CK,2)}
                s_add_u32 m0, s47, s13
                s_cmp_lg_u64 vcc, 0
                s_cbranch_scc1 L_a_spin{tag}
                L_a_go{tag}:
                """)
                if BAL:
                    p(f"""
                    v_cmp_eq_u32 vcc, 4, v{CKO}
                    s_setprio 0
                    s_cmp_eq_u64 vcc, 0
                    s_cbranch_scc1 L_a_pr{tag}
                    s_setprio 1
                    L_a_pr{tag}:
                    """)
                if SPR and not first:
                    p("s_cmp_le_u32 s48, 5\ns_cselect_b64 vcc, -1, 0")
                if not SPR:
                    if not first:
                        p(f"s_cmp_gt_u32 s48, 5\ns_cbranch_scc1 L_a_nofill")
                    for q in range(4):
                        p(f"buffer_load_dwordx4 v{VKV}, s[36:39], s14 offen offset:{q*1024} sc1 lds")
                    p(f"s_add_u32 s14, s14, {KVS}")
                    if not first:
                        p.label("L_a_nofill")

            def dma(q):
                if not SPR:
                    return ""
                t = f"buffer_load_dwordx4 v{VKV}, s[36:39], s14 offen offset:{q*1024} sc1 lds\n"
                if not first:
                    t = f"s_cbranch_vccz L_a_nf{q}\n" + t + f"L_a_nf{q}:\n"
                return t
            phase(0, f"{MFMA} {vr(sn,16)}, {vr(KF,4)}, {vr(Q,4)}, 0", f"ds_read_b128 {vr(KF,4)}, {ta(u+2, 0)}", sc, None if (first and u == 0) else sn,
                  dma(2 * (u - 2)) if u >= 2 else fil.get((u, 0), ""))
            phase(1, f"{MFMA} {vr(sn,16)}, {vr(KF+4,4)}, {vr(Q+4,4)}, {vr(sn,16)}",
                  f"ds_read_b128 {vr(KF+4,4)}, {ta(u+2, 1024)}", sc, sn, fil.get((u, 1), ""))
            phase(2, None if (first and u == 0) else f"{MFMA} {vr(O,16)}, {vr(VF+4,4)}, {vr(PP+4,4)}, {vr(O,16)}",
                  f"ds_read_b128 {vr(VF+4,4)}, {ta(u, 3072)}", sc, sn,
                  fil.get((u, 2), "") + "\n" + ((f"ds_read_b64 {vr(CK,2)}, v{VCN}" + (f"\nds_read_b32 v{CKO}, v{VCO}" if BAL else "")) if u == 1 else dma(2 * (u - 2) + 1) if u >= 2 else ""))
            ex = (sig if u == 0 else "") + fil.get((u, 3), "")
            if u == 3:
                ex = f"""
                v_mov_b32 v{VCUR}, v{VNXT}
                v_add_u32 v{VNXT}, s47, v{VL16}
                v_add_u32 v{VCN}, 8, v{VCN}
                v_xor_b32 v{VCO}, 128, v{VCN}
                s_add_u32 s47, s47, {2*SLOT}
                s_cmp_ge_u32 s47, {6*SLOT}
                s_cselect_b32 s3, {6*SLOT}, 0
                s_sub_u32 s47, s47, s3
                """
                if SPR:
                    ex += f"s_add_u32 s14, s14, {KVS}\n"
                if not first:
                    ex += "s_add_u32 s48, s48, 1\ns_cmp_lt_u32 s48, 8"
                else:
                    ex += f"""
                    s_mov_b64 exec, 1
                    v_mov_b32 v{CKO}, {CNT_H}
                    s_waitcnt vmcnt(4)
                    ds_add_rtn_u32 v{CK}, v{CKO}, v{VONE}
                    s_waitcnt lgkmcnt(0)
                    v_cmp_eq_u32 vcc, 7, v{CK}
                    s_and_b64 exec, exec, vcc
                    s_cbranch_execz L_nh{tag}
                    buffer_store_dwordx2 {vr(T,2)}, off, s[40:43], s71 offset:256 sc1
                    L_nh{tag}:
                    s_mov_b64 exec, -1
                    v_mov_b32 v{VONE+1}, 1
                    """
            phase(3, f"{MFMA} {vr(O,16)}, {vr(VF,4)}, {vr(PP,4)}, {'0' if (first and u == 0) else vr(O,16)}",
                  f"ds_read_b128 {vr(VF,4)}, {ta(u+1, 2048)}", sc, sn, ex)
    p("s_cmp_eq_u32 s8, 1\ns_cbranch_scc1 L_btype")
    stream("A", setup_s)
    start("a")
    body(True, "fa", fillers([], epi_s(XL), True))
    p("s_branch L_aloop")
    p.label("L_btype")
    stream("B", setup_s)
    start("b")
    body(True, "fb", fillers(gelu(GG, [2])[12:] + gelu(GG, [3]), prod2(XL)))
    T = T_TAG
    p(".p2align 6")
    p.label("L_aloop")
    body(False, "")
    p("s_cbranch_scc1 L_aloop\ns_branch L_a_done")
    for tag in ("fa", "fb", ""):
        p.label("L_a_spin" + tag)
        lds_spin(p, "L_a_sp" + tag, f"v{VCN}", CK, "s[50:51]", 52, wide=True)
        p("s_branch L_a_go" + tag)
    p.label("L_a_done")
    stamp(p, 6)
    p(f"""
    v_cvt_pk_bf16_f32 v{PP+6}, v{E3}, v{E3+1}
    v_cvt_pk_bf16_f32 v{PP+7}, v{E3+2}, v{E3+3}
    s_waitcnt lgkmcnt(0)
    {MFMA} {vr(O,16)}, {vr(VF+4,4)}, {vr(PP+4,4)}, {vr(O,16)}
    s_lshl_b32 s46, s{S_RG}, 12
    s_lshl_b32 s3, s{S_HF}, 14
    s_add_u32 s46, s46, s3
    s_add_u32 s46, s46, {4*SLOT}
    v_add_u32 v3, s46, v{VL16}
    s_lshl_b32 s3, s{S_RG}, 3
    s_add_u32 s3, s3, {CNT_COMB}
    v_mov_b32 v{VCN}, s3
    s_mov_b64 exec, 1
    ds_add_rtn_u32 v{CK}, v{VCN}, v{VONE}
    s_mov_b64 exec, -1
    s_waitcnt lgkmcnt(0)
    v_readfirstlane_b32 s3, v{CK}
    s_cmp_lg_u32 s3, 0
    s_cbranch_scc1 L_acomb
    """)
    for i in range(4):
        p(f"ds_write_b128 v3, {vr(O+4*i,4)} offset:{1024*i}")
    p(f"""
    s_mov_b64 exec, 1
    s_waitcnt lgkmcnt(0)
    ds_add_u32 v{VCN}, v{VONE} offset:4
    s_waitcnt lgkmcnt(0)
    """)
    endpgm(p)
    p.label("L_acomb")
    p(f"v_xor_b32 v3, {SLOT}, v3")
    lds_spin(p, "L_cw", f"v{VCN} offset:4", CK, "1", 52)
    for i in range(4):
        p(f"ds_read_b128 {vr(S0+4*i,4)}, v3 offset:{1024*i}")
    for q in range(4):
        p(f"s_waitcnt lgkmcnt({3-q})")
        for i in range(4 * q, 4 * q + 4):
            p(f"v_add_f32 v{O+i}, v{O+i}, v{S0+i}")
    p.label("L_afin")
    T2 = S1
    p(f"""
    s_mov_b32 s50, {f32(2.0**-40)}
    s_mov_b32 s51, {f32(2.0**100)}
    s_bitcmp1_b32 s7, 0
    s_cbranch_scc1 L_f_odd
    v_mov_b32 v{T2}, v{O+12}
    v_mov_b32 v{T2+1}, v{O+12}
    v_permlane32_swap_b32 v{T2}, v{T2+1}
    s_mov_b32 exec_lo, 0
    v_mov_b32 v{O+12}, 0
    v_mov_b32 v{O+13}, 0
    v_mov_b32 v{O+14}, 0
    v_mov_b32 v{O+15}, 0
    s_branch L_f_join
    L_f_odd:
    v_mov_b32 v{T2}, v{O}
    v_mov_b32 v{T2+1}, v{O}
    v_permlane32_swap_b32 v{T2+1}, v{T2}
    s_mov_b32 exec_hi, 0
    v_mov_b32 v{O}, 0
    v_mov_b32 v{O+1}, 0
    v_mov_b32 v{O+2}, 0
    v_mov_b32 v{O+3}, 0
    L_f_join:
    s_mov_b64 exec, -1
    v_rcp_f32 v{T2+2}, v{T2+1}
    v_cmp_ge_f32 s[52:53], v{T2+1}, s50
    v_cmp_le_f32 s[54:55], v{T2+1}, s51
    """)
    for i in range(16):
        p(f"v_mul_f32 v{O+i}, v{O+i}, v{T2+2}")
    p(f"v_mul_f32 v{T2+3}, 0, v{O}")
    for i in range(1, 16):
        p(f"v_fmac_f32 v{T2+3}, 0, v{O+i}")
    pack16(p, PP, O)
    p(f"""
    v_cmp_eq_f32 s[56:57], 0, v{T2+3}
    s_and_b64 s[52:53], s[52:53], s[54:55]
    s_lshl_b32 s45, s11, 15             ; rowtile*32K
    s_lshl_b32 s46, s7, 11              ; head*2K
    s_add_u32 s45, s45, s46
    s_add_u32 s45, s45, {O_OFF}
    s_and_b64 s[52:53], s[52:53], s[56:57]
    s_cmp_eq_u64 s[52:53], -1
    s_cbranch_scc1 L_aok
    s_cmp_eq_u32 s49, 0x5afe
    s_cbranch_scc0 L_fallback
    """)
    p.label("L_aok")
    p(f"""
    buffer_store_dwordx4 {vr(PP,4)}, v{VL16}, s[40:43], s45 offen sc1
    buffer_store_dwordx4 {vr(PP+4,4)}, v{VL16}, s[40:43], s45 offen offset:1024 sc1
    s_lshl_b32 s45, s11, 11
    s_lshl_b32 s46, s7, 7
    s_add_u32 s45, s45, s46
    s_add_u32 s45, s45, {OFL}
    s_mov_b64 exec, 1
    s_waitcnt vmcnt(0)
    buffer_store_dwordx2 {vr(T,2)}, off, s[40:43], s45 sc1
    """)
    endpgm(p)
    p.label("L_fallback")
    M, MN, AL, TM, T3 = 100, 101, 102, 103, 104
    p("s_mov_b32 s49, 0x5afe")
    for i in range(16):
        p(f"v_mov_b32 v{O+i}, 0")
    p(f"v_mov_b32 v{M}, 0xff800000\ns_mov_b32 s14, 0")
    p.label("L_fbloop")
    p(f"""
    buffer_load_dwordx4 {vr(KF,4)}, v{VL16}, s[36:39], s14 offen sc1
    buffer_load_dwordx4 {vr(KF+4,4)}, v{VL16}, s[36:39], s14 offen offset:1024 sc1
    buffer_load_dwordx4 {vr(VF,4)}, v{VL16}, s[36:39], s14 offen offset:2048 sc1
    buffer_load_dwordx4 {vr(VF+4,4)}, v{VL16}, s[36:39], s14 offen offset:3072 sc1
    s_waitcnt vmcnt(2)
    {MFMA} {vr(S0,16)}, {vr(KF,4)}, {vr(Q,4)}, 0
    {MFMA} {vr(S0,16)}, {vr(KF+4,4)}, {vr(Q+4,4)}, {vr(S0,16)}
    v_max3_f32 v{TM}, v{S0}, v{S0+1}, v{S0+2}
    """)
    for i in range(3, 15, 2):
        p(f"v_max3_f32 v{TM}, v{S0+i}, v{S0+i+1}, v{TM}")
    p(f"""
    v_max_f32 v{TM}, v{S0+15}, v{TM}
    v_mov_b32 v{T3}, v{TM}
    v_permlane32_swap_b32 v{TM}, v{T3}
    v_max3_f32 v{MN}, v{TM}, v{T3}, v{M}
    v_sub_f32 v{AL}, v{M}, v{MN}
    v_exp_f32 v{AL}, v{AL}
    v_mov_b32 v{M}, v{MN}
    """)
    for i in range(16):
        p(f"v_sub_f32 v{S0+i}, v{S0+i}, v{MN}")
    for i in range(16):
        p(f"v_exp_f32 v{S0+i}, v{S0+i}")
    for i in range(16):
        p(f"v_mul_f32 v{O+i}, v{O+i}, v{AL}")
    pack16(p, PP, S0)
    p(f"""
    s_waitcnt vmcnt(0)
    {MFMA} {vr(O,16)}, {vr(VF,4)}, {vr(PP,4)}, {vr(O,16)}
    {MFMA} {vr(O,16)}, {vr(VF+4,4)}, {vr(PP+4,4)}, {vr(O,16)}
    s_add_u32 s14, s14, 4096
    s_cmp_lt_u32 s14, 262144
    s_cbranch_scc1 L_fbloop
    s_branch L_afin
    """)


def gen_s(p, S_W):
    VL16, VQ, VF_, VS_ = 1, 2, 3, 7
    p(f"""
    s_sub_u32 s4, s{S_W}, 8
    s_and_b32 s9, s4, 1
    s_lshr_b32 s10, s4, 1
    v_bfe_u32 v13, v0, 2, 3
    s_mul_i32 s12, s9, 224
    s_lshl_b32 s13, s10, 3
    s_add_u32 s12, s12, s13
    v_add_u32 v13, s12, v13
    v_lshrrev_b32 v14, 5, v0
    v_and_b32 v15, 3, v0
    v_lshlrev_b32 v15, 4, v15
    v_mul_u32_u24 v{VF_}, 3584, v13
    v_add_u32 v{VF_}, v{VF_}, v15
    v_lshl_add_u32 v{VF_}, v14, 6, v{VF_}
    v_lshrrev_b32 v{VS_}, 2, v0
    s_mul_i32 s12, s9, 224
    v_add_u32 v{VS_}, s12, v{VS_}
    v_mul_u32_u24 v{VS_}, 3584, v{VS_}
    v_add_u32 v{VS_}, v{VS_}, v15
    v_mul_u32_u24 v{VQ}, 2688, v13
    v_mul_u32_u24 v14, 48, v14
    v_add3_u32 v{VQ}, v{VQ}, v14, v15
    v_lshlrev_b32 v{VL16}, 4, v0
    s_lshl_b32 s56, s10, 11
    s_lshl_b32 s12, s9, 10
    s_add_u32 s56, s56, s12
    s_mul_i32 s64, s7, 112
    s_add_u32 s65, s64, 896
    s_cmp_eq_u32 s8, 1
    s_cselect_b32 s12, 0, 1792
    s_cselect_b32 s13, 0, 256
    s_add_u32 s64, s64, s12
    s_mul_i32 s66, s7, 384
    s_add_u32 s66, s66, s13
    s_lshl_b32 s67, s7, 6
    s_add_u32 s67, s67, {48*64}
    """)
    p.label("L_ld_p")
    if ENV("CODEPF", "1") == "1":
        p(f"""
        s_sub_u32 s12, s4, 1
        s_cmp_gt_u32 s12, 1
        s_cbranch_scc1 L_nocpf
        s_lshl_b32 s12, s12, 5
        s_add_u32 s12, s12, s6
        s_lshl_b32 s12, s12, 10
        s_cmp_ge_u32 s12, L_code_end-{KN}-1024
        s_cbranch_scc1 L_nocpf
        s_getpc_b64 s[14:15]
        L_pcref:
        s_sub_u32 s14, s14, L_pcref-{KN}
        s_subb_u32 s15, s15, 0
        s_add_u32 s14, s14, s12
        s_addc_u32 s15, s15, 0
        global_load_dwordx4 v[48:51], v{VL16}, s[14:15]
        L_nocpf:
        """)
    p("s_waitcnt lgkmcnt(0)")
    srd(p, 36, P_WQKV, 448 * 2688)
    srd(p, 40, P_WG, 448 * 3584)
    PF = 24
    VFQ, TGV, FL = 6, 4, 8
    PB = int(ENV("PB", 14))
    EVD = int(ENV("EVD", 2))

    def qkv_poll(emit):
        return emit(f"buffer_load_dwordx2 {vr(FL,2)}, v{VFQ}, s[44:47], s62 offen sc1")

    def late_setup(sfx):
        if ENV("TLB", "1") != "0":
            TA = 44
            p(f"""
            s_cmp_lg_u32 s4, 0
            s_cbranch_scc1 L_notlb{sfx}
            v_min_u32 v{TA}, {WS_USED // (2*MB) - 1}, v0
            v_lshlrev_b32 v{TA}, 21, v{TA}
            v_mov_b32 v{TA+1}, s{P_WS+1}
            v_add_co_u32 v{TA}, vcc, s{P_WS}, v{TA}
            v_addc_co_u32 v{TA+1}, vcc, 0, v{TA+1}, vcc
            """)
            bufs = [(P_WG, 448 * 3584), (P_WU, 448 * 3584), (P_WD, 1792 * 896), (P_WO, 448 * 896), (P_OUT, 2048 * 896), (P_DBG, 256)]
            for i, (b, n) in enumerate(bufs):
                p(f"""
                v_writelane_b32 v{TA}, s{b}, {16+2*i}
                v_writelane_b32 v{TA+1}, s{b+1}, {16+2*i}
                s_add_u32 s12, s{b}, {n-4}
                s_addc_u32 s13, s{b+1}, 0
                v_writelane_b32 v{TA}, s12, {17+2*i}
                v_writelane_b32 v{TA+1}, s13, {17+2*i}
                """)
            p(f"global_load_dword v{TA+2}, {vr(TA,2)}, off sc1")
            p.label("L_notlb" + sfx)
        srd(p, 72, P_WU, 448 * 3584)
        srd(p, 48, P_WD, 1792 * 896)
        srd(p, 52, P_WO, 448 * 896)
        srd(p, 44, P_WS, WS_USED)
        p(f"""
        s_cmp_eq_u32 s10, 0
        s_cselect_b32 s76, s{P_WG}, s{P_WU}
        s_cselect_b32 s77, s{P_WG+1}, s{P_WU+1}
        s_mov_b32 s78, {448*3584}
        s_mov_b32 s79, 0x20000
        s_lshl_b32 s57, s9, 11
        s_lshl_b32 s12, s10, 10
        s_add_u32 s57, s57, s12
        s_lshl_b32 s62, s5, 12
        s_add_u32 s62, s62, {QKVF}
        s_and_b32 s63, s6, 15
        s_add_u32 s63, s63, 16
        v_mov_b32 v{VFQ}, s63
        v_cmp_gt_u32 vcc, 16, v0
        v_cndmask_b32 v{VFQ}, v{VFQ}, v0, vcc
        v_lshlrev_b32 v{VFQ}, 7, v{VFQ}
        """)

    def stream(kinds):
        spec = {"V": (36, VQ, 64, 0), "Q": (36, VQ, 64, 0), "K": (36, VQ, 65, 0), "G": (40, VF_, 66, 0), "U": (72, VF_, 66, 0),
                "g": (40, VF_, 66, 128), "u": (72, VF_, 66, 128), "S": (76, VS_, 67, 0)}
        stages = [[(kinds[q >> 1], 32 * c + 16 * (q & 1)) for q in range(4)] for c in range(7)]
        stages += [[(kinds[ps], 64 * sl + 16 * q) for q in range(2 if sl == 3 else 4)] for ps in range(2, 5) for sl in range(4)]
        vm = VM(p)
        last = {}
        issued = 0
        nq = 0

        def issue1():
            nonlocal issued, nq
            kind, row = stages[issued][nq]
            s_, v, col, add = spec[kind]
            stride = 2688 if s_ == 36 else 3584
            p(f"s_add_u32 m0, {'s57' if kind == 'S' else 's56'}, {phys(issued)*SLOT + nq*4096}")
            p(f"s_add_u32 s13, s{col}, {row*stride + add}")
            if ENV("NOFILL"):
                last[issued] = None
            else:
                last[issued] = vm.op(f"buffer_load_dwordx4 v{v}, s[{s_}:{s_+3}], s13 offen lds")
            nq += 1
            if nq == len(stages[issued]):
                nq = 0
                issued += 1

        def issue():
            c = issued
            while issued == c:
                issue1()
        if TL:
            p("v_mov_b32 v60, 0")
        tl(p, 0)
        def wpf():
            p(f"s_lshl_b32 s13, s2, 2\ns_add_u32 s13, s13, s4\ns_lshl_b32 s13, s13, 10\ns_add_u32 s14, s13, {1 << 20}")
            mats = (36, 40, 72) if ENV("CPF", "1") == "0" else (72,) if ENV("CPF") == "2" else ()
            for r in mats + ((48,) if ENV("WDPF", "1") == "1" else ()):
                vm.op(f"buffer_load_dwordx4 {vr(PF,4)}, v{VL16}, s[{r}:{r+3}], s13 offen")
                vm.op(f"buffer_load_dwordx4 {vr(PF,4)}, v{VL16}, s[{r}:{r+3}], s14 offen")
        issue(); issue()
        if ENV("ST2", "1") == "1":
            issue()
        late_setup(kinds)
        if ENV("WPF", "1") != "0":
            wpf()
        tl(p, 1)
        dbg = ENV("SDBG")
        p(f"s_barrier\ns_barrier\ns_setprio {ENV('SPRIO', 0)}")
        if dbg: stamp(p, 1)
        tl(p, 2)
        issue()
        if ENV("ST2", "1") != "1":
            issue()
        vm.need(last[1])
        tl(p, 3)
        p("s_barrier")
        tl(p, 4)
        if dbg: stamp(p, 2)
        issue(); issue()
        if dbg: stamp(p, 3)
        for i in range(1, PB + EVD):
            assert issued > i + 1
            vm.need(last[i + 1])
            tl(p, 3 + 2 * i)
            p("s_barrier")
            tl(p, 4 + 2 * i)
            budget = 6 if i < 7 else eval(ENV("BUD", "[2, 8, 8, 3]"))[(i - 7) % 4]
            while budget > 0 and issued < min(NST, max(9, i + 6)):
                budget -= 1
                issue1()
            if i == 6:
                p(f"v_mov_b32 v{TGV}, {TAGL}\nds_read_b64 {vr(TGV,2)}, v{TGV}\ns_waitcnt lgkmcnt(0)")
            if i == 10:
                p(f"""
                s_cmp_lg_u32 s4, 0
                s_cbranch_scc1 L_noinit{kinds}
                v_lshlrev_b32 v22, 2, v0
                v_add_u32 v22, {CNT}, v22
                v_mov_b32 v23, 0
                ds_write_b32 v22, v23
                s_waitcnt lgkmcnt(0)
                L_noinit{kinds}:
                """)
            if i == PB:
                pollid = qkv_poll(vm.op)
            if i == int(ENV('PFI', 99)):
                PFMODE = ENV("PFMODE", "chip")
                if PFMODE == "chip":
                    p(f"s_lshl_b32 s13, s2, 2\ns_add_u32 s13, s13, s4\ns_lshl_b32 s14, s13, 11\ns_lshl_b32 s13, s13, 9")
                    vm.op(f"buffer_load_dwordx4 {vr(PF,4)}, v{VL16}, s[48:51], s14 offen")
                    vm.op(f"buffer_load_dwordx4 {vr(PF+4,4)}, v{VL16}, s[48:51], s14 offen offset:1024")
                    vm.op(f"buffer_load_dwordx4 {vr(PF+8,4)}, v{VL16}, s[52:55], s13 offen")
            if ENV("PFMODE", "chip") == "xcd" and 5 <= i < 9:
                k = i - 5
                if k == 0:
                    p(f"s_lshl_b32 s13, s6, 2\ns_add_u32 s13, s13, s4\ns_mul_i32 s57, s13, {13*1024}\ns_lshl_b32 s58, s13, 12")
                    for q in range(4):
                        vm.op(f"buffer_load_dwordx4 {vr(PF+4*q,4)}, v{VL16}, s[52:55], s58 offen offset:{q*1024}")
                    vm.op(f"buffer_load_dwordx4 {vr(PF+16,4)}, v{VL16}, s[48:51], s57 offen")
                    p("s_add_u32 s57, s57, 1024")
                else:
                    for q in range(4):
                        vm.op(f"buffer_load_dwordx4 {vr(PF+4*q,4)}, v{VL16}, s[48:51], s57 offen offset:{q*1024}")
                    p("s_add_u32 s57, s57, 4096")
        assert issued == NST
    p("s_cmp_eq_u32 s8, 1\ns_cbranch_scc1 L_ld_b")
    stream("VKGUS")
    p("s_branch L_ld_done")
    p.label("L_ld_b")
    stream("QGUgu")
    p.label("L_ld_done")
    if not ENV("SDBG"):
        stamp(p, 1)
    tl_dump(p)
    if ENV("STOPB"):
        endpgm(p)
    p(f"""
    s_lshr_b32 s7, s6, 4
    s_lshl_b32 s8, s5, 1
    s_add_u32 s7, s7, s8                ; head
    s_and_b32 s8, s6, 15                ; q block
    """)
    VKV = 2
    p(f"""
    s_lshl_b32 s12, s7, 18
    s_add_u32 s12, s12, {KV_OFF}
    s_lshl_b32 s13, s4, 12              ; s*4096
    v_add_u32 v{VKV}, s13, v{VL16}
    s_lshl_b32 s66, s7, 17
    s_lshl_b32 s3, s8, 13
    s_add_u32 s66, s66, s3
    s_lshl_b32 s3, s4, 11
    s_add_u32 s66, s66, s3
    s_add_u32 s66, s66, {QF_OFF}
    s_add_u32 s67, s3, {QL}
    s_mov_b32 s68, 0                    ; ready
    s_mov_b32 s69, 0
    s_mov_b32 s70, {PB+EVD}
    s_mov_b32 s71, {SPIN_MAX}
    s_add_u32 s64, s13, {4*SLOT}
    """)
    srd(p, 36, P_WS, 262144, "s12")
    srd(p, 40, P_WS, WS_USED)
    p.label("L_pl")
    p(f"""
    s_cmp_lg_u32 s68, 0
    s_cbranch_scc1 L_pl_ready
    s_cmp_ge_u32 s70, 19
    s_cbranch_scc1 L_pl_eval
    s_cmp_lg_u32 s70, {PB+EVD}
    s_cbranch_scc1 L_pl_bar
    L_pl_eval:
    s_waitcnt vmcnt(0)
    v_cmp_eq_u64 s[60:61], {vr(FL,2)}, {vr(TGV,2)}
    """)
    p(f"""
    s_sub_u32 s71, s71, 1
    s_cselect_b32 s68, 1, 0
    s_cmp_eq_u64 s[60:61], -1
    s_cselect_b32 s68, 1, s68
    s_cmp_lg_u32 s68, 0
    s_cbranch_scc1 L_pl_q
    """)
    qkv_poll(lambda t: p(t))
    p(f"""
    s_branch L_pl_bar
    L_pl_q:
    s_mov_b32 m0, s67
    s_nop 0
    buffer_load_dwordx4 v{VL16}, s[40:43], s66 offen sc1 lds
    buffer_load_dwordx4 v{VL16}, s[40:43], s66 offen offset:1024 sc1 lds
    L_pl_ready:
    s_add_u32 s3, s69, 15
    s_cmp_gt_u32 s3, s70
    s_cbranch_scc1 L_pl_bar
    s_cmp_ge_u32 s69, 4
    s_cbranch_scc1 L_pl_bar
    s_lshl_b32 s14, s69, 14
    s_mov_b32 m0, s64
    s_add_u32 s69, s69, 1
    buffer_load_dwordx4 v{VKV}, s[36:39], s14 offen sc1 lds
    buffer_load_dwordx4 v{VKV}, s[36:39], s14 offen offset:1024 sc1 lds
    buffer_load_dwordx4 v{VKV}, s[36:39], s14 offen offset:2048 sc1 lds
    buffer_load_dwordx4 v{VKV}, s[36:39], s14 offen offset:3072 sc1 lds
    s_add_u32 s64, s64, {SLOT}
    s_cmp_eq_u32 s69, 2
    s_cselect_b32 s64, s13, s64
    s_branch L_pl_ready
    L_pl_bar:
    s_cmp_ge_u32 s70, 19
    s_cbranch_scc1 L_pl_nobar
    s_barrier
    s_add_u32 s70, s70, 1
    s_branch L_pl
    L_pl_nobar:
    s_cmp_ge_u32 s69, 4
    s_cbranch_scc1 L_pl_done
    s_sleep 4
    s_branch L_pl
    L_pl_done:
    v_mov_b32 v{FL}, {CNT}
    v_mov_b32 v{FL+1}, 1
    s_mov_b64 exec, 1
    s_waitcnt vmcnt(8)
    ds_add_u32 v{FL}, v{FL+1} offset:96
    s_waitcnt vmcnt(0)
    ds_add_u32 v{FL}, v{FL+1} offset:4
    ds_add_u32 v{FL}, v{FL+1} offset:132
    s_mov_b64 exec, -1
    s_mul_i32 s14, s8, {12*1024}
    s_mul_i32 s3, s4, {3*1024}
    s_add_u32 s14, s14, s3
    s_add_u32 s14, s14, {2*KVS}
    buffer_load_dwordx4 {vr(FL+4,4)}, v{VL16}, s[36:39], s14 offen sc1
    buffer_load_dwordx4 {vr(FL+4,4)}, v{VL16}, s[36:39], s14 offen offset:1024 sc1
    buffer_load_dwordx4 {vr(FL+4,4)}, v{VL16}, s[36:39], s14 offen offset:2048 sc1
    s_lshl_b32 s3, s2, 2
    s_add_u32 s3, s3, s4
    s_lshl_b32 s3, s3, 9
    buffer_load_dwordx4 {vr(FL+4,4)}, v{VL16}, s[52:55], s3 offen
    s_cmp_ge_u32 s6, {0 if ENV("NODOWN") else 28}
    s_cbranch_scc1 L_s_end
    s_barrier                           ; barrier(19)
    s_barrier
    s_setprio {ENV("DPRIO0", 0)}
    """)
    stamp(p, 2)
    ACC, WF, HB = 8, 72, 88
    VD, VT0, VT1, VX = 2, 3, 6, 7
    GR, XF = 144, 160
    NRING = 7
    p(f"""
    s_and_b32 s9, s6, 3
    s_lshl_b32 s10, s5, 2
    s_add_u32 s9, s9, s10
    s_lshr_b32 s10, s6, 2
    s_lshr_b32 s11, s4, 1
    s_lshl_b32 s57, s9, 1
    s_add_u32 s57, s57, s11
    s_xor_b32 s58, s57, 1
    s_mul_i32 s3, s4, {12*2048}
    s_add_u32 s3, s3, {H_OFF}
    s_mul_i32 s60, s57, 114688
    s_add_u32 s60, s60, s3
    s_mul_i32 s61, s58, 114688
    s_add_u32 s61, s61, s3
    v_bfe_u32 v{VX}, v0, 2, 3
    v_mul_u32_u24 v{VX}, 896, v{VX}
    v_lshrrev_b32 v{VT0}, 5, v0
    v_lshl_add_u32 v{VX}, v{VT0}, 6, v{VX}
    v_and_b32 v{VT0}, 3, v0
    v_lshl_add_u32 v{VX}, v{VT0}, 4, v{VX}
    s_lshl_b32 s14, s10, 7
    v_add_u32 v{VD}, s14, v{VX}
    v_lshrrev_b32 v{VX}, 5, v0
    v_lshlrev_b32 v{VX}, 8, v{VX}
    v_bfe_u32 v{VT0}, v0, 2, 2
    v_lshl_add_u32 v{VX}, v{VT0}, 6, v{VX}
    v_bfe_u32 v{VT0}, v0, 4, 1
    v_lshl_add_u32 v{VX}, v{VT0}, 5, v{VX}
    v_and_b32 v{VT0}, 3, v0
    v_lshl_add_u32 v{VX}, v{VT0}, 3, v{VX}
    s_lshl_b32 s15, s4, 14
    s_add_u32 s15, s15, {PRIV}
    s_and_b32 s3, s4, 1
    s_lshl_b32 s3, s3, 9
    s_add_u32 s3, s3, s15
    v_add_u32 v{VT0}, s3, v{VX}
    v_xor_b32 v{VT1}, 512, v{VT0}
    s_mul_i32 s62, s4, {12*32*896}
    s_mul_i32 s63, s4, -10
    s_add_u32 s63, s63, 48
    s_lshl_b32 s64, s63, 11
    s_add_u32 s65, s64, s61
    s_add_u32 s64, s64, s60
    s_mul_i32 s63, s63, {32*896}
    s_add_u32 s63, s63, s62
    """)
    vm = VM(p)

    order = [0, 1, 6, 7, 4, 5, 10, 11, 2, 3, 8, 9, 12, 13]
    seg_end = [8, 16, 28]
    seg_mask = [0x11, 0x22, 0xCC]

    def wload(ks):
        sl = ks % NRING
        if ks >= 28:
            for o in range(2):
                p(f"s_add_u32 m0, s15, {sl*2048 + o*1024}")
                p(f"s_add_u32 s14, s67, {(16*sl + 8*o)*896}")
                vm.op(f"buffer_load_dwordx4 v{VD}, s[52:55], s14 offen lds")
            return
        t = order[ks >> 1]
        base, t = ("s62", t) if t < 12 else ("s63", t - 12)
        for o in range(2):
            p(f"s_add_u32 m0, s15, {sl*2048 + o*1024}")
            p(f"s_add_u32 s14, {base}, {(32*t + 16*(ks&1) + 8*o)*896}")
            wid[ks] = vm.op(f"buffer_load_dwordx4 v{VD}, s[48:51], s14 offen lds")

    def hload(ks):
        sl = ks % NRING
        t = order[ks >> 1]
        (b0, b1), t = (("s60", "s61"), t) if t < 12 else (("s64", "s65"), t - 12)
        off = t * 2048 + (ks & 1) * 1024
        for r, b_ in enumerate((b0, b1)):
            if off >= 4096:
                p(f"s_add_u32 s14, {b_}, {off & ~4095}")
            hid[ks] = vm.op(f"buffer_load_dwordx4 {vr(HB+8*sl+4*r,4)}, v{VL16}, s[40:43], {'s14' if off >= 4096 else b_} offen offset:{off & 4095} sc1")
    wid, hid = {}, {}
    VFA, FT = GR, GR + 2
    p(f"""
    v_and_b32 v{VFA}, 7, v0
    v_lshlrev_b32 v{VFA}, 7, v{VFA}
    s_lshr_b32 s66, s9, 1
    s_lshl_b32 s66, s66, 12
    s_lshl_b32 s3, s4, 10
    s_add_u32 s66, s66, s3
    s_add_u32 s66, s66, {HFL}
    s_mov_b32 s71, {SPIN_MAX}
    s_mul_i32 s67, s4, {112*896}
    v_and_b32 v{VX}, 31, v0
    s_lshl_b32 s14, s57, 5
    v_add_u32 v{VX}, s14, v{VX}
    v_mul_u32_u24 v{VX}, 896, v{VX}
    v_lshrrev_b32 v0, 5, v0
    v_lshl_add_u32 v{VX}, v0, 3, v{VX}
    s_and_b32 s14, s4, 1
    s_lshl_b32 s14, s14, 6
    s_lshl_b32 s3, s10, 7
    s_add_u32 s14, s14, s3
    v_add_u32 v0, s14, v{VX}
    """)
    VXO = 0
    srd(p, 44, P_X, 2048 * 896)
    for g4 in range(4):
        vm.op(f"buffer_load_dwordx2 {vr(XF+2*g4,2)}, v{VXO}, s[44:47], 0 offen offset:{16*g4}")

    def hpoll(k):
        label = f"L_hp{k}"
        p(f"s_mov_b32 s68, {seg_mask[k]}\ns_mov_b32 s69, 0\ns_mov_b32 s71, {SPIN_MAX}")
        p.label(label)
        p(f"""
        buffer_load_dwordx2 {vr(FT,2)}, v{VFA}, s[40:43], s66 offen sc1
        s_sub_u32 s71, s71, 1
        s_waitcnt vmcnt(0)
        v_cmp_eq_u64 vcc, {vr(FT,2)}, {vr(TGV,2)}
        s_cmp_eq_u32 s71, 0
        s_cbranch_scc1 {label}_x
        s_and_b64 vcc, vcc, s[68:69]
        s_cmp_eq_u64 vcc, s[68:69]
        s_cbranch_scc1 {label}_x
        s_sleep 8
        s_branch {label}
        {label}_x:
        """)
        vm.done = vm.n

    def trd(wb, base, a0=VT0, a1=VT1):
        for c, a in enumerate((a0, a1)):
            for b in range(2):
                p(f"ds_read_b64_tr_b16 {vr(wb+4*c+2*b,2)}, v{a} offset:{base + b*1024}")
    LOOK = int(ENV("LOOK", 3))
    seg, hn = 0, 0

    def hfill(done):
        nonlocal hn
        while hn < min(seg_end[seg], done + NRING):
            hload(hn)
            hn += 1
    for ks in range(2):
        wload(ks)
    hpoll(0)
    stamp(p, 3)
    for ks in range(NRING):
        hload(ks)
        if ks + 2 < NRING:
            wload(ks + 2)
    hn = NRING
    p(f"s_setprio {ENV('DPRIO', 0)}")
    trd(WF, 0)
    for ks in range(28):
        sl = ks % NRING
        wb = WF + 8 * (ks & 1)
        if ENV("DSW") and ks == int(ENV("DSW")):
            p(f"s_setprio {ENV('DSWP', 1)}")
        if ks + 1 < 28:
            vm.need(wid[ks + 1])
            trd(WF + 8 * ((ks + 1) & 1), ((ks + 1) % NRING) * 2048)
        vm.need(hid[ks])
        p(f"s_waitcnt lgkmcnt({4 if ks + 1 < 28 else 0})")
        for a in range(4):
            ac = vr(ACC + 16 * a, 16)
            p(f"{MFMA} {ac}, {vr(wb+4*(a&1),4)}, {vr(HB+8*sl+4*(a>>1),4)}, {'0' if ks == 0 else ac}")
            if ENV("DINT") and a == 0 and ks >= 1:
                hfill(ks)
            if ENV("DINT") and a == 1 and ks + NRING < 28:
                wload(ks + NRING)
        if seg < 2 and ks + 1 + LOOK == seg_end[seg]:
            seg += 1
            hpoll(seg)
            hfill(ks + 1)
        if not ENV("DINT"):
            hfill(ks + 1)
            wload(ks + NRING)
    stamp(p, 4)

    def send():
        p(f"v_add_u32 v{VX}, s15, v{VL16}")
        for a in range(1, 4):
            for r in range(4):
                p(f"ds_write_b128 v{VX}, {vr(ACC+16*a+4*r,4)} offset:{(a-1)*4096 + r*1024}")

    def ssync(k):
        p(f"v_mov_b32 v{WF+1}, {CNT_S0 + 4*k}\nv_mov_b32 v{WF+2}, 1")
        p(f"s_mov_b64 exec, 1\ns_waitcnt lgkmcnt(0)\nds_add_u32 v{WF+1}, v{WF+2}\ns_mov_b64 exec, -1")
        lds_spin(p, f"L_ss{k}", f"v{WF+1}", WF, "4", 71)

    def recv():
        for a in range(1, 4):
            p(f"s_xor_b32 s3, s4, {a}\ns_lshl_b32 s3, s3, 14\ns_add_u32 s3, s3, {PRIV + (a-1)*4096}\nv_add_u32 v{VX}, s3, v{VL16}")
            for r in range(4):
                p(f"ds_read_b128 {vr(ACC+16*a+4*r,4)}, v{VX} offset:{r*1024}")

    def addup():
        for a in range(1, 4):
            p(f"s_waitcnt lgkmcnt({4*(3-a)})")
            for r in range(16):
                p(f"v_add_f32 v{ACC+r}, v{ACC+r}, v{ACC+16*a+r}")
    d7 = ENV("SD7")
    if d7: stamp(p, 1)
    if ENV("DSW"):
        p(f"s_setprio {ENV('DSWE', 0)}")
    p(f"""
    v_mov_b32 v{WF+1}, {CNT}
    v_mov_b32 v{WF+2}, 1
    s_lshl_b32 s3, s4, 2
    v_mov_b32 v{WF+3}, s3
    v_add_u32 v{WF+3}, {CNT_S0 + 4}, v{WF+3}
    v_xor_b32 v{WF+4}, 8, v{WF+3}
    v_xor_b32 v{WF+5}, 4, v{WF+3}
    s_and_b32 s3, s4, 1
    s_lshl_b32 s3, s3, 13
    s_cmp_lt_u32 s4, 2
    s_cselect_b32 s14, 0, {SLOT}
    s_add_u32 s3, s3, s14
    s_add_u32 s3, s3, {2*SLOT}
    v_add_u32 v{VX}, s3, v{VL16}                    ; area(kq)
    v_xor_b32 v{VD}, {SLOT}, v{VX}                  ; area(kq^2)
    """)
    lds_spin(p, "L_g0", f"v{WF+1} offset:48", WF, "4", 71)
    lds_spin(p, "L_g1", f"v{WF+1} offset:176", WF, "4", 71)
    for i in range(8):
        p(f"ds_write_b128 v{VX}, {vr(ACC+32+4*i,4)} offset:{i*1024}")
    p(f"s_waitcnt lgkmcnt(0)\nds_write_b32 v{WF+3}, v{WF+2}")
    lds_spin(p, "L_h1", f"v{WF+4}", WF, "1", 71)
    if d7: stamp(p, 2)
    for i in (4, 5, 6, 7, 0, 1, 2, 3):
        p(f"ds_read_b128 {vr(ACC+32+4*i,4)}, v{VD} offset:{i*1024}")
    p("s_waitcnt lgkmcnt(4)")
    for r in range(16):
        p(f"v_add_f32 v{ACC+16+r}, v{ACC+16+r}, v{ACC+48+r}")
    p("s_waitcnt lgkmcnt(0)")
    for i in range(4):
        p(f"ds_write_b128 v{VD}, {vr(ACC+16+4*i,4)} offset:{i*1024}")
    for r in range(16):
        p(f"v_add_f32 v{ACC+r}, v{ACC+r}, v{ACC+32+r}")
    p(f"v_xor_b32 v{VX}, 8192, v{VX}\ns_waitcnt lgkmcnt(0)\nds_write_b32 v{WF+3}, v{WF+2} offset:16")
    if d7: stamp(p, 3)
    lds_spin(p, "L_h2", f"v{WF+5} offset:16", WF, "1", 71)
    p(f"v_xor_b32 v{VX}, {SLOT}, v{VX}")
    for i in range(4):
        p(f"ds_read_b128 {vr(ACC+16+4*i,4)}, v{VX} offset:{i*1024}")
    for i in range(4):
        p(f"s_waitcnt lgkmcnt({3-i})")
        for r in range(4 * i, 4 * i + 4):
            p(f"v_add_f32 v{ACC+r}, v{ACC+r}, v{ACC+16+r}")
    if d7: stamp(p, 4)
    T = ACC + 16
    p(f"s_mov_b32 s3, {f32(-LOG2E)}")
    for i in range(16):
        p(f"v_mul_f32 v{T+i}, s3, v{ACC+i}")
    for i in range(16):
        p(f"v_exp_f32 v{T+i}, v{T+i}")
    for i in range(16):
        p(f"v_add_f32 v{T+i}, 1.0, v{T+i}")
    for i in range(16):
        p(f"v_rcp_f32 v{T+i}, v{T+i}")
    GREG = [GR + i for i in range(16)]
    for i in range(16):
        p(f"v_mul_f32 v{GREG[i]}, v{ACC+i}, v{T+i}")
    if ENV("DUMP_G"):
        for i in range(8):
            p(f"v_cvt_pk_bf16_f32 v{T+i}, v{GREG[2*i]}, v{GREG[2*i+1]}")
        p(f"""
        s_mul_i32 s14, s57, {14*2048}
        s_lshl_b32 s3, s10, 1
        s_and_b32 s63, s4, 1
        s_add_u32 s3, s3, s63
        s_lshl_b32 s3, s3, 11
        s_add_u32 s14, s14, s3
        s_add_u32 s14, s14, {G_OFF}
        buffer_store_dwordx4 {vr(T,4)}, v{VL16}, s[40:43], s14 offen
        buffer_store_dwordx4 {vr(T+4,4)}, v{VL16}, s[40:43], s14 offen offset:1024
        """)
    p(f"""
    v_bfe_u32 v{WF+4}, v{VL16}, 4, 2
    v_lshlrev_b32 v{VX}, 7, v{WF+4}
    v_bfe_u32 v{WF}, v{VL16}, 6, 1
    v_lshl_add_u32 v{VX}, v{WF}, 11, v{VX}
    s_lshl_b32 s14, s9, 12
    s_lshl_b32 s3, s4, 9
    s_add_u32 s14, s14, s3
    s_add_u32 s14, s14, {OFL}
    s_mov_b32 s71, {SPIN_MAX}
    s_lshl_b32 s3, s4, 13
    s_add_u32 s3, s3, {O_OFF}
    s_lshl_b32 s60, s57, 15
    s_add_u32 s60, s60, s3
    s_lshl_b32 s61, s58, 15
    s_add_u32 s61, s61, s3
    s_add_u32 s62, s60, 4096
    s_add_u32 s63, s61, 4096
    v_lshlrev_b32 v{WF+4}, 3, v{WF+4}
    v_add_u32 v{WF+4}, {CNT_COMB}, v{WF+4}
    """)
    stamp(p, 5)
    p(f"s_setprio {ENV('DPRIO3', 0)}")
    p.label("L_op")
    p(f"""
    buffer_load_dwordx2 {vr(WF,2)}, v{VX}, s[40:43], s14 offen sc1
    s_sub_u32 s71, s71, 1
    s_waitcnt vmcnt(0)
    v_cmp_eq_u64 vcc, {vr(WF,2)}, {vr(TGV,2)}
    s_cmp_eq_u32 s71, 0
    s_cbranch_scc1 L_op_x
    s_cmp_eq_u64 vcc, -1
    s_cbranch_scc1 L_op_x
    ds_read_b32 v{WF+2}, v{WF+4}
    s_waitcnt lgkmcnt(0)
    v_cmp_eq_u32 vcc, 2, v{WF+2}
    s_cmp_eq_u64 vcc, -1
    s_cbranch_scc1 L_op
    s_sleep {ENV("OSLEEP", 2)}
    s_branch L_op
    L_op_x:
    """)
    stamp(p, 6)
    vm = VM(p)
    OB = HB
    oid = {}

    def oload(kk, r):
        sreg = (("s60", "s61"), ("s62", "s63"))[kk >> 2][r]
        slot = (2 * kk + r) % 14
        oid[(kk, r)] = vm.op(f"buffer_load_dwordx4 {vr(OB+4*slot,4)}, v{VL16}, s[40:43], {sreg} offen offset:{(kk&3)*1024} sc1")
    for kk in range(7):
        oload(kk, 0); oload(kk, 1)

    def wrd(kk):
        hh, s_ = kk >> 1, kk & 1
        row = 28 * hh - 4 * (hh & 1) + 16 * s_
        trd(WF + 8 * (kk & 1), (row >> 3) * 1024)
    wrd(0)
    for kk in range(8):
        if kk + 1 < 8:
            wrd(kk + 1)
        wb = WF + 8 * (kk & 1)
        p(f"s_waitcnt lgkmcnt({4 if kk + 1 < 8 else 0})")
        for a in range(4):
            vm.need(oid[(kk, a >> 1)])
            ac = vr(ACC + 16 * a, 16)
            p(f"{MFMA} {ac}, {vr(wb+4*(a&1),4)}, {vr(OB+4*((2*kk+(a>>1))%14),4)}, {'0' if kk == 0 else ac}")
        if kk == 0:
            oload(7, 0); oload(7, 1)
    if ENV("SD8"): stamp(p, 1)
    send()
    srd(p, 44, P_OUT, 2048 * 896)
    XE = HB
    for i in range(8):
        p(f"v_lshlrev_b32 v{XE+2*i}, 16, v{XF+i}")
        p(f"v_and_b32 v{XE+2*i+1}, 0xffff0000, v{XF+i}")
    ssync(0)
    if ENV("SD8"): stamp(p, 2)
    recv()
    addup()
    if ENV("SD8"): stamp(p, 3)
    for i in range(16):
        p(f"v_fma_f32 v{ACC+i}, v{ACC+i}, v{GREG[i]}, v{XE+i}")
    pack16(p, WF, ACC)
    for g4 in range(4):
        p(f"buffer_store_dwordx2 {vr(WF+2*g4,2)}, v{VXO}, s[44:47], 0 offen offset:{16*g4}")
    p.label("L_s_end")
    endpgm(p)


def main():
    ref = open("cdna_kernels/" + NAME + ".s.ref").read().split("\n")
    head = [l for l in ref if l.startswith(";") and "@launch" not in l and "Override launch" not in l and "grid=ceil" not in l]
    p = Prog()
    gen(p)
    body = p.finalize()
    out = head[:]
    out += """;
; One fused kernel, one 12-wave workgroup per CU (generated by my own script, gen/gen3.py).
;  waves 0-7 : layernorm of 128 rows, Q/K/V/gate/up projections (MFMA, W streamed through LDS, K split over wave pairs),
;              then attention for one (head, 128 queries): S^T = K Q^T, P = exp2(S) without a shift, row sums from a
;              ones column of V.  The result is checked (row sum in [2^-40, 2^100], everything finite); a tile that
;              fails is recomputed by the online-softmax loop with the true running max (L_fallback).
;  waves 8-11: stream the weights, then the down projection + silu, the output projection and out = x + s*g.
;  Hand-offs between workgroups: write-through (sc1) stores, drained, then an 8-byte flag holding this launch's tag
;  (start time of workgroup 0, passed through d_debug); consumers poll with sc1 loads.  Every spin is bounded.""".split("\n")
    out.append("; @launch grid=(256,1,1) block=(768,1,1) lds=163840")
    out.append('.amdgcn_target "amdgcn-amd-amdhsa--gfx950"\n.text')
    out.append(body)
    out.append(f""".section .rodata,"a"
.p2align 6
.amdhsa_kernel {KN}
  .amdhsa_next_free_vgpr 168
  .amdhsa_next_free_sgpr 100
  .amdhsa_accum_offset 168
  .amdhsa_group_segment_fixed_size 0
  .amdhsa_kernarg_size 80
  .amdhsa_user_sgpr_count 2
  .amdhsa_user_sgpr_kernarg_segment_ptr 1
  .amdhsa_system_sgpr_workgroup_id_x 1
.end_amdhsa_kernel""")
    if ENV("PLAINLD"):
        import re
        out = [re.sub(r"(buffer_load_dwordx4 .*) sc1( lds)?$", r"\1\2", l, flags=re.M) if "s[44:47], s6" not in l else l for l in "\n".join(out).split("\n")]
    path = sys.argv[1] if len(sys.argv) > 1 else "cdna_kernels/" + NAME + ".s"
    open(path, "w").write("\n".join(out) + "\n")
    print("wrote", path, "nops inserted:", p.total_nops)


main()
```

```python
import math, struct, sys, os
from asmlib import Prog

NAME = "recurrent_scan__mha_block__geglu_ffn__prompt"
KN = NAME + "_kernel"
MB = 1 << 20
QF_OFF, KV_OFF, H_OFF, O_OFF, G_OFF = 0, 2 * MB, 6 * MB, 13 * MB, 15 * MB
FLAG_OFF = 17 * MB
QKVF, HFL, OFL = FLAG_OFF, FLAG_OFF + 65536, FLAG_OFF + 131072
WS_USED = 18 * MB
LOG2E = math.log2(math.e)
QSCALE = LOG2E / math.sqrt(28.0)
SPIN_MAX = 1 << 12
ENV = os.environ.get
STAMPS = bool(ENV("STAMPS"))
STAMP_OFF = 24 * MB
MFMA = "v_mfma_f32_32x32x16_bf16"
P_X, P_WQKV, P_WO, P_WG, P_WU, P_WD, P_OUT, P_DBG, P_WS = 16, 18, 20, 24, 26, 28, 30, 32, 34
SLOT = 16384
QL = 5 * SLOT + 8192
STATL = 9 * SLOT + 12288
NST = 19


def phys(c):
    return (c + 7) % 10


PRIV = 6 * SLOT
CNT = PRIV + 15360
CNT_COMB, CNT_S0 = CNT + 64, CNT + 220
KVS = 32768
CNT_GO = CNT + 96
CNT_H = CNT + 100
CNT_TAG = CNT + 104


def f32(x):
    return "0x%08x" % struct.unpack("<I", struct.pack("<f", x))[0]


def vr(b, n=1):
    return f"v{b}" if n == 1 else f"v[{b}:{b+n-1}]"


def srd(p, d, base, nrec, add=None):
    if add is None:
        p(f"s_mov_b32 s{d}, s{base}\ns_mov_b32 s{d+1}, s{base+1}")
    else:
        p(f"s_add_u32 s{d}, s{base}, {add}\ns_addc_u32 s{d+1}, s{base+1}, 0")
    p(f"s_mov_b32 s{d+2}, {nrec}\ns_mov_b32 s{d+3}, 0x20000")


def pack16(p, dst, src):
    for i in range(8):
        p(f"v_cvt_pk_bf16_f32 v{dst+i}, v{src+2*i}, v{src+2*i+1}")


def stamp_txt(i):
    if STAMPS and not (ENV("CB") and i < 7):
        assert i < 8
        return [f"{ENV('STAMP_INS', 's_memrealtime')} s[{80+2*i}:{81+2*i}]"]
    return []


def stamp(p, i):
    for x in stamp_txt(i):
        p(x)


TL = bool(ENV("TL"))


def tl(p, idx):
    if TL:
        p(f"{ENV('STAMP_INS', 's_memrealtime')} s[94:95]\ns_waitcnt lgkmcnt(0)\nv_writelane_b32 v60, s94, {idx}")


def tl_dump(p):
    if TL:
        p(f"""
        s_lshl_b32 s94, s2, 4
        s_add_u32 s94, s94, s59
        s_lshl_b32 s94, s94, 8
        s_add_u32 s94, s94, {STAMP_OFF + MB}
        s_mov_b32 s96, s{P_WS}
        s_mov_b32 s97, s{P_WS+1}
        s_mov_b32 s98, {32*MB}
        s_mov_b32 s99, 0x20000
        v_lshlrev_b32 v61, 2, v0
        buffer_store_dword v60, v61, s[96:99], s94 offen
        """)


def endpgm(p):
    if STAMPS and ENV("DBGMAX"):
        stamp(p, 7)
        p(f"""
        s_mov_b64 exec, -1
        s_mov_b32 s96, s{P_DBG}
        s_mov_b32 s97, s{P_DBG+1}
        s_mov_b32 s98, 256
        s_mov_b32 s99, 0x20000
        buffer_load_dword v10, off, s[96:99], 0 sc1
        s_waitcnt vmcnt(0) lgkmcnt(0)
        """)
        for i in range(8):
            p(f"v_writelane_b32 v8, s{80+2*((i+1) % 8)}, {i}")
        p(f"""
        v_cmp_ne_u32 vcc, 0, v8
        v_sub_u32 v8, v8, v10
        v_add_u32 v8, 1000, v8
        v_cndmask_b32 v8, 0, v8, vcc
        s_cmp_ge_u32 s59, 8
        s_cselect_b32 s4, 36, 8
        v_mbcnt_lo_u32_b32 v9, -1, 0
        v_lshlrev_b32 v9, 2, v9
        s_mov_b64 exec, 0x7f
        buffer_atomic_umax v8, v9, s[96:99], s4 offen
        s_waitcnt vmcnt(0)
        """)
    elif STAMPS:
        stamp(p, 7)
        p("s_waitcnt vmcnt(0) lgkmcnt(0)\ns_mov_b64 exec, -1")
        for i in range(8):
            p(f"v_writelane_b32 v8, s{80+2*i}, {i}")
        p(f"""
        s_lshl_b32 s4, s2, 4
        s_add_u32 s4, s4, s59
        s_lshl_b32 s4, s4, 5
        s_add_u32 s4, s4, {STAMP_OFF}
        s_mov_b32 s96, s{P_WS}
        s_mov_b32 s97, s{P_WS+1}
        s_mov_b32 s98, {32*MB}
        s_mov_b32 s99, 0x20000
        v_mbcnt_lo_u32_b32 v9, -1, 0
        v_lshlrev_b32 v9, 2, v9
        s_mov_b64 exec, 0xff
        buffer_store_dword v8, v9, s[96:99], s4 offen
        """)
    p("s_endpgm")


class DS:
    def __init__(self, pending):
        self.n, self.done = pending, 0

    def op(self):
        self.n += 1
        return self.n - 1

    def need(self, i):
        if i < self.done:
            return []
        self.done = i + 1
        return [f"s_waitcnt lgkmcnt({min(15, self.n - 1 - i)})"]


class VM:
    def __init__(self, p):
        self.p, self.n, self.done = p, 0, 0

    def op(self, txt):
        self.p(txt)
        self.n += 1
        return self.n - 1

    def need(self, i):
        if i is None or i < self.done:
            return
        self.done = i + 1
        k = self.n - 1 - i
        assert k <= 63
        self.p(f"s_waitcnt vmcnt({k})")


def cost(ins):
    c = 0
    for l in ins.strip().split("\n"):
        m = l.strip().split()[0]
        c += 8 if m.startswith(("v_exp", "v_rcp", "v_rsq", "ds_")) else 16 if m.startswith("buffer_") else 4
    return c


def lds_spin(p, label, addr_v, tmp, want, sreg, wide=False):
    p(f"s_mov_b32 s{sreg}, {SPIN_MAX*8}")
    p.label(label)
    if wide:
        p(f"ds_read_b64 {vr(tmp,2)}, {addr_v}\ns_sub_u32 s{sreg}, s{sreg}, 1\ns_waitcnt lgkmcnt(0)\nv_cmp_ne_u64 vcc, {want}, {vr(tmp,2)}")
    else:
        p(f"ds_read_b32 v{tmp}, {addr_v}\ns_sub_u32 s{sreg}, s{sreg}, 1\ns_waitcnt lgkmcnt(0)\nv_cmp_ne_u32 vcc, {want}, v{tmp}")
    p(f"""
    s_cmp_eq_u32 s{sreg}, 0
    s_cbranch_scc1 {label}_x
    s_cmp_eq_u64 vcc, 0
    s_cbranch_scc1 {label}_x
    s_sleep 1
    s_branch {label}
    {label}_x:
    """)


def gen(p):
    p(f".globl {KN}\n.p2align 8\n.type {KN},@function")
    p.label(KN)
    S_W, S_RG, S_HF, S_RB, S_RT = 59, 60, 61, 62, 63
    RX = int(ENV('RX', 2))
    p(f"""
    s_cmp_ge_u32 s2, 256
    s_cbranch_scc1 L_exit
    s_load_dwordx16 s[16:31], s[0:1], 0
    s_load_dwordx4 s[32:35], s[0:1], 64
    """)
    if STAMPS:
        for i in range(16):
            p(f"s_mov_b32 s{80+i}, 0")
        stamp(p, 0)
    p(f"""
    v_lshrrev_b32 v2, 6, v0
    v_and_b32 v0, 63, v0
    v_readfirstlane_b32 s{S_W}, v2
    s_and_b32 s5, s2, 7                 ; xcd
    s_lshr_b32 s6, s2, 3                ; j
    s_and_b32 s7, s5, {(1 << RX) - 1}
    s_lshl_b32 s7, s7, {4 - RX}
    s_and_b32 s8, s6, {(16 >> RX) - 1}
    s_add_u32 s{S_RB}, s7, s8
    s_lshr_b32 s7, s5, {RX}
    s_lshl_b32 s7, s7, {RX + 1}
    s_lshr_b32 s8, s6, {4 - RX}
    s_add_u32 s7, s7, s8
    s_and_b32 s8, s7, 1
    s_lshr_b32 s7, s7, 1
    s_cmp_ge_u32 s{S_W}, 8
    s_cbranch_scc1 L_service
    """)
    gen_c(p, S_W, S_RG, S_HF, S_RB, S_RT)
    p.label("L_service")
    gen_s(p, S_W)
    p.label("L_exit")
    p("s_endpgm")
    p.label("L_code_end")


def gen_c(p, S_W, S_RG, S_HF, S_RB, S_RT):
    VST, VA, VB, VTRL = 0, 1, 2, 3
    X, A0, A1, WF, T = 4, 116, 132, 148, 160
    U = A0
    p(f"""
    s_and_b32 s{S_RG}, s{S_W}, 3
    s_lshr_b32 s{S_HF}, s{S_W}, 2
    s_xor_b32 s{S_HF}, s{S_HF}, s8
    v_lshrrev_b32 v12, 2, v0            ; r16
    v_lshrrev_b32 v13, 4, v0            ; r16>>2
    v_xor_b32 v13, v13, v0
    v_and_b32 v13, 3, v13
    v_mul_u32_u24 v12, 896, v12
    v_lshl_add_u32 v12, v13, 4, v12
    s_lshl_b32 s9, s{S_RB}, 2
    s_add_u32 s{S_RT}, s9, s{S_RG}
    s_mul_i32 s9, s{S_RT}, {32*896}
    s_mul_i32 s10, s{S_HF}, 448
    s_add_u32 s9, s9, s10
    v_add_u32 v12, s9, v12
    s_mul_i32 s10, s{S_W}, 14336
    s_mov_b32 s11, {16*896}
    s_waitcnt lgkmcnt(0)
    """)
    srd(p, 44, P_DBG, 256)
    p(f"""
    s_add_u32 s12, s2, s{S_W}
    s_cmp_lg_u32 s12, 0
    s_cbranch_scc1 L_notagw
    s_memrealtime s[12:13]
    s_waitcnt lgkmcnt(0)
    s_or_b32 s12, s12, 1
    v_mov_b32 v16, s12
    v_mov_b32 v17, s13
    s_mov_b64 exec, 1
    buffer_store_dwordx2 v[16:17], off, s[44:47], 0 sc1
    s_mov_b64 exec, -1
    L_notagw:
    """)
    CPF = ENV("CPF", "0")
    if CPF != "0":
        p(f"s_lshl_b32 s12, s2, 3\ns_add_u32 s12, s12, s{S_W}\ns_lshl_b32 s12, s12, 10\nv_lshlrev_b32 v13, 4, v0")
        for k, (ptr, n) in enumerate(((P_WQKV, 448 * 2688), (P_WG, 448 * 3584), (P_WU, 448 * 3584))):
            srd(p, 64 + 4 * k, ptr, n)
            p(f"buffer_load_dwordx4 {vr(A1,4)}, v13, s[{64+4*k}:{67+4*k}], s12 offen")
    srd(p, 36, P_X, 2048 * 896)
    for cb in range(7):
        for rh in range(2):
            p(f"s_add_u32 m0, s10, {(rh*7+cb)*1024 - 64*cb}")
            p(f"buffer_load_dwordx4 v12, s[36:39], {'s11' if rh else '0'} offen offset:{64*cb} lds")
    srd(p, 40, P_WS, WS_USED)
    VXA, VXB, SUM, SQ, RS, NM, ONES = T, T + 1, T + 2, T + 3, T + 4, T + 5, T + 6
    c0 = -2.0 * math.sqrt(2.0 / math.pi) * LOG2E
    c1 = c0 * 0.044715
    al = -((-c1) ** (1.0 / 3.0))
    p(f"""
    v_lshrrev_b32 v13, 5, v0
    v_lshlrev_b32 v13, 10, v13
    v_bfe_u32 v14, v0, 2, 2
    v_lshl_add_u32 v13, v14, 6, v13
    v_bfe_u32 v14, v0, 4, 1
    v_lshl_add_u32 v13, v14, 5, v13
    v_and_b32 v14, 3, v0
    v_lshl_add_u32 v13, v14, 3, v13
    s_lshl_b32 s12, s{S_HF}, 9
    v_add_u32 v{VTRL}, s12, v13
    v_add_u32 v{VA}, {phys(0)*SLOT}, v{VTRL}
    v_add_u32 v{VB}, {phys(1)*SLOT}, v{VTRL}
    v_bfe_u32 v13, v0, 4, 1
    v_mul_u32_u24 v13, 7168, v13
    v_and_b32 v14, 15, v0
    v_lshl_add_u32 v13, v14, 6, v13
    v_lshrrev_b32 v14, 5, v0            ; h
    v_bfe_u32 v15, v0, 2, 2             ; swz
    v_xor_b32 v14, v14, v15
    v_lshl_add_u32 v{VXA}, v14, 4, v13
    v_xor_b32 v14, 2, v14
    v_lshl_add_u32 v{VXB}, v14, 4, v13
    v_add_u32 v{VXA}, s10, v{VXA}
    v_add_u32 v{VXB}, s10, v{VXB}
    v_mov_b32 v{SUM}, 0
    v_mov_b32 v{SQ}, 0
    v_mov_b32 v{ONES}, 0x3f803f80
    s_mov_b32 s66, 0xffff0000
    s_mov_b32 s64, {f32(al)}
    s_mov_b32 s65, {f32(c0 / c1 * al * al)}
    v_and_b32 v{U+2}, 31, v0
    v_lshlrev_b32 v{U+2}, 3, v{U+2}
    s_lshl_b32 s12, s{S_W}, 8
    s_add_u32 s12, s12, {STATL}
    v_add_u32 v{U+3}, s12, v{U+2}
    v_xor_b32 v{U+2}, 1024, v{U+3}
    s_xor_b32 s12, s{S_W}, 4
    s_mul_i32 s12, s12, 14336
    s_sub_u32 s58, s12, s10
    v_lshlrev_b32 v{VST}, 4, v0
    """)
    p(f"""
    s_lshl_b32 s13, s7, 1
    s_add_u32 s13, s13, s{S_HF}         ; head
    s_cmp_eq_u32 s8, 1
    s_cselect_b32 s69, {f32(QSCALE)}, 1.0
    s_cselect_b32 s4, 17, 18
    s_cselect_b32 s15, {QF_OFF}, {KV_OFF}
    s_cselect_b32 s14, 0, 4
    s_lshl_b32 s67, s13, s4
    s_sub_u32 s4, s4, 6
    s_lshl_b32 s4, s{S_RT}, s4
    s_add_u32 s67, s67, s4
    s_add_u32 s67, s67, s15
    s_add_u32 s72, s67, 2048
    s_mul_i32 s12, s7, 6
    s_add_u32 s14, s14, s12
    s_add_u32 s14, s14, s{S_HF}
    s_lshl_b32 s70, s14, 11
    s_mul_i32 s4, s{S_RT}, 114688
    s_add_u32 s4, s4, {H_OFF}
    s_add_u32 s70, s70, s4
    s_lshl_b32 s71, s7, 1
    s_add_u32 s71, s71, s{S_HF}
    s_lshl_b32 s71, s71, 10
    s_add_u32 s71, s71, {48*2048}
    s_add_u32 s71, s71, s4
    s_lshl_b32 s73, s{S_RB}, 12
    s_lshl_b32 s4, s7, 9
    s_add_u32 s73, s73, s4
    s_xor_b32 s4, s8, 1
    s_lshl_b32 s4, s4, 7
    s_add_u32 s73, s73, s4
    s_add_u32 s73, s73, {HFL + 256}
    s_cmp_eq_u32 s{S_HF}, 1
    s_cselect_b32 s52, -1, 0
    s_mov_b32 s53, 0
    s_mov_b32 s54, 0
    s_cselect_b32 s55, 0, -1
    s_cselect_b32 s56, 15, 0xf0000000
    s_mov_b32 s57, s56
    s_cselect_b32 s48, 1, 0x10000000
    s_mov_b32 s49, s48
    """)
    stamp(p, 1)

    def half(xo, tag):
        def stat(cb):
            for d in range(8):
                r = X + xo + 8 * cb + d
                p(f"v_dot2c_f32_bf16 v{SUM}, v{r}, v{ONES}")
                p(f"v_dot2c_f32_bf16 v{SQ}, v{r}, v{r}")
        for cb in range(7):
            p(f"s_waitcnt vmcnt({12 - 2*cb})")
            p(f"ds_read_b128 {vr(X+xo+8*cb,4)}, v{VXA} offset:{cb*1024}")
            p(f"ds_read_b128 {vr(X+xo+8*cb+4,4)}, v{VXB} offset:{cb*1024}")
            if cb:
                p("s_waitcnt lgkmcnt(2)")
                stat(cb - 1)
        p("s_waitcnt lgkmcnt(0)")
        stat(6)
        p(f"""
        v_mov_b32 v{U}, v{SUM}
        v_mov_b32 v{U+1}, v{SQ}
        v_permlane32_swap_b32 v{SUM}, v{U}
        v_permlane32_swap_b32 v{SQ}, v{U+1}
        v_add_f32 v{SUM}, v{SUM}, v{U}
        v_add_f32 v{SQ}, v{SQ}, v{U+1}
        ds_write_b64 v{U+3}, {vr(SUM,2)}
        v_add_u32 v{VXA}, s58, v{VXA}
        v_add_u32 v{VXB}, s58, v{VXB}
        s_waitcnt lgkmcnt(0)
        s_barrier
        ds_read_b64 {vr(U,2)}, v{U+2}
        """)
        for cb in range(7):
            p(f"ds_read_b128 {vr(X+56-xo+8*cb,4)}, v{VXA} offset:{cb*1024}")
            p(f"ds_read_b128 {vr(X+56-xo+8*cb+4,4)}, v{VXB} offset:{cb*1024}")
    p(f"s_cmp_eq_u32 s{S_HF}, 1\ns_cbranch_scc1 L_half1")
    half(0, "0")
    p("s_branch L_halfj")
    p.label("L_half1")
    half(56, "1")
    p.label("L_halfj")
    p(f"""
    s_waitcnt lgkmcnt(14)
    v_add_f32 v{SUM}, v{SUM}, v{U}
    v_add_f32 v{SQ}, v{SQ}, v{U+1}
    v_mul_f32 v{SUM}, {f32(1.0/448)}, v{SUM}        ; mean
    v_mul_f32 v{SQ}, {f32(1.0/448)}, v{SQ}
    v_fma_f32 v{SQ}, -v{SUM}, v{SUM}, v{SQ}         ; var
    v_max_f32 v{SQ}, 0, v{SQ}
    v_add_f32 v{SQ}, {f32(1e-5)}, v{SQ}
    v_rsq_f32 v{RS}, v{SQ}                          ; rstd
    v_mul_f32 v{SUM}, v{SUM}, v{RS}
    v_sub_f32 v{NM}, 0, v{SUM}                      ; -mean*rstd
    s_waitcnt lgkmcnt(0)
    s_barrier
    """)
    stamp(p, 2)

    def normalise(ks, tb, n=2):
        e = []
        for d0 in range(0, 4, n):
            r = X + 4 * ks + d0
            for d in range(n):
                e += [f"v_lshlrev_b32 v{tb+2*d}, 16, v{r+d}", f"v_and_b32 v{tb+2*d+1}, s66, v{r+d}"]
            e += [f"v_fma_f32 v{tb+i}, v{tb+i}, v{RS}, v{NM}" for i in range(2 * n)]
            e += [f"v_cvt_pk_bf16_f32 v{r+d}, v{tb+2*d}, v{tb+2*d+1}" for d in range(n)]
        return e
    NPRE = int(ENV("NPRE", 9))
    p(f"v_mov_b32 v{T}, v{RS}\nv_mov_b32 v{T+1}, v{RS}\nv_mov_b32 v{T+2}, v{NM}\nv_mov_b32 v{T+3}, v{NM}")
    for k0 in range(0, NPRE, 2):
        kk = [k for k in (k0, k0 + 1) if k < NPRE]
        for k in kk:
            tb = U + 8 * (k % 4)
            for d in range(4):
                p(f"v_lshlrev_b32 v{tb+2*d}, 16, v{X+4*k+d}\nv_and_b32 v{tb+2*d+1}, s66, v{X+4*k+d}")
        for k in kk:
            tb = U + 8 * (k % 4)
            for d in range(4):
                p(f"v_pk_fma_f32 {vr(tb+2*d,2)}, {vr(tb+2*d,2)}, {vr(T,2)}, {vr(T+2,2)}")
        for k in kk:
            tb = U + 8 * (k % 4)
            for d in range(4):
                p(f"v_cvt_pk_bf16_f32 v{X+4*k+d}, v{tb+2*d}, v{tb+2*d+1}")
    p("s_barrier")
    NB = 3

    def st(r, sreg, off=0):
        return f"buffer_store_dwordx4 {vr(r,4)}, v{VST}, s[40:43], s{sreg} offen{' offset:%d' % off if off else ''} sc1"

    def pack(dst, a, n=8):
        return [f"v_cvt_pk_bf16_f32 v{dst+i}, v{a+2*i}, v{a+2*i+1}" for i in range(n)]

    def qk_a(a, dst):
        return [f"v_mul_f32 v{a+i}, s69, v{a+i}" for i in range(16)] + pack(dst, a)

    def qk_b(d):
        return [f"s_mov_b64 exec, s[52:53]\nv_mov_b32 v{d}, 0\nv_mov_b32 v{d+1}, 0\ns_mov_b64 exec, s[54:55]\n"
                f"v_mov_b32 v{d+6}, 0\nv_mov_b32 v{d+7}, 0\ns_mov_b64 exec, -1", st(d, 67), st(d + 4, 67, 1024)]

    def v_b(d):
        return ["s_mov_b64 exec, s[56:57]\n" + "".join(f"v_mov_b32 v{d+i}, 0\n" for i in range(8)) + "s_mov_b64 exec, -1",
                "s_mov_b64 exec, s[48:49]\n" + "".join(f"v_mov_b32 v{d+i}, 0x3f803f80\n" for i in range(8)) + "s_mov_b64 exec, -1",
                st(d, 72), st(d + 4, 72, 1024)]

    def gelu(g, qs):
        e = []
        for q in qs:
            r = [g + 4 * q + i for i in range(4)]
            t = [T + i for i in range(4)]
            u = [T + 4 + i for i in range(4)]
            e += [f"v_mul_f32 v{t[i]}, s64, v{r[i]}" for i in range(4)]
            e += [f"v_fma_f32 v{u[i]}, v{t[i]}, v{t[i]}, s65" for i in range(4)]
            e += [f"v_mul_f32 v{t[i]}, v{t[i]}, v{u[i]}" for i in range(4)]
            e += [f"v_exp_f32 v{t[i]}, v{t[i]}" for i in range(4)]
            e += [f"v_add_f32 v{t[i]}, 1.0, v{t[i]}" for i in range(4)]
            e += [f"v_rcp_f32 v{t[i]}, v{t[i]}" for i in range(4)]
            e += [f"v_mul_f32 v{r[i]}, v{r[i]}, v{t[i]}" for i in range(4)]
        return e

    def prod(d, o):
        return [f"v_mul_f32 v{d+i}, v{d+i}, v{o+i}" for i in range(16)]

    def hstore(a):
        return pack(a, a) + [st(a, 70), st(a + 4, 70, 1024), "s_add_u32 s70, s70, 4096"]

    def epi_s(a):
        return gelu(a, [0, 1]) + [f"v_mul_f32 v{a+i}, v{a+i}, v{a+8+i}" for i in range(8)] + pack(a, a, 4) + [st(a, 71)]

    def stream(kind, late):
        N = 140
        types = "VKGUS" if kind == "A" else "QGUGU"
        G_ = []
        for ks in range(28):
            for ps in range(2):
                G_.append((ks >> 2, ps * 8192 + (ks & 3) * 2048, ks, (A0, A1)[ps], ks == 0, types[ps] == "V"))
        acc = {2: A0, 3: A1, 4: A0} if kind == "A" else {2: A0, 3: A0, 4: A1}
        for ps in range(2, 5):
            for j in range(28):
                G_.append((7 + 4 * (ps - 2) + (j >> 3), (j & 7) * 2048, j, acc[ps], j == 0, False))
        win, after = [], {}

        def W(a, b, ins):
            win.append((a, b, ins))
        allnorm = []
        pr = (T, T + 2, T + 6)
        dw = [X + 4 * ks + d for ks in range(NPRE, 28) for d in range(4)]
        for i in range(len(dw) + 2):
            if i < len(dw):
                t = pr[i % 3]
                allnorm += [f"v_lshlrev_b32 v{t}, 16, v{dw[i]}", f"v_and_b32 v{t+1}, s66, v{dw[i]}"]
            if 1 <= i <= len(dw):
                t = pr[(i - 1) % 3]
                allnorm += [f"v_fma_f32 v{t}, v{t}, v{RS}, v{NM}", f"v_fma_f32 v{t+1}, v{t+1}, v{RS}, v{NM}"]
            if i >= 2:
                t = pr[(i - 2) % 3]
                allnorm.append(f"v_cvt_pk_bf16_f32 v{dw[i-2]}, v{t}, v{t+1}")
        nend = min(52, 2 * (28 - NPRE) if NPRE < 4 else 52)
        W(0, nend, allnorm)
        for ks in range(NPRE, 28):
            assert (ks - NPRE + 1) * nend / (28 - NPRE) + 1 <= 2 * ks, ks
        pubw = set()
        if kind == "A":
            after[55] = pack(T, A0)
            vb, kb = v_b(T), qk_b(A1)
            W(56, 59, vb[:3])
            W(63, 64, vb[3:])
            W(59, 69, qk_a(A1, A1) + kb[:1])
            W(70, 71, kb[1:2])
            W(77, 78, kb[2:])
            pubw.add(int(ENV("KB", 83)))
            W(86, 111, gelu(A0, [0, 1, 2, 3]))
            after[111] = prod(A1, A0)
            W(113, 119, hstore(A1))
        else:
            after[55] = qk_a(A0, T)
            W(56, 58, qk_b(T))
            W(59, 83, gelu(A1, [0, 1, 2, 3]))
            pubw.add(79)
            after[83] = prod(A1, A0)
            W(85, 91, hstore(A1))
            pubw.add(107)
            W(114, 140, gelu(A0, [0, 1, 2, 3]))
        W(120 if kind == "A" else 95, 126 if kind == "A" else 105, late)
        per = [[] for _ in range(N)]
        for (a, b, ins) in win:
            tot = sum(cost(i) for i in ins)
            c = 0
            for i in ins:
                g = a + min(b - a - 1, int((c + cost(i) / 2) * (b - a) / tot))
                per[g].append(i)
                c += cost(i)
        ds = DS(0)
        frag = {}
        out = []

        def rd(n):
            c, imm = G_[n][0], G_[n][1]
            b = WF + 4 * (n % NB)
            a = VA if c % 2 == 0 else VB
            out.extend([f"ds_read_b64_tr_b16 {vr(b,2)}, v{a} offset:{imm}", f"ds_read_b64_tr_b16 {vr(b+2,2)}, v{a} offset:{imm+256}"])
            ds.op()
            frag[n] = ds.op()
            if n + 1 < N and G_[n + 1][0] != c and c + 2 < NST:
                if c + 2 == 15 and types[4] == "S":
                    out.append(f"v_bfe_u32 v{a}, v{VTRL}, 10, 1\nv_lshlrev_b32 v{a}, 9, v{a}\nv_and_b32 v{VTRL}, 255, v{VTRL}\n"
                               f"v_or_b32 v{a}, v{a}, v{VTRL}\nv_bfe_u32 v{VTRL}, v{VTRL}, 5, 1\nv_mul_u32_u24 v{VTRL}, 992, v{VTRL}\n"
                               f"s_lshl_b32 s12, s{S_HF}, 5\nv_add3_u32 v{VTRL}, v{VTRL}, v{a}, s12")
                out.append(f"v_add_u32 v{a}, {phys(c+2)*SLOT}, v{VTRL}")
        for n in range(NB):
            rd(n)
        for g in range(N):
            c, imm, xf, ac, first, swap = G_[g]
            out += ds.need(frag[g])
            w, x = vr(WF + 4 * (g % NB), 4), vr(X + 4 * xf, 4)
            a, b = (x, w) if swap else (w, x)
            out.append(f"{MFMA} {vr(ac,16)}, {a}, {b}, {'0' if first else vr(ac,16)}")
            if g + 1 < N and G_[g + 1][0] != c:
                if g in pubw:
                    out.append("s_waitcnt vmcnt(0)")
                out.append("s_barrier")
                if ENV("CB"):
                    bi = c + 1 - int(ENV("CB"))
                    if 0 <= bi < 7:
                        out.append(f"s_memtime s[{80+2*bi}:{81+2*bi}]")
            if g + NB < N:
                rd(g + NB)
            out += per[g]
            out += after.get(g, [])
            if g == 55:
                out += stamp_txt(3)
        for i in out:
            p(i)

    Q, KF, VF, S0, S1, PP, O = 8, 16, 24, 32, 48, 64, 72
    VCUR, VNXT, VCO, VKV, VCN, VONE, CK, CKO, VQA, E3, T_TAG = 1, 2, 4, 5, 6, 88, 90, 92, 94, 96, 100
    VLN = VST
    BAL = ENV('BAL', '1') == '1'
    SPR = False
    setup_s = f"""s_lshr_b32 s7, s6, 4
    s_lshl_b32 s8, s5, 1
    s_add_u32 s7, s7, s8                ; head
    s_and_b32 s8, s6, 15                ; q block
    s_lshl_b32 s11, s8, 2
    s_add_u32 s11, s11, s{S_RG}         ; q tile (0..63)
    s_lshl_b32 s9, s7, 18
    s_add_u32 s9, s9, {KV_OFF}
    s_lshl_b32 s46, s{S_HF}, 14         ; kh*16384
    s_add_u32 s47, s46, {4*SLOT}        ; slot of stage i+2
    s_lshl_b32 s13, s{S_RG}, 12         ; rg*4096
    s_add_u32 s14, s46, {2*KVS}         ; source offset of the next fill
    s_lshl_b32 s15, s{S_HF}, 7
    s_add_u32 s15, s15, {CNT}
    s_mov_b32 s48, 1                    ; iteration
    s_mov_b32 s49, 0
    s_mov_b32 s50, 4
    s_mov_b32 s51, 4
    s_lshl_b32 s10, s{S_RG}, 11
    s_add_u32 s10, s10, {QL}
    s_add_u32 s36, s{P_WS}, s9
    s_addc_u32 s37, s{P_WS+1}, 0
    s_mov_b32 s38, 262144""".split("\n")
    setup_s = [setup_s[i] if not setup_s[i].strip().startswith("s_add_u32 s36") else setup_s[i] + "\n" + setup_s[i+1]
               for i in range(len(setup_s)) if not setup_s[i].strip().startswith("s_addc")]

    def start(tag):
        stamp(p, 4)
        p(f"""
        v_mov_b32 v{CKO}, {CNT_GO}
        v_add_u32 v{VQA}, s10, v{VLN}
        v_add_u32 v{VCUR}, s46, v{VLN}
        v_add_u32 v{VNXT}, {2*SLOT}, v{VCUR}
        """)
        lds_spin(p, "L_w0" + tag, f"v{CKO}", CK, "4", 52)
        stamp(p, 5)
        p(f"""
        ds_read_b128 {vr(Q,4)}, v{VQA}
        ds_read_b128 {vr(Q+4,4)}, v{VQA} offset:1024
        ds_read_b128 {vr(KF,4)}, v{VCUR}
        ds_read_b128 {vr(KF+4,4)}, v{VCUR} offset:1024
        ds_read_b64 {vr(T_TAG,2)}, v{CKO} offset:8
        v_add_u32 v{VKV}, s13, v{VLN}
        v_mov_b32 v{VCN}, s15
        v_xor_b32 v{VCO}, 128, v{VCN}
        v_mov_b32 v{VONE}, 1
        v_mov_b32 v{VONE+1}, 0
        s_waitcnt lgkmcnt(0)
        {MFMA} {vr(S0,16)}, {vr(KF,4)}, {vr(Q,4)}, 0
        {MFMA} {vr(S0,16)}, {vr(KF+4,4)}, {vr(Q+4,4)}, {vr(S0,16)}
        ds_read_b128 {vr(KF,4)}, v{VCUR} offset:4096
        ds_read_b128 {vr(KF+4,4)}, v{VCUR} offset:5120
        ds_read_b128 {vr(VF+4,4)}, v{VCUR} offset:3072
        ds_read_b128 {vr(VF,4)}, v{VCUR} offset:2048
        """)

    def fillers(pre, post, pub=False):
        for i in pre:
            p(i)
        f = {}
        slots = [(0, 0), (0, 1), (0, 2), (0, 3), (1, 0)]
        for k, sl in enumerate(slots):
            f[sl] = "\n".join(post[len(post) * k // 5:len(post) * (k + 1) // 5]) + "\n"
        f[(0, 0)] = ("s_waitcnt vmcnt(0)\n" if pub else "") + "s_barrier\n" + f[(0, 0)]
        return f
    VL16 = VLN

    def phase(k, mf, rd, sc, sp, extra=""):
        if k % 2 == 0:
            p("s_waitcnt lgkmcnt(2)")
        if mf:
            p(mf)
        p(rd)
        src, pk = (E3, 3) if k == 0 else (sc + 4 * (k - 1), k - 1)
        dst = E3 if k == 3 else sc + 4 * k
        e = [f"v_exp_f32 v{dst+i}, v{sc+4*k+i}" for i in range(4)]
        c = [f"v_cvt_pk_bf16_f32 v{PP+2*pk+i}, v{src+2*i}, v{src+2*i+1}" for i in range(2)]
        for x in (e[0], c[0], e[1], c[1]) if sp is not None else (e[0], e[1]):
            p(x)
        if extra.strip():
            p(extra)
        p(e[2]); p(e[3])

    def ta(u, off):
        return f"v{VCUR} offset:{u*4096+off}" if u < 4 else f"v{VNXT} offset:{(u-4)*4096+off}"

    def body(first, tag, fil=None):
        fil = fil or {}
        T = T_TAG
        sig = f"""
        s_mov_b64 exec, 1
        {'s_memtime s[54:55]' + chr(10) + 's_waitcnt lgkmcnt(0)' + chr(10) + 's_sub_u32 s12, s12, s54' if ENV('SPINC') == '2' else ''}
        {'' if (first or ENV('NOSIGW')) else 's_waitcnt vmcnt(0)'}
        {'s_memtime s[54:55]' + chr(10) + 's_waitcnt lgkmcnt(0)' + chr(10) + 's_add_u32 s12, s12, s54' if ENV('SPINC') == '2' else ''}
        ds_add_u64 v{VCN}, {vr(VONE,2)}
        s_mov_b64 exec, -1
        """
        for u in range(4):
            sc, sn = (S0, S1) if u % 2 == 0 else (S1, S0)
            if u == 2:
                p(f"""
                s_waitcnt lgkmcnt(1)
                v_cmp_ne_u64 vcc, s[50:51], {vr(CK,2)}
                s_add_u32 m0, s47, s13
                s_cmp_lg_u64 vcc, 0
                s_cbranch_scc1 L_a_spin{tag}
                L_a_go{tag}:
                """)
                if BAL:
                    p(f"""
                    v_cmp_eq_u32 vcc, 4, v{CKO}
                    s_setprio 0
                    s_cmp_eq_u64 vcc, 0
                    s_cbranch_scc1 L_a_pr{tag}
                    s_setprio 1
                    L_a_pr{tag}:
                    """)
                if SPR and not first:
                    p("s_cmp_le_u32 s48, 5\ns_cselect_b64 vcc, -1, 0")
                if not SPR:
                    if not first:
                        p(f"s_cmp_gt_u32 s48, 5\ns_cbranch_scc1 L_a_nofill")
                    for q in range(4):
                        p(f"buffer_load_dwordx4 v{VKV}, s[36:39], s14 offen offset:{q*1024} sc1 lds")
                    p(f"s_add_u32 s14, s14, {KVS}")
                    if not first:
                        p.label("L_a_nofill")

            def dma(q):
                if not SPR:
                    return ""
                t = f"buffer_load_dwordx4 v{VKV}, s[36:39], s14 offen offset:{q*1024} sc1 lds\n"
                if not first:
                    t = f"s_cbranch_vccz L_a_nf{q}\n" + t + f"L_a_nf{q}:\n"
                return t
            phase(0, f"{MFMA} {vr(sn,16)}, {vr(KF,4)}, {vr(Q,4)}, 0", f"ds_read_b128 {vr(KF,4)}, {ta(u+2, 0)}", sc, None if (first and u == 0) else sn,
                  dma(2 * (u - 2)) if u >= 2 else fil.get((u, 0), ""))
            phase(1, f"{MFMA} {vr(sn,16)}, {vr(KF+4,4)}, {vr(Q+4,4)}, {vr(sn,16)}",
                  f"ds_read_b128 {vr(KF+4,4)}, {ta(u+2, 1024)}", sc, sn, fil.get((u, 1), ""))
            phase(2, None if (first and u == 0) else f"{MFMA} {vr(O,16)}, {vr(VF+4,4)}, {vr(PP+4,4)}, {vr(O,16)}",
                  f"ds_read_b128 {vr(VF+4,4)}, {ta(u, 3072)}", sc, sn,
                  fil.get((u, 2), "") + "\n" + ((f"ds_read_b64 {vr(CK,2)}, v{VCN}" + (f"\nds_read_b32 v{CKO}, v{VCO}" if BAL else "")) if u == 1 else dma(2 * (u - 2) + 1) if u >= 2 else ""))
            ex = (sig if u == 0 else "") + fil.get((u, 3), "")
            if u == 3:
                ex = f"""
                v_mov_b32 v{VCUR}, v{VNXT}
                v_add_u32 v{VNXT}, s47, v{VL16}
                v_add_u32 v{VCN}, 8, v{VCN}
                v_xor_b32 v{VCO}, 128, v{VCN}
                s_add_u32 s47, s47, {2*SLOT}
                s_cmp_ge_u32 s47, {6*SLOT}
                s_cselect_b32 s3, {6*SLOT}, 0
                s_sub_u32 s47, s47, s3
                """
                if SPR:
                    ex += f"s_add_u32 s14, s14, {KVS}\n"
                if not first:
                    ex += "s_add_u32 s48, s48, 1\ns_cmp_lt_u32 s48, 8"
                else:
                    ex += f"""
                    s_mov_b64 exec, 1
                    v_mov_b32 v{CKO}, {CNT_H}
                    s_waitcnt vmcnt(4)
                    ds_add_rtn_u32 v{CK}, v{CKO}, v{VONE}
                    s_waitcnt lgkmcnt(0)
                    v_cmp_eq_u32 vcc, 7, v{CK}
                    s_and_b64 exec, exec, vcc
                    s_cbranch_execz L_nh{tag}
                    buffer_store_dwordx2 {vr(T,2)}, off, s[40:43], s73 sc1
                    L_nh{tag}:
                    s_mov_b64 exec, -1
                    v_mov_b32 v{VONE+1}, 1
                    """
            phase(3, f"{MFMA} {vr(O,16)}, {vr(VF,4)}, {vr(PP,4)}, {'0' if (first and u == 0) else vr(O,16)}",
                  f"ds_read_b128 {vr(VF,4)}, {ta(u+1, 2048)}", sc, sn, ex)
    p("s_cmp_eq_u32 s8, 1\ns_cbranch_scc1 L_btype")
    stream("A", setup_s)
    start("a")
    es = epi_s(A0)
    body(True, "fa", fillers(es[:12], es[12:], True))
    p("s_branch L_aloop")
    p.label("L_btype")
    stream("B", setup_s)
    start("b")
    body(True, "fb", fillers(prod(A1, A0), hstore(A1)))
    T = T_TAG
    p(".p2align 6")
    p.label("L_aloop")
    body(False, "")
    p("s_cbranch_scc1 L_aloop\ns_branch L_a_done")
    for tag in ("fa", "fb", ""):
        p.label("L_a_spin" + tag)
        if ENV("SPINC"):
            p("s_memtime s[54:55]\ns_waitcnt lgkmcnt(0)\ns_sub_u32 s56, s56, s54")
        lds_spin(p, "L_a_sp" + tag, f"v{VCN}", CK, "s[50:51]", 52, wide=True)
        if ENV("SPINC"):
            p("s_memtime s[54:55]\ns_waitcnt lgkmcnt(0)\ns_add_u32 s56, s56, s54\ns_add_u32 s57, s57, 1")
        p("s_branch L_a_go" + tag)
    p.label("L_a_done")
    stamp(p, 6)
    if ENV("SPINC"):
        p("s_add_u32 s82, s56, 1\ns_add_u32 s84, s57, 1\ns_add_u32 s86, s12, 1")
    p(f"""
    v_cvt_pk_bf16_f32 v{PP+6}, v{E3}, v{E3+1}
    v_cvt_pk_bf16_f32 v{PP+7}, v{E3+2}, v{E3+3}
    s_waitcnt lgkmcnt(0)
    {MFMA} {vr(O,16)}, {vr(VF+4,4)}, {vr(PP+4,4)}, {vr(O,16)}
    s_lshl_b32 s46, s{S_RG}, 12
    s_lshl_b32 s3, s{S_HF}, 14
    s_add_u32 s46, s46, s3
    v_add_u32 v3, s46, v{VL16}
    s_lshl_b32 s3, s{S_RG}, 3
    s_add_u32 s3, s3, {CNT_COMB}
    v_mov_b32 v{VCN}, s3
    s_mov_b64 exec, 1
    ds_add_rtn_u32 v{CK}, v{VCN}, v{VONE}
    s_mov_b64 exec, -1
    s_waitcnt lgkmcnt(0)
    v_readfirstlane_b32 s3, v{CK}
    s_cmp_lg_u32 s3, 0
    s_cbranch_scc1 L_acomb
    """)
    for i in range(4):
        p(f"ds_write_b128 v3, {vr(O+4*i,4)} offset:{1024*i}")
    p(f"""
    s_mov_b64 exec, 1
    s_waitcnt lgkmcnt(0)
    ds_add_u32 v{VCN}, v{VONE} offset:4
    s_waitcnt lgkmcnt(0)
    """)
    endpgm(p)
    p.label("L_acomb")
    p(f"v_xor_b32 v3, {SLOT}, v3")
    lds_spin(p, "L_cw", f"v{VCN} offset:4", CK, "1", 52)
    for i in range(4):
        p(f"ds_read_b128 {vr(S0+4*i,4)}, v3 offset:{1024*i}")
    for q in range(4):
        p(f"s_waitcnt lgkmcnt({3-q})")
        for i in range(4 * q, 4 * q + 4):
            p(f"v_add_f32 v{O+i}, v{O+i}, v{S0+i}")
    p.label("L_afin")
    T2 = S1
    p(f"""
    s_mov_b32 s50, {f32(2.0**-40)}
    s_mov_b32 s51, {f32(2.0**100)}
    s_bitcmp1_b32 s7, 0
    s_cbranch_scc1 L_f_odd
    v_mov_b32 v{T2}, v{O+12}
    v_mov_b32 v{T2+1}, v{O+12}
    v_permlane32_swap_b32 v{T2}, v{T2+1}
    s_mov_b32 exec_lo, 0
    v_mov_b32 v{O+12}, 0
    v_mov_b32 v{O+13}, 0
    v_mov_b32 v{O+14}, 0
    v_mov_b32 v{O+15}, 0
    s_branch L_f_join
    L_f_odd:
    v_mov_b32 v{T2}, v{O}
    v_mov_b32 v{T2+1}, v{O}
    v_permlane32_swap_b32 v{T2+1}, v{T2}
    s_mov_b32 exec_hi, 0
    v_mov_b32 v{O}, 0
    v_mov_b32 v{O+1}, 0
    v_mov_b32 v{O+2}, 0
    v_mov_b32 v{O+3}, 0
    L_f_join:
    s_mov_b64 exec, -1
    v_rcp_f32 v{T2+2}, v{T2+1}
    v_cmp_ge_f32 s[52:53], v{T2+1}, s50
    v_cmp_le_f32 s[54:55], v{T2+1}, s51
    """)
    for i in range(16):
        p(f"v_mul_f32 v{O+i}, v{O+i}, v{T2+2}")
    p(f"v_mul_f32 v{T2+3}, 0, v{O}")
    for i in range(1, 16):
        p(f"v_fmac_f32 v{T2+3}, 0, v{O+i}")
    pack16(p, PP, O)
    p(f"""
    v_cmp_eq_f32 s[56:57], 0, v{T2+3}
    s_and_b64 s[52:53], s[52:53], s[54:55]
    s_lshl_b32 s45, s11, 15             ; rowtile*32K
    s_lshl_b32 s46, s7, 11              ; head*2K
    s_add_u32 s45, s45, s46
    s_add_u32 s45, s45, {O_OFF}
    s_and_b64 s[52:53], s[52:53], s[56:57]
    s_cmp_eq_u64 s[52:53], -1
    s_cbranch_scc1 L_aok
    s_cmp_eq_u32 s49, 0x5afe
    s_cbranch_scc0 L_fallback
    """)
    p.label("L_aok")
    p(f"""
    buffer_store_dwordx4 {vr(PP,4)}, v{VL16}, s[40:43], s45 offen sc1
    buffer_store_dwordx4 {vr(PP+4,4)}, v{VL16}, s[40:43], s45 offen offset:1024 sc1
    s_lshl_b32 s45, s11, 11
    s_lshl_b32 s46, s7, 7
    s_add_u32 s45, s45, s46
    s_add_u32 s45, s45, {OFL}
    s_mov_b64 exec, 1
    s_waitcnt vmcnt(0)
    buffer_store_dwordx2 {vr(T,2)}, off, s[40:43], s45 sc1
    """)
    endpgm(p)
    p.label("L_fallback")
    M, MN, AL, TM, T3 = 104, 105, 106, 107, 108
    p("s_mov_b32 s49, 0x5afe")
    for i in range(16):
        p(f"v_mov_b32 v{O+i}, 0")
    p(f"v_mov_b32 v{M}, 0xff800000\ns_mov_b32 s14, 0")
    p.label("L_fbloop")
    p(f"""
    buffer_load_dwordx4 {vr(KF,4)}, v{VL16}, s[36:39], s14 offen sc1
    buffer_load_dwordx4 {vr(KF+4,4)}, v{VL16}, s[36:39], s14 offen offset:1024 sc1
    buffer_load_dwordx4 {vr(VF,4)}, v{VL16}, s[36:39], s14 offen offset:2048 sc1
    buffer_load_dwordx4 {vr(VF+4,4)}, v{VL16}, s[36:39], s14 offen offset:3072 sc1
    s_waitcnt vmcnt(2)
    {MFMA} {vr(S0,16)}, {vr(KF,4)}, {vr(Q,4)}, 0
    {MFMA} {vr(S0,16)}, {vr(KF+4,4)}, {vr(Q+4,4)}, {vr(S0,16)}
    v_max3_f32 v{TM}, v{S0}, v{S0+1}, v{S0+2}
    """)
    for i in range(3, 15, 2):
        p(f"v_max3_f32 v{TM}, v{S0+i}, v{S0+i+1}, v{TM}")
    p(f"""
    v_max_f32 v{TM}, v{S0+15}, v{TM}
    v_mov_b32 v{T3}, v{TM}
    v_permlane32_swap_b32 v{TM}, v{T3}
    v_max3_f32 v{MN}, v{TM}, v{T3}, v{M}
    v_sub_f32 v{AL}, v{M}, v{MN}
    v_exp_f32 v{AL}, v{AL}
    v_mov_b32 v{M}, v{MN}
    """)
    for i in range(16):
        p(f"v_sub_f32 v{S0+i}, v{S0+i}, v{MN}")
    for i in range(16):
        p(f"v_exp_f32 v{S0+i}, v{S0+i}")
    for i in range(16):
        p(f"v_mul_f32 v{O+i}, v{O+i}, v{AL}")
    pack16(p, PP, S0)
    p(f"""
    s_waitcnt vmcnt(0)
    {MFMA} {vr(O,16)}, {vr(VF,4)}, {vr(PP,4)}, {vr(O,16)}
    {MFMA} {vr(O,16)}, {vr(VF+4,4)}, {vr(PP+4,4)}, {vr(O,16)}
    s_add_u32 s14, s14, 4096
    s_cmp_lt_u32 s14, 262144
    s_cbranch_scc1 L_fbloop
    s_branch L_afin
    """)


def gen_s(p, S_W):
    VL16, VQ, VF_, VS_ = 1, 2, 3, 7
    p(f"""
    s_sub_u32 s4, s{S_W}, 8
    s_and_b32 s9, s4, 1
    s_lshr_b32 s10, s4, 1
    v_bfe_u32 v13, v0, 2, 3
    s_lshl_b32 s12, s4, 3
    v_add_u32 v13, s12, v13
    v_lshrrev_b32 v14, 5, v0
    v_and_b32 v15, 3, v0
    v_lshlrev_b32 v15, 4, v15
    v_mul_u32_u24 v{VF_}, 3584, v13
    v_add_u32 v{VF_}, v{VF_}, v15
    v_lshl_add_u32 v{VF_}, v14, 6, v{VF_}
    v_mul_u32_u24 v{VQ}, 2688, v13
    v_mul_u32_u24 v14, 48, v14
    v_add3_u32 v{VQ}, v{VQ}, v14, v15
    v_lshrrev_b32 v{VS_}, 2, v0
    s_lshl_b32 s12, s10, 4
    v_add_u32 v{VS_}, s12, v{VS_}
    v_mul_u32_u24 v{VS_}, 3584, v{VS_}
    v_add_u32 v{VS_}, v{VS_}, v15
    v_lshlrev_b32 v{VL16}, 4, v0
    s_lshl_b32 s56, s4, 10
    s_mul_i32 s64, s7, 112
    s_add_u32 s65, s64, 896
    s_cmp_eq_u32 s8, 1
    s_cselect_b32 s12, 0, 1792
    s_cselect_b32 s13, 0, 256
    s_add_u32 s64, s64, s12
    s_mul_i32 s66, s7, 384
    s_add_u32 s66, s66, s13
    s_lshl_b32 s67, s7, 6
    s_add_u32 s67, s67, {48*64}
    """)
    p.label("L_ld_p")
    if ENV("CODEPF", "1") == "1":
        p(f"""
        s_sub_u32 s12, s4, 1
        s_cmp_gt_u32 s12, 1
        s_cbranch_scc1 L_nocpf
        s_lshl_b32 s12, s12, 5
        s_add_u32 s12, s12, s6
        s_lshl_b32 s12, s12, 10
        s_cmp_ge_u32 s12, L_code_end-{KN}-1024
        s_cbranch_scc1 L_nocpf
        s_getpc_b64 s[14:15]
        L_pcref:
        s_sub_u32 s14, s14, L_pcref-{KN}
        s_subb_u32 s15, s15, 0
        s_add_u32 s14, s14, s12
        s_addc_u32 s15, s15, 0
        global_load_dwordx4 v[48:51], v{VL16}, s[14:15]
        L_nocpf:
        """)
    p("s_waitcnt lgkmcnt(0)")
    srd(p, 36, P_WQKV, 448 * 2688)
    srd(p, 40, P_WG, 448 * 3584)
    PF = 24
    VFQ, TGV, FL = 6, 4, 8
    PB = int(ENV("PB", 14))
    EVD = int(ENV("EVD", 2))

    def qkv_poll(emit):
        return emit(f"buffer_load_dwordx2 {vr(FL,2)}, v{VFQ}, s[44:47], s62 offen sc1")

    def late_setup(sfx):
        if ENV("TLB", "1") != "0":
            TA = 44
            p(f"""
            s_cmp_lg_u32 s4, 0
            s_cbranch_scc1 L_notlb{sfx}
            v_min_u32 v{TA}, {WS_USED // (2*MB) - 1}, v0
            v_lshlrev_b32 v{TA}, 21, v{TA}
            v_mov_b32 v{TA+1}, s{P_WS+1}
            v_add_co_u32 v{TA}, vcc, s{P_WS}, v{TA}
            v_addc_co_u32 v{TA+1}, vcc, 0, v{TA+1}, vcc
            """)
            bufs = [(P_WG, 448 * 3584), (P_WU, 448 * 3584), (P_WD, 1792 * 896), (P_WO, 448 * 896), (P_OUT, 2048 * 896), (P_DBG, 256)]
            for i, (b, n) in enumerate(bufs):
                p(f"""
                v_writelane_b32 v{TA}, s{b}, {16+2*i}
                v_writelane_b32 v{TA+1}, s{b+1}, {16+2*i}
                s_add_u32 s12, s{b}, {n-4}
                s_addc_u32 s13, s{b+1}, 0
                v_writelane_b32 v{TA}, s12, {17+2*i}
                v_writelane_b32 v{TA+1}, s13, {17+2*i}
                """)
            p(f"global_load_dword v{TA+2}, {vr(TA,2)}, off sc1")
            p.label("L_notlb" + sfx)
        srd(p, 72, P_WU, 448 * 3584)
        srd(p, 48, P_WD, 1792 * 896)
        srd(p, 52, P_WO, 448 * 896)
        srd(p, 44, P_WS, WS_USED)
        srd(p, 96, P_DBG, 256)
        p(f"""
        s_cmp_eq_u32 s9, 0
        s_cselect_b32 s76, s{P_WG}, s{P_WU}
        s_cselect_b32 s77, s{P_WG+1}, s{P_WU+1}
        s_mov_b32 s78, {448*3584}
        s_mov_b32 s79, 0x20000
        s_lshl_b32 s57, s10, 11
        s_lshl_b32 s12, s9, 10
        s_add_u32 s57, s57, s12
        s_lshl_b32 s68, s7, 12
        s_lshl_b32 s12, s62, 7
        s_add_u32 s68, s68, s12
        s_lshl_b32 s12, s8, 11
        s_add_u32 s68, s68, s12
        s_add_u32 s68, s68, {QKVF}
        s_lshl_b32 s69, s62, 12
        s_lshl_b32 s12, s7, 9
        s_add_u32 s69, s69, s12
        s_xor_b32 s12, s8, 1
        s_lshl_b32 s12, s12, 7
        s_add_u32 s69, s69, s12
        s_add_u32 s69, s69, {HFL}
        s_mov_b32 s58, s69
        s_lshl_b32 s62, s5, 12
        s_add_u32 s62, s62, {QKVF}
        s_and_b32 s63, s6, 15
        s_add_u32 s63, s63, 16
        v_mov_b32 v{VFQ}, s63
        v_cmp_gt_u32 vcc, 16, v0
        v_cndmask_b32 v{VFQ}, v{VFQ}, v0, vcc
        v_lshlrev_b32 v{VFQ}, 7, v{VFQ}
        """)

    def stream(kinds):
        spec = {"V": (36, VQ, 64, 0), "Q": (36, VQ, 64, 0), "K": (36, VQ, 65, 0), "G": (40, VF_, 66, 0), "U": (72, VF_, 66, 0),
                "g": (40, VF_, 66, 128), "u": (72, VF_, 66, 128), "S": (76, VS_, 67, 0)}
        stages = [[(kinds[q >> 1], 64 * c + 32 * (q & 1)) for q in range(4)] for c in range(7)]
        stages += [[(kinds[ps], 128 * sl + 32 * q) for q in range(2 if sl == 3 else 4)] for ps in range(2, 5) for sl in range(4)]
        vm = VM(p)
        last = {}
        issued = 0
        nq = 0

        def issue1():
            nonlocal issued, nq
            kind, row = stages[issued][nq]
            s_, v, col, add = spec[kind]
            stride = 2688 if s_ == 36 else 3584
            p(f"s_add_u32 m0, {'s57' if kind == 'S' else 's56'}, {phys(issued)*SLOT + nq*4096}")
            p(f"s_add_u32 s13, s{col}, {row*stride + add}")
            if ENV("NOFILL"):
                last[issued] = None
            else:
                last[issued] = vm.op(f"buffer_load_dwordx4 v{v}, s[{s_}:{s_+3}], s13 offen lds")
            nq += 1
            if nq == len(stages[issued]):
                nq = 0
                issued += 1

        def issue():
            c = issued
            while issued == c:
                issue1()
        if TL:
            p("v_mov_b32 v60, 0")
        tl(p, 0)
        def wpf():
            p(f"s_lshl_b32 s13, s2, 2\ns_add_u32 s13, s13, s4\ns_lshl_b32 s13, s13, 10\ns_add_u32 s14, s13, {1 << 20}")
            mats = (36, 40, 72) if ENV("CPF", "0") == "0" else (72,) if ENV("CPF") == "2" else ()
            for r in mats + ((48,) if ENV("WDPF", "0") == "1" else ()):
                vm.op(f"buffer_load_dwordx4 {vr(PF,4)}, v{VL16}, s[{r}:{r+3}], s13 offen")
                vm.op(f"buffer_load_dwordx4 {vr(PF,4)}, v{VL16}, s[{r}:{r+3}], s14 offen")
        issue(); issue()
        issue1(); issue1(); issue1()
        late_setup(kinds)
        if ENV("WPF", "1") != "0":
            wpf()
        tl(p, 1)
        dbg = ENV("SDBG")
        p(f"s_barrier\ns_barrier\ns_setprio {ENV('SPRIO', 0)}")
        if dbg: stamp(p, 1)
        tl(p, 2)
        issue(); issue()
        vm.need(last[1])
        tl(p, 3)
        p("s_barrier")
        tl(p, 4)
        if dbg: stamp(p, 2)
        issue(); issue()
        if dbg: stamp(p, 3)
        for i in range(1, PB + EVD):
            assert issued > i + 1
            vm.need(last[i + 1])
            tl(p, 3 + 2 * i)
            p("s_barrier")
            tl(p, 4 + 2 * i)
            bg = (8 * i - 1) if i <= 7 else 56 + 28 * ((i - 8) // 4) + (7, 15, 23, 27)[(i - 8) % 4]
            pubs = {79: 68, 107: 69} if kinds[0] == "Q" else {int(ENV("KB", 83)): 68}
            if bg in pubs:
                p(f"s_cmp_lg_u32 s4, 0\ns_cbranch_scc1 L_np{kinds}{i}\ns_mov_b64 exec, 1\n"
                  f"buffer_store_dwordx2 {vr(TGV,2)}, off, s[44:47], s{pubs[bg]} sc1\ns_mov_b64 exec, -1\nL_np{kinds}{i}:")
            budget = int(ENV("BUD", 5)) if (i < 7 or (i - 7) % 4 != 3) else 2
            while budget > 0 and issued < min(NST, max(10, i + 10)):
                budget -= 1
                issue1()
            if i == 2:
                tagop = vm.op(f"buffer_load_dwordx2 {vr(TGV,2)}, off, s[96:99], 0 sc1")
            if i == 7:
                vm.need(tagop)
                p(f"""
                s_mov_b32 s12, {SPIN_MAX}
                L_tq{kinds}:
                v_cmp_ne_u32 vcc, 0, v{TGV}
                s_sub_u32 s12, s12, 1
                s_cbranch_scc1 L_tr{kinds}
                s_cmp_lg_u64 vcc, 0
                s_cbranch_scc1 L_tr{kinds}
                buffer_load_dwordx2 {vr(TGV,2)}, off, s[96:99], 0 sc1
                s_waitcnt vmcnt(0)
                s_branch L_tq{kinds}
                L_tr{kinds}:
                """)
            if i == 10:
                p(f"""
                s_cmp_lg_u32 s4, 0
                s_cbranch_scc1 L_noinit{kinds}
                v_lshlrev_b32 v22, 2, v0
                v_add_u32 v22, {CNT}, v22
                v_mov_b32 v23, 0
                ds_write_b32 v22, v23
                v_mov_b32 v22, {CNT_TAG}
                s_waitcnt lgkmcnt(0)
                ds_write_b64 v22, {vr(TGV,2)}
                s_waitcnt lgkmcnt(0)
                L_noinit{kinds}:
                """)
            if i == PB:
                pollid = qkv_poll(vm.op)
            if i == int(ENV('PFI', 99)):
                PFMODE = ENV("PFMODE", "chip")
                if PFMODE == "chip":
                    p(f"s_lshl_b32 s13, s2, 2\ns_add_u32 s13, s13, s4\ns_lshl_b32 s14, s13, 11\ns_lshl_b32 s13, s13, 9")
                    vm.op(f"buffer_load_dwordx4 {vr(PF,4)}, v{VL16}, s[48:51], s14 offen")
                    vm.op(f"buffer_load_dwordx4 {vr(PF+4,4)}, v{VL16}, s[48:51], s14 offen offset:1024")
                    vm.op(f"buffer_load_dwordx4 {vr(PF+8,4)}, v{VL16}, s[52:55], s13 offen")
            if ENV("PFMODE", "chip") == "xcd" and 5 <= i < 9:
                k = i - 5
                if k == 0:
                    p(f"s_lshl_b32 s13, s6, 2\ns_add_u32 s13, s13, s4\ns_mul_i32 s57, s13, {13*1024}\ns_lshl_b32 s58, s13, 12")
                    for q in range(4):
                        vm.op(f"buffer_load_dwordx4 {vr(PF+4*q,4)}, v{VL16}, s[52:55], s58 offen offset:{q*1024}")
                    vm.op(f"buffer_load_dwordx4 {vr(PF+16,4)}, v{VL16}, s[48:51], s57 offen")
                    p("s_add_u32 s57, s57, 1024")
                else:
                    for q in range(4):
                        vm.op(f"buffer_load_dwordx4 {vr(PF+4*q,4)}, v{VL16}, s[48:51], s57 offen offset:{q*1024}")
                    p("s_add_u32 s57, s57, 4096")
        assert issued == NST
    p("s_cmp_eq_u32 s8, 1\ns_cbranch_scc1 L_ld_b")
    stream("VKGUS")
    p("s_branch L_ld_done")
    p.label("L_ld_b")
    stream("QGUgu")
    p.label("L_ld_done")
    if not ENV("SDBG"):
        stamp(p, 1)
    tl_dump(p)
    if ENV("STOPB"):
        endpgm(p)
    p(f"""
    s_add_u32 s65, s8, s4
    s_lshr_b32 s7, s6, 4
    s_lshl_b32 s8, s5, 1
    s_add_u32 s7, s7, s8                ; head
    s_and_b32 s8, s6, 15                ; q block
    """)
    VKV = 2
    p(f"""
    s_lshl_b32 s12, s7, 18
    s_add_u32 s12, s12, {KV_OFF}
    s_lshl_b32 s13, s4, 12              ; s*4096
    v_add_u32 v{VKV}, s13, v{VL16}
    s_lshl_b32 s66, s7, 17
    s_lshl_b32 s3, s8, 13
    s_add_u32 s66, s66, s3
    s_lshl_b32 s3, s4, 11
    s_add_u32 s66, s66, s3
    s_add_u32 s66, s66, {QF_OFF}
    s_add_u32 s67, s3, {QL}
    s_mov_b32 s68, 0                    ; ready
    s_mov_b32 s69, 0
    s_mov_b32 s70, {PB+EVD}
    s_mov_b32 s71, {SPIN_MAX}
    s_mov_b32 s64, s13
    """)
    srd(p, 36, P_WS, 262144, "s12")
    srd(p, 40, P_WS, WS_USED)
    p.label("L_pl")
    p(f"""
    s_cmp_lg_u32 s68, 0
    s_cbranch_scc1 L_pl_ready
    L_pl_eval:
    s_waitcnt vmcnt(0)
    v_cmp_eq_u64 s[60:61], {vr(FL,2)}, {vr(TGV,2)}
    """)
    p(f"""
    s_sub_u32 s71, s71, 1
    s_cselect_b32 s68, 1, 0
    s_cmp_eq_u64 s[60:61], -1
    s_cselect_b32 s68, 1, s68
    s_cmp_lg_u32 s68, 0
    s_cbranch_scc1 L_pl_q
    """)
    qkv_poll(lambda t: p(t))
    p(f"""
    s_branch L_pl_bar
    L_pl_q:
    s_mov_b32 m0, s67
    s_nop 0
    buffer_load_dwordx4 v{VL16}, s[40:43], s66 offen sc1 lds
    buffer_load_dwordx4 v{VL16}, s[40:43], s66 offen offset:1024 sc1 lds
    L_pl_ready:
    s_add_u32 s3, s69, 15
    s_cmp_gt_u32 s3, s70
    s_cbranch_scc1 L_pl_bar
    s_cmp_ge_u32 s69, 4
    s_cbranch_scc1 L_pl_bar
    s_lshl_b32 s14, s69, 14
    s_mov_b32 m0, s64
    s_add_u32 s69, s69, 1
    buffer_load_dwordx4 v{VKV}, s[36:39], s14 offen sc1 lds
    buffer_load_dwordx4 v{VKV}, s[36:39], s14 offen offset:1024 sc1 lds
    buffer_load_dwordx4 v{VKV}, s[36:39], s14 offen offset:2048 sc1 lds
    buffer_load_dwordx4 v{VKV}, s[36:39], s14 offen offset:3072 sc1 lds
    s_add_u32 s64, s64, {SLOT}
    s_branch L_pl_ready
    L_pl_bar:
    s_cmp_ge_u32 s70, 19
    s_cbranch_scc1 L_pl_nobar
    s_barrier
    s_add_u32 s70, s70, 1
    s_branch L_pl
    L_pl_nobar:
    s_cmp_ge_u32 s69, 4
    s_cbranch_scc1 L_pl_done
    s_sleep 4
    s_branch L_pl
    L_pl_done:
    v_mov_b32 v{FL}, {CNT}
    v_mov_b32 v{FL+1}, 1
    s_mov_b64 exec, 1
    s_waitcnt vmcnt(8)
    ds_add_u32 v{FL}, v{FL+1} offset:96
    s_waitcnt vmcnt(0)
    ds_add_u32 v{FL}, v{FL+1} offset:4
    ds_add_u32 v{FL}, v{FL+1} offset:132
    s_mov_b64 exec, -1
    s_mul_i32 s14, s8, {12*1024}
    s_mul_i32 s3, s4, {3*1024}
    s_add_u32 s14, s14, s3
    s_add_u32 s14, s14, {2*KVS}
    buffer_load_dwordx4 {vr(FL+4,4)}, v{VL16}, s[36:39], s14 offen sc1
    buffer_load_dwordx4 {vr(FL+4,4)}, v{VL16}, s[36:39], s14 offen offset:1024 sc1
    buffer_load_dwordx4 {vr(FL+4,4)}, v{VL16}, s[36:39], s14 offen offset:2048 sc1
    s_lshl_b32 s3, s2, 2
    s_add_u32 s3, s3, s4
    s_lshl_b32 s3, s3, 9
    buffer_load_dwordx4 {vr(FL+4,4)}, v{VL16}, s[52:55], s3 offen
    {"s_lshl_b32 s3, s3, 2" + chr(10) + f"buffer_load_dwordx4 {vr(FL+4,4)}, v{VL16}, s[48:51], s3 offen" + chr(10) + f"buffer_load_dwordx4 {vr(FL+4,4)}, v{VL16}, s[48:51], s3 offen offset:1024" if ENV("WDL", "1") == "1" else ""}
    s_barrier                           ; barrier(19)
    s_cmp_lg_u32 s65, 0
    s_cbranch_scc1 L_np19
    s_mov_b64 exec, 1
    buffer_store_dwordx2 {vr(TGV,2)}, off, s[40:43], s58 sc1
    s_mov_b64 exec, -1
    L_np19:
    s_cmp_ge_u32 s6, {0 if ENV("NODOWN") else 28}
    s_cbranch_scc1 L_s_end
    s_setprio {ENV("DPRIO0", 0)}
    """)
    stamp(p, 2)
    ACC, WF, HB = 8, 72, 88
    VD, VT0, VT1, VX = 2, 3, 6, 7
    GR, XF = 144, 160
    NRING = 7
    p(f"""
    s_and_b32 s9, s6, 3
    s_lshl_b32 s10, s5, 2
    s_add_u32 s9, s9, s10
    s_lshr_b32 s10, s6, 2
    s_lshr_b32 s11, s4, 1
    s_lshl_b32 s57, s9, 1
    s_add_u32 s57, s57, s11
    s_xor_b32 s58, s57, 1
    s_mul_i32 s3, s4, {12*2048}
    s_add_u32 s3, s3, {H_OFF}
    s_mul_i32 s60, s57, 114688
    s_add_u32 s60, s60, s3
    s_mul_i32 s61, s58, 114688
    s_add_u32 s61, s61, s3
    v_bfe_u32 v{VX}, v0, 2, 3
    v_mul_u32_u24 v{VX}, 896, v{VX}
    v_lshrrev_b32 v{VT0}, 5, v0
    v_lshl_add_u32 v{VX}, v{VT0}, 6, v{VX}
    v_and_b32 v{VT0}, 3, v0
    v_lshl_add_u32 v{VX}, v{VT0}, 4, v{VX}
    s_lshl_b32 s14, s10, 7
    v_add_u32 v{VD}, s14, v{VX}
    v_lshrrev_b32 v{VX}, 5, v0
    v_lshlrev_b32 v{VX}, 8, v{VX}
    v_bfe_u32 v{VT0}, v0, 2, 2
    v_lshl_add_u32 v{VX}, v{VT0}, 6, v{VX}
    v_bfe_u32 v{VT0}, v0, 4, 1
    v_lshl_add_u32 v{VX}, v{VT0}, 5, v{VX}
    v_and_b32 v{VT0}, 3, v0
    v_lshl_add_u32 v{VX}, v{VT0}, 3, v{VX}
    s_lshl_b32 s15, s4, 14
    s_add_u32 s15, s15, {PRIV}
    s_and_b32 s3, s4, 1
    s_lshl_b32 s3, s3, 9
    s_add_u32 s3, s3, s15
    v_add_u32 v{VT0}, s3, v{VX}
    v_xor_b32 v{VT1}, 512, v{VT0}
    s_mul_i32 s62, s4, {12*32*896}
    s_mul_i32 s63, s4, -10
    s_add_u32 s63, s63, 48
    s_lshl_b32 s64, s63, 11
    s_add_u32 s65, s64, s61
    s_add_u32 s64, s64, s60
    s_mul_i32 s63, s63, {32*896}
    s_add_u32 s63, s63, s62
    """)
    vm = VM(p)

    order = [0, 1, 6, 7, 4, 5, 10, 11, 2, 3, 8, 9, 12, 13]
    seg_end = [8, 16, 28]
    seg_mask = [0x11, 0x22, 0xCC]

    def wload(ks):
        sl = ks % NRING
        if ks >= 28:
            for o in range(2):
                p(f"s_add_u32 m0, s15, {sl*2048 + o*1024}")
                p(f"s_add_u32 s14, s67, {(16*sl + 8*o)*896}")
                vm.op(f"buffer_load_dwordx4 v{VD}, s[52:55], s14 offen lds")
            return
        t = order[ks >> 1]
        base, t = ("s62", t) if t < 12 else ("s63", t - 12)
        for o in range(2):
            p(f"s_add_u32 m0, s15, {sl*2048 + o*1024}")
            p(f"s_add_u32 s14, {base}, {(32*t + 16*(ks&1) + 8*o)*896}")
            if ENV("XNOW"):
                wid[ks] = None
                continue
            wid[ks] = vm.op(f"buffer_load_dwordx4 v{VD}, s[48:51], s14 offen lds")

    def hload(ks):
        sl = ks % NRING
        t = order[ks >> 1]
        (b0, b1), t = (("s60", "s61"), t) if t < 12 else (("s64", "s65"), t - 12)
        off = t * 2048 + (ks & 1) * 1024
        for r, b_ in enumerate((b0, b1)):
            if off >= 4096:
                p(f"s_add_u32 s14, {b_}, {off & ~4095}")
            if ENV("XNOH"):
                hid[ks] = None
                continue
            hid[ks] = vm.op(f"buffer_load_dwordx4 {vr(HB+8*sl+4*r,4)}, v{VL16}, s[40:43], {'s14' if off >= 4096 else b_} offen offset:{off & 4095} sc1")
    wid, hid = {}, {}
    VFA, FT = GR, GR + 2
    p(f"""
    v_and_b32 v{VFA}, 7, v0
    v_lshlrev_b32 v{VFA}, 7, v{VFA}
    s_lshr_b32 s66, s9, 1
    s_lshl_b32 s66, s66, 12
    s_lshl_b32 s3, s4, 10
    s_add_u32 s66, s66, s3
    s_add_u32 s66, s66, {HFL}
    s_mov_b32 s71, {SPIN_MAX}
    s_mul_i32 s67, s4, {112*896}
    v_and_b32 v{VX}, 31, v0
    s_lshl_b32 s14, s57, 5
    v_add_u32 v{VX}, s14, v{VX}
    v_mul_u32_u24 v{VX}, 896, v{VX}
    v_lshrrev_b32 v0, 5, v0
    v_lshl_add_u32 v{VX}, v0, 3, v{VX}
    s_and_b32 s14, s4, 1
    s_lshl_b32 s14, s14, 6
    s_lshl_b32 s3, s10, 7
    s_add_u32 s14, s14, s3
    v_add_u32 v0, s14, v{VX}
    """)
    VXO = 0
    srd(p, 44, P_X, 2048 * 896)
    for g4 in range(4):
        vm.op(f"buffer_load_dwordx2 {vr(XF+2*g4,2)}, v{VXO}, s[44:47], 0 offen offset:{16*g4}")

    def hpoll(k):
        label = f"L_hp{k}"
        p(f"s_mov_b32 s68, {seg_mask[k]}\ns_mov_b32 s69, 0\ns_mov_b32 s71, {SPIN_MAX}")
        p.label(label)
        p(f"""
        buffer_load_dwordx2 {vr(FT,2)}, v{VFA}, s[40:43], s66 offen sc1
        s_sub_u32 s71, s71, 1
        s_waitcnt vmcnt(0)
        v_cmp_eq_u64 vcc, {vr(FT,2)}, {vr(TGV,2)}
        s_cmp_eq_u32 s71, 0
        s_cbranch_scc1 {label}_x
        s_and_b64 vcc, vcc, s[68:69]
        s_cmp_eq_u64 vcc, s[68:69]
        s_cbranch_scc1 {label}_x
        s_sleep 8
        s_branch {label}
        {label}_x:
        """)
        vm.done = vm.n

    def trd(wb, base, a0=VT0, a1=VT1):
        for c, a in enumerate((a0, a1)):
            for b in range(2):
                p(f"ds_read_b64_tr_b16 {vr(wb+4*c+2*b,2)}, v{a} offset:{base + b*1024}")
    LOOK = int(ENV("LOOK", 3))
    seg, hn = 0, 0

    def hfill(done):
        nonlocal hn
        while hn < min(seg_end[seg], done + NRING):
            hload(hn)
            hn += 1
    for ks in range(2):
        wload(ks)
    hpoll(0)
    stamp(p, 3)
    for ks in range(NRING):
        hload(ks)
        if ks + 2 < NRING:
            wload(ks + 2)
    hn = NRING
    p(f"s_setprio {ENV('DPRIO', 0)}")
    trd(WF, 0)
    for ks in range(28):
        sl = ks % NRING
        wb = WF + 8 * (ks & 1)
        if ENV("DSW") and ks == int(ENV("DSW")):
            p(f"s_setprio {ENV('DSWP', 1)}")
        if ks + 1 < 28:
            vm.need(wid[ks + 1])
            trd(WF + 8 * ((ks + 1) & 1), ((ks + 1) % NRING) * 2048)
        vm.need(hid[ks])
        p(f"s_waitcnt lgkmcnt({4 if ks + 1 < 28 else 0})")
        for a in range(4):
            ac = vr(ACC + 16 * a, 16)
            if not ENV("XNOM"):
                p(f"{MFMA} {ac}, {vr(wb+4*(a&1),4)}, {vr(HB+8*sl+4*(a>>1),4)}, {'0' if ks == 0 else ac}")
            if ENV("DINT") and a == 0 and ks >= 1:
                hfill(ks)
            if ENV("DINT") and a == 1 and ks + NRING < 28:
                wload(ks + NRING)
        if seg < 2 and ks + 1 + LOOK == seg_end[seg]:
            seg += 1
            hpoll(seg)
            hfill(ks + 1)
        if not ENV("DINT"):
            hfill(ks + 1)
            wload(ks + NRING)
    stamp(p, 4)

    def send():
        p(f"v_add_u32 v{VX}, s15, v{VL16}")
        for a in range(1, 4):
            for r in range(4):
                p(f"ds_write_b128 v{VX}, {vr(ACC+16*a+4*r,4)} offset:{(a-1)*4096 + r*1024}")

    def ssync(k):
        p(f"v_mov_b32 v{WF+1}, {CNT_S0 + 4*k}\nv_mov_b32 v{WF+2}, 1")
        p(f"s_mov_b64 exec, 1\ns_waitcnt lgkmcnt(0)\nds_add_u32 v{WF+1}, v{WF+2}\ns_mov_b64 exec, -1")
        lds_spin(p, f"L_ss{k}", f"v{WF+1}", WF, "4", 71)

    def recv():
        for a in range(1, 4):
            p(f"s_xor_b32 s3, s4, {a}\ns_lshl_b32 s3, s3, 14\ns_add_u32 s3, s3, {PRIV + (a-1)*4096}\nv_add_u32 v{VX}, s3, v{VL16}")
            for r in range(4):
                p(f"ds_read_b128 {vr(ACC+16*a+4*r,4)}, v{VX} offset:{r*1024}")

    def addup():
        for a in range(1, 4):
            p(f"s_waitcnt lgkmcnt({4*(3-a)})")
            for r in range(16):
                p(f"v_add_f32 v{ACC+r}, v{ACC+r}, v{ACC+16*a+r}")
    d7 = ENV("SD7")
    if d7: stamp(p, 1)
    if ENV("DSW"):
        p(f"s_setprio {ENV('DSWE', 0)}")
    p(f"""
    v_mov_b32 v{WF+1}, {CNT}
    v_mov_b32 v{WF+2}, 1
    s_lshl_b32 s3, s4, 2
    v_mov_b32 v{WF+3}, s3
    v_add_u32 v{WF+3}, {CNT_S0 + 4}, v{WF+3}
    v_xor_b32 v{WF+4}, 8, v{WF+3}
    v_xor_b32 v{WF+5}, 4, v{WF+3}
    s_and_b32 s3, s4, 1
    s_lshl_b32 s3, s3, 13
    s_cmp_lt_u32 s4, 2
    s_cselect_b32 s14, 0, {SLOT}
    s_add_u32 s3, s3, s14
    s_add_u32 s3, s3, {4*SLOT}
    v_add_u32 v{VX}, s3, v{VL16}                    ; area(kq)
    v_xor_b32 v{VD}, {SLOT}, v{VX}                  ; area(kq^2)
    """)
    lds_spin(p, "L_g0", f"v{WF+1} offset:48", WF, "4", 71)
    lds_spin(p, "L_g1", f"v{WF+1} offset:176", WF, "4", 71)
    for i in range(8):
        p(f"ds_write_b128 v{VX}, {vr(ACC+32+4*i,4)} offset:{i*1024}")
    p(f"s_waitcnt lgkmcnt(0)\nds_write_b32 v{WF+3}, v{WF+2}")
    lds_spin(p, "L_h1", f"v{WF+4}", WF, "1", 71)
    if d7: stamp(p, 2)
    for i in (4, 5, 6, 7, 0, 1, 2, 3):
        p(f"ds_read_b128 {vr(ACC+32+4*i,4)}, v{VD} offset:{i*1024}")
    p("s_waitcnt lgkmcnt(4)")
    for r in range(16):
        p(f"v_add_f32 v{ACC+16+r}, v{ACC+16+r}, v{ACC+48+r}")
    p("s_waitcnt lgkmcnt(0)")
    for i in range(4):
        p(f"ds_write_b128 v{VD}, {vr(ACC+16+4*i,4)} offset:{i*1024}")
    for r in range(16):
        p(f"v_add_f32 v{ACC+r}, v{ACC+r}, v{ACC+32+r}")
    p(f"v_xor_b32 v{VX}, 8192, v{VX}\ns_waitcnt lgkmcnt(0)\nds_write_b32 v{WF+3}, v{WF+2} offset:16")
    if d7: stamp(p, 3)
    lds_spin(p, "L_h2", f"v{WF+5} offset:16", WF, "1", 71)
    p(f"v_xor_b32 v{VX}, {SLOT}, v{VX}")
    for i in range(4):
        p(f"ds_read_b128 {vr(ACC+16+4*i,4)}, v{VX} offset:{i*1024}")
    for i in range(4):
        p(f"s_waitcnt lgkmcnt({3-i})")
        for r in range(4 * i, 4 * i + 4):
            p(f"v_add_f32 v{ACC+r}, v{ACC+r}, v{ACC+16+r}")
    if d7: stamp(p, 4)
    T = ACC + 16
    p(f"s_mov_b32 s3, {f32(-LOG2E)}")
    for i in range(16):
        p(f"v_mul_f32 v{T+i}, s3, v{ACC+i}")
    for i in range(16):
        p(f"v_exp_f32 v{T+i}, v{T+i}")
    for i in range(16):
        p(f"v_add_f32 v{T+i}, 1.0, v{T+i}")
    for i in range(16):
        p(f"v_rcp_f32 v{T+i}, v{T+i}")
    GREG = [GR + i for i in range(16)]
    for i in range(16):
        p(f"v_mul_f32 v{GREG[i]}, v{ACC+i}, v{T+i}")
    if ENV("DUMP_G"):
        for i in range(8):
            p(f"v_cvt_pk_bf16_f32 v{T+i}, v{GREG[2*i]}, v{GREG[2*i+1]}")
        p(f"""
        s_mul_i32 s14, s57, {14*2048}
        s_lshl_b32 s3, s10, 1
        s_and_b32 s63, s4, 1
        s_add_u32 s3, s3, s63
        s_lshl_b32 s3, s3, 11
        s_add_u32 s14, s14, s3
        s_add_u32 s14, s14, {G_OFF}
        buffer_store_dwordx4 {vr(T,4)}, v{VL16}, s[40:43], s14 offen
        buffer_store_dwordx4 {vr(T+4,4)}, v{VL16}, s[40:43], s14 offen offset:1024
        """)
    p(f"""
    v_bfe_u32 v{WF+4}, v{VL16}, 4, 2
    v_lshlrev_b32 v{VX}, 7, v{WF+4}
    v_bfe_u32 v{WF}, v{VL16}, 6, 1
    v_lshl_add_u32 v{VX}, v{WF}, 11, v{VX}
    s_lshl_b32 s14, s9, 12
    s_lshl_b32 s3, s4, 9
    s_add_u32 s14, s14, s3
    s_add_u32 s14, s14, {OFL}
    s_mov_b32 s71, {SPIN_MAX}
    s_lshl_b32 s3, s4, 13
    s_add_u32 s3, s3, {O_OFF}
    s_lshl_b32 s60, s57, 15
    s_add_u32 s60, s60, s3
    s_lshl_b32 s61, s58, 15
    s_add_u32 s61, s61, s3
    s_add_u32 s62, s60, 4096
    s_add_u32 s63, s61, 4096
    v_lshlrev_b32 v{WF+4}, 3, v{WF+4}
    v_add_u32 v{WF+4}, {CNT_COMB}, v{WF+4}
    """)
    stamp(p, 5)
    p(f"s_setprio {ENV('DPRIO3', 0)}")
    p.label("L_op")
    p(f"""
    buffer_load_dwordx2 {vr(WF,2)}, v{VX}, s[40:43], s14 offen sc1
    s_sub_u32 s71, s71, 1
    s_waitcnt vmcnt(0)
    v_cmp_eq_u64 vcc, {vr(WF,2)}, {vr(TGV,2)}
    s_cmp_eq_u32 s71, 0
    s_cbranch_scc1 L_op_x
    s_cmp_eq_u64 vcc, -1
    s_cbranch_scc1 L_op_x
    ds_read_b32 v{WF+2}, v{WF+4}
    s_waitcnt lgkmcnt(0)
    v_cmp_eq_u32 vcc, 2, v{WF+2}
    s_cmp_eq_u64 vcc, -1
    s_cbranch_scc1 L_op
    s_sleep {ENV("OSLEEP", 2)}
    s_branch L_op
    L_op_x:
    """)
    stamp(p, 6)
    vm = VM(p)
    OB = HB
    oid = {}

    def oload(kk, r):
        sreg = (("s60", "s61"), ("s62", "s63"))[kk >> 2][r]
        slot = (2 * kk + r) % 14
        oid[(kk, r)] = vm.op(f"buffer_load_dwordx4 {vr(OB+4*slot,4)}, v{VL16}, s[40:43], {sreg} offen offset:{(kk&3)*1024} sc1")
    for kk in range(7):
        oload(kk, 0); oload(kk, 1)

    def wrd(kk):
        hh, s_ = kk >> 1, kk & 1
        row = 28 * hh - 4 * (hh & 1) + 16 * s_
        trd(WF + 8 * (kk & 1), (row >> 3) * 1024)
    wrd(0)
    for kk in range(8):
        if kk + 1 < 8:
            wrd(kk + 1)
        wb = WF + 8 * (kk & 1)
        p(f"s_waitcnt lgkmcnt({4 if kk + 1 < 8 else 0})")
        for a in range(4):
            vm.need(oid[(kk, a >> 1)])
            ac = vr(ACC + 16 * a, 16)
            p(f"{MFMA} {ac}, {vr(wb+4*(a&1),4)}, {vr(OB+4*((2*kk+(a>>1))%14),4)}, {'0' if kk == 0 else ac}")
        if kk == 0:
            oload(7, 0); oload(7, 1)
    if ENV("SD8"): stamp(p, 1)
    send()
    srd(p, 44, P_OUT, 2048 * 896)
    XE = HB
    for i in range(8):
        p(f"v_lshlrev_b32 v{XE+2*i}, 16, v{XF+i}")
        p(f"v_and_b32 v{XE+2*i+1}, 0xffff0000, v{XF+i}")
    ssync(0)
    if ENV("SD8"): stamp(p, 2)
    recv()
    addup()
    if ENV("SD8"): stamp(p, 3)
    for i in range(16):
        p(f"v_fma_f32 v{ACC+i}, v{ACC+i}, v{GREG[i]}, v{XE+i}")
    pack16(p, WF, ACC)
    for g4 in range(4):
        p(f"buffer_store_dwordx2 {vr(WF+2*g4,2)}, v{VXO}, s[44:47], 0 offen offset:{16*g4}")
    p.label("L_s_end")
    endpgm(p)


def main():
    ref = open("cdna_kernels/" + NAME + ".s.ref").read().split("\n")
    head = [l for l in ref if l.startswith(";") and "@launch" not in l and "Override launch" not in l and "grid=ceil" not in l]
    p = Prog()
    gen(p)
    body = p.finalize()
    out = head[:]
    out += """;
; One fused kernel, one 12-wave workgroup per CU (generated by my own script, gen/gen4.py).
;  waves 0-7 : layernorm of 128 rows, Q/K/V/gate/up projections (MFMA, W streamed through LDS, x held in registers),
;              then attention for one (head, 128 queries): S^T = K Q^T, P = exp2(S) without a shift, row sums from a
;              ones column of V.  The result is checked (row sum in [2^-40, 2^100], everything finite); a tile that
;              fails is recomputed by the online-softmax loop with the true running max (L_fallback).
;  waves 8-11: stream the weights, then the down projection + silu, the output projection and out = x + s*g.
;  Hand-offs between workgroups: write-through (sc1) stores, drained, then an 8-byte flag holding this launch's tag
;  (start time of workgroup 0, passed through d_debug); consumers poll with sc1 loads.  Every spin is bounded.""".split("\n")
    out.append("; @launch grid=(256,1,1) block=(768,1,1) lds=163840")
    out.append('.amdgcn_target "amdgcn-amd-amdhsa--gfx950"\n.text')
    out.append(body)
    out.append(f""".section .rodata,"a"
.p2align 6
.amdhsa_kernel {KN}
  .amdhsa_next_free_vgpr 168
  .amdhsa_next_free_sgpr 100
  .amdhsa_accum_offset 168
  .amdhsa_group_segment_fixed_size 0
  .amdhsa_kernarg_size 80
  .amdhsa_user_sgpr_count 2
  .amdhsa_user_sgpr_kernarg_segment_ptr 1
  .amdhsa_system_sgpr_workgroup_id_x 1
.end_amdhsa_kernel""")
    if ENV("PLAINLD"):
        import re
        out = [re.sub(r"(buffer_load_dwordx4 .*) sc1( lds)?$", r"\1\2", l, flags=re.M) if "s[44:47], s6" not in l else l for l in "\n".join(out).split("\n")]
    path = sys.argv[1] if len(sys.argv) > 1 else "cdna_kernels/" + NAME + ".s"
    open(path, "w").write("\n".join(out) + "\n")
    print("wrote", path, "nops inserted:", p.total_nops)


main()
```

```python
import math, struct, sys, os
from asmlib import Prog

NAME = "recurrent_scan__mha_block__geglu_ffn__prompt"
KN = NAME + "_kernel"
MB = 1 << 20
QF_OFF, KV_OFF, H_OFF, O_OFF, G_OFF = 0, 2 * MB, 6 * MB, 13 * MB, 15 * MB
FLAG_OFF = 17 * MB
QKVF, HFL, OFL = FLAG_OFF, FLAG_OFF + 65536, FLAG_OFF + 131072
WS_USED = 18 * MB
LOG2E = math.log2(math.e)
QSCALE = LOG2E / math.sqrt(28.0)
SPIN_MAX = 1 << 12
ENV = os.environ.get
STAMPS = bool(ENV("STAMPS"))
STAMP_OFF = 24 * MB
MFMA = "v_mfma_f32_32x32x16_bf16"
P_X, P_WQKV, P_WO, P_WG, P_WU, P_WD, P_OUT, P_DBG, P_WS = 16, 18, 20, 24, 26, 28, 30, 32, 34
SLOT = 16384
QL = 5 * SLOT + 8192
STATL = 9 * SLOT + 12288
NST = 19


def phys(c):
    return (c + 7) % 10


PRIV = 6 * SLOT
CNT = PRIV + 15360
CNT_COMB, CNT_S0 = CNT + 64, CNT + 220
KVS = 32768
CNT_GO = CNT + 96
CNT_H = CNT + 100
CNT_TAG = CNT + 104


def f32(x):
    return "0x%08x" % struct.unpack("<I", struct.pack("<f", x))[0]


def vr(b, n=1):
    return f"v{b}" if n == 1 else f"v[{b}:{b+n-1}]"


def srd(p, d, base, nrec, add=None):
    if add is None:
        p(f"s_mov_b32 s{d}, s{base}\ns_mov_b32 s{d+1}, s{base+1}")
    else:
        p(f"s_add_u32 s{d}, s{base}, {add}\ns_addc_u32 s{d+1}, s{base+1}, 0")
    p(f"s_mov_b32 s{d+2}, {nrec}\ns_mov_b32 s{d+3}, 0x20000")


def pack16(p, dst, src):
    for i in range(8):
        p(f"v_cvt_pk_bf16_f32 v{dst+i}, v{src+2*i}, v{src+2*i+1}")


def stamp_txt(i):
    if STAMPS and not (ENV("CB") and i < 7):
        assert i < 8
        return [f"{ENV('STAMP_INS', 's_memrealtime')} s[{80+2*i}:{81+2*i}]"]
    return []


def stamp(p, i):
    for x in stamp_txt(i):
        p(x)


TL = bool(ENV("TL"))


def tl(p, idx):
    if TL:
        p(f"{ENV('STAMP_INS', 's_memrealtime')} s[94:95]\ns_waitcnt lgkmcnt(0)\nv_writelane_b32 v60, s94, {idx}")


def tl_dump(p):
    if TL:
        p(f"""
        s_lshl_b32 s94, s2, 4
        s_add_u32 s94, s94, s59
        s_lshl_b32 s94, s94, 8
        s_add_u32 s94, s94, {STAMP_OFF + MB}
        s_mov_b32 s96, s{P_WS}
        s_mov_b32 s97, s{P_WS+1}
        s_mov_b32 s98, {32*MB}
        s_mov_b32 s99, 0x20000
        v_lshlrev_b32 v61, 2, v0
        buffer_store_dword v60, v61, s[96:99], s94 offen
        """)


_dl = [0]


def endpgm(p):
    if STAMPS and ENV("PROBE"):
        role, k = ENV("PROBE")[0], int(ENV("PROBE")[1:])
        _dl[0] += 1
        stamp(p, 7)
        p(f"""
        s_mov_b64 exec, -1
        s_mov_b32 s96, s{P_DBG}
        s_mov_b32 s97, s{P_DBG+1}
        s_mov_b32 s98, 256
        s_mov_b32 s99, 0x20000
        buffer_load_dword v10, off, s[96:99], 0 sc1
        s_waitcnt vmcnt(0) lgkmcnt(0)
        v_readfirstlane_b32 s4, v10
        s_sub_u32 s3, s{80+2*k}, s4
        s_cmp_eq_u32 s{80+2*k}, 0
        s_cselect_b32 s3, 0, s3
        s_max_i32 s3, s3, 0
        s_min_u32 s3, s3, 4000
        s_lshl_b32 s3, s3, 3
        s_cmp_ge_u32 s59, 8
        s_cselect_b32 s5, {1 if role == 'S' else 0}, {1 if role == 'C' else 0}
        s_mul_i32 s3, s3, s5
        s_add_u32 s3, s3, 6000
        s_add_u32 s3, s3, s4
        s_mov_b32 s6, 100000
        L_dl{_dl[0]}:
        s_memrealtime s[8:9]
        s_waitcnt lgkmcnt(0)
        s_sub_u32 s6, s6, 1
        s_cbranch_scc1 L_dx{_dl[0]}
        s_sub_u32 s8, s8, s3
        s_cmp_lt_i32 s8, 0
        s_sleep 8
        s_cbranch_scc1 L_dl{_dl[0]}
        L_dx{_dl[0]}:
        """)
    elif STAMPS and ENV("DBGMAX"):
        stamp(p, 7)
        p(f"""
        s_mov_b64 exec, -1
        s_mov_b32 s96, s{P_DBG}
        s_mov_b32 s97, s{P_DBG+1}
        s_mov_b32 s98, 256
        s_mov_b32 s99, 0x20000
        buffer_load_dword v10, off, s[96:99], 0 sc1
        s_waitcnt vmcnt(0) lgkmcnt(0)
        """)
        for i in range(8):
            p(f"v_writelane_b32 v8, s{80+2*((i+1) % 8)}, {i}")
        p(f"""
        v_cmp_ne_u32 vcc, 0, v8
        v_sub_u32 v8, v8, v10
        v_add_u32 v8, 1000, v8
        v_cndmask_b32 v8, 0, v8, vcc
        s_cmp_ge_u32 s59, 8
        s_cselect_b32 s4, 36, 8
        v_mbcnt_lo_u32_b32 v9, -1, 0
        v_lshlrev_b32 v9, 2, v9
        s_mov_b64 exec, 0x7f
        buffer_atomic_umax v8, v9, s[96:99], s4 offen
        s_waitcnt vmcnt(0)
        """)
    elif STAMPS:
        stamp(p, 7)
        p("s_waitcnt vmcnt(0) lgkmcnt(0)\ns_mov_b64 exec, -1")
        for i in range(8):
            p(f"v_writelane_b32 v8, s{80+2*i}, {i}")
        p(f"""
        s_lshl_b32 s4, s2, 4
        s_add_u32 s4, s4, s59
        s_lshl_b32 s4, s4, 5
        s_add_u32 s4, s4, {STAMP_OFF}
        s_mov_b32 s96, s{P_WS}
        s_mov_b32 s97, s{P_WS+1}
        s_mov_b32 s98, {32*MB}
        s_mov_b32 s99, 0x20000
        v_mbcnt_lo_u32_b32 v9, -1, 0
        v_lshlrev_b32 v9, 2, v9
        s_mov_b64 exec, 0xff
        buffer_store_dword v8, v9, s[96:99], s4 offen
        """)
    p("s_endpgm")


class DS:
    def __init__(self, pending):
        self.n, self.done = pending, 0

    def op(self):
        self.n += 1
        return self.n - 1

    def need(self, i):
        if i < self.done:
            return []
        self.done = i + 1
        return [f"s_waitcnt lgkmcnt({min(15, self.n - 1 - i)})"]


class VM:
    def __init__(self, p):
        self.p, self.n, self.done = p, 0, 0

    def op(self, txt):
        self.p(txt)
        self.n += 1
        return self.n - 1

    def need(self, i):
        if i is None or i < self.done:
            return
        self.done = i + 1
        k = self.n - 1 - i
        assert k <= 63
        self.p(f"s_waitcnt vmcnt({k})")


def cost(ins):
    c = 0
    for l in ins.strip().split("\n"):
        m = l.strip().split()[0]
        c += 8 if m.startswith(("v_exp", "v_rcp", "v_rsq", "ds_")) else 16 if m.startswith("buffer_") else 4
    return c


def lds_spin(p, label, addr_v, tmp, want, sreg, wide=False):
    p(f"s_mov_b32 s{sreg}, {SPIN_MAX*8}")
    p.label(label)
    if wide:
        p(f"ds_read_b64 {vr(tmp,2)}, {addr_v}\ns_sub_u32 s{sreg}, s{sreg}, 1\ns_waitcnt lgkmcnt(0)\nv_cmp_ne_u64 vcc, {want}, {vr(tmp,2)}")
    else:
        p(f"ds_read_b32 v{tmp}, {addr_v}\ns_sub_u32 s{sreg}, s{sreg}, 1\ns_waitcnt lgkmcnt(0)\nv_cmp_ne_u32 vcc, {want}, v{tmp}")
    p(f"""
    s_cmp_eq_u32 s{sreg}, 0
    s_cbranch_scc1 {label}_x
    s_cmp_eq_u64 vcc, 0
    s_cbranch_scc1 {label}_x
    s_sleep 1
    s_branch {label}
    {label}_x:
    """)


def gen(p):
    p(f".globl {KN}\n.p2align 8\n.type {KN},@function")
    p.label(KN)
    S_W, S_RG, S_HF, S_RB, S_RT = 59, 60, 61, 62, 63
    RX = int(ENV('RX', 2))
    p(f"""
    s_cmp_ge_u32 s2, 256
    s_cbranch_scc1 L_exit
    s_load_dwordx16 s[16:31], s[0:1], 0
    s_load_dwordx4 s[32:35], s[0:1], 64
    """)
    if STAMPS:
        for i in range(16):
            p(f"s_mov_b32 s{80+i}, 0")
        stamp(p, 0)
    p(f"""
    v_lshrrev_b32 v2, 6, v0
    v_and_b32 v0, 63, v0
    v_readfirstlane_b32 s{S_W}, v2
    s_and_b32 s5, s2, 7                 ; xcd
    s_lshr_b32 s6, s2, 3                ; j
    s_and_b32 s7, s5, {(1 << RX) - 1}
    s_lshl_b32 s7, s7, {4 - RX}
    s_and_b32 s8, s6, {(16 >> RX) - 1}
    s_add_u32 s{S_RB}, s7, s8
    s_lshr_b32 s7, s5, {RX}
    s_lshl_b32 s7, s7, {RX + 1}
    s_lshr_b32 s8, s6, {4 - RX}
    s_add_u32 s7, s7, s8
    s_and_b32 s8, s7, 1
    s_lshr_b32 s7, s7, 1
    s_cmp_ge_u32 s{S_W}, 8
    s_cbranch_scc1 L_service
    """)
    gen_c(p, S_W, S_RG, S_HF, S_RB, S_RT)
    p.label("L_service")
    gen_s(p, S_W)
    p.label("L_exit")
    p("s_endpgm")
    p.label("L_code_end")


def gen_c(p, S_W, S_RG, S_HF, S_RB, S_RT):
    VST, VA, VB, VTRL = 0, 1, 2, 3
    X, A0, A1, WF, T = 4, 116, 132, 148, 160
    U = A0
    p(f"""
    s_and_b32 s{S_RG}, s{S_W}, 3
    s_lshr_b32 s{S_HF}, s{S_W}, 2
    s_xor_b32 s{S_HF}, s{S_HF}, s8
    v_lshrrev_b32 v12, 2, v0            ; r16
    v_lshrrev_b32 v13, 4, v0            ; r16>>2
    v_xor_b32 v13, v13, v0
    v_and_b32 v13, 3, v13
    v_mul_u32_u24 v12, 896, v12
    v_lshl_add_u32 v12, v13, 4, v12
    s_lshl_b32 s9, s{S_RB}, 2
    s_add_u32 s{S_RT}, s9, s{S_RG}
    s_mul_i32 s9, s{S_RT}, {32*896}
    s_mul_i32 s10, s{S_HF}, 448
    s_add_u32 s9, s9, s10
    v_add_u32 v12, s9, v12
    s_mul_i32 s10, s{S_W}, 14336
    s_mov_b32 s11, {16*896}
    s_waitcnt lgkmcnt(0)
    """)
    srd(p, 44, P_DBG, 256)
    p(f"""
    s_add_u32 s12, s2, s{S_W}
    s_cmp_lg_u32 s12, 0
    s_cbranch_scc1 L_notagw
    s_memrealtime s[12:13]
    s_waitcnt lgkmcnt(0)
    s_or_b32 s12, s12, 1
    v_mov_b32 v16, s12
    v_mov_b32 v17, s13
    s_mov_b64 exec, 1
    buffer_store_dwordx2 v[16:17], off, s[44:47], 0 sc1
    s_mov_b64 exec, -1
    L_notagw:
    """)
    CPF = ENV("CPF", "0")
    if CPF != "0":
        p(f"s_lshl_b32 s12, s2, 3\ns_add_u32 s12, s12, s{S_W}\ns_lshl_b32 s12, s12, 10\nv_lshlrev_b32 v13, 4, v0")
        for k, (ptr, n) in enumerate(((P_WQKV, 448 * 2688), (P_WG, 448 * 3584), (P_WU, 448 * 3584))):
            srd(p, 64 + 4 * k, ptr, n)
            p(f"buffer_load_dwordx4 {vr(A1,4)}, v13, s[{64+4*k}:{67+4*k}], s12 offen")
    srd(p, 36, P_X, 2048 * 896)
    for cb in range(7):
        for rh in range(2):
            p(f"s_add_u32 m0, s10, {(rh*7+cb)*1024 - 64*cb}")
            p(f"buffer_load_dwordx4 v12, s[36:39], {'s11' if rh else '0'} offen offset:{64*cb} lds")
    srd(p, 40, P_WS, WS_USED)
    VXA, VXB, SUM, SQ, RS, NM, ONES = T, T + 1, T + 2, T + 3, T + 4, T + 5, T + 6
    c0 = -2.0 * math.sqrt(2.0 / math.pi) * LOG2E
    c1 = c0 * 0.044715
    al = -((-c1) ** (1.0 / 3.0))
    p(f"""
    v_lshrrev_b32 v13, 5, v0
    v_lshlrev_b32 v13, 10, v13
    v_bfe_u32 v14, v0, 2, 2
    v_lshl_add_u32 v13, v14, 6, v13
    v_bfe_u32 v14, v0, 4, 1
    v_lshl_add_u32 v13, v14, 5, v13
    v_and_b32 v14, 3, v0
    v_lshl_add_u32 v13, v14, 3, v13
    s_lshl_b32 s12, s{S_HF}, 9
    v_add_u32 v{VTRL}, s12, v13
    v_add_u32 v{VA}, {phys(0)*SLOT}, v{VTRL}
    v_add_u32 v{VB}, {phys(1)*SLOT}, v{VTRL}
    v_bfe_u32 v13, v0, 4, 1
    v_mul_u32_u24 v13, 7168, v13
    v_and_b32 v14, 15, v0
    v_lshl_add_u32 v13, v14, 6, v13
    v_lshrrev_b32 v14, 5, v0            ; h
    v_bfe_u32 v15, v0, 2, 2             ; swz
    v_xor_b32 v14, v14, v15
    v_lshl_add_u32 v{VXA}, v14, 4, v13
    v_xor_b32 v14, 2, v14
    v_lshl_add_u32 v{VXB}, v14, 4, v13
    v_add_u32 v{VXA}, s10, v{VXA}
    v_add_u32 v{VXB}, s10, v{VXB}
    v_mov_b32 v{SUM}, 0
    v_mov_b32 v{SQ}, 0
    v_mov_b32 v{ONES}, 0x3f803f80
    s_mov_b32 s66, 0xffff0000
    s_mov_b32 s64, {f32(al)}
    s_mov_b32 s65, {f32(c0 / c1 * al * al)}
    v_and_b32 v{U+2}, 31, v0
    v_lshlrev_b32 v{U+2}, 3, v{U+2}
    s_lshl_b32 s12, s{S_W}, 8
    s_add_u32 s12, s12, {STATL}
    v_add_u32 v{U+3}, s12, v{U+2}
    v_xor_b32 v{U+2}, 1024, v{U+3}
    s_xor_b32 s12, s{S_W}, 4
    s_mul_i32 s12, s12, 14336
    s_sub_u32 s58, s12, s10
    v_lshlrev_b32 v{VST}, 4, v0
    """)
    p(f"""
    s_lshl_b32 s13, s7, 1
    s_add_u32 s13, s13, s{S_HF}         ; head
    s_cmp_eq_u32 s8, 1
    s_cselect_b32 s69, {f32(QSCALE)}, 1.0
    s_cselect_b32 s4, 17, 18
    s_cselect_b32 s15, {QF_OFF}, {KV_OFF}
    s_cselect_b32 s14, 0, 4
    s_lshl_b32 s67, s13, s4
    s_sub_u32 s4, s4, 6
    s_lshl_b32 s4, s{S_RT}, s4
    s_add_u32 s67, s67, s4
    s_add_u32 s67, s67, s15
    s_add_u32 s72, s67, 2048
    s_mul_i32 s12, s7, 6
    s_add_u32 s14, s14, s12
    s_add_u32 s14, s14, s{S_HF}
    s_lshl_b32 s70, s14, 11
    s_mul_i32 s4, s{S_RT}, 114688
    s_add_u32 s4, s4, {H_OFF}
    s_add_u32 s70, s70, s4
    s_lshl_b32 s71, s7, 1
    s_add_u32 s71, s71, s{S_HF}
    s_lshl_b32 s71, s71, 10
    s_add_u32 s71, s71, {48*2048}
    s_add_u32 s71, s71, s4
    s_lshl_b32 s73, s{S_RB}, 12
    s_lshl_b32 s4, s7, 9
    s_add_u32 s73, s73, s4
    s_xor_b32 s4, s8, 1
    s_lshl_b32 s4, s4, 7
    s_add_u32 s73, s73, s4
    s_add_u32 s73, s73, {HFL + 256}
    s_cmp_eq_u32 s{S_HF}, 1
    s_cselect_b32 s52, -1, 0
    s_mov_b32 s53, 0
    s_mov_b32 s54, 0
    s_cselect_b32 s55, 0, -1
    s_cselect_b32 s56, 15, 0xf0000000
    s_mov_b32 s57, s56
    s_cselect_b32 s48, 1, 0x10000000
    s_mov_b32 s49, s48
    """)
    stamp(p, 1)

    def half(xo, tag):
        def stat(cb):
            for d in range(8):
                r = X + xo + 8 * cb + d
                p(f"v_dot2c_f32_bf16 v{SUM}, v{r}, v{ONES}")
                p(f"v_dot2c_f32_bf16 v{SQ}, v{r}, v{r}")
        for cb in range(7):
            p(f"s_waitcnt vmcnt({12 - 2*cb})")
            p(f"ds_read_b128 {vr(X+xo+8*cb,4)}, v{VXA} offset:{cb*1024}")
            p(f"ds_read_b128 {vr(X+xo+8*cb+4,4)}, v{VXB} offset:{cb*1024}")
            if cb:
                p("s_waitcnt lgkmcnt(2)")
                stat(cb - 1)
        p("s_waitcnt lgkmcnt(0)")
        stat(6)
        p(f"""
        v_mov_b32 v{U}, v{SUM}
        v_mov_b32 v{U+1}, v{SQ}
        v_permlane32_swap_b32 v{SUM}, v{U}
        v_permlane32_swap_b32 v{SQ}, v{U+1}
        v_add_f32 v{SUM}, v{SUM}, v{U}
        v_add_f32 v{SQ}, v{SQ}, v{U+1}
        ds_write_b64 v{U+3}, {vr(SUM,2)}
        v_add_u32 v{VXA}, s58, v{VXA}
        v_add_u32 v{VXB}, s58, v{VXB}
        s_waitcnt lgkmcnt(0)
        s_barrier
        ds_read_b64 {vr(U,2)}, v{U+2}
        """)
        for cb in range(7):
            p(f"ds_read_b128 {vr(X+56-xo+8*cb,4)}, v{VXA} offset:{cb*1024}")
            p(f"ds_read_b128 {vr(X+56-xo+8*cb+4,4)}, v{VXB} offset:{cb*1024}")
    p(f"s_cmp_eq_u32 s{S_HF}, 1\ns_cbranch_scc1 L_half1")
    half(0, "0")
    p("s_branch L_halfj")
    p.label("L_half1")
    half(56, "1")
    p.label("L_halfj")
    p(f"""
    s_waitcnt lgkmcnt(14)
    v_add_f32 v{SUM}, v{SUM}, v{U}
    v_add_f32 v{SQ}, v{SQ}, v{U+1}
    v_mul_f32 v{SUM}, {f32(1.0/448)}, v{SUM}        ; mean
    v_mul_f32 v{SQ}, {f32(1.0/448)}, v{SQ}
    v_fma_f32 v{SQ}, -v{SUM}, v{SUM}, v{SQ}         ; var
    v_max_f32 v{SQ}, 0, v{SQ}
    v_add_f32 v{SQ}, {f32(1e-5)}, v{SQ}
    v_rsq_f32 v{RS}, v{SQ}                          ; rstd
    v_mul_f32 v{SUM}, v{SUM}, v{RS}
    v_sub_f32 v{NM}, 0, v{SUM}                      ; -mean*rstd
    s_waitcnt lgkmcnt(0)
    s_barrier
    """)
    stamp(p, 2)

    def normalise(ks, tb, n=2):
        e = []
        for d0 in range(0, 4, n):
            r = X + 4 * ks + d0
            for d in range(n):
                e += [f"v_lshlrev_b32 v{tb+2*d}, 16, v{r+d}", f"v_and_b32 v{tb+2*d+1}, s66, v{r+d}"]
            e += [f"v_fma_f32 v{tb+i}, v{tb+i}, v{RS}, v{NM}" for i in range(2 * n)]
            e += [f"v_cvt_pk_bf16_f32 v{r+d}, v{tb+2*d}, v{tb+2*d+1}" for d in range(n)]
        return e
    NPRE = int(ENV("NPRE", 9))
    p(f"v_mov_b32 v{T}, v{RS}\nv_mov_b32 v{T+1}, v{RS}\nv_mov_b32 v{T+2}, v{NM}\nv_mov_b32 v{T+3}, v{NM}")
    for k0 in range(0, NPRE, 2):
        kk = [k for k in (k0, k0 + 1) if k < NPRE]
        for k in kk:
            tb = U + 8 * (k % 4)
            for d in range(4):
                p(f"v_lshlrev_b32 v{tb+2*d}, 16, v{X+4*k+d}\nv_and_b32 v{tb+2*d+1}, s66, v{X+4*k+d}")
        for k in kk:
            tb = U + 8 * (k % 4)
            for d in range(4):
                p(f"v_pk_fma_f32 {vr(tb+2*d,2)}, {vr(tb+2*d,2)}, {vr(T,2)}, {vr(T+2,2)}")
        for k in kk:
            tb = U + 8 * (k % 4)
            for d in range(4):
                p(f"v_cvt_pk_bf16_f32 v{X+4*k+d}, v{tb+2*d}, v{tb+2*d+1}")
    p("s_barrier")
    NB = 3

    def st(r, sreg, off=0):
        return f"buffer_store_dwordx4 {vr(r,4)}, v{VST}, s[40:43], s{sreg} offen{' offset:%d' % off if off else ''} sc1"

    def pack(dst, a, n=8):
        return [f"v_cvt_pk_bf16_f32 v{dst+i}, v{a+2*i}, v{a+2*i+1}" for i in range(n)]

    def qk_a(a, dst):
        return [f"v_mul_f32 v{a+i}, s69, v{a+i}" for i in range(16)] + pack(dst, a)

    def qk_b(d):
        return [f"s_mov_b64 exec, s[52:53]\nv_mov_b32 v{d}, 0\nv_mov_b32 v{d+1}, 0\ns_mov_b64 exec, s[54:55]\n"
                f"v_mov_b32 v{d+6}, 0\nv_mov_b32 v{d+7}, 0\ns_mov_b64 exec, -1", st(d, 67), st(d + 4, 67, 1024)]

    def v_b(d):
        return ["s_mov_b64 exec, s[56:57]\n" + "".join(f"v_mov_b32 v{d+i}, 0\n" for i in range(8)) + "s_mov_b64 exec, -1",
                "s_mov_b64 exec, s[48:49]\n" + "".join(f"v_mov_b32 v{d+i}, 0x3f803f80\n" for i in range(8)) + "s_mov_b64 exec, -1",
                st(d, 72), st(d + 4, 72, 1024)]

    def gelu(g, qs):
        e = []
        for q in qs:
            r = [g + 4 * q + i for i in range(4)]
            t = [T + i for i in range(4)]
            u = [T + 4 + i for i in range(4)]
            e += [f"v_mul_f32 v{t[i]}, s64, v{r[i]}" for i in range(4)]
            e += [f"v_fma_f32 v{u[i]}, v{t[i]}, v{t[i]}, s65" for i in range(4)]
            e += [f"v_mul_f32 v{t[i]}, v{t[i]}, v{u[i]}" for i in range(4)]
            e += [f"v_exp_f32 v{t[i]}, v{t[i]}" for i in range(4)]
            e += [f"v_add_f32 v{t[i]}, 1.0, v{t[i]}" for i in range(4)]
            e += [f"v_rcp_f32 v{t[i]}, v{t[i]}" for i in range(4)]
            e += [f"v_mul_f32 v{r[i]}, v{r[i]}, v{t[i]}" for i in range(4)]
        return e

    def prod(d, o):
        return [f"v_mul_f32 v{d+i}, v{d+i}, v{o+i}" for i in range(16)]

    def hstore(a):
        return pack(a, a) + [st(a, 70), st(a + 4, 70, 1024), "s_add_u32 s70, s70, 4096"]

    def epi_s(a):
        return gelu(a, [0, 1]) + [f"v_mul_f32 v{a+i}, v{a+i}, v{a+8+i}" for i in range(8)] + pack(a, a, 4) + [st(a, 71)]

    def stream(kind, late):
        N = 140
        types = "VKGUS" if kind == "A" else "QGUGU"
        G_ = []
        for ks in range(28):
            for ps in range(2):
                G_.append((ks >> 2, ps * 8192 + (ks & 3) * 2048, ks, (A0, A1)[ps], ks == 0, types[ps] == "V"))
        acc = {2: A0, 3: A1, 4: A0} if kind == "A" else {2: A0, 3: A0, 4: A1}
        for ps in range(2, 5):
            for j in range(28):
                G_.append((7 + 4 * (ps - 2) + (j >> 3), (j & 7) * 2048, j, acc[ps], j == 0, False))
        win, after = [], {}

        def W(a, b, ins):
            win.append((a, b, ins))
        allnorm = []
        pr = (T, T + 2, T + 6)
        dw = [X + 4 * ks + d for ks in range(NPRE, 28) for d in range(4)]
        for i in range(len(dw) + 2):
            if i < len(dw):
                t = pr[i % 3]
                allnorm += [f"v_lshlrev_b32 v{t}, 16, v{dw[i]}", f"v_and_b32 v{t+1}, s66, v{dw[i]}"]
            if 1 <= i <= len(dw):
                t = pr[(i - 1) % 3]
                allnorm += [f"v_fma_f32 v{t}, v{t}, v{RS}, v{NM}", f"v_fma_f32 v{t+1}, v{t+1}, v{RS}, v{NM}"]
            if i >= 2:
                t = pr[(i - 2) % 3]
                allnorm.append(f"v_cvt_pk_bf16_f32 v{dw[i-2]}, v{t}, v{t+1}")
        nend = min(52, 2 * (28 - NPRE) if NPRE < 4 else 52)
        W(0, nend, allnorm)
        for ks in range(NPRE, 28):
            assert (ks - NPRE + 1) * nend / (28 - NPRE) + 1 <= 2 * ks, ks
        pubw = set()
        if kind == "A":
            after[55] = pack(T, A0)
            vb, kb = v_b(T), qk_b(A1)
            W(56, 59, vb[:3])
            W(63, 64, vb[3:])
            W(59, 69, qk_a(A1, A1) + kb[:1])
            W(70, 71, kb[1:2])
            W(77, 78, kb[2:])
            pubw.add(int(ENV("KB", 83)))
            W(86, 111, gelu(A0, [0, 1, 2, 3]))
            after[111] = prod(A1, A0)
            W(113, 119, hstore(A1))
        else:
            after[55] = qk_a(A0, T)
            W(56, 58, qk_b(T))
            W(59, 83, gelu(A1, [0, 1, 2, 3]))
            pubw.add(79)
            after[83] = prod(A1, A0)
            W(85, 91, hstore(A1))
            pubw.add(107)
            W(114, 140, gelu(A0, [0, 1, 2, 3]))
        W(120 if kind == "A" else 95, 126 if kind == "A" else 105, late)
        per = [[] for _ in range(N)]
        for (a, b, ins) in win:
            tot = sum(cost(i) for i in ins)
            c = 0
            for i in ins:
                g = a + min(b - a - 1, int((c + cost(i) / 2) * (b - a) / tot))
                per[g].append(i)
                c += cost(i)
        ds = DS(0)
        frag = {}
        out = []

        def rd(n):
            c, imm = G_[n][0], G_[n][1]
            b = WF + 4 * (n % NB)
            a = VA if c % 2 == 0 else VB
            out.extend([f"ds_read_b64_tr_b16 {vr(b,2)}, v{a} offset:{imm}", f"ds_read_b64_tr_b16 {vr(b+2,2)}, v{a} offset:{imm+256}"])
            ds.op()
            frag[n] = ds.op()
            if n + 1 < N and G_[n + 1][0] != c and c + 2 < NST:
                if c + 2 == 15 and types[4] == "S":
                    out.append(f"v_bfe_u32 v{a}, v{VTRL}, 10, 1\nv_lshlrev_b32 v{a}, 9, v{a}\nv_and_b32 v{VTRL}, 255, v{VTRL}\n"
                               f"v_or_b32 v{a}, v{a}, v{VTRL}\nv_bfe_u32 v{VTRL}, v{VTRL}, 5, 1\nv_mul_u32_u24 v{VTRL}, 992, v{VTRL}\n"
                               f"s_lshl_b32 s12, s{S_HF}, 5\nv_add3_u32 v{VTRL}, v{VTRL}, v{a}, s12")
                out.append(f"v_add_u32 v{a}, {phys(c+2)*SLOT}, v{VTRL}")
        for n in range(NB):
            rd(n)
        for g in range(N):
            c, imm, xf, ac, first, swap = G_[g]
            out += ds.need(frag[g])
            w, x = vr(WF + 4 * (g % NB), 4), vr(X + 4 * xf, 4)
            a, b = (x, w) if swap else (w, x)
            out.append(f"{MFMA} {vr(ac,16)}, {a}, {b}, {'0' if first else vr(ac,16)}")
            if g + 1 < N and G_[g + 1][0] != c:
                if g in pubw:
                    out.append("s_waitcnt vmcnt(0)")
                out.append("s_barrier")
                if ENV("CB"):
                    bi = c + 1 - int(ENV("CB"))
                    if 0 <= bi < 7:
                        out.append(f"s_memtime s[{80+2*bi}:{81+2*bi}]")
            if g + NB < N:
                rd(g + NB)
            out += per[g]
            out += after.get(g, [])
            if g == 55:
                out += stamp_txt(3)
        for i in out:
            p(i)

    Q, KF, VF, S0, S1, PP, O = 8, 16, 24, 32, 48, 64, 72
    VCUR, VNXT, VCO, VKV, VCN, VONE, CK, CKO, VQA, E3, T_TAG = 1, 2, 4, 5, 6, 88, 90, 92, 94, 96, 100
    VLN = VST
    BAL = ENV('BAL', '1') == '1'
    SPR = False
    setup_s = f"""s_lshr_b32 s7, s6, 4
    s_lshl_b32 s8, s5, 1
    s_add_u32 s7, s7, s8                ; head
    s_and_b32 s8, s6, 15                ; q block
    s_lshl_b32 s11, s8, 2
    s_add_u32 s11, s11, s{S_RG}         ; q tile (0..63)
    s_lshl_b32 s9, s7, 18
    s_add_u32 s9, s9, {KV_OFF}
    s_lshl_b32 s46, s{S_HF}, 14         ; kh*16384
    s_add_u32 s47, s46, {4*SLOT}        ; slot of stage i+2
    s_lshl_b32 s13, s{S_RG}, 12         ; rg*4096
    s_add_u32 s14, s46, {2*KVS}         ; source offset of the next fill
    s_lshl_b32 s15, s{S_HF}, 7
    s_add_u32 s15, s15, {CNT}
    s_mov_b32 s48, 1                    ; iteration
    s_mov_b32 s49, 0
    s_mov_b32 s50, 4
    s_mov_b32 s51, 4
    s_lshl_b32 s10, s{S_RG}, 11
    s_add_u32 s10, s10, {QL}
    s_add_u32 s36, s{P_WS}, s9
    s_addc_u32 s37, s{P_WS+1}, 0
    s_mov_b32 s38, 262144""".split("\n")
    setup_s = [setup_s[i] if not setup_s[i].strip().startswith("s_add_u32 s36") else setup_s[i] + "\n" + setup_s[i+1]
               for i in range(len(setup_s)) if not setup_s[i].strip().startswith("s_addc")]

    def start(tag):
        stamp(p, 4)
        p(f"""
        v_mov_b32 v{CKO}, {CNT_GO}
        v_add_u32 v{VQA}, s10, v{VLN}
        v_add_u32 v{VCUR}, s46, v{VLN}
        v_add_u32 v{VNXT}, {2*SLOT}, v{VCUR}
        """)
        lds_spin(p, "L_w0" + tag, f"v{CKO}", CK, "4", 52)
        stamp(p, 5)
        p(f"""
        ds_read_b128 {vr(Q,4)}, v{VQA}
        ds_read_b128 {vr(Q+4,4)}, v{VQA} offset:1024
        ds_read_b128 {vr(KF,4)}, v{VCUR}
        ds_read_b128 {vr(KF+4,4)}, v{VCUR} offset:1024
        ds_read_b64 {vr(T_TAG,2)}, v{CKO} offset:8
        v_add_u32 v{VKV}, s13, v{VLN}
        v_mov_b32 v{VCN}, s15
        v_xor_b32 v{VCO}, 128, v{VCN}
        v_mov_b32 v{VONE}, 1
        v_mov_b32 v{VONE+1}, 0
        s_waitcnt lgkmcnt(0)
        {MFMA} {vr(S0,16)}, {vr(KF,4)}, {vr(Q,4)}, 0
        {MFMA} {vr(S0,16)}, {vr(KF+4,4)}, {vr(Q+4,4)}, {vr(S0,16)}
        ds_read_b128 {vr(KF,4)}, v{VCUR} offset:4096
        ds_read_b128 {vr(KF+4,4)}, v{VCUR} offset:5120
        ds_read_b128 {vr(VF+4,4)}, v{VCUR} offset:3072
        ds_read_b128 {vr(VF,4)}, v{VCUR} offset:2048
        """)

    def fillers(pre, post, pub=False):
        for i in pre:
            p(i)
        f = {}
        slots = [(0, 0), (0, 1), (0, 2), (0, 3), (1, 0)]
        for k, sl in enumerate(slots):
            f[sl] = "\n".join(post[len(post) * k // 5:len(post) * (k + 1) // 5]) + "\n"
        f[(0, 0)] = ("s_waitcnt vmcnt(0)\n" if pub else "") + "s_barrier\n" + f[(0, 0)]
        return f
    VL16 = VLN

    def phase(k, mf, rd, sc, sp, extra=""):
        if k % 2 == 0:
            p("s_waitcnt lgkmcnt(2)")
        if mf:
            p(mf)
        p(rd)
        src, pk = (E3, 3) if k == 0 else (sc + 4 * (k - 1), k - 1)
        dst = E3 if k == 3 else sc + 4 * k
        e = [f"v_exp_f32 v{dst+i}, v{sc+4*k+i}" for i in range(4)]
        c = [f"v_cvt_pk_bf16_f32 v{PP+2*pk+i}, v{src+2*i}, v{src+2*i+1}" for i in range(2)]
        for x in (e[0], c[0], e[1], c[1]) if sp is not None else (e[0], e[1]):
            p(x)
        if extra.strip():
            p(extra)
        p(e[2]); p(e[3])

    def ta(u, off):
        return f"v{VCUR} offset:{u*4096+off}" if u < 4 else f"v{VNXT} offset:{(u-4)*4096+off}"

    def body(first, tag, fil=None):
        fil = fil or {}
        T = T_TAG
        sig = f"""
        s_mov_b64 exec, 1
        {'s_memtime s[54:55]' + chr(10) + 's_waitcnt lgkmcnt(0)' + chr(10) + 's_sub_u32 s12, s12, s54' if ENV('SPINC') == '2' else ''}
        {'' if (first or ENV('NOSIGW')) else 's_waitcnt vmcnt(0)'}
        {'s_memtime s[54:55]' + chr(10) + 's_waitcnt lgkmcnt(0)' + chr(10) + 's_add_u32 s12, s12, s54' if ENV('SPINC') == '2' else ''}
        ds_add_u64 v{VCN}, {vr(VONE,2)}
        s_mov_b64 exec, -1
        """
        for u in range(4):
            sc, sn = (S0, S1) if u % 2 == 0 else (S1, S0)
            if u == 2:
                p(f"""
                s_waitcnt lgkmcnt(1)
                v_cmp_ne_u64 vcc, s[50:51], {vr(CK,2)}
                s_add_u32 m0, s47, s13
                s_cmp_lg_u64 vcc, 0
                s_cbranch_scc1 L_a_spin{tag}
                L_a_go{tag}:
                """)
                if BAL:
                    p(f"""
                    v_cmp_eq_u32 vcc, 4, v{CKO}
                    s_setprio 0
                    s_cmp_eq_u64 vcc, 0
                    s_cbranch_scc1 L_a_pr{tag}
                    s_setprio 1
                    L_a_pr{tag}:
                    """)
                if SPR and not first:
                    p("s_cmp_le_u32 s48, 5\ns_cselect_b64 vcc, -1, 0")
                if not SPR:
                    if not first:
                        p(f"s_cmp_gt_u32 s48, 5\ns_cbranch_scc1 L_a_nofill")
                    for q in range(4):
                        p(f"buffer_load_dwordx4 v{VKV}, s[36:39], s14 offen offset:{q*1024} sc1 lds")
                    p(f"s_add_u32 s14, s14, {KVS}")
                    if not first:
                        p.label("L_a_nofill")

            def dma(q):
                if not SPR:
                    return ""
                t = f"buffer_load_dwordx4 v{VKV}, s[36:39], s14 offen offset:{q*1024} sc1 lds\n"
                if not first:
                    t = f"s_cbranch_vccz L_a_nf{q}\n" + t + f"L_a_nf{q}:\n"
                return t
            phase(0, f"{MFMA} {vr(sn,16)}, {vr(KF,4)}, {vr(Q,4)}, 0", f"ds_read_b128 {vr(KF,4)}, {ta(u+2, 0)}", sc, None if (first and u == 0) else sn,
                  dma(2 * (u - 2)) if u >= 2 else fil.get((u, 0), ""))
            phase(1, f"{MFMA} {vr(sn,16)}, {vr(KF+4,4)}, {vr(Q+4,4)}, {vr(sn,16)}",
                  f"ds_read_b128 {vr(KF+4,4)}, {ta(u+2, 1024)}", sc, sn, fil.get((u, 1), ""))
            phase(2, None if (first and u == 0) else f"{MFMA} {vr(O,16)}, {vr(VF+4,4)}, {vr(PP+4,4)}, {vr(O,16)}",
                  f"ds_read_b128 {vr(VF+4,4)}, {ta(u, 3072)}", sc, sn,
                  fil.get((u, 2), "") + "\n" + ((f"ds_read_b64 {vr(CK,2)}, v{VCN}" + (f"\nds_read_b32 v{CKO}, v{VCO}" if BAL else "")) if u == 1 else dma(2 * (u - 2) + 1) if u >= 2 else ""))
            ex = (sig if u == 0 else "") + fil.get((u, 3), "")
            if u == 3:
                ex = f"""
                v_mov_b32 v{VCUR}, v{VNXT}
                v_add_u32 v{VNXT}, s47, v{VL16}
                v_add_u32 v{VCN}, 8, v{VCN}
                v_xor_b32 v{VCO}, 128, v{VCN}
                s_add_u32 s47, s47, {2*SLOT}
                s_cmp_ge_u32 s47, {6*SLOT}
                s_cselect_b32 s3, {6*SLOT}, 0
                s_sub_u32 s47, s47, s3
                """
                if SPR:
                    ex += f"s_add_u32 s14, s14, {KVS}\n"
                if not first:
                    ex += "s_add_u32 s48, s48, 1\ns_cmp_lt_u32 s48, 8"
                else:
                    ex += f"""
                    s_mov_b64 exec, 1
                    v_mov_b32 v{CKO}, {CNT_H}
                    s_waitcnt vmcnt(4)
                    ds_add_rtn_u32 v{CK}, v{CKO}, v{VONE}
                    s_waitcnt lgkmcnt(0)
                    v_cmp_eq_u32 vcc, 7, v{CK}
                    s_and_b64 exec, exec, vcc
                    s_cbranch_execz L_nh{tag}
                    buffer_store_dwordx2 {vr(T,2)}, off, s[40:43], s73 sc1
                    L_nh{tag}:
                    s_mov_b64 exec, -1
                    v_mov_b32 v{VONE+1}, 1
                    """
            phase(3, f"{MFMA} {vr(O,16)}, {vr(VF,4)}, {vr(PP,4)}, {'0' if (first and u == 0) else vr(O,16)}",
                  f"ds_read_b128 {vr(VF,4)}, {ta(u+1, 2048)}", sc, sn, ex)
    p("s_cmp_eq_u32 s8, 1\ns_cbranch_scc1 L_btype")
    stream("A", setup_s)
    start("a")
    es = epi_s(A0)
    body(True, "fa", fillers(es[:12], es[12:], True))
    p("s_branch L_aloop")
    p.label("L_btype")
    stream("B", setup_s)
    start("b")
    body(True, "fb", fillers(prod(A1, A0), hstore(A1)))
    T = T_TAG
    p(".p2align 6")
    p.label("L_aloop")
    body(False, "")
    p("s_cbranch_scc1 L_aloop\ns_branch L_a_done")
    for tag in ("fa", "fb", ""):
        p.label("L_a_spin" + tag)
        if ENV("SPINC"):
            p("s_memtime s[54:55]\ns_waitcnt lgkmcnt(0)\ns_sub_u32 s56, s56, s54")
        lds_spin(p, "L_a_sp" + tag, f"v{VCN}", CK, "s[50:51]", 52, wide=True)
        if ENV("SPINC"):
            p("s_memtime s[54:55]\ns_waitcnt lgkmcnt(0)\ns_add_u32 s56, s56, s54\ns_add_u32 s57, s57, 1")
        p("s_branch L_a_go" + tag)
    p.label("L_a_done")
    stamp(p, 6)
    if ENV("SPINC"):
        p("s_add_u32 s82, s56, 1\ns_add_u32 s84, s57, 1\ns_add_u32 s86, s12, 1")
    p(f"""
    v_cvt_pk_bf16_f32 v{PP+6}, v{E3}, v{E3+1}
    v_cvt_pk_bf16_f32 v{PP+7}, v{E3+2}, v{E3+3}
    s_waitcnt lgkmcnt(0)
    {MFMA} {vr(O,16)}, {vr(VF+4,4)}, {vr(PP+4,4)}, {vr(O,16)}
    s_lshl_b32 s46, s{S_RG}, 12
    s_lshl_b32 s3, s{S_HF}, 14
    s_add_u32 s46, s46, s3
    v_add_u32 v3, s46, v{VL16}
    s_lshl_b32 s3, s{S_RG}, 3
    s_add_u32 s3, s3, {CNT_COMB}
    v_mov_b32 v{VCN}, s3
    s_mov_b64 exec, 1
    ds_add_rtn_u32 v{CK}, v{VCN}, v{VONE}
    s_mov_b64 exec, -1
    s_waitcnt lgkmcnt(0)
    v_readfirstlane_b32 s3, v{CK}
    s_cmp_lg_u32 s3, 0
    s_cbranch_scc1 L_acomb
    """)
    for i in range(4):
        p(f"ds_write_b128 v3, {vr(O+4*i,4)} offset:{1024*i}")
    p(f"""
    s_mov_b64 exec, 1
    s_waitcnt lgkmcnt(0)
    ds_add_u32 v{VCN}, v{VONE} offset:4
    s_waitcnt lgkmcnt(0)
    """)
    endpgm(p)
    p.label("L_acomb")
    p(f"v_xor_b32 v3, {SLOT}, v3")
    lds_spin(p, "L_cw", f"v{VCN} offset:4", CK, "1", 52)
    for i in range(4):
        p(f"ds_read_b128 {vr(S0+4*i,4)}, v3 offset:{1024*i}")
    for q in range(4):
        p(f"s_waitcnt lgkmcnt({3-q})")
        for i in range(4 * q, 4 * q + 4):
            p(f"v_add_f32 v{O+i}, v{O+i}, v{S0+i}")
    p.label("L_afin")
    T2 = S1
    p(f"""
    s_mov_b32 s50, {f32(2.0**-40)}
    s_mov_b32 s51, {f32(2.0**100)}
    s_bitcmp1_b32 s7, 0
    s_cbranch_scc1 L_f_odd
    v_mov_b32 v{T2}, v{O+12}
    v_mov_b32 v{T2+1}, v{O+12}
    v_permlane32_swap_b32 v{T2}, v{T2+1}
    s_mov_b32 exec_lo, 0
    v_mov_b32 v{O+12}, 0
    v_mov_b32 v{O+13}, 0
    v_mov_b32 v{O+14}, 0
    v_mov_b32 v{O+15}, 0
    s_branch L_f_join
    L_f_odd:
    v_mov_b32 v{T2}, v{O}
    v_mov_b32 v{T2+1}, v{O}
    v_permlane32_swap_b32 v{T2+1}, v{T2}
    s_mov_b32 exec_hi, 0
    v_mov_b32 v{O}, 0
    v_mov_b32 v{O+1}, 0
    v_mov_b32 v{O+2}, 0
    v_mov_b32 v{O+3}, 0
    L_f_join:
    s_mov_b64 exec, -1
    v_rcp_f32 v{T2+2}, v{T2+1}
    v_cmp_ge_f32 s[52:53], v{T2+1}, s50
    v_cmp_le_f32 s[54:55], v{T2+1}, s51
    """)
    for i in range(16):
        p(f"v_mul_f32 v{O+i}, v{O+i}, v{T2+2}")
    p(f"v_mul_f32 v{T2+3}, 0, v{O}")
    for i in range(1, 16):
        p(f"v_fmac_f32 v{T2+3}, 0, v{O+i}")
    pack16(p, PP, O)
    p(f"""
    v_cmp_eq_f32 s[56:57], 0, v{T2+3}
    s_and_b64 s[52:53], s[52:53], s[54:55]
    s_lshl_b32 s45, s11, 15             ; rowtile*32K
    s_lshl_b32 s46, s7, 11              ; head*2K
    s_add_u32 s45, s45, s46
    s_add_u32 s45, s45, {O_OFF}
    s_and_b64 s[52:53], s[52:53], s[56:57]
    s_cmp_eq_u64 s[52:53], -1
    s_cbranch_scc1 L_aok
    s_cmp_eq_u32 s49, 0x5afe
    s_cbranch_scc0 L_fallback
    """)
    p.label("L_aok")
    p(f"""
    buffer_store_dwordx4 {vr(PP,4)}, v{VL16}, s[40:43], s45 offen sc1
    buffer_store_dwordx4 {vr(PP+4,4)}, v{VL16}, s[40:43], s45 offen offset:1024 sc1
    s_lshl_b32 s45, s11, 11
    s_lshl_b32 s46, s7, 7
    s_add_u32 s45, s45, s46
    s_add_u32 s45, s45, {OFL}
    s_mov_b64 exec, 1
    s_waitcnt vmcnt(0)
    buffer_store_dwordx2 {vr(T,2)}, off, s[40:43], s45 sc1
    """)
    endpgm(p)
    p.label("L_fallback")
    M, MN, AL, TM, T3 = 104, 105, 106, 107, 108
    p("s_mov_b32 s49, 0x5afe")
    for i in range(16):
        p(f"v_mov_b32 v{O+i}, 0")
    p(f"v_mov_b32 v{M}, 0xff800000\ns_mov_b32 s14, 0")
    p.label("L_fbloop")
    p(f"""
    buffer_load_dwordx4 {vr(KF,4)}, v{VL16}, s[36:39], s14 offen sc1
    buffer_load_dwordx4 {vr(KF+4,4)}, v{VL16}, s[36:39], s14 offen offset:1024 sc1
    buffer_load_dwordx4 {vr(VF,4)}, v{VL16}, s[36:39], s14 offen offset:2048 sc1
    buffer_load_dwordx4 {vr(VF+4,4)}, v{VL16}, s[36:39], s14 offen offset:3072 sc1
    s_waitcnt vmcnt(2)
    {MFMA} {vr(S0,16)}, {vr(KF,4)}, {vr(Q,4)}, 0
    {MFMA} {vr(S0,16)}, {vr(KF+4,4)}, {vr(Q+4,4)}, {vr(S0,16)}
    v_max3_f32 v{TM}, v{S0}, v{S0+1}, v{S0+2}
    """)
    for i in range(3, 15, 2):
        p(f"v_max3_f32 v{TM}, v{S0+i}, v{S0+i+1}, v{TM}")
    p(f"""
    v_max_f32 v{TM}, v{S0+15}, v{TM}
    v_mov_b32 v{T3}, v{TM}
    v_permlane32_swap_b32 v{TM}, v{T3}
    v_max3_f32 v{MN}, v{TM}, v{T3}, v{M}
    v_sub_f32 v{AL}, v{M}, v{MN}
    v_exp_f32 v{AL}, v{AL}
    v_mov_b32 v{M}, v{MN}
    """)
    for i in range(16):
        p(f"v_sub_f32 v{S0+i}, v{S0+i}, v{MN}")
    for i in range(16):
        p(f"v_exp_f32 v{S0+i}, v{S0+i}")
    for i in range(16):
        p(f"v_mul_f32 v{O+i}, v{O+i}, v{AL}")
    pack16(p, PP, S0)
    p(f"""
    s_waitcnt vmcnt(0)
    {MFMA} {vr(O,16)}, {vr(VF,4)}, {vr(PP,4)}, {vr(O,16)}
    {MFMA} {vr(O,16)}, {vr(VF+4,4)}, {vr(PP+4,4)}, {vr(O,16)}
    s_add_u32 s14, s14, 4096
    s_cmp_lt_u32 s14, 262144
    s_cbranch_scc1 L_fbloop
    s_branch L_afin
    """)


def gen_s(p, S_W):
    VL16, VQ, VF_, VS_ = 1, 2, 3, 7
    p(f"""
    s_sub_u32 s4, s{S_W}, 8
    s_and_b32 s9, s4, 1
    s_lshr_b32 s10, s4, 1
    v_bfe_u32 v13, v0, 2, 3
    s_lshl_b32 s12, s4, 3
    v_add_u32 v13, s12, v13
    v_lshrrev_b32 v14, 5, v0
    v_and_b32 v15, 3, v0
    v_lshlrev_b32 v15, 4, v15
    v_mul_u32_u24 v{VF_}, 3584, v13
    v_add_u32 v{VF_}, v{VF_}, v15
    v_lshl_add_u32 v{VF_}, v14, 6, v{VF_}
    v_mul_u32_u24 v{VQ}, 2688, v13
    v_mul_u32_u24 v14, 48, v14
    v_add3_u32 v{VQ}, v{VQ}, v14, v15
    v_lshrrev_b32 v{VS_}, 2, v0
    s_lshl_b32 s12, s10, 4
    v_add_u32 v{VS_}, s12, v{VS_}
    v_mul_u32_u24 v{VS_}, 3584, v{VS_}
    v_add_u32 v{VS_}, v{VS_}, v15
    v_lshlrev_b32 v{VL16}, 4, v0
    s_lshl_b32 s56, s4, 10
    s_mul_i32 s64, s7, 112
    s_add_u32 s65, s64, 896
    s_cmp_eq_u32 s8, 1
    s_cselect_b32 s12, 0, 1792
    s_cselect_b32 s13, 0, 256
    s_add_u32 s64, s64, s12
    s_mul_i32 s66, s7, 384
    s_add_u32 s66, s66, s13
    s_lshl_b32 s67, s7, 6
    s_add_u32 s67, s67, {48*64}
    """)
    p.label("L_ld_p")
    if ENV("CODEPF", "1") == "1":
        p(f"""
        s_sub_u32 s12, s4, 1
        s_cmp_gt_u32 s12, 1
        s_cbranch_scc1 L_nocpf
        s_lshl_b32 s12, s12, 5
        s_add_u32 s12, s12, s6
        s_lshl_b32 s12, s12, 10
        s_cmp_ge_u32 s12, L_code_end-{KN}-1024
        s_cbranch_scc1 L_nocpf
        s_getpc_b64 s[14:15]
        L_pcref:
        s_sub_u32 s14, s14, L_pcref-{KN}
        s_subb_u32 s15, s15, 0
        s_add_u32 s14, s14, s12
        s_addc_u32 s15, s15, 0
        global_load_dwordx4 v[48:51], v{VL16}, s[14:15]
        L_nocpf:
        """)
    p("s_waitcnt lgkmcnt(0)")
    srd(p, 36, P_WQKV, 448 * 2688)
    srd(p, 40, P_WG, 448 * 3584)
    PF = 24
    VFQ, TGV, FL = 6, 4, 8
    PB = int(ENV("PB", 14))
    EVD = int(ENV("EVD", 2))

    def qkv_poll(emit):
        return emit(f"buffer_load_dwordx2 {vr(FL,2)}, v{VFQ}, s[44:47], s62 offen sc1")

    def late_setup(sfx):
        if ENV("TLB", "1") != "0":
            TA = 44
            p(f"""
            s_cmp_lg_u32 s4, 0
            s_cbranch_scc1 L_notlb{sfx}
            v_min_u32 v{TA}, {WS_USED // (2*MB) - 1}, v0
            v_lshlrev_b32 v{TA}, 21, v{TA}
            v_mov_b32 v{TA+1}, s{P_WS+1}
            v_add_co_u32 v{TA}, vcc, s{P_WS}, v{TA}
            v_addc_co_u32 v{TA+1}, vcc, 0, v{TA+1}, vcc
            """)
            bufs = [(P_WG, 448 * 3584), (P_WU, 448 * 3584), (P_WD, 1792 * 896), (P_WO, 448 * 896), (P_OUT, 2048 * 896), (P_DBG, 256)]
            for i, (b, n) in enumerate(bufs):
                p(f"""
                v_writelane_b32 v{TA}, s{b}, {16+2*i}
                v_writelane_b32 v{TA+1}, s{b+1}, {16+2*i}
                s_add_u32 s12, s{b}, {n-4}
                s_addc_u32 s13, s{b+1}, 0
                v_writelane_b32 v{TA}, s12, {17+2*i}
                v_writelane_b32 v{TA+1}, s13, {17+2*i}
                """)
            p(f"global_load_dword v{TA+2}, {vr(TA,2)}, off sc1")
            p.label("L_notlb" + sfx)
        srd(p, 72, P_WU, 448 * 3584)
        srd(p, 48, P_WD, 1792 * 896)
        srd(p, 52, P_WO, 448 * 896)
        srd(p, 44, P_WS, WS_USED)
        srd(p, 96, P_DBG, 256)
        p(f"""
        s_cmp_eq_u32 s9, 0
        s_cselect_b32 s76, s{P_WG}, s{P_WU}
        s_cselect_b32 s77, s{P_WG+1}, s{P_WU+1}
        s_mov_b32 s78, {448*3584}
        s_mov_b32 s79, 0x20000
        s_lshl_b32 s57, s10, 11
        s_lshl_b32 s12, s9, 10
        s_add_u32 s57, s57, s12
        s_lshl_b32 s68, s7, 12
        s_lshl_b32 s12, s62, 7
        s_add_u32 s68, s68, s12
        s_lshl_b32 s12, s8, 11
        s_add_u32 s68, s68, s12
        s_add_u32 s68, s68, {QKVF}
        s_lshl_b32 s69, s62, 12
        s_lshl_b32 s12, s7, 9
        s_add_u32 s69, s69, s12
        s_xor_b32 s12, s8, 1
        s_lshl_b32 s12, s12, 7
        s_add_u32 s69, s69, s12
        s_add_u32 s69, s69, {HFL}
        s_mov_b32 s58, s69
        s_lshl_b32 s62, s5, 12
        s_add_u32 s62, s62, {QKVF}
        s_and_b32 s63, s6, 15
        s_add_u32 s63, s63, 16
        v_mov_b32 v{VFQ}, s63
        v_cmp_gt_u32 vcc, 16, v0
        v_cndmask_b32 v{VFQ}, v{VFQ}, v0, vcc
        v_lshlrev_b32 v{VFQ}, 7, v{VFQ}
        """)

    def stream(kinds):
        spec = {"V": (36, VQ, 64, 0), "Q": (36, VQ, 64, 0), "K": (36, VQ, 65, 0), "G": (40, VF_, 66, 0), "U": (72, VF_, 66, 0),
                "g": (40, VF_, 66, 128), "u": (72, VF_, 66, 128), "S": (76, VS_, 67, 0)}
        stages = [[(kinds[q >> 1], 64 * c + 32 * (q & 1)) for q in range(4)] for c in range(7)]
        stages += [[(kinds[ps], 128 * sl + 32 * q) for q in range(2 if sl == 3 else 4)] for ps in range(2, 5) for sl in range(4)]
        vm = VM(p)
        last = {}
        issued = 0
        nq = 0

        def issue1():
            nonlocal issued, nq
            kind, row = stages[issued][nq]
            s_, v, col, add = spec[kind]
            stride = 2688 if s_ == 36 else 3584
            p(f"s_add_u32 m0, {'s57' if kind == 'S' else 's56'}, {phys(issued)*SLOT + nq*4096}")
            p(f"s_add_u32 s13, s{col}, {row*stride + add}")
            if ENV("NOFILL"):
                last[issued] = None
            else:
                last[issued] = vm.op(f"buffer_load_dwordx4 v{v}, s[{s_}:{s_+3}], s13 offen lds")
            nq += 1
            if nq == len(stages[issued]):
                nq = 0
                issued += 1

        def issue():
            c = issued
            while issued == c:
                issue1()
        if TL:
            p("v_mov_b32 v60, 0")
        tl(p, 0)
        def wpf():
            p(f"s_lshl_b32 s13, s2, 2\ns_add_u32 s13, s13, s4\ns_lshl_b32 s13, s13, 10\ns_add_u32 s14, s13, {1 << 20}")
            mats = (36, 40, 72) if ENV("CPF", "0") == "0" else (72,) if ENV("CPF") == "2" else ()
            for r in mats + ((48,) if ENV("WDPF", "0") == "1" else ()):
                vm.op(f"buffer_load_dwordx4 {vr(PF,4)}, v{VL16}, s[{r}:{r+3}], s13 offen")
                vm.op(f"buffer_load_dwordx4 {vr(PF,4)}, v{VL16}, s[{r}:{r+3}], s14 offen")
        issue(); issue()
        issue1(); issue1(); issue1()
        late_setup(kinds)
        if ENV("WPF", "1") != "0":
            wpf()
        tl(p, 1)
        dbg = ENV("SDBG")
        p(f"s_barrier\ns_barrier\ns_setprio {ENV('SPRIO', 0)}")
        if dbg: stamp(p, 1)
        tl(p, 2)
        issue(); issue()
        vm.need(last[1])
        tl(p, 3)
        p("s_barrier")
        tl(p, 4)
        if dbg: stamp(p, 2)
        issue(); issue()
        if dbg: stamp(p, 3)
        for i in range(1, PB + EVD):
            assert issued > i + 1
            vm.need(last[i + 1])
            tl(p, 3 + 2 * i)
            p("s_barrier")
            tl(p, 4 + 2 * i)
            bg = (8 * i - 1) if i <= 7 else 56 + 28 * ((i - 8) // 4) + (7, 15, 23, 27)[(i - 8) % 4]
            pubs = {79: 68, 107: 69} if kinds[0] == "Q" else {int(ENV("KB", 83)): 68}
            if bg in pubs:
                p(f"s_cmp_lg_u32 s4, 0\ns_cbranch_scc1 L_np{kinds}{i}\ns_mov_b64 exec, 1\n"
                  f"buffer_store_dwordx2 {vr(TGV,2)}, off, s[44:47], s{pubs[bg]} sc1\ns_mov_b64 exec, -1\nL_np{kinds}{i}:")
            budget = int(ENV("BUD", 5)) if (i < 7 or (i - 7) % 4 != 3) else 2
            while budget > 0 and issued < min(NST, max(10, i + 10)):
                budget -= 1
                issue1()
            if i == 2:
                tagop = vm.op(f"buffer_load_dwordx2 {vr(TGV,2)}, off, s[96:99], 0 sc1")
            if i == 7:
                vm.need(tagop)
                p(f"""
                s_mov_b32 s12, {SPIN_MAX}
                L_tq{kinds}:
                v_cmp_ne_u32 vcc, 0, v{TGV}
                s_sub_u32 s12, s12, 1
                s_cbranch_scc1 L_tr{kinds}
                s_cmp_lg_u64 vcc, 0
                s_cbranch_scc1 L_tr{kinds}
                buffer_load_dwordx2 {vr(TGV,2)}, off, s[96:99], 0 sc1
                s_waitcnt vmcnt(0)
                s_branch L_tq{kinds}
                L_tr{kinds}:
                """)
            if i == 10:
                p(f"""
                s_cmp_lg_u32 s4, 0
                s_cbranch_scc1 L_noinit{kinds}
                v_lshlrev_b32 v22, 2, v0
                v_add_u32 v22, {CNT}, v22
                v_mov_b32 v23, 0
                ds_write_b32 v22, v23
                v_mov_b32 v22, {CNT_TAG}
                s_waitcnt lgkmcnt(0)
                ds_write_b64 v22, {vr(TGV,2)}
                s_waitcnt lgkmcnt(0)
                L_noinit{kinds}:
                """)
            if i == PB:
                pollid = qkv_poll(vm.op)
            if i == int(ENV('PFI', 99)):
                PFMODE = ENV("PFMODE", "chip")
                if PFMODE == "chip":
                    p(f"s_lshl_b32 s13, s2, 2\ns_add_u32 s13, s13, s4\ns_lshl_b32 s14, s13, 11\ns_lshl_b32 s13, s13, 9")
                    vm.op(f"buffer_load_dwordx4 {vr(PF,4)}, v{VL16}, s[48:51], s14 offen")
                    vm.op(f"buffer_load_dwordx4 {vr(PF+4,4)}, v{VL16}, s[48:51], s14 offen offset:1024")
                    vm.op(f"buffer_load_dwordx4 {vr(PF+8,4)}, v{VL16}, s[52:55], s13 offen")
            if ENV("PFMODE", "chip") == "xcd" and 5 <= i < 9:
                k = i - 5
                if k == 0:
                    p(f"s_lshl_b32 s13, s6, 2\ns_add_u32 s13, s13, s4\ns_mul_i32 s57, s13, {13*1024}\ns_lshl_b32 s58, s13, 12")
                    for q in range(4):
                        vm.op(f"buffer_load_dwordx4 {vr(PF+4*q,4)}, v{VL16}, s[52:55], s58 offen offset:{q*1024}")
                    vm.op(f"buffer_load_dwordx4 {vr(PF+16,4)}, v{VL16}, s[48:51], s57 offen")
                    p("s_add_u32 s57, s57, 1024")
                else:
                    for q in range(4):
                        vm.op(f"buffer_load_dwordx4 {vr(PF+4*q,4)}, v{VL16}, s[48:51], s57 offen offset:{q*1024}")
                    p("s_add_u32 s57, s57, 4096")
        assert issued == NST
    p("s_cmp_eq_u32 s8, 1\ns_cbranch_scc1 L_ld_b")
    stream("VKGUS")
    p("s_branch L_ld_done")
    p.label("L_ld_b")
    stream("QGUgu")
    p.label("L_ld_done")
    if not ENV("SDBG"):
        stamp(p, 1)
    tl_dump(p)
    if ENV("STOPB"):
        endpgm(p)
    p(f"""
    s_add_u32 s65, s8, s4
    s_lshr_b32 s7, s6, 4
    s_lshl_b32 s8, s5, 1
    s_add_u32 s7, s7, s8                ; head
    s_and_b32 s8, s6, 15                ; q block
    """)
    VKV = 2
    p(f"""
    s_lshl_b32 s12, s7, 18
    s_add_u32 s12, s12, {KV_OFF}
    s_lshl_b32 s13, s4, 12              ; s*4096
    v_add_u32 v{VKV}, s13, v{VL16}
    s_lshl_b32 s66, s7, 17
    s_lshl_b32 s3, s8, 13
    s_add_u32 s66, s66, s3
    s_lshl_b32 s3, s4, 11
    s_add_u32 s66, s66, s3
    s_add_u32 s66, s66, {QF_OFF}
    s_add_u32 s67, s3, {QL}
    s_mov_b32 s68, 0                    ; ready
    s_mov_b32 s69, 0
    s_mov_b32 s70, {PB+EVD}
    s_mov_b32 s71, {SPIN_MAX}
    s_mov_b32 s64, s13
    """)
    srd(p, 36, P_WS, 262144, "s12")
    srd(p, 40, P_WS, WS_USED)
    p.label("L_pl")
    p(f"""
    s_cmp_lg_u32 s68, 0
    s_cbranch_scc1 L_pl_ready
    L_pl_eval:
    s_waitcnt vmcnt(0)
    v_cmp_eq_u64 s[60:61], {vr(FL,2)}, {vr(TGV,2)}
    """)
    p(f"""
    s_sub_u32 s71, s71, 1
    s_cselect_b32 s68, 1, 0
    s_cmp_eq_u64 s[60:61], -1
    s_cselect_b32 s68, 1, s68
    s_cmp_lg_u32 s68, 0
    s_cbranch_scc1 L_pl_q
    """)
    qkv_poll(lambda t: p(t))
    p(f"""
    s_branch L_pl_bar
    L_pl_q:
    s_mov_b32 m0, s67
    s_nop 0
    buffer_load_dwordx4 v{VL16}, s[40:43], s66 offen sc1 lds
    buffer_load_dwordx4 v{VL16}, s[40:43], s66 offen offset:1024 sc1 lds
    L_pl_ready:
    s_add_u32 s3, s69, 15
    s_cmp_gt_u32 s3, s70
    s_cbranch_scc1 L_pl_bar
    s_cmp_ge_u32 s69, 4
    s_cbranch_scc1 L_pl_bar
    s_lshl_b32 s14, s69, 14
    s_mov_b32 m0, s64
    s_add_u32 s69, s69, 1
    buffer_load_dwordx4 v{VKV}, s[36:39], s14 offen sc1 lds
    buffer_load_dwordx4 v{VKV}, s[36:39], s14 offen offset:1024 sc1 lds
    buffer_load_dwordx4 v{VKV}, s[36:39], s14 offen offset:2048 sc1 lds
    buffer_load_dwordx4 v{VKV}, s[36:39], s14 offen offset:3072 sc1 lds
    s_add_u32 s64, s64, {SLOT}
    s_branch L_pl_ready
    L_pl_bar:
    s_cmp_ge_u32 s70, 19
    s_cbranch_scc1 L_pl_nobar
    s_barrier
    s_add_u32 s70, s70, 1
    s_branch L_pl
    L_pl_nobar:
    s_cmp_ge_u32 s69, 4
    s_cbranch_scc1 L_pl_done
    s_sleep 4
    s_branch L_pl
    L_pl_done:
    v_mov_b32 v{FL}, {CNT}
    v_mov_b32 v{FL+1}, 1
    s_mov_b64 exec, 1
    s_waitcnt vmcnt(8)
    ds_add_u32 v{FL}, v{FL+1} offset:96
    s_waitcnt vmcnt(0)
    ds_add_u32 v{FL}, v{FL+1} offset:4
    ds_add_u32 v{FL}, v{FL+1} offset:132
    s_mov_b64 exec, -1
    s_mul_i32 s14, s8, {12*1024}
    s_mul_i32 s3, s4, {3*1024}
    s_add_u32 s14, s14, s3
    s_add_u32 s14, s14, {2*KVS}
    buffer_load_dwordx4 {vr(FL+4,4)}, v{VL16}, s[36:39], s14 offen sc1
    buffer_load_dwordx4 {vr(FL+4,4)}, v{VL16}, s[36:39], s14 offen offset:1024 sc1
    buffer_load_dwordx4 {vr(FL+4,4)}, v{VL16}, s[36:39], s14 offen offset:2048 sc1
    s_lshl_b32 s3, s2, 2
    s_add_u32 s3, s3, s4
    s_lshl_b32 s3, s3, 9
    buffer_load_dwordx4 {vr(FL+4,4)}, v{VL16}, s[52:55], s3 offen
    {"s_lshl_b32 s3, s3, 2" + chr(10) + f"buffer_load_dwordx4 {vr(FL+4,4)}, v{VL16}, s[48:51], s3 offen" + chr(10) + f"buffer_load_dwordx4 {vr(FL+4,4)}, v{VL16}, s[48:51], s3 offen offset:1024" if ENV("WDL", "1") == "1" else ""}
    s_barrier                           ; barrier(19)
    s_cmp_lg_u32 s65, 0
    s_cbranch_scc1 L_np19
    s_mov_b64 exec, 1
    buffer_store_dwordx2 {vr(TGV,2)}, off, s[40:43], s58 sc1
    s_mov_b64 exec, -1
    L_np19:
    s_cmp_ge_u32 s6, {0 if ENV("NODOWN") else 28}
    s_cbranch_scc1 L_s_end
    s_setprio {ENV("DPRIO0", 0)}
    """)
    stamp(p, 2)
    ACC, WF, HB = 8, 72, 88
    VD, VT0, VT1, VX = 2, 3, 6, 7
    GR, XF = 144, 160
    NRING = 7
    p(f"""
    s_and_b32 s9, s6, 3
    s_lshl_b32 s10, s5, 2
    s_add_u32 s9, s9, s10
    s_lshr_b32 s10, s6, 2
    s_lshr_b32 s11, s4, 1
    s_lshl_b32 s57, s9, 1
    s_add_u32 s57, s57, s11
    s_xor_b32 s58, s57, 1
    s_mul_i32 s3, s4, {12*2048}
    s_add_u32 s3, s3, {H_OFF}
    s_mul_i32 s60, s57, 114688
    s_add_u32 s60, s60, s3
    s_mul_i32 s61, s58, 114688
    s_add_u32 s61, s61, s3
    v_bfe_u32 v{VX}, v0, 2, 3
    v_mul_u32_u24 v{VX}, 896, v{VX}
    v_lshrrev_b32 v{VT0}, 5, v0
    v_lshl_add_u32 v{VX}, v{VT0}, 6, v{VX}
    v_and_b32 v{VT0}, 3, v0
    v_lshl_add_u32 v{VX}, v{VT0}, 4, v{VX}
    s_lshl_b32 s14, s10, 7
    v_add_u32 v{VD}, s14, v{VX}
    v_lshrrev_b32 v{VX}, 5, v0
    v_lshlrev_b32 v{VX}, 8, v{VX}
    v_bfe_u32 v{VT0}, v0, 2, 2
    v_lshl_add_u32 v{VX}, v{VT0}, 6, v{VX}
    v_bfe_u32 v{VT0}, v0, 4, 1
    v_lshl_add_u32 v{VX}, v{VT0}, 5, v{VX}
    v_and_b32 v{VT0}, 3, v0
    v_lshl_add_u32 v{VX}, v{VT0}, 3, v{VX}
    s_lshl_b32 s15, s4, 14
    s_add_u32 s15, s15, {PRIV}
    s_and_b32 s3, s4, 1
    s_lshl_b32 s3, s3, 9
    s_add_u32 s3, s3, s15
    v_add_u32 v{VT0}, s3, v{VX}
    v_xor_b32 v{VT1}, 512, v{VT0}
    s_mul_i32 s62, s4, {12*32*896}
    s_mul_i32 s63, s4, -10
    s_add_u32 s63, s63, 48
    s_lshl_b32 s64, s63, 11
    s_add_u32 s65, s64, s61
    s_add_u32 s64, s64, s60
    s_mul_i32 s63, s63, {32*896}
    s_add_u32 s63, s63, s62
    """)
    vm = VM(p)

    order = [0, 1, 6, 7, 4, 5, 10, 11, 2, 3, 8, 9, 12, 13]
    seg_end = [8, 16, 28]
    seg_mask = [0x11, 0x22, 0xCC]

    def wload(ks):
        sl = ks % NRING
        if ks >= 28:
            for o in range(2):
                p(f"s_add_u32 m0, s15, {sl*2048 + o*1024}")
                p(f"s_add_u32 s14, s67, {(16*sl + 8*o)*896}")
                vm.op(f"buffer_load_dwordx4 v{VD}, s[52:55], s14 offen lds")
            return
        t = order[ks >> 1]
        base, t = ("s62", t) if t < 12 else ("s63", t - 12)
        for o in range(2):
            p(f"s_add_u32 m0, s15, {sl*2048 + o*1024}")
            p(f"s_add_u32 s14, {base}, {(32*t + 16*(ks&1) + 8*o)*896}")
            if ENV("XNOW"):
                wid[ks] = None
                continue
            wid[ks] = vm.op(f"buffer_load_dwordx4 v{VD}, s[48:51], s14 offen lds")

    def hload(ks):
        sl = ks % NRING
        t = order[ks >> 1]
        (b0, b1), t = (("s60", "s61"), t) if t < 12 else (("s64", "s65"), t - 12)
        off = t * 2048 + (ks & 1) * 1024
        for r, b_ in enumerate((b0, b1)):
            if off >= 4096:
                p(f"s_add_u32 s14, {b_}, {off & ~4095}")
            if ENV("XNOH"):
                hid[ks] = None
                continue
            hid[ks] = vm.op(f"buffer_load_dwordx4 {vr(HB+8*sl+4*r,4)}, v{VL16}, s[40:43], {'s14' if off >= 4096 else b_} offen offset:{off & 4095} sc1")
    wid, hid = {}, {}
    VFA, FT = GR, GR + 2
    p(f"""
    v_and_b32 v{VFA}, 7, v0
    v_lshlrev_b32 v{VFA}, 7, v{VFA}
    s_lshr_b32 s66, s9, 1
    s_lshl_b32 s66, s66, 12
    s_lshl_b32 s3, s4, 10
    s_add_u32 s66, s66, s3
    s_add_u32 s66, s66, {HFL}
    s_mov_b32 s71, {SPIN_MAX}
    s_mul_i32 s67, s4, {112*896}
    v_and_b32 v{VX}, 31, v0
    s_lshl_b32 s14, s57, 5
    v_add_u32 v{VX}, s14, v{VX}
    v_mul_u32_u24 v{VX}, 896, v{VX}
    v_lshrrev_b32 v0, 5, v0
    v_lshl_add_u32 v{VX}, v0, 3, v{VX}
    s_and_b32 s14, s4, 1
    s_lshl_b32 s14, s14, 6
    s_lshl_b32 s3, s10, 7
    s_add_u32 s14, s14, s3
    v_add_u32 v0, s14, v{VX}
    """)
    VXO = 0
    srd(p, 44, P_X, 2048 * 896)
    for g4 in range(4):
        vm.op(f"buffer_load_dwordx2 {vr(XF+2*g4,2)}, v{VXO}, s[44:47], 0 offen offset:{16*g4}")

    def hpoll(k):
        label = f"L_hp{k}"
        p(f"s_mov_b32 s68, {seg_mask[k]}\ns_mov_b32 s69, 0\ns_mov_b32 s71, {SPIN_MAX}")
        p.label(label)
        p(f"""
        buffer_load_dwordx2 {vr(FT,2)}, v{VFA}, s[40:43], s66 offen sc1
        s_sub_u32 s71, s71, 1
        s_waitcnt vmcnt(0)
        v_cmp_eq_u64 vcc, {vr(FT,2)}, {vr(TGV,2)}
        s_cmp_eq_u32 s71, 0
        s_cbranch_scc1 {label}_x
        s_and_b64 vcc, vcc, s[68:69]
        s_cmp_eq_u64 vcc, s[68:69]
        s_cbranch_scc1 {label}_x
        s_sleep 8
        s_branch {label}
        {label}_x:
        """)
        vm.done = vm.n

    def trd(wb, base, a0=VT0, a1=VT1):
        for c, a in enumerate((a0, a1)):
            for b in range(2):
                p(f"ds_read_b64_tr_b16 {vr(wb+4*c+2*b,2)}, v{a} offset:{base + b*1024}")
    LOOK = int(ENV("LOOK", 3))
    seg, hn = 0, 0

    def hfill(done):
        nonlocal hn
        while hn < min(seg_end[seg], done + NRING):
            hload(hn)
            hn += 1
    for ks in range(2):
        wload(ks)
    hpoll(0)
    stamp(p, 3)
    for ks in range(NRING):
        hload(ks)
        if ks + 2 < NRING:
            wload(ks + 2)
    hn = NRING
    p(f"s_setprio {ENV('DPRIO', 0)}")
    trd(WF, 0)
    for ks in range(28):
        sl = ks % NRING
        wb = WF + 8 * (ks & 1)
        if ENV("DSW") and ks == int(ENV("DSW")):
            p(f"s_setprio {ENV('DSWP', 1)}")
        if ks + 1 < 28:
            vm.need(wid[ks + 1])
            trd(WF + 8 * ((ks + 1) & 1), ((ks + 1) % NRING) * 2048)
        vm.need(hid[ks])
        p(f"s_waitcnt lgkmcnt({4 if ks + 1 < 28 else 0})")
        for a in range(4):
            ac = vr(ACC + 16 * a, 16)
            if not ENV("XNOM"):
                p(f"{MFMA} {ac}, {vr(wb+4*(a&1),4)}, {vr(HB+8*sl+4*(a>>1),4)}, {'0' if ks == 0 else ac}")
            if ENV("DINT") and a == 0 and ks >= 1:
                hfill(ks)
            if ENV("DINT") and a == 1 and ks + NRING < 28:
                wload(ks + NRING)
        if seg < 2 and ks + 1 + LOOK == seg_end[seg]:
            seg += 1
            hpoll(seg)
            hfill(ks + 1)
        if not ENV("DINT"):
            hfill(ks + 1)
            wload(ks + NRING)
    stamp(p, 4)

    def send():
        p(f"v_add_u32 v{VX}, s15, v{VL16}")
        for a in range(1, 4):
            for r in range(4):
                p(f"ds_write_b128 v{VX}, {vr(ACC+16*a+4*r,4)} offset:{(a-1)*4096 + r*1024}")

    def ssync(k):
        p(f"v_mov_b32 v{WF+1}, {CNT_S0 + 4*k}\nv_mov_b32 v{WF+2}, 1")
        p(f"s_mov_b64 exec, 1\ns_waitcnt lgkmcnt(0)\nds_add_u32 v{WF+1}, v{WF+2}\ns_mov_b64 exec, -1")
        lds_spin(p, f"L_ss{k}", f"v{WF+1}", WF, "4", 71)

    def recv():
        for a in range(1, 4):
            p(f"s_xor_b32 s3, s4, {a}\ns_lshl_b32 s3, s3, 14\ns_add_u32 s3, s3, {PRIV + (a-1)*4096}\nv_add_u32 v{VX}, s3, v{VL16}")
            for r in range(4):
                p(f"ds_read_b128 {vr(ACC+16*a+4*r,4)}, v{VX} offset:{r*1024}")

    def addup():
        for a in range(1, 4):
            p(f"s_waitcnt lgkmcnt({4*(3-a)})")
            for r in range(16):
                p(f"v_add_f32 v{ACC+r}, v{ACC+r}, v{ACC+16*a+r}")
    d7 = ENV("SD7")
    if d7: stamp(p, 1)
    if ENV("DSW"):
        p(f"s_setprio {ENV('DSWE', 0)}")
    p(f"""
    v_mov_b32 v{WF+1}, {CNT}
    v_mov_b32 v{WF+2}, 1
    s_lshl_b32 s3, s4, 2
    v_mov_b32 v{WF+3}, s3
    v_add_u32 v{WF+3}, {CNT_S0 + 4}, v{WF+3}
    v_xor_b32 v{WF+4}, 8, v{WF+3}
    v_xor_b32 v{WF+5}, 4, v{WF+3}
    s_and_b32 s3, s4, 1
    s_lshl_b32 s3, s3, 13
    s_cmp_lt_u32 s4, 2
    s_cselect_b32 s14, 0, {SLOT}
    s_add_u32 s3, s3, s14
    s_add_u32 s3, s3, {4*SLOT}
    v_add_u32 v{VX}, s3, v{VL16}                    ; area(kq)
    v_xor_b32 v{VD}, {SLOT}, v{VX}                  ; area(kq^2)
    """)
    lds_spin(p, "L_g0", f"v{WF+1} offset:48", WF, "4", 71)
    lds_spin(p, "L_g1", f"v{WF+1} offset:176", WF, "4", 71)
    for i in range(8):
        p(f"ds_write_b128 v{VX}, {vr(ACC+32+4*i,4)} offset:{i*1024}")
    p(f"s_waitcnt lgkmcnt(0)\nds_write_b32 v{WF+3}, v{WF+2}")
    lds_spin(p, "L_h1", f"v{WF+4}", WF, "1", 71)
    if d7: stamp(p, 2)
    for i in (4, 5, 6, 7, 0, 1, 2, 3):
        p(f"ds_read_b128 {vr(ACC+32+4*i,4)}, v{VD} offset:{i*1024}")
    p("s_waitcnt lgkmcnt(4)")
    for r in range(16):
        p(f"v_add_f32 v{ACC+16+r}, v{ACC+16+r}, v{ACC+48+r}")
    p("s_waitcnt lgkmcnt(0)")
    for i in range(4):
        p(f"ds_write_b128 v{VD}, {vr(ACC+16+4*i,4)} offset:{i*1024}")
    for r in range(16):
        p(f"v_add_f32 v{ACC+r}, v{ACC+r}, v{ACC+32+r}")
    p(f"v_xor_b32 v{VX}, 8192, v{VX}\ns_waitcnt lgkmcnt(0)\nds_write_b32 v{WF+3}, v{WF+2} offset:16")
    if d7: stamp(p, 3)
    lds_spin(p, "L_h2", f"v{WF+5} offset:16", WF, "1", 71)
    p(f"v_xor_b32 v{VX}, {SLOT}, v{VX}")
    for i in range(4):
        p(f"ds_read_b128 {vr(ACC+16+4*i,4)}, v{VX} offset:{i*1024}")
    for i in range(4):
        p(f"s_waitcnt lgkmcnt({3-i})")
        for r in range(4 * i, 4 * i + 4):
            p(f"v_add_f32 v{ACC+r}, v{ACC+r}, v{ACC+16+r}")
    if d7: stamp(p, 4)
    T = ACC + 16
    p(f"s_mov_b32 s3, {f32(-LOG2E)}")
    for i in range(16):
        p(f"v_mul_f32 v{T+i}, s3, v{ACC+i}")
    for i in range(16):
        p(f"v_exp_f32 v{T+i}, v{T+i}")
    for i in range(16):
        p(f"v_add_f32 v{T+i}, 1.0, v{T+i}")
    for i in range(16):
        p(f"v_rcp_f32 v{T+i}, v{T+i}")
    GREG = [GR + i for i in range(16)]
    for i in range(16):
        p(f"v_mul_f32 v{GREG[i]}, v{ACC+i}, v{T+i}")
    if ENV("DUMP_G"):
        for i in range(8):
            p(f"v_cvt_pk_bf16_f32 v{T+i}, v{GREG[2*i]}, v{GREG[2*i+1]}")
        p(f"""
        s_mul_i32 s14, s57, {14*2048}
        s_lshl_b32 s3, s10, 1
        s_and_b32 s63, s4, 1
        s_add_u32 s3, s3, s63
        s_lshl_b32 s3, s3, 11
        s_add_u32 s14, s14, s3
        s_add_u32 s14, s14, {G_OFF}
        buffer_store_dwordx4 {vr(T,4)}, v{VL16}, s[40:43], s14 offen
        buffer_store_dwordx4 {vr(T+4,4)}, v{VL16}, s[40:43], s14 offen offset:1024
        """)
    p(f"""
    v_bfe_u32 v{WF+4}, v{VL16}, 4, 2
    v_lshlrev_b32 v{VX}, 7, v{WF+4}
    v_bfe_u32 v{WF}, v{VL16}, 6, 1
    v_lshl_add_u32 v{VX}, v{WF}, 11, v{VX}
    s_lshl_b32 s14, s9, 12
    s_lshl_b32 s3, s4, 9
    s_add_u32 s14, s14, s3
    s_add_u32 s14, s14, {OFL}
    s_mov_b32 s71, {SPIN_MAX}
    s_lshl_b32 s3, s4, 13
    s_add_u32 s3, s3, {O_OFF}
    s_lshl_b32 s60, s57, 15
    s_add_u32 s60, s60, s3
    s_lshl_b32 s61, s58, 15
    s_add_u32 s61, s61, s3
    s_add_u32 s62, s60, 4096
    s_add_u32 s63, s61, 4096
    v_lshlrev_b32 v{WF+4}, 3, v{WF+4}
    v_add_u32 v{WF+4}, {CNT_COMB}, v{WF+4}
    """)
    stamp(p, 5)
    p(f"s_setprio {ENV('DPRIO3', 0)}")
    p.label("L_op")
    p(f"""
    buffer_load_dwordx2 {vr(WF,2)}, v{VX}, s[40:43], s14 offen sc1
    s_sub_u32 s71, s71, 1
    s_waitcnt vmcnt(0)
    v_cmp_eq_u64 vcc, {vr(WF,2)}, {vr(TGV,2)}
    s_cmp_eq_u32 s71, 0
    s_cbranch_scc1 L_op_x
    s_cmp_eq_u64 vcc, -1
    s_cbranch_scc1 L_op_x
    ds_read_b32 v{WF+2}, v{WF+4}
    s_waitcnt lgkmcnt(0)
    v_cmp_eq_u32 vcc, 2, v{WF+2}
    s_cmp_eq_u64 vcc, -1
    s_cbranch_scc1 L_op
    s_sleep {ENV("OSLEEP", 2)}
    s_branch L_op
    L_op_x:
    """)
    stamp(p, 6)
    vm = VM(p)
    OB = HB
    oid = {}

    def oload(kk, r):
        sreg = (("s60", "s61"), ("s62", "s63"))[kk >> 2][r]
        slot = (2 * kk + r) % 14
        oid[(kk, r)] = vm.op(f"buffer_load_dwordx4 {vr(OB+4*slot,4)}, v{VL16}, s[40:43], {sreg} offen offset:{(kk&3)*1024} sc1")
    for kk in range(7):
        oload(kk, 0); oload(kk, 1)

    def wrd(kk):
        hh, s_ = kk >> 1, kk & 1
        row = 28 * hh - 4 * (hh & 1) + 16 * s_
        trd(WF + 8 * (kk & 1), (row >> 3) * 1024)
    wrd(0)
    for kk in range(8):
        if kk + 1 < 8:
            wrd(kk + 1)
        wb = WF + 8 * (kk & 1)
        p(f"s_waitcnt lgkmcnt({4 if kk + 1 < 8 else 0})")
        for a in range(4):
            vm.need(oid[(kk, a >> 1)])
            ac = vr(ACC + 16 * a, 16)
            p(f"{MFMA} {ac}, {vr(wb+4*(a&1),4)}, {vr(OB+4*((2*kk+(a>>1))%14),4)}, {'0' if kk == 0 else ac}")
        if kk == 0:
            oload(7, 0); oload(7, 1)
    if ENV("SD8"): stamp(p, 1)
    send()
    srd(p, 44, P_OUT, 2048 * 896)
    XE = HB
    for i in range(8):
        p(f"v_lshlrev_b32 v{XE+2*i}, 16, v{XF+i}")
        p(f"v_and_b32 v{XE+2*i+1}, 0xffff0000, v{XF+i}")
    ssync(0)
    if ENV("SD8"): stamp(p, 2)
    recv()
    addup()
    if ENV("SD8"): stamp(p, 3)
    for i in range(16):
        p(f"v_fma_f32 v{ACC+i}, v{ACC+i}, v{GREG[i]}, v{XE+i}")
    pack16(p, WF, ACC)
    for g4 in range(4):
        p(f"buffer_store_dwordx2 {vr(WF+2*g4,2)}, v{VXO}, s[44:47], 0 offen offset:{16*g4}{ENV('OUTP', '')}")
    p.label("L_s_end")
    endpgm(p)


def main():
    ref = open("cdna_kernels/" + NAME + ".s.ref").read().split("\n")
    head = [l for l in ref if l.startswith(";") and "@launch" not in l and "Override launch" not in l and "grid=ceil" not in l]
    p = Prog()
    gen(p)
    body = p.finalize()
    out = head[:]
    out += """;
; One fused kernel, one 12-wave workgroup per CU (generated by my own script, gen/gen4.py).
;  waves 0-7 : layernorm of 128 rows, Q/K/V/gate/up projections (MFMA, W streamed through LDS, x held in registers),
;              then attention for one (head, 128 queries): S^T = K Q^T, P = exp2(S) without a shift, row sums from a
;              ones column of V.  The result is checked (row sum in [2^-40, 2^100], everything finite); a tile that
;              fails is recomputed by the online-softmax loop with the true running max (L_fallback).
;  waves 8-11: stream the weights, then the down projection + silu, the output projection and out = x + s*g.
;  Hand-offs between workgroups: write-through (sc1) stores, drained, then an 8-byte flag holding this launch's tag
;  (start time of workgroup 0, passed through d_debug); consumers poll with sc1 loads.  Every spin is bounded.""".split("\n")
    out.append("; @launch grid=(256,1,1) block=(768,1,1) lds=163840")
    out.append('.amdgcn_target "amdgcn-amd-amdhsa--gfx950"\n.text')
    out.append(body)
    out.append(f""".section .rodata,"a"
.p2align 6
.amdhsa_kernel {KN}
  .amdhsa_next_free_vgpr 168
  .amdhsa_next_free_sgpr 100
  .amdhsa_accum_offset 168
  .amdhsa_group_segment_fixed_size 0
  .amdhsa_kernarg_size 80
  .amdhsa_user_sgpr_count 2
  .amdhsa_user_sgpr_kernarg_segment_ptr 1
  .amdhsa_system_sgpr_workgroup_id_x 1
.end_amdhsa_kernel""")
    if ENV("PLAINLD"):
        import re
        out = [re.sub(r"(buffer_load_dwordx4 .*) sc1( lds)?$", r"\1\2", l, flags=re.M) if "s[44:47], s6" not in l else l for l in "\n".join(out).split("\n")]
    path = sys.argv[1] if len(sys.argv) > 1 else "cdna_kernels/" + NAME + ".s"
    open(path, "w").write("\n".join(out) + "\n")
    print("wrote", path, "nops inserted:", p.total_nops)


main()
```
